```python
import torch

def _softmax(x, axis=-1):
    return torch.softmax(x, dim=axis)

def _gelu(x):
    return torch.nn.functional.gelu(x, approximate='tanh')

def _silu(x):
    return torch.nn.functional.silu(x)

def _sigmoid(x):
    return torch.sigmoid(x)

def _layernorm(x, axis=-1, eps=1e-05):
    m = x.mean(dim=axis, keepdim=True)
    v = x.var(dim=axis, keepdim=True, unbiased=False)
    return (x - m) / torch.sqrt(v + eps)

def _scatter_add(tgt, idx, src, axis=0):
    return tgt.clone().index_add_(axis, idx, src)

def _segment_sum(src, seg, n):
    out = torch.zeros((n,) + src.shape[1:], dtype=src.dtype)
    return out.index_add_(0, seg, src)

def _pad(x, pw):
    flat = tuple((v for pair in reversed(pw) for v in pair))
    return torch.nn.functional.pad(x, flat)
kernel_name = 'adaLN_cond__mha_block__glu_gated_swiglu__prompt'

def setup_inputs():

    _w = lambda a: (lambda t: t.to(torch.bfloat16) if t.is_floating_point() else t)(torch.as_tensor(a))

    def _A_setup():
        B, S, D, H = (1, 2048, 576, 32)
        return {'x': _w((lambda *s: torch.randn(*s, dtype=torch.bfloat16) * 0.05)(B, S, D)), 'wqkv': _w((lambda *s: torch.randn(*s, dtype=torch.bfloat16) * 0.05)(D, 3 * D)), 'wo': _w((lambda *s: torch.randn(*s, dtype=torch.bfloat16) * 0.05)(D, D))}
    _A_in = _A_setup()

    def _B_setup():
        B, S, D, F = (1, 2048, 576, 4608)
        return {'x': _w((lambda *s: torch.randn(*s, dtype=torch.bfloat16) * 0.05)(B, S, D)), 'w1': _w((lambda *s: torch.randn(*s, dtype=torch.bfloat16) * 0.8)(D, F) * (2.0 / D) ** 0.5), 'w3': _w((lambda *s: torch.randn(*s, dtype=torch.bfloat16) * 0.8)(D, F) * (2.0 / D) ** 0.5), 'w2': _w((lambda *s: torch.randn(*s, dtype=torch.bfloat16) * 0.8)(F, D) * (2.0 / F) ** 0.5)}
    _B_in = _B_setup()
    return {'A_x': _A_in['x'], 'A_wqkv': _A_in['wqkv'], 'A_wo': _A_in['wo'], 'B_x': _B_in['x'], 'B_w1': _B_in['w1'], 'B_w3': _B_in['w3'], 'B_w2': _B_in['w2'], 'c': _w((lambda *s: torch.randn(*s, dtype=torch.bfloat16) * 0.2)(1, 576) * 8.0), 'w_mod': _w((lambda *s: torch.randn(*s, dtype=torch.bfloat16) * 0.2)(576, 6 * 576) * 576 ** (-0.5) * 8.0)}

def reference(A_x, A_wqkv, A_wo, B_x, B_w1, B_w3, B_w2, c, w_mod):

    def _A_ref(x, wqkv, wo):
        B, S, D = x.shape
        H = 32
        Dh = D // H
        qkv = (lambda x, *d: x.permute(*d))((x @ wqkv).reshape(B, S, 3, H, Dh), 2, 0, 3, 1, 4)
        q, k, v = (qkv[0], qkv[1], qkv[2])
        scores = torch.einsum('bhqd,bhkd->bhqk', q, k) * Dh ** (-0.5)
        p = _softmax(scores, axis=-1)
        o = torch.einsum('bhqk,bhkd->bhqd', p, v)
        return (lambda x, *d: x.permute(*d))(o, 0, 2, 1, 3).reshape(B, S, D) @ wo

    def _B_ref(x, w1, w3, w2):
        gate = torch.einsum('bsd,df->bsf', x, w1)
        up = torch.einsum('bsd,df->bsf', x, w3)
        h = _silu(gate) * up
        out = torch.einsum('bsf,fd->bsd', h, w2)
        return out
    x = A_x
    mod = (_silu(c) @ w_mod).reshape(c.shape[0], 6, 1, -1)
    sa, ca, ga, sb, cb, gb = (mod[:, 0].clone(), mod[:, 1].clone(), mod[:, 2].clone(), mod[:, 3].clone(), mod[:, 4].clone(), mod[:, 5].clone())
    h = _layernorm(x, axis=-1) * (1 + ca) + sa
    x = x + ga * _A_ref(h, A_wqkv, A_wo)
    h = _layernorm(x, axis=-1) * (1 + cb) + sb
    x = x + gb * _B_ref(h, B_w1, B_w3, B_w2)
    return x
```

```python
import re

def v(i, n=1): return "v%d" % i if n == 1 else "v[%d:%d]" % (i, i+n-1)
def a(i, n=1): return "a%d" % i if n == 1 else "a[%d:%d]" % (i, i+n-1)
def s(i, n=1): return "s%d" % i if n == 1 else "s[%d:%d]" % (i, i+n-1)

TRANS = ("v_exp_f32", "v_log_f32", "v_rcp_f32", "v_rsq_f32", "v_sqrt_f32", "v_sin_f32", "v_cos_f32", "v_rcp_iflag_f32")
_reg_re = re.compile(r"^(-|\|)?(abs\()?([vas])(?:(\d+)|\[(\d+):(\d+)\])\)?\|?$")

def regs_of(op):
    op = op.strip()
    if op in ("vcc",): return {("s", "vcc_lo"), ("s", "vcc_hi")}
    if op in ("vcc_lo", "vcc_hi", "m0", "exec_lo", "exec_hi"): return {("s", op)}
    if op == "exec": return {("s", "exec_lo"), ("s", "exec_hi")}
    m = _reg_re.match(op)
    if not m: return set()
    k = m.group(3)
    if m.group(4) is not None: return {(k, int(m.group(4)))}
    return {(k, i) for i in range(int(m.group(5)), int(m.group(6))+1)}

class Ins:
    __slots__ = ("text", "mn", "ops", "mods", "kind", "defs", "uses", "srcA", "srcB", "srcC", "passes", "trans", "label", "target", "ws", "storedata")
    def __init__(self, text):
        self.text = text
        t = text.split(";")[0].strip()
        self.label = None; self.target = None; self.kind = "none"; self.defs = set(); self.uses = set()
        self.srcA = self.srcB = self.srcC = set(); self.passes = 0; self.trans = False; self.ws = 0; self.mn = ""; self.ops = []; self.mods = ""
        self.storedata = set()
        if not t or t.startswith("."): return
        if t.endswith(":"):
            self.label = t[:-1]; self.kind = "label"; return
        parts = t.split(None, 1)
        mn = parts[0]; rest = parts[1] if len(parts) > 1 else ""
        for suf in ("_e32", "_e64"):
            if mn.endswith(suf): mn = mn[:-len(suf)]
        self.mn = mn
        ops = []; depth = 0; cur = ""
        for ch in rest:
            if ch == "[": depth += 1
            if ch == "]": depth -= 1
            if ch == "," and depth == 0: ops.append(cur.strip()); cur = ""
            else: cur += ch
        if cur.strip(): ops.append(cur.strip())
        mods = ""
        if ops:
            last = ops[-1].split(None, 1)
            if len(last) > 1: ops[-1] = last[0]; mods = last[1]
        self.ops = ops; self.mods = mods; self.ws = 1
        R = regs_of
        allu = lambda lst: set().union(*[R(o) for o in lst]) if lst else set()
        if mn.startswith("v_mfma"):
            self.kind = "mfma"; self.defs = R(ops[0]); self.srcA = R(ops[1]); self.srcB = R(ops[2]); self.srcC = R(ops[3])
            self.uses = self.srcA | self.srcB | self.srcC
            self.passes = 8 if "32x32x16" in mn else 4 if "16x16x32" in mn else None
            assert self.passes, text
        elif mn.startswith("v_"):
            self.kind = "valu"; base = mn.replace("_dpp", "").replace("_sdwa", "")
            self.trans = base in TRANS
            if base.startswith("v_cmp"):
                self.defs = R(ops[0]); self.uses = allu(ops[1:])
                if base.startswith("v_cmpx"): raise ValueError("no cmpx please")
            elif base in ("v_add_co_u32", "v_sub_co_u32", "v_subrev_co_u32"):
                self.defs = R(ops[0]) | R(ops[1]); self.uses = allu(ops[2:])
            elif base in ("v_addc_co_u32", "v_subb_co_u32"):
                self.defs = R(ops[0]) | R(ops[1]); self.uses = allu(ops[2:])
            elif base.startswith("v_permlane") or base == "v_swap_b32":
                self.defs = allu(ops[:2]); self.uses = allu(ops[:2])
            else:
                self.defs = R(ops[0]); self.uses = allu(ops[1:])
                if base.startswith(("v_fmac", "v_dot2c", "v_pk_fmac", "v_writelane")) or "dpp" in mn or "row_" in mods or "quad_perm" in mods or "PRESERVE" in mods:
                    self.uses |= R(ops[0])
        elif mn.startswith(("buffer_", "global_")):
            self.kind = "vmem"
            if mn in ("buffer_wbl2", "buffer_inv"): pass
            elif mn.startswith("buffer_load"):
                if re.search(r"\blds\b", mods): self.uses = allu(ops) | {("s", "m0")}
                else: self.defs = R(ops[0]); self.uses = allu(ops[1:])
            elif mn.startswith("buffer_store"):
                self.uses = allu(ops)
                if "x3" in mn or "x4" in mn: self.storedata = R(ops[0])
            elif mn.startswith("buffer_atomic"):
                self.uses = allu(ops)
                if "sc0" in mods: self.defs = R(ops[0])
            elif mn.startswith("global_load_lds"): self.uses = allu(ops) | {("s", "m0")}
            elif mn.startswith("global_load"): self.defs = R(ops[0]); self.uses = allu(ops[1:])
            elif mn.startswith("global_store"):
                self.uses = allu(ops)
                if "x3" in mn or "x4" in mn: self.storedata = R(ops[1])
            elif mn.startswith("global_atomic"):
                if "sc0" in mods: self.defs = R(ops[0]); self.uses = allu(ops[1:])
                else: self.uses = allu(ops)
            else: raise ValueError(text)
        elif mn.startswith("ds_"):
            self.kind = "ds"
            if mn.startswith(("ds_read", "ds_bpermute", "ds_permute", "ds_swizzle")): self.defs = R(ops[0]); self.uses = allu(ops[1:])
            else: self.uses = allu(ops)
        elif mn.startswith("s_"):
            self.kind = "salu"
            if mn == "s_nop": self.ws = int(ops[0], 0) + 1
            elif mn in ("s_branch",) or mn.startswith("s_cbranch"): self.target = ops[0]
            elif mn.startswith(("s_cmp", "s_waitcnt", "s_barrier", "s_setprio", "s_sleep", "s_endpgm", "s_bitcmp")): self.uses = allu(ops)
            else:
                self.defs = R(ops[0]); self.uses = allu(ops[1:])
                if "saveexec" in mn: self.defs |= R("exec"); self.uses |= R("exec")
        else:
            raise ValueError("unknown instruction: " + text)

def isv(r): return r[0] in ("v", "a")
def iss(r): return r[0] == "s"

def gap(p, c):
    need = 0
    pv = {r for r in p.defs if isv(r)}; ps = {r for r in p.defs if iss(r)}
    if p.kind == "valu":
        if c.kind == "mfma" and pv & c.uses: need = max(need, 2)
        if p.trans and c.kind in ("valu", "vmem", "ds") and pv & c.uses: need = max(need, 1)
        if c.kind == "valu":
            b = c.mn
            if b.startswith(("v_readlane", "v_readfirstlane")) and pv & c.uses: need = max(need, 1)
            if b.startswith("v_permlane") and pv & c.uses: need = max(need, 2)
            if ("dpp" in b or "row_" in c.mods or "quad_perm" in c.mods) and pv & c.uses: need = max(need, 2)
            if ps & c.uses:
                need = max(need, 4 if b.startswith(("v_readlane", "v_writelane")) else 2)
            if ("sdwa" in p.mn or "op_sel" in p.mods) and pv & (c.uses | c.defs): need = max(need, 1)
        if p.mn.startswith("v_dot"):
            hit = pv & (c.uses | c.defs)
            if hit:
                same_c = c.mn == p.mn and c.kind == "valu" and not (pv & set().union(*[regs_of(o) for o in c.ops[1:3]]))
                if not same_c: need = max(need, 3)
        if c.kind == "vmem" and ps & c.uses: need = max(need, 5)
        if c.kind == "salu" and ps & c.uses: need = max(need, 1)
    if p.kind == "mfma":
        n = p.passes
        if c.kind == "mfma":
            if pv & (c.srcA | c.srcB): need = max(need, {4: 8, 8: 12}[n])
            if pv & c.srcC:
                if not (pv == c.srcC and c.passes == n): need = max(need, {4: 6, 8: 10}[n])
            elif pv & c.defs:
                need = max(need, {4: 6, 8: 10}[n])
        elif c.kind == "valu":
            if pv & (c.uses | c.defs): need = max(need, {4: 8, 8: 12}[n])
            if p.srcC & c.defs: need = max(need, {4: 3, 8: 7}[n])
        elif c.kind in ("vmem", "ds"):
            if pv & (c.uses | c.defs): need = max(need, {4: 8, 8: 12}[n])
            if p.srcC & c.defs: need = max(need, {4: 3, 8: 7}[n])
    if p.kind == "vmem" and p.storedata:
        if c.kind == "valu" and p.storedata & c.defs: need = max(need, 2)
        elif c.kind != "valu" and p.storedata & c.defs: need = max(need, 1)
    if p.kind == "salu" and ("s", "m0") in p.defs and c.kind in ("vmem", "ds") and ("s", "m0") in c.uses: need = max(need, 1)
    if p.kind == "salu" and any(r in p.defs for r in (("s", "exec_lo"), ("s", "exec_hi"))) and c.kind == "mfma": need = max(need, 4)
    return need

MAXD = 14
def fix_hazards(lines, verbose=False):
    ins = [Ins(l) for l in lines]
    total_nops = 0
    changed = True
    while changed:
        changed = False
        labels = {x.label: i for i, x in enumerate(ins) if x.label}
        br_to = {}
        for i, x in enumerate(ins):
            if x.target in labels: br_to.setdefault(labels[x.target], []).append(i)
        def deficiency(ci):
            c = ins[ci]; worst = 0
            stack = [(ci-1, 0)]; seen = set()
            while stack:
                i, d = stack.pop()
                while i >= 0 and d < MAXD:
                    if (i, d) in seen: break
                    seen.add((i, d))
                    x = ins[i]
                    if x.kind == "label":
                        for b in br_to.get(i, []): stack.append((b, d))
                        j = i-1
                        while j >= 0 and ins[j].kind in ("none", "label"): j -= 1
                        if j >= 0 and ins[j].mn in ("s_branch", "s_endpgm"): break
                        i -= 1; continue
                    if x.kind == "none": i -= 1; continue
                    g = gap(x, c)
                    if g > d: worst = max(worst, g-d)
                    d += x.ws; i -= 1
            return worst
        for ci, c in enumerate(ins):
            if c.kind in ("none", "label"): continue
            df = deficiency(ci)
            if df > 0:
                if verbose: print("hazard: +%d before: %s" % (df, c.text.strip()))
                ins.insert(ci, Ins("    s_nop %d" % (df-1)))
                total_nops += 1; changed = True
                break
        if changed: continue
    return [x.text for x in ins], total_nops

def fix_hazards_fast(lines, verbose=False):
    ins = [Ins(l) for l in lines]
    total = 0
    for it in range(50):
        labels = {x.label: i for i, x in enumerate(ins) if x.label}
        br_to = {}
        for i, x in enumerate(ins):
            if x.target in labels: br_to.setdefault(labels[x.target], []).append(i)
        out = []; inserted = 0
        def deficiency(ci):
            c = ins[ci]; worst = 0
            stack = [(ci-1, extra.get(ci, 0))]; seen = set()
            while stack:
                i, d = stack.pop()
                while i >= 0 and d < MAXD:
                    if (i, d) in seen: break
                    seen.add((i, d))
                    x = ins[i]
                    if x.kind == "label":
                        for b in br_to.get(i, []): stack.append((b, d))
                        j = i-1
                        while j >= 0 and ins[j].kind in ("none", "label"): j -= 1
                        if j >= 0 and ins[j].mn in ("s_branch", "s_endpgm"): break
                        i -= 1; continue
                    if x.kind == "none": i -= 1; continue
                    g = gap(x, c)
                    if g > d: worst = max(worst, g-d)
                    d += x.ws + extra.get(i, 0); i -= 1
            return worst
        extra = {}
        for ci, c in enumerate(ins):
            if c.kind in ("none", "label"): continue
            df = deficiency(ci)
            if df > 0:
                extra[ci] = extra.get(ci, 0) + df
                if verbose: print("hazard: +%d before: %s" % (df, c.text.strip()))
        if not extra: break
        new = []
        for i, x in enumerate(ins):
            if i in extra: new.append(Ins("    s_nop %d" % (extra[i]-1))); total += 1
            new.append(x)
        ins = new
    else:
        raise RuntimeError("hazard fixing did not converge")
    return [x.text for x in ins], total

class Kern:
    def __init__(self, name, vgprs, agprs=0, sgprs=102):
        self.name = name; self.L = []; self.vgprs = vgprs; self.agprs = agprs; self.sgprs = sgprs; self.nlab = 0
    def __call__(self, t):
        for l in t.split("\n"):
            l = l.strip()
            if not l: continue
            self.L.append(l if l.endswith(":") else "    " + l)
    def lab(self, base):
        self.nlab += 1; return "L_%s_%s%d" % (self.name.replace("_kernel", ""), base, self.nlab)
    def text(self, verbose=False):
        body, n = fix_hazards_fast(self.L, verbose)
        mv = ma = -1
        for l in body:
            x = Ins(l)
            for r in x.defs | x.uses:
                if r[0] == "v": mv = max(mv, r[1])
                if r[0] == "a": ma = max(ma, r[1])
                if r[0] == "s" and isinstance(r[1], int): assert r[1] < self.sgprs, l
        assert mv < self.vgprs, (self.name, mv, self.vgprs)
        assert ma < self.agprs or ma < 0, (self.name, ma, self.agprs)
        hdr = ".globl %s\n.p2align 8\n.type %s,@function\n%s:\n" % (self.name, self.name, self.name)
        self.stats = dict(n_ins=sum(1 for l in body if not l.endswith(":")), nops=n, maxv=mv, maxa=ma)
        return hdr + "\n".join(body) + "\n"
    def desc(self):
        acc = (self.vgprs + 3)//4*4
        nfv = acc + self.agprs if self.agprs else self.vgprs
        return (".amdhsa_kernel %s\n  .amdhsa_next_free_vgpr %d\n  .amdhsa_next_free_sgpr %d\n  .amdhsa_accum_offset %d\n"
                "  .amdhsa_group_segment_fixed_size 0\n  .amdhsa_kernarg_size 96\n  .amdhsa_user_sgpr_count 2\n"
                "  .amdhsa_user_sgpr_kernarg_segment_ptr 1\n  .amdhsa_system_sgpr_workgroup_id_x 1\n"
                "  .amdhsa_float_denorm_mode_32 3\n.end_amdhsa_kernel\n") % (self.name, nfv, self.sgprs, acc)
```

```python
import sys, importlib
from asmgen import *
from layout import *
NAME = "adaLN_cond__mha_block__glu_gated_swiglu__prompt"
def header():
    return open("cdna_kernels/%s.s.ref" % NAME).read().split("; Override launch geometry")[0]
def build(gens, path):
    ks = [g() for g in gens]
    txt = header()
    for k, (grid, block, lds) in ks:
        txt += "; @launch kernel=%s grid=(%d,1,1) block=(%d,1,1) lds=%d\n" % (k.name, grid, block, lds)
    txt += '.amdgcn_target "amdgcn-amd-amdhsa--gfx950"\n.text\n'
    seen = set()
    for k, _ in ks:
        if k.name in seen: continue
        seen.add(k.name); txt += k.text()
    txt += '.section .rodata,"a"\n'
    seen = set()
    for k, _ in ks:
        if k.name in seen: continue
        seen.add(k.name); txt += ".p2align 6\n" + k.desc()
    open(path, "w").write(txt)
    return [(k.name, g) for k, g in ks], {k.name: k.stats for k, _ in ks}
```

```python
from asmgen import *
from layout import *
from k_g1 import srd, spread

def gen_att(stamps=False, helper=False, dbg='', order=1):
    k = Kern("att_kernel", vgprs=140)
    sWS = 4
    rKV, rQM, rQR, rOM, rOR = 8, 12, 16, 20, 24
    sw, sh, sqt, stmp, stmp2, spass, sloop, snmax, skv = range(32, 41)
    soff = 44
    sstr = 49
    vl16, vK, vKR, vV, vt0, vt1, vom, vor = 1, 2, 3, 4, 5, 6, 7, 8
    QM, NEG, S0, S1, P, O = 12, 20, 36, 52, 68, 76
    KM = [92, 96]; KR = [100, 104]; VF = [108, 116]; QRJ = [124, 128, 132, 136]; QR = 16
    S = [S0, S1]
    k("s_cmp_ge_u32 s2, 256\ns_cbranch_scc1 L_att_end")
    k(f"s_load_dwordx2 {s(sWS,2)}, s[0:1], {KA['ws']}")
    if stamps: k("s_memtime s[60:61]\ns_memrealtime s[62:63]")
    k("v_lshrrev_b32 v9, 6, v0\nv_and_b32 v0, 63, v0")
    k(f"v_readfirstlane_b32 {s(sw)}, v9")
    k(f"v_lshlrev_b32 {v(vl16)}, 4, v0")
    k(f"s_and_b32 {s(stmp)}, s2, 7\ns_lshl_b32 {s(sh)}, {s(stmp)}, 2\ns_lshr_b32 {s(stmp)}, s2, 3\ns_and_b32 {s(stmp)}, {s(stmp)}, 3\ns_add_u32 {s(sh)}, {s(sh)}, {s(stmp)}")
    k(f"s_lshr_b32 {s(sqt)}, s2, 5\ns_lshl_b32 {s(sqt)}, {s(sqt)}, 3\ns_add_u32 {s(sqt)}, {s(sqt)}, {s(sw)}")
    k(f"s_mul_i32 {s(skv)}, {s(sh)}, {KV_STRIDE}")
    for e in range(5):
        n = stmp
        k(f"s_add_u32 {s(n)}, {s(sw)}, {8*e}\ns_min_u32 {s(n)}, {s(n)}, 36")
        k(f"s_lshl_b32 {s(stmp2)}, {s(n)}, 10")
        k(f"s_add_u32 {s(soff+e)}, {s(stmp2)}, {73728-18*1024}\ns_mov_b32 {s(sstr+e)}, 19456")
        k(f"s_cmp_lt_u32 {s(n)}, 18")
        k(f"s_cselect_b32 {s(sstr+e)}, 2048, {s(sstr+e)}")
        k(f"s_add_u32 s54, {s(stmp2)}, {65536-16*1024}")
        k(f"s_cmp_lt_u32 {s(n)}, 18\ns_cselect_b32 {s(soff+e)}, s54, {s(soff+e)}")
        k(f"s_cmp_lt_u32 {s(n)}, 16\ns_cselect_b32 {s(soff+e)}, {s(stmp2)}, {s(soff+e)}\ns_cselect_b32 {s(sstr+e)}, 16384, {s(sstr+e)}")
    k(f"v_mov_b32 {v(vK)}, {v(vl16)}")
    k(f"v_and_b32 v9, 31, v0\nv_lshlrev_b32 {v(vKR)}, 4, v9\nv_add_u32 {v(vKR)}, 65536, {v(vKR)}")
    k("v_mov_b32 v10, 4\nv_mov_b32 v11, 0")
    k("v_cmp_gt_u32 vcc, 20, v9\nv_cndmask_b32 v11, v11, v10, vcc")
    k("v_cmp_lt_u32 vcc, 27, v9\nv_cndmask_b32 v11, v11, v10, vcc")
    k("v_cmp_gt_u32 vcc, 19, v9\nv_cndmask_b32 v11, v11, v9, vcc")
    k(f"v_lshrrev_b32 v10, 5, v0\nv_mul_u32_u24 v10, 19, v10\nv_add_u32 v11, v11, v10\nv_lshlrev_b32 {v(vV)}, 4, v11\nv_add_u32 {v(vV)}, 73728, {v(vV)}")
    if True:
        k(f"v_cmp_gt_u32 vcc, 19, v9\nv_mov_b32 v10, 0x30000\nv_cndmask_b32 {v(vV)}, v10, {v(vV)}, vcc")
    k(f"v_lshlrev_b32 {v(vt0)}, 2, v9\nv_mov_b32 v10, 0x7fffffff\nv_cmp_gt_u32 vcc, 32, v0\nv_cndmask_b32 {v(vt1)}, v10, {v(vt0)}, vcc")
    k(f"v_mov_b32 {v(vor)}, {v(vt1)}")
    k(f"v_lshlrev_b32 {v(vom)}, 5, v9\nv_lshrrev_b32 v10, 5, v0\nv_lshlrev_b32 v10, 4, v10\nv_add_u32 {v(vom)}, {v(vom)}, v10")
    k("s_waitcnt lgkmcnt(0)")
    srd(k, rKV, sWS, WS["KV"], WS["KV_SZ"]); srd(k, rQM, sWS, WS["QM"], WS["QM_SZ"]); srd(k, rQR, sWS, WS["QR"], WS["QR_SZ"])
    srd(k, rOM, sWS, WS["OM"], WS["OM_SZ"]); srd(k, rOR, sWS, WS["OR"], WS["OR_SZ"])
    k(f"s_lshl_b32 {s(stmp)}, {s(sh)}, 6\ns_add_u32 {s(stmp)}, {s(stmp)}, {s(sqt)}")
    k(f"s_lshl_b32 {s(stmp2)}, {s(stmp)}, 10")
    k(f"buffer_load_dwordx4 {v(QM,4)}, {v(vl16)}, {s(rQM,4)}, {s(stmp2)} offen")
    k(f"s_lshl_b32 {s(stmp2)}, {s(stmp)}, 7")
    k(f"buffer_load_dword {v(QR)}, {v(vt1)}, {s(rQR,4)}, {s(stmp2)} offen")
    for seg in range(4):
        for e in range(5):
            k(f"s_mov_b32 m0, {s(soff+e)}\ns_add_u32 {s(stmp2)}, {s(skv)}, {s(soff+e)}")
            k(f"buffer_load_dwordx4 {v(vl16)}, {s(rKV,4)}, {s(stmp2)} offen lds")
            if seg < 3: k(f"s_add_u32 {s(soff+e)}, {s(soff+e)}, {s(sstr+e)}")
    for j in range(4):
        for e in range(4):
            if e != j: k(f"v_mov_b32 {v(QRJ[j]+e)}, 0")
    k(f"s_mov_b32 {s(spass)}, 0\ns_mov_b32 {s(snmax)}, 1")
    k("s_waitcnt vmcnt(20)")
    for j in range(4): k(f"v_mov_b32 {v(QRJ[j]+j)}, {v(QR)}")
    k("s_waitcnt vmcnt(15)\ns_barrier")
    if stamps: k("s_memtime s[64:65]")
    def mf(d, a_, b_, c_, tag=''):
        if tag and tag in dbg: return
        k(f"v_mfma_f32_32x32x16_bf16 {v(d,16)}, {v(a_,4)}, {v(b_,4)}, {c_}")
    k("L_att_max:")
    k(f"v_mov_b32 {v(vt0)}, 0xff800000\ns_mov_b32 {s(sloop)}, 0")
    k("L_att_maxloop:")
    k(f"ds_read_b128 {v(KR[0],4)}, {v(vKR)}")
    for j in range(4):
        k(f"ds_read_b128 {v(KM[0],4)}, {v(vK)} offset:{j*1024}")
        k("s_waitcnt lgkmcnt(0)")
        mf(S0, KM[0], QM, "0"); mf(S0, KR[0], QRJ[j], v(S0,16))
        for i in range(8): k(f"v_max3_f32 {v(vt0)}, {v(vt0)}, {v(S0+2*i)}, {v(S0+2*i+1)}")
        if j == 0: k(f"s_cmp_eq_u32 {s(spass)}, 0\ns_cbranch_scc1 L_att_maxdone")
    k(f"v_add_u32 {v(vK)}, 4096, {v(vK)}\nv_add_u32 {v(vKR)}, 512, {v(vKR)}")
    k(f"s_add_u32 {s(sloop)}, {s(sloop)}, 1\ns_cmp_lt_u32 {s(sloop)}, {s(snmax)}\ns_cbranch_scc1 L_att_maxloop")
    k("L_att_maxdone:")
    k(f"v_mov_b32 {v(vt1)}, {v(vt0)}")
    k(f"v_permlane32_swap_b32 {v(vt0)}, {v(vt1)}")
    k(f"v_max_f32 {v(vt0)}, {v(vt0)}, {v(vt1)}")
    for i in range(16): k(f"v_sub_f32 {v(NEG+i)}, 0, {v(vt0)}")
    k(f"v_mov_b32 {v(vK)}, {v(vl16)}\nv_and_b32 v9, 31, v0\nv_lshlrev_b32 {v(vKR)}, 4, v9\nv_add_u32 {v(vKR)}, 65536, {v(vKR)}")
    for i in range(16): k(f"v_mov_b32 {v(O+i)}, 0")
    k(f"ds_read_b128 {v(KR[0],4)}, {v(vKR)}\nds_read_b128 {v(KM[0],4)}, {v(vK)}")
    k(f"ds_read_b128 {v(KM[1],4)}, {v(vK)} offset:1024")
    k(f"ds_read_b128 {v(VF[0],4)}, {v(vV)}\nds_read_b128 {v(VF[0]+4,4)}, {v(vV)} offset:608")
    k("s_waitcnt lgkmcnt(3)")
    mf(S0, KM[0], QM, v(NEG,16)); mf(S0, KR[0], QRJ[0], v(S0,16))
    for i in range(8): k(f"v_mov_b32 {v(P+i)}, 0")
    for i in range(8): k(f"v_mov_b32 {v(VF[1]+i)}, 0")
    k(f"s_mov_b32 {s(sloop)}, 0")
    k("L_att_loop:")
    k(f"s_and_b32 {s(stmp)}, {s(sloop)}, 1\ns_cmp_eq_u32 {s(stmp)}, 1\ns_cbranch_scc0 L_att_nobar")
    k(f"s_cmp_eq_u32 {s(spass)}, 0\ns_cbranch_scc0 L_att_nobar")
    k(f"s_cmp_eq_u32 {s(sloop)}, 7\ns_cbranch_scc1 L_att_nobar")
    k(f"s_cmp_eq_u32 {s(sloop)}, 1\ns_cbranch_scc0 L_att_b2")
    k("s_waitcnt vmcnt(10)\ns_branch L_att_bar")
    k("L_att_b2:")
    k(f"s_cmp_eq_u32 {s(sloop)}, 3\ns_cbranch_scc0 L_att_b3")
    k("s_waitcnt vmcnt(5)\ns_branch L_att_bar")
    k("L_att_b3:")
    k("s_waitcnt vmcnt(0)")
    k("L_att_bar:\ns_barrier")
    k("L_att_nobar:")
    ex = lambda r: None if 'E' in dbg else k(f"v_exp_f32 {v(r)}, {v(r)}")
    cv = lambda i, sa: k(f"v_cvt_pk_bf16_f32 {v(P+i)}, {v(sa+2*i)}, {v(sa+2*i+1)}")
    for t in range(8):
        sa = S[t % 2]; sb = S[1 - t % 2]; b = t % 2; nb = 1 - b
        g1 = ((t+1) >> 2) & 1; j1 = (t+1) & 3
        rdkr = (t % 4 == 1)
        k("s_waitcnt lgkmcnt(2)")
        mf(sb, KM[nb], QM, v(NEG,16), 'Q')
        k(f"ds_read_b128 {v(KM[b],4)}, {v(vK)} offset:{(t+2)*1024}")
        ex(sa+0); ex(sa+1); ex(sa+2); ex(sa+3); cv(0, sa); cv(1, sa)
        mf(O, VF[nb]+4, P+4, v(O,16), 'V')
        if rdkr: k(f"ds_read_b128 {v(KR[((t>>2)+1) & 1],4)}, {v(vKR)} offset:{((t>>2)+1)*512}")
        ex(sa+4); ex(sa+5); ex(sa+6); ex(sa+7); cv(2, sa); cv(3, sa)
        mf(sb, KR[g1], QRJ[j1], v(sb,16), 'Q')
        k(f"ds_read_b128 {v(VF[nb],4)}, {v(vV)} offset:{(2*t+2)*608}")
        ex(sa+8); ex(sa+9); ex(sa+10); ex(sa+11); cv(4, sa); cv(5, sa)
        k(f"s_waitcnt lgkmcnt({4 if rdkr else 3})")
        mf(O, VF[b], P, v(O,16), 'V')
        k(f"ds_read_b128 {v(VF[nb]+4,4)}, {v(vV)} offset:{(2*t+3)*608}")
        ex(sa+12); ex(sa+13); ex(sa+14); ex(sa+15); cv(6, sa); cv(7, sa)
    k(f"v_add_u32 {v(vK)}, 8192, {v(vK)}\nv_add_u32 {v(vKR)}, 1024, {v(vKR)}\nv_add_u32 {v(vV)}, {16*608}, {v(vV)}")
    k(f"s_add_u32 {s(sloop)}, {s(sloop)}, 1\ns_cmp_lt_u32 {s(sloop)}, 8\ns_cbranch_scc1 L_att_loop")
    mf(O, VF[1]+4, P+4, v(O,16))
    k("s_waitcnt lgkmcnt(0)")
    if stamps: k("s_memtime s[66:67]")
    k(f"v_mov_b32 {v(vt0)}, {v(O+10)}\nv_mov_b32 {v(vt1)}, {v(O+10)}")
    k(f"v_permlane32_swap_b32 {v(vt0)}, {v(vt1)}")
    k(f"s_cmp_eq_u32 {s(spass)}, {1 if dbg else 0}\ns_cbranch_scc0 L_att_fin")
    k(f"v_mov_b32 {v(vt1)}, 0x5f800000")
    k(f"v_cmp_nlt_f32 vcc, {v(vt0)}, {v(vt1)}")
    k("s_nop 1\ns_cmp_eq_u64 vcc, 0\ns_cbranch_scc1 L_att_fin")
    k(f"s_mov_b32 {s(spass)}, 1\ns_mov_b32 {s(snmax)}, 16")
    k(f"v_mov_b32 {v(vK)}, {v(vl16)}\nv_and_b32 v9, 31, v0\nv_lshlrev_b32 {v(vKR)}, 4, v9\nv_add_u32 {v(vKR)}, 65536, {v(vKR)}")
    k(f"v_subrev_u32 {v(vV)}, {8*16*608}, {v(vV)}")
    k("s_branch L_att_max")
    k("L_att_fin:")
    k(f"v_rcp_f32 {v(vt0)}, {v(vt0)}")
    k("s_nop 0")
    for i in range(10): k(f"v_mul_f32 {v(O+i)}, {v(O+i)}, {v(vt0)}")
    for i in range(5): k(f"v_cvt_pk_bf16_f32 {v(P+i)}, {v(O+2*i)}, {v(O+2*i+1)}")
    k(f"s_lshl_b32 {s(stmp)}, {s(sh)}, 6\ns_add_u32 {s(stmp)}, {s(stmp)}, {s(sqt)}")
    k(f"s_lshl_b32 {s(stmp2)}, {s(stmp)}, 10")
    k(f"buffer_store_dwordx4 {v(P,4)}, {v(vom)}, {s(rOM,4)}, {s(stmp2)} offen")
    k(f"s_lshl_b32 {s(stmp2)}, {s(stmp)}, 7")
    k(f"buffer_store_dword {v(P+4)}, {v(vor)}, {s(rOR,4)}, {s(stmp2)} offen")
    if stamps:
        k("s_waitcnt vmcnt(0)\ns_memtime s[68:69]\ns_memrealtime s[70:71]\ns_waitcnt lgkmcnt(0)")
        srd(k, 24, sWS, WS["AUX"], WS["AUX_SZ"])
        k(f"s_lshl_b32 {s(stmp)}, s2, 3\ns_add_u32 {s(stmp)}, {s(stmp)}, {s(sw)}\ns_lshl_b32 {s(stmp)}, {s(stmp)}, 6\nv_mov_b32 v9, {s(stmp)}")
        for i, (x, y) in enumerate(((64,60),(66,60),(68,60),(70,62))):
            k(f"s_sub_u32 s72, s{x}, s{y}\nv_mov_b32 v10, s72\nbuffer_store_dword v10, v9, s[24:27], 0 offen offset:{4*i}")
        k(f"v_mov_b32 v10, s62\nbuffer_store_dword v10, v9, s[24:27], 0 offen offset:16")
        k(f"v_mov_b32 v10, {s(spass)}\nbuffer_store_dword v10, v9, s[24:27], 0 offen offset:20")
    k("L_att_end:\ns_endpgm")
    return k, (256, 512, 151552 + 4096)
```

```python
from asmgen import *
from layout import *

def srd(k, base, ptr, off, size):
    if off:
        k(f"s_add_u32 {s(base)}, {s(ptr)}, {off}")
        k(f"s_addc_u32 {s(base+1)}, {s(ptr+1)}, 0")
    else:
        k(f"s_mov_b32 {s(base)}, {s(ptr)}")
        k(f"s_mov_b32 {s(base+1)}, {s(ptr+1)}")
    k(f"s_mov_b32 {s(base+2)}, {size}")
    k(f"s_mov_b32 {s(base+3)}, 0x20000")

def spread(ops, nslots, start=0):
    out = [[] for _ in range(nslots)]
    n = nslots - start
    for i, o in enumerate(ops): out[start + (i*n)//max(len(ops), 1)].append(o)
    return out

def gen_g1(stamps=False, no_epi=False, no_reads=False, no_dma=False, plain_read=False, xpre=6, prio=0, interleave=False):
    k = Kern("g1_kernel", vgprs=80, agprs=144)
    nst = [0]
    def stamp():
        if stamps:
            k(f"s_memtime {s(60+2*nst[0],2)}"); nst[0] += 1
    if stamps: k("s_memrealtime s[90:91]")
    stamp()
    STG = 73728; UP = 36864
    sWS, sW1, sW3 = 4, 6, 8
    rW1, rW3, rH2, rHH, rE8 = 12, 16, 20, 24, 28
    sw, srb, sjf, sf0, ssrc, ssrc8, swb, se8, stmp, sx0, sx1, sh0, sdelta, sxor, sloop, snl2e, sbuf, sf4, srow, srow8, sik = range(32, 53)
    vl16, vdma, vgA, vgB, vuA, vuB, vst2 = 1, 2, 3, 4, 5, 6, 7
    RING = 8; ACC = [32, 48]; OUT = 64; TMP = 72
    k(f"s_cmp_ge_u32 s2, 256")
    k(f"s_cbranch_scc1 L_g1_end")
    k(f"s_load_dwordx2 {s(sWS,2)}, s[0:1], {KA['ws']}")
    k(f"s_load_dwordx2 {s(sW1,2)}, s[0:1], {KA['w1']}")
    k(f"s_load_dwordx2 {s(sW3,2)}, s[0:1], {KA['w3']}")
    k(f"v_lshrrev_b32 v8, 6, v0")
    k(f"v_and_b32 v0, 63, v0")
    k(f"v_readfirstlane_b32 {s(sw)}, v8")
    k(f"v_lshlrev_b32 {v(vl16)}, 4, v0")
    k(f"v_lshrrev_b32 v8, 2, v0")
    k(f"v_lshrrev_b32 v9, 4, v0")
    k(f"v_and_b32 v9, 1, v9")
    k(f"v_lshrrev_b32 v10, 1, v0")
    k(f"v_and_b32 v10, 1, v10")
    k(f"v_xor_b32 v10, v10, v9")
    k(f"v_lshlrev_b32 v10, 5, v10")
    k(f"v_and_b32 v11, 1, v0")
    k(f"v_lshlrev_b32 v11, 4, v11")
    k(f"v_add_u32 v10, v10, v11")
    k(f"v_mul_u32_u24 {v(vdma)}, 9216, v8")
    k(f"v_add_u32 {v(vdma)}, {v(vdma)}, v10")
    k(f"v_lshlrev_b32 {v(vgA)}, 6, v8")
    k(f"v_lshlrev_b32 v9, 5, v9")
    k(f"v_add_u32 {v(vgA)}, {v(vgA)}, v9")
    k(f"v_and_b32 v11, 3, v0")
    k(f"v_lshlrev_b32 v11, 3, v11")
    k(f"v_add_u32 {v(vgA)}, {v(vgA)}, v11")
    k(f"v_xor_b32 {v(vgB)}, 32, {v(vgA)}")
    k(f"v_add_u32 {v(vuA)}, {UP}, {v(vgA)}")
    k(f"v_add_u32 {v(vuB)}, {UP}, {v(vgB)}")
    k(f"s_and_b32 {s(stmp)}, s2, 1")
    k(f"s_lshr_b32 {s(srb)}, s2, 6")
    k(f"s_lshl_b32 {s(stmp)}, {s(stmp)}, 2")
    k(f"s_add_u32 {s(srb)}, {s(srb)}, {s(stmp)}")
    k(f"s_lshr_b32 {s(sjf)}, s2, 3")
    k(f"s_and_b32 {s(sjf)}, {s(sjf)}, 7")
    k(f"s_lshr_b32 {s(stmp)}, s2, 1")
    k(f"s_and_b32 {s(stmp)}, {s(stmp)}, 3")
    k(f"s_mul_i32 {s(sf0)}, {s(stmp)}, 2304")
    k(f"s_lshr_b32 {s(sf4)}, {s(sjf)}, 1")
    k(f"s_lshl_b32 {s(sf4)}, {s(sf4)}, 6")
    k(f"s_add_u32 {s(sf4)}, {s(sf4)}, {s(sf0)}")
    k(f"s_add_u32 {s(sf4)}, {s(sf4)}, 2048")
    k(f"s_lshl_b32 {s(stmp)}, {s(sjf)}, 8")
    k(f"s_add_u32 {s(sf0)}, {s(sf0)}, {s(stmp)}")
    k(f"s_mul_i32 {s(srow)}, {s(sw)}, 147456")
    k(f"s_and_b32 {s(stmp)}, {s(sw)}, 3")
    k(f"s_add_u32 {s(stmp)}, {s(stmp)}, 32")
    k(f"s_mul_i32 {s(srow8)}, {s(stmp)}, 147456")
    k(f"s_lshl_b32 {s(se8)}, {s(stmp)}, 10")
    k(f"s_cmp_ge_u32 {s(sw)}, 4")
    k(f"s_cselect_b32 {s(stmp)}, {UP}, 0")
    k(f"s_add_u32 {s(se8)}, {s(se8)}, {s(stmp)}")
    k(f"s_lshl_b32 {s(swb)}, {s(sw)}, 10")
    k(f"s_lshl_b32 {s(stmp)}, {s(srb)}, 4")
    k(f"s_lshl_b32 {s(sx0)}, {s(sw)}, 1")
    k(f"s_add_u32 {s(stmp)}, {s(stmp)}, {s(sx0)}")
    k(f"s_mul_i32 {s(sx0)}, {s(stmp)}, 18432")
    k(f"s_add_u32 {s(sx1)}, {s(sx0)}, 18432")
    k(f"s_mul_i32 {s(sh0)}, {s(stmp)}, 147456")
    k(f"s_mov_b32 {s(snl2e)}, 0xbfb8aa3b")
    k(f"s_and_b32 {s(sxor)}, {s(sjf)}, 1")
    k(f"v_mov_b32 {v(vst2)}, {s(sxor)}")
    k(f"v_lshlrev_b32 {v(vst2)}, 3, {v(vst2)}")
    k(f"v_add_u32 {v(vst2)}, {v(vst2)}, {v(vl16)}")
    k(f"s_waitcnt lgkmcnt(0)")
    srd(k, rW1, sW1, 0, 576*9216)
    srd(k, rW3, sW3, 0, 576*9216)
    srd(k, rH2, sWS, WS["H2F"], WS["H2F_SZ"])
    srd(k, rHH, sWS, WS["HHF"], WS["HHF_SZ"])
    k(f"s_cmp_ge_u32 {s(sw)}, 4")
    k(f"s_cselect_b32 {s(rE8)}, {s(sW3)}, {s(sW1)}")
    k(f"s_cselect_b32 {s(rE8+1)}, {s(sW3+1)}, {s(sW1+1)}")
    k(f"s_mov_b32 {s(rE8+2)}, {576*9216}")
    k(f"s_mov_b32 {s(rE8+3)}, 0x20000")

    def dma_ops(fb, bufreg_or_const):
        ops = [[f"s_add_u32 {s(ssrc)}, {s(fb)}, {s(srow)}", f"s_add_u32 {s(ssrc8)}, {s(fb)}, {s(srow8)}",
                f"s_add_u32 {s(sik+1)}, {s(sbuf)}, {s(swb)}"]]
        for e in range(9):
            g = []
            if e < 8:
                m = e // 4; ee = e % 4
                g.append(f"s_add_u32 m0, {s(sik+1)}, {m*UP + ee*8192}")
                g.append(f"s_add_u32 {s(stmp)}, {s(ssrc)}, {ee*8*147456}")
                g.append(f"buffer_load_dwordx4 {v(vdma)}, {s(rW3 if m else rW1,4)}, {s(stmp)} offen lds")
            else:
                g.append(f"s_add_u32 m0, {s(sbuf)}, {s(se8)}")
                g.append(f"s_nop 0")
                g.append(f"buffer_load_dwordx4 {v(vdma)}, {s(rE8,4)}, {s(ssrc8)} offen lds")
            ops.append(g)
        return ops
    sst = sik + 3
    k(f"s_mov_b32 {s(sbuf)}, 0")
    for g in dma_ops(sf0, None):
        for o in g: k(o)
    def xload(ks):
        r = []
        for t in range(2):
            sx = sx0 if t == 0 else sx1
            r.append(f"s_add_u32 {s(stmp)}, {s(sx)}, {(ks>>2)*4096}")
            r.append(f"buffer_load_dwordx4 {a((t*18+ks)*4,4)}, {v(vl16)}, {s(rH2,4)}, {s(stmp)} offen offset:{(ks&3)*1024}")
        return r
    XPRE = xpre
    for ks in range(XPRE):
        for o in xload(ks): k(o)
    k(f"s_mov_b32 {s(sdelta)}, {STG}")
    k(f"s_waitcnt vmcnt({2*XPRE})")
    k(f"s_barrier")
    stamp()
    k(f"s_mov_b32 {s(sbuf)}, {STG}")
    k(f"s_add_u32 {s(sik)}, {s(sf0)}, 64")
    d1 = dma_ops(sik, None)
    pre0 = {}; xw = {}
    issued = 2*XPRE
    order = []
    for ks in range(XPRE): order += [('x', ks), ('x', ks)]
    dleft = list(d1[1:])
    for ks in range(18):
        ops = []
        if ks + XPRE < 18:
            ops += xload(ks + XPRE); order += [('x', ks+XPRE)]*2
        else:
            if ks + XPRE == 18: ops += d1[0]
            nd = -(-9 // XPRE)
            for _ in range(nd):
                if dleft: ops += dleft.pop(0); order.append(('d',))
        pre0[ks] = ops
        last_idx = max(i for i, o in enumerate(order) if o == ('x', ks))
        xw[ks] = len(order) - 1 - last_idx
    assert not dleft

    def reads(unit_sel, ks):
        slot = RING + 8*(ks % 3)
        ag, au = (vgA, vuA) if unit_sel == 0 else (vgB, vuB)
        o = ks*2048
        if no_reads: return []
        if plain_read: return [f"ds_read_b128 {v(slot,4)}, {v(vl16)} offset:{o}", f"ds_read_b128 {v(slot+4,4)}, {v(vl16)} offset:{o+1024}"]
        return [f"ds_read_b64_tr_b16 {v(slot,2)}, {v(ag)} offset:{o}",
                f"ds_read_b64_tr_b16 {v(slot+2,2)}, {v(ag)} offset:{o+1024}",
                f"ds_read_b64_tr_b16 {v(slot+4,2)}, {v(au)} offset:{o}",
                f"ds_read_b64_tr_b16 {v(slot+6,2)}, {v(au)} offset:{o+1024}"]
    for o in reads(0, 0) + reads(0, 1): k(o)

    def epi_ops(X, p):
        ops = []
        if no_epi: return ops
        g = lambda e: X + e; u = lambda e: X + 8 + e; t = lambda e: TMP + e
        ops += [f"v_mul_f32 {v(t(e))}, {s(snl2e)}, {v(g(e))}" for e in range(8)]
        ops += [f"v_exp_f32 {v(t(e))}, {v(t(e))}" for e in range(8)]
        ops += [f"v_mul_f32 {v(u(e))}, {v(g(e))}, {v(u(e))}" for e in range(8)]
        ops += [f"v_add_f32 {v(t(e))}, 1.0, {v(t(e))}" for e in range(8)]
        ops += [f"v_rcp_f32 {v(t(e))}, {v(t(e))}" for e in range(8)]
        ops += [f"v_mul_f32 {v(u(e))}, {v(u(e))}, {v(t(e))}" for e in range(8)]
        for tt in range(2):
            for h in range(2):
                ops.append(f"v_cvt_pk_bf16_f32 {v(OUT+4*tt+2*p+h)}, {v(u(4*tt+2*h))}, {v(u(4*tt+2*h+1))}")
        return ops
    def store_pair_ops():
        return [f"s_add_u32 {s(sst)}, {s(sh0)}, {s(sik)}\nbuffer_store_dwordx4 {v(OUT,4)}, {v(vl16)}, {s(rHH,4)}, {s(sst)} offen",
                f"s_add_u32 {s(sst)}, {s(sst)}, 147456\nbuffer_store_dwordx4 {v(OUT+4,4)}, {v(vl16)}, {s(rHH,4)}, {s(sst)} offen"]

    def unit(X, sel, extra, xwait=False, barrier=False, last=False, pre=None, vmw=0, fine=None):
        slots = spread(extra, 18*4 - 6, start=4)
        slots += [[] for _ in range(6)]
        for ks in range(18):
            if fine is not None and ks in fine: k(f"s_memtime {s(fine[ks],2)}")
            if pre and ks in pre:
                for o in pre[ks]: k(o)
            if barrier and ks == 16:
                k(f"s_waitcnt vmcnt({vmw}) lgkmcnt(0)")
                k("s_barrier")
                if fine is not None and 'b' in fine: k(f"s_memtime {s(fine['b'],2)}")
                for r in (vgA, vgB, vuA, vuB): k(f"v_add_u32 {v(r)}, {s(sdelta)}, {v(r)}")
                k(f"v_xor_b32 {v(vgA)}, {s(sxor)}, {v(vgA)}")
                k(f"v_xor_b32 {v(vuA)}, {s(sxor)}, {v(vuA)}")
                k(f"s_sub_u32 {s(sdelta)}, 0, {s(sdelta)}")
            nk = ks + 2
            rd = []
            if nk < 18: rd = reads(sel, nk)
            elif not last: rd = reads(1-sel, nk-18)
            late = interleave and not (barrier and ks == 16) and not xwait
            if not late:
                for o in rd: k(o)
                rd = []
            if xwait: k(f"s_waitcnt vmcnt({xw[ks]})")
            nrd = (2 if plain_read else 4)
            if last and ks == 16: k(f"s_waitcnt lgkmcnt({nrd})")
            elif last and ks == 17: k("s_waitcnt lgkmcnt(0)")
            elif not (barrier and ks >= 16): k("s_waitcnt lgkmcnt(%d)" % (nrd if late else 2*nrd))
            if prio: k("s_setprio 1")
            slot = RING + 8*(ks % 3)
            for j, (acc, af, t) in enumerate(((X, slot, 0), (X+8, slot+4, 0), (X+4, slot, 1), (X+12, slot+4, 1))):
                c = "0" if ks == 0 else v(acc, 4)
                k(f"v_mfma_f32_16x16x32_bf16 {v(acc,4)}, {v(af,4)}, {a((t*18+ks)*4,4)}, {c}")
                if prio == 1 and j == 3: k("s_setprio 0")
                if rd: k(rd.pop(0))
                for o in slots[ks*4 + j]: k(o)
            if prio == 2: k("s_setprio 0")
            for o in rd: k(o)

    k(f"s_mov_b32 {s(sxor)}, 0")
    unit(ACC[0], 0, [], xwait=True, pre=pre0)
    stamp()
    unit(ACC[1], 1, epi_ops(ACC[0], 0), barrier=True)
    stamp()
    if stamps: k("s_memrealtime s[94:95]")
    k(f"s_mov_b32 {s(sloop)}, 1")
    k("L_g1_loop:")
    k(f"s_add_u32 {s(sik)}, {s(sloop)}, 1")
    k(f"s_lshl_b32 {s(sik)}, {s(sik)}, 6")
    k(f"s_add_u32 {s(sik)}, {s(sik)}, {s(sf0)}")
    k(f"s_cmp_eq_u32 {s(sloop)}, 3")
    k(f"s_cselect_b32 {s(sik+2)}, {s(sf4)}, {s(sik)}")
    k(f"s_and_b32 {s(stmp)}, {s(sjf)}, 1")
    k(f"s_lshl_b32 {s(stmp)}, {s(stmp)}, 5")
    k(f"s_cmp_eq_u32 {s(sloop)}, 3")
    k(f"s_cselect_b32 {s(sxor)}, {s(stmp)}, 0")
    k(f"s_add_u32 {s(stmp)}, {s(sloop)}, 1")
    k(f"s_and_b32 {s(stmp)}, {s(stmp)}, 1")
    k(f"s_mul_i32 {s(sbuf)}, {s(stmp)}, {STG}")
    k(f"s_lshr_b32 {s(sik)}, {s(sf0)}, 6")
    k(f"s_add_u32 {s(sik)}, {s(sik)}, {s(sloop)}")
    k(f"s_sub_u32 {s(sik)}, {s(sik)}, 1")
    k(f"s_lshl_b32 {s(sik)}, {s(sik)}, 10")
    d = dma_ops(sik+2, None)
    if no_dma: d = [[] for _ in d]
    pre = {0: d[0] + d[1]}
    for i in range(2, 10): pre[i-1] = d[i]
    unit(ACC[0], 0, epi_ops(ACC[1], 1) + store_pair_ops(), pre=pre, fine=({0: 76, 9: 78} if stamps else None))
    unit(ACC[1], 1, epi_ops(ACC[0], 0), barrier=True, vmw=2, fine=({0: 80, 16: 82, 'b': 84} if stamps else None))
    if stamps: k("s_memtime s[86:87]")
    k(f"s_add_u32 {s(sloop)}, {s(sloop)}, 1")
    k(f"s_cmp_lt_u32 {s(sloop)}, 4")
    k(f"s_cbranch_scc1 L_g1_loop")
    stamp()
    if stamps: k("s_memrealtime s[96:97]")
    k(f"s_lshr_b32 {s(sik)}, {s(sf0)}, 6")
    k(f"s_add_u32 {s(sik)}, {s(sik)}, 3")
    k(f"s_lshl_b32 {s(sik)}, {s(sik)}, 10")
    unit(ACC[0], 0, epi_ops(ACC[1], 1) + store_pair_ops(), last=True)
    for o in epi_ops(ACC[0], 0): k(o)
    k(f"s_lshr_b32 {s(sik)}, {s(sf4)}, 6")
    k(f"s_lshl_b32 {s(sik)}, {s(sik)}, 10")
    k(f"s_add_u32 {s(stmp)}, {s(sh0)}, {s(sik)}")
    k(f"buffer_store_dwordx2 {v(OUT,2)}, {v(vst2)}, {s(rHH,4)}, {s(stmp)} offen")
    k(f"s_add_u32 {s(stmp)}, {s(stmp)}, 147456")
    k(f"buffer_store_dwordx2 {v(OUT+4,2)}, {v(vst2)}, {s(rHH,4)}, {s(stmp)} offen")
    if stamps:
        stamp()
        k("s_waitcnt vmcnt(0)")
        stamp()
        k("s_memrealtime s[92:93]")
        k("s_waitcnt lgkmcnt(0)")
        k("s_sub_u32 s92, s92, s90")
        srd(k, 24, sWS, WS["AUX"], WS["AUX_SZ"])
        k(f"s_lshl_b32 {s(stmp)}, s2, 3")
        k(f"s_add_u32 {s(stmp)}, {s(stmp)}, {s(sw)}")
        k(f"s_lshl_b32 {s(stmp)}, {s(stmp)}, 6")
        for i in range(nst[0]):
            k(f"s_sub_u32 {s(60+2*i+1)}, {s(60+2*i)}, s60")
            k(f"v_mov_b32 v8, {s(60+2*i+1)}")
            k(f"v_mov_b32 v9, {s(stmp)}")
            k(f"buffer_store_dword v8, v9, s[24:27], 0 offen offset:{4*i}")
        k(f"v_mov_b32 v8, s92")
        k(f"buffer_store_dword v8, v9, s[24:27], 0 offen offset:{4*7}")
        k(f"v_mov_b32 v8, s90")
        k(f"buffer_store_dword v8, v9, s[24:27], 0 offen offset:{4*8}")
        k(f"s_sub_u32 s96, s96, s94")
        k(f"v_mov_b32 v8, s96")
        k(f"buffer_store_dword v8, v9, s[24:27], 0 offen offset:{4*15}")
        for i in range(6):
            k(f"s_sub_u32 s{77+2*i}, s{76+2*i}, s76")
            k(f"v_mov_b32 v8, s{77+2*i}")
            k(f"buffer_store_dword v8, v9, s[24:27], 0 offen offset:{4*(9+i)}")
    k("L_g1_end:")
    k("s_endpgm")
    return k, (256, 512, 2*STG)
```

```python
from asmgen import *
from layout import *
from k_g1 import srd, spread

def w_patterns(k, vbase, rowb, tmp):
    for i in range(3):
        t0, t1, t2 = tmp, tmp+1, tmp+2
        k(f"v_add_u32 {v(t0)}, {64*i}, v0")
        k(f"v_mul_u32_u24 {v(t1)}, 21846, {v(t0)}")
        k(f"v_lshrrev_b32 {v(t1)}, 18, {v(t1)}")
        k(f"v_mul_u32_u24 {v(t2)}, 12, {v(t1)}")
        k(f"v_sub_u32 {v(t0)}, {v(t0)}, {v(t2)}")
        k(f"v_lshrrev_b32 {v(t2)}, 2, {v(t1)}")
        k(f"v_and_b32 {v(t2)}, 1, {v(t2)}")
        k(f"v_lshlrev_b32 {v(t2)}, 1, {v(t2)}")
        k(f"v_xor_b32 {v(t0)}, {v(t0)}, {v(t2)}")
        k(f"v_lshlrev_b32 {v(t0)}, 4, {v(t0)}")
        k(f"v_mul_u32_u24 {v(t1)}, {rowb}, {v(t1)}")
        k(f"v_add_u32 {v(vbase+i)}, {v(t0)}, {v(t1)}")

def gen_g2(stamps=False, NS=6):
    k = Kern("g2_kernel", vgprs=200, agprs=16*NS)
    SLOT = 6144; PD = NS-1
    sWS, sW2, sOUT = 4, 6, 8
    rW2, rHH, rX1, rMOD, rOUT = 12, 16, 20, 24, 28
    sw, srb, scs, shh, swsrc, slds, stmp, stmp2, sloop, sx1 = range(32, 42)
    vl16, vP, vE, vO, vout = 1, 2, 5, 6, 7
    ACC = 8
    AF = 104
    EP = 152
    acc = lambda dt, t: ACC + (dt*4+t)*4
    k("s_cmp_ge_u32 s2, 192\ns_cbranch_scc1 L_g2_end")
    k(f"s_load_dwordx2 {s(sWS,2)}, s[0:1], {KA['ws']}")
    k(f"s_load_dwordx2 {s(sW2,2)}, s[0:1], {KA['w2']}")
    k(f"s_load_dwordx2 {s(sOUT,2)}, s[0:1], {KA['out']}")
    if stamps: k("s_memtime s[60:61]\ns_memrealtime s[62:63]")
    k("v_lshrrev_b32 v8, 6, v0\nv_and_b32 v0, 63, v0")
    k(f"v_readfirstlane_b32 {s(sw)}, v8")
    k(f"v_lshlrev_b32 {v(vl16)}, 4, v0")
    w_patterns(k, vP, 1152, 8)
    k("v_lshrrev_b32 v8, 2, v0\nv_mul_u32_u24 v8, 192, v8\nv_and_b32 v9, 3, v0\nv_lshlrev_b32 v9, 3, v9\nv_add_u32 v8, v8, v9")
    k("v_lshrrev_b32 v9, 4, v0\nv_and_b32 v9, 1, v9\nv_lshlrev_b32 v9, 5, v9")
    k(f"v_add_u32 {v(vE)}, v8, v9")
    k(f"v_xor_b32 v9, 32, v9\nv_add_u32 {v(vO)}, v8, v9")
    k(f"s_and_b32 {s(stmp)}, s2, 7\ns_lshl_b32 {s(srb)}, {s(stmp)}, 2\ns_lshr_b32 {s(stmp)}, s2, 3\ns_and_b32 {s(stmp2)}, {s(stmp)}, 3\ns_add_u32 {s(srb)}, {s(srb)}, {s(stmp2)}\ns_lshr_b32 {s(scs)}, {s(stmp)}, 2")
    k(f"s_mul_i32 {s(shh)}, {s(srb)}, {4*144*1024}\ns_mul_i32 {s(stmp)}, {s(sw)}, {36*1024}\ns_add_u32 {s(shh)}, {s(shh)}, {s(stmp)}")
    k(f"s_mul_i32 {s(swsrc)}, {s(sw)}, {36*32*1152}\ns_mul_i32 {s(stmp)}, {s(scs)}, 192\ns_add_u32 {s(swsrc)}, {s(swsrc)}, {s(stmp)}")
    k(f"s_mul_i32 {s(slds)}, {s(sw)}, {NS*SLOT}")
    k(f"v_add_u32 {v(vE)}, {s(slds)}, {v(vE)}\nv_add_u32 {v(vO)}, {s(slds)}, {v(vO)}")
    k("s_waitcnt lgkmcnt(0)")
    srd(k, rW2, sW2, 0, 4608*1152); srd(k, rHH, sWS, WS["HHF"], WS["HHF_SZ"]); srd(k, rX1, sWS, WS["X1F"], WS["X1F_SZ"])
    srd(k, rMOD, sWS, WS["MOD"], WS["MOD_SZ"]); srd(k, rOUT, sOUT, 0, 2048*1152)

    def loads(step_mod):
        ops = []
        for i in range(6):
            g = f"s_add_u32 m0, {s(slds)}, {step_mod*SLOT + i*1024}\n"
            g += (f"s_add_u32 {s(stmp)}, {s(swsrc)}, {16*1152}\n" if i == 3 else ("s_nop 0\n" if i == 0 else ""))
            g += f"buffer_load_dwordx4 {v(vP + i%3)}, {s(rW2,4)}, {s(swsrc if i < 3 else stmp)} offen lds"
            ops.append(g)
        for t in range(4):
            g = f"s_add_u32 {s(stmp2)}, {s(shh)}, {t*147456}\n"
            g += f"buffer_load_dwordx4 {a(step_mod*16 + t*4, 4)}, {v(vl16)}, {s(rHH,4)}, {s(stmp2)} offen"
            ops.append(g)
        ops.append(f"s_add_u32 {s(swsrc)}, {s(swsrc)}, {32*1152}\ns_add_u32 {s(shh)}, {s(shh)}, 1024")
        return ops
    def areads(step_mod, par):
        ops = []
        for dt in range(6):
            r = AF + par*24 + dt*4; ad = vE if dt % 2 == 0 else vO
            o = step_mod*SLOT + (dt & ~1)*32
            ops.append(f"ds_read_b64_tr_b16 {v(r,2)}, {v(ad)} offset:{o}")
            ops.append(f"ds_read_b64_tr_b16 {v(r+2,2)}, {v(ad)} offset:{o+3072}")
        return ops
    for st in range(PD):
        for o in loads(st): k(o)
    k(f"s_waitcnt vmcnt({10*PD-6})")
    for o in areads(0, 0): k(o)
    if stamps: k("s_memtime s[64:65]")
    def step(i, first, ld, wvm, nxt_reads=True, extra=[]):
        sm = i % NS; par = i % 2
        k(f"s_waitcnt vmcnt({wvm}) lgkmcnt(0)")
        fill = []
        if nxt_reads: fill += areads((i+1) % NS, 1-par)
        if ld: fill += loads((i+PD) % NS)
        fill += extra
        slots = spread(fill, 24)
        j = 0
        for t in range(4):
            for dt in range(6):
                c = "0" if first else v(acc(dt,t),4)
                k(f"v_mfma_f32_16x16x32_bf16 {v(acc(dt,t),4)}, {v(AF+par*24+dt*4,4)}, {a(sm*16+t*4,4)}, {c}")
                for o in slots[j]: k(o)
                j += 1
    WV = 4 + 10*(PD-2)
    assert 36 % NS == 0 and NS % 2 == 0
    nit = 36 // NS
    for i in range(NS): step(i, i == 0, True, WV)
    k(f"s_mov_b32 {s(sloop)}, 1")
    k("L_g2_loop:")
    for i in range(NS): step(i, False, True, WV)
    k(f"s_add_u32 {s(sloop)}, {s(sloop)}, 1\ns_cmp_lt_u32 {s(sloop)}, {nit-1}\ns_cbranch_scc1 L_g2_loop")
    X1 = EP; GBv = EP + 12
    ep = []
    ep.append(f"s_lshl_b32 {s(stmp)}, {s(srb)}, 2\ns_add_u32 {s(stmp)}, {s(stmp)}, {s(sw)}\ns_mul_i32 {s(sx1)}, {s(stmp)}, {18*1024}\ns_mul_i32 {s(stmp2)}, {s(scs)}, {3*1024}\ns_add_u32 {s(sx1)}, {s(sx1)}, {s(stmp2)}")
    for j in range(3): ep.append(f"buffer_load_dwordx4 {v(X1+4*j,4)}, {v(vl16)}, {s(rX1,4)}, {s(sx1)} offen offset:{j*1024}")
    ep.append(f"v_lshrrev_b32 v2, 4, v0\nv_lshlrev_b32 v3, 4, v2\ns_mul_i32 {s(stmp2)}, {s(scs)}, {96*4}\ns_add_u32 {s(stmp2)}, {s(stmp2)}, {5*576*4}")
    for dt in range(6): ep.append(f"buffer_load_dwordx4 {v(GBv+4*dt,4)}, v3, {s(rMOD,4)}, {s(stmp2)} offen offset:{dt*64}")
    NEP = 9
    for i in range(NS):
        g = 36 - NS + i
        ld = g + PD <= 35
        last_issued = min(g+PD-1, 35)
        pass
        need_until = min(g+1, 35)
        if g+1 <= 35: allowed = 4 + 10*(last_issued - (g+1))
        else: allowed = 0
        do_ep = (i == 1)
        if i > 1: allowed += NEP if g+1 <= 35 or True else 0
        step(i, False, ld, allowed, nxt_reads=(g < 35), extra=(ep if do_ep else []))
    if stamps: k("s_memtime s[66:67]")
    k(f"s_lshl_b32 {s(stmp)}, {s(srb)}, 2\ns_add_u32 {s(stmp)}, {s(stmp)}, {s(sw)}")
    k("v_lshrrev_b32 v2, 4, v0")
    k(f"v_and_b32 v4, 15, v0\ns_lshl_b32 {s(stmp)}, {s(stmp)}, 4\nv_add_u32 v4, {s(stmp)}, v4\nv_mul_u32_u24 {v(vout)}, 1152, v4")
    k(f"v_lshlrev_b32 v2, 3, v2\nv_add_u32 {v(vout)}, {v(vout)}, v2\ns_mul_i32 {s(stmp)}, {s(scs)}, 192")
    k(f"v_add_u32 {v(vout)}, {s(stmp)}, {v(vout)}")
    k("s_barrier")
    k(f"s_mul_i32 {s(stmp)}, {s(sw)}, 24576\nv_add_u32 v2, {s(stmp)}, {v(vl16)}")
    k("s_nop 7")
    for t in range(4):
        for dt in range(6):
            k(f"ds_write_b128 v2, {v(acc(dt,t),4)} offset:{(t*6+dt)*1024}")
    k("s_waitcnt lgkmcnt(0)\ns_barrier")
    k(f"s_mul_i32 {s(stmp)}, {s(sw)}, 6144\nv_add_u32 v2, {s(stmp)}, {v(vl16)}\nv_add_u32 v3, 49152, v2")
    R = AF
    for src in range(4):
        for dt in range(6):
            ad = "v2" if src < 2 else "v3"
            k(f"ds_read_b128 {v(ACC+(src*6+dt)*4,4)}, {ad} offset:{(src%2)*24576 + dt*1024}")
    k("s_waitcnt lgkmcnt(0)")
    for dt in range(6):
        for r in range(4):
            a0 = ACC+dt*4+r
            k(f"v_add_f32 {v(a0)}, {v(a0)}, {v(a0+24)}")
            k(f"v_add_f32 {v(a0+48)}, {v(a0+48)}, {v(a0+72)}")
    k("s_waitcnt vmcnt(0)")
    for dt in range(6):
        for r in range(4):
            a0 = ACC+dt*4+r
            k(f"v_add_f32 {v(a0)}, {v(a0)}, {v(a0+48)}")
        xr = X1 + (dt >> 1)*4 + (dt & 1)*2
        T = AF + dt*4
        k(f"v_lshlrev_b32 {v(T)}, 16, {v(xr)}\nv_and_b32 {v(T+1)}, 0xffff0000, {v(xr)}")
        k(f"v_lshlrev_b32 {v(T+2)}, 16, {v(xr+1)}\nv_and_b32 {v(T+3)}, 0xffff0000, {v(xr+1)}")
        for r in range(4): k(f"v_fma_f32 {v(T+r)}, {v(GBv+dt*4+r)}, {v(ACC+dt*4+r)}, {v(T+r)}")
        k(f"v_cvt_pk_bf16_f32 {v(T)}, {v(T)}, {v(T+1)}\nv_cvt_pk_bf16_f32 {v(T+1)}, {v(T+2)}, {v(T+3)}")
        k(f"buffer_store_dwordx2 {v(T,2)}, {v(vout)}, {s(rOUT,4)}, 0 offen offset:{dt*32}")
    if stamps:
        k("s_waitcnt vmcnt(0)\ns_memtime s[68:69]\ns_memrealtime s[70:71]\ns_waitcnt lgkmcnt(0)")
        srd(k, 24, sWS, WS["AUX"], WS["AUX_SZ"])
        k(f"s_lshl_b32 {s(stmp)}, s2, 3\ns_add_u32 {s(stmp)}, {s(stmp)}, {s(sw)}\ns_lshl_b32 {s(stmp)}, {s(stmp)}, 6\nv_mov_b32 v9, {s(stmp)}")
        for i, (x, y) in enumerate(((64,60),(66,60),(68,60),(70,62))):
            k(f"s_sub_u32 s72, s{x}, s{y}\nv_mov_b32 v8, s72\nbuffer_store_dword v8, v9, s[24:27], 0 offen offset:{4*i}")
        k(f"v_mov_b32 v8, s62\nbuffer_store_dword v8, v9, s[24:27], 0 offen offset:16")
    k("L_g2_end:\ns_endpgm")
    return k, (192, 256, max(98304, 4*NS*SLOT))
```

```python
from asmgen import *
from layout import *
from k_g1 import srd, spread

def gen_k0():
    k = Kern("k0_kernel", vgprs=128)
    sWS, sC, sW = 4, 6, 8
    rW, rC, rMOD = 12, 16, 20
    stmp, spart = 32, 33
    k("s_cmp_ge_u32 s2, 54\ns_cbranch_scc1 L_k0_end")
    k(f"s_load_dwordx2 {s(sWS,2)}, s[0:1], {KA['ws']}\ns_load_dwordx2 {s(sC,2)}, s[0:1], {KA['c']}\ns_load_dwordx2 {s(sW,2)}, s[0:1], {KA['wmod']}")
    k("v_and_b32 v1, 7, v0\nv_lshrrev_b32 v2, 3, v0")
    k("v_mul_u32_u24 v3, 6912, v2\nv_lshlrev_b32 v4, 4, v1\nv_add_u32 v3, v3, v4")
    k(f"s_lshl_b32 {s(stmp)}, s2, 7\nv_add_u32 v3, {s(stmp)}, v3")
    k("v_lshlrev_b32 v4, 1, v2")
    k("s_waitcnt lgkmcnt(0)")
    srd(k, rW, sW, 0, 576*6912); srd(k, rC, sC, 0, 1152); srd(k, rMOD, sWS, WS["MOD"], WS["MOD_SZ"])
    C = 8; W = 28
    for i in range(18): k(f"buffer_load_ushort {v(C+i)}, v4, {s(rC,4)}, 0 offen offset:{64*i}")
    for i in range(18): k(f"s_mov_b32 {s(stmp)}, {i*32*6912}\nbuffer_load_dwordx4 {v(W+4*i,4)}, v3, {s(rW,4)}, {s(stmp)} offen")
    k("s_waitcnt vmcnt(18)")
    T = 100
    for i in range(18): k(f"v_lshlrev_b32 {v(C+i)}, 16, {v(C+i)}")
    for b in range(0, 18, 6):
        es = range(b, b+6)
        for i in es: k(f"v_mul_f32 {v(T+i-b)}, 0xbfb8aa3b, {v(C+i)}")
        for i in es: k(f"v_exp_f32 {v(T+i-b)}, {v(T+i-b)}")
        for i in es: k(f"v_add_f32 {v(T+i-b)}, 1.0, {v(T+i-b)}")
        for i in es: k(f"v_rcp_f32 {v(T+i-b)}, {v(T+i-b)}")
        for i in es: k(f"v_mul_f32 {v(C+i)}, {v(C+i)}, {v(T+i-b)}")
        for i in es: k(f"v_cvt_pk_bf16_f32 {v(C+i)}, {v(C+i)}, {v(C+i)}")
        for i in es: k(f"v_lshlrev_b32 {v(C+i)}, 16, {v(C+i)}")
    A = 108
    for e in range(8): k(f"v_mov_b32 {v(A+e)}, 0")
    for i in range(18):
        k(f"s_waitcnt vmcnt({17-i})")
        for j in range(4):
            k(f"v_lshlrev_b32 {v(T)}, 16, {v(W+4*i+j)}\nv_and_b32 {v(T+1)}, 0xffff0000, {v(W+4*i+j)}")
            k(f"v_fmac_f32 {v(A+2*j)}, {v(T)}, {v(C+i)}\nv_fmac_f32 {v(A+2*j+1)}, {v(T+1)}, {v(C+i)}")
    k("v_lshlrev_b32 v5, 8, v2\nv_lshlrev_b32 v6, 5, v1\nv_add_u32 v5, v5, v6")
    k(f"ds_write_b128 v5, {v(A,4)}\nds_write_b128 v5, {v(A+4,4)} offset:16")
    k("s_waitcnt lgkmcnt(0)\ns_barrier")
    k("v_cmp_gt_u32 vcc, 64, v0\ns_and_saveexec_b64 s[40:41], vcc\ns_cbranch_execz L_k0_end")
    k("v_lshlrev_b32 v5, 2, v0")
    for r in range(32): k(f"ds_read_b32 {v(W+r)}, v5 offset:{r*256}")
    k("s_waitcnt lgkmcnt(0)")
    for st in (16, 8, 4, 2, 1):
        for r in range(st): k(f"v_add_f32 {v(W+r)}, {v(W+r)}, {v(W+r+st)}")
    k(f"v_cvt_pk_bf16_f32 {v(W)}, {v(W)}, {v(W)}\nv_lshlrev_b32 {v(W)}, 16, {v(W)}")
    k(f"s_mul_i32 {s(spart)}, s2, 7282\ns_lshr_b32 {s(spart)}, {s(spart)}, 16")
    k(f"s_cmp_eq_u32 {s(spart)}, 1\ns_cbranch_scc1 L_k0_add\ns_cmp_eq_u32 {s(spart)}, 4\ns_cbranch_scc0 L_k0_st")
    k("L_k0_add:")
    k(f"v_add_f32 {v(W)}, 1.0, {v(W)}\nv_cvt_pk_bf16_f32 {v(W)}, {v(W)}, {v(W)}\nv_lshlrev_b32 {v(W)}, 16, {v(W)}")
    k("L_k0_st:")
    k(f"s_lshl_b32 {s(stmp)}, s2, 8\nbuffer_store_dword {v(W)}, v5, {s(rMOD,4)}, {s(stmp)} offen")
    k("L_k0_end:\ns_endpgm")
    return k, (54, 256, 8192)

def gen_k1(stamps=False):
    k = Kern("k1_kernel", vgprs=252, agprs=72)
    SLOT = 9216; NSL = 16; MODL = NSL*SLOT
    sWS, sX, sW = 4, 6, 8
    rW, rX, rMOD, rQM, rQR, rKV = 12, 16, 20, 24, 28, 44
    sw, srb, scs, stmp, stmp2, ssrc, sqt, sh0, skind = range(32, 41)
    vP = 1
    vx, vA, vl16, vt = 10, 11, 12, 13
    X = 16
    ACC = 160
    M = 232
    xr = lambda t, ks: X + (t*18+ks)*4
    acc = lambda u, t: ACC + (u*2+t)*4
    k("s_cmp_ge_u32 s2, 192\ns_cbranch_scc1 L_k1_end")
    k(f"s_load_dwordx2 {s(sWS,2)}, s[0:1], {KA['ws']}\ns_load_dwordx2 {s(sX,2)}, s[0:1], {KA['x']}\ns_load_dwordx2 {s(sW,2)}, s[0:1], {KA['wqkv']}")
    if stamps: k("s_memtime s[60:61]\ns_memrealtime s[62:63]")
    k(f"v_lshrrev_b32 v14, 6, v0\nv_and_b32 v0, 63, v0\nv_readfirstlane_b32 {s(sw)}, v14")
    k(f"v_lshlrev_b32 {v(vl16)}, 4, v0")
    k(f"s_and_b32 {s(stmp)}, s2, 7\ns_lshl_b32 {s(srb)}, {s(stmp)}, 1\ns_lshr_b32 {s(stmp)}, s2, 3\ns_and_b32 {s(stmp2)}, {s(stmp)}, 1\ns_add_u32 {s(srb)}, {s(srb)}, {s(stmp2)}\ns_lshr_b32 {s(scs)}, {s(stmp)}, 1")
    k(f"s_lshl_b32 {s(sqt)}, {s(srb)}, 2\ns_add_u32 {s(sqt)}, {s(sqt)}, {s(sw)}")
    for i in range(9):
        k(f"v_add_u32 v13, {64*i}, v0\nv_mul_u32_u24 v14, 3641, v13\nv_lshrrev_b32 v14, 16, v14\nv_mul_u32_u24 v15, 18, v14\nv_sub_u32 v13, v13, v15")
        k(f"v_lshrrev_b32 v15, 1, v14\nv_and_b32 v15, 4, v15\nv_xor_b32 v14, v14, v15\nv_mul_u32_u24 v14, 3456, v14\nv_lshlrev_b32 v13, 4, v13\nv_add_u32 {v(vP+i)}, v13, v14")
    k(f"v_and_b32 v13, 15, v0\ns_lshl_b32 {s(stmp)}, {s(sqt)}, 5\nv_add_u32 v13, {s(stmp)}, v13\nv_mul_u32_u24 v13, 1152, v13\nv_lshrrev_b32 v14, 4, v0\nv_lshlrev_b32 v14, 4, v14\nv_add_u32 {v(vx)}, v13, v14")
    k("v_lshrrev_b32 v13, 4, v0\nv_lshlrev_b32 v13, 3, v13\nv_bfe_u32 v14, v0, 2, 2\nv_add_u32 v13, v13, v14")
    k("v_lshrrev_b32 v14, 1, v13\nv_and_b32 v14, 4, v14\nv_xor_b32 v15, v13, v14")
    k(f"v_mul_u32_u24 v15, 288, v15\nv_and_b32 v14, 3, v0\nv_lshlrev_b32 v14, 3, v14\nv_add_u32 {v(vA)}, v15, v14")
    k("v_add_u32 v13, 4, v13\nv_lshrrev_b32 v15, 1, v13\nv_and_b32 v15, 4, v15\nv_xor_b32 v15, v13, v15")
    k(f"v_mul_u32_u24 v15, 288, v15\nv_add_u32 {v(M+16)}, v15, v14")
    vA2 = M+16
    k("s_waitcnt lgkmcnt(0)")
    srd(k, rW, sW, 0, 576*3456); srd(k, rX, sX, 0, 2048*1152); srd(k, rMOD, sWS, WS["MOD"], WS["MOD_SZ"])
    srd(k, rQM, sWS, WS["QM"], WS["QM_SZ"]); srd(k, rQR, sWS, WS["QR"], WS["QR_SZ"]); srd(k, rKV, sWS, WS["KV"], WS["KV_SZ"])
    for ks in range(18):
        for t in range(2):
            k(f"s_mov_b32 {s(stmp)}, {t*16*1152}\nbuffer_load_dwordx4 {v(xr(t,ks),4)}, {v(vx)}, {s(rX,4)}, {s(stmp)} offen offset:{ks*64}")
    k(f"s_lshl_b32 {s(stmp)}, {s(sw)}, 10\ns_add_u32 m0, {s(stmp)}, {MODL}\ns_nop 0\nbuffer_load_dwordx4 {v(vl16)}, {s(rMOD,4)}, {s(stmp)} offen lds")
    k(f"s_mov_b32 {s(stmp)}, 4096\ns_mov_b32 m0, {MODL+4096}\ns_nop 0\nbuffer_load_dwordx4 {v(vl16)}, {s(rMOD,4)}, {s(stmp)} offen lds")
    k(f"s_mul_i32 {s(ssrc)}, {s(scs)}, 288\ns_mul_i32 {s(stmp)}, {s(sw)}, {32*3456}\ns_add_u32 {s(ssrc)}, {s(ssrc)}, {s(stmp)}\ns_mul_i32 {s(sh0)}, {s(sw)}, {SLOT}")
    def wdma(g, slotbase):
        for i in range(9):
            k(f"s_add_u32 m0, {s(sh0)}, {slotbase + i*1024}\ns_add_u32 {s(stmp)}, {s(ssrc)}, {g*4*32*3456}\nbuffer_load_dwordx4 {v(vP+i)}, {s(rW,4)}, {s(stmp)} offen lds")
    wdma(0, 0)
    for t in range(2): k(f"v_mov_b32 {v(M+2*t)}, 0\nv_mov_b32 {v(M+2*t+1)}, 0")
    k(f"v_mov_b32 {v(M+4)}, 0x3f803f80")
    for ks in range(18):
        k(f"s_waitcnt vmcnt({11 + 2*(17-ks)})")
        for t in range(2):
            for j in range(4):
                r = xr(t,ks)+j
                k(f"v_dot2_f32_bf16 {v(M+2*t)}, {v(r)}, {v(M+4)}, {v(M+2*t)}\nv_dot2_f32_bf16 {v(M+2*t+1)}, {v(r)}, {v(r)}, {v(M+2*t+1)}")
        if ks in (2, 6, 10): wdma(ks//4 + 1, (ks//4 + 1)*4*SLOT)
    for i in range(4):
        r = v(M+i)
        k(f"v_mov_b32 v13, {r}\nv_permlane32_swap_b32 {r}, v13\nv_add_f32 {r}, {r}, v13\nv_mov_b32 v13, {r}\nv_permlane16_swap_b32 {r}, v13\nv_add_f32 {r}, {r}, v13")
    for t in range(2):
        m, q = M+2*t, M+2*t+1
        k(f"v_mul_f32 {v(m)}, 0x3ae38e39, {v(m)}\nv_mul_f32 {v(q)}, 0x3ae38e39, {v(q)}")
        k(f"v_fma_f32 {v(q)}, -{v(m)}, {v(m)}, {v(q)}\nv_max_f32 {v(q)}, 0, {v(q)}\nv_add_f32 {v(q)}, 0x3727c5ac, {v(q)}\nv_rsq_f32 {v(q)}, {v(q)}")
        k(f"s_nop 0\nv_mul_f32 {v(m)}, {v(m)}, {v(q)}\nv_sub_f32 {v(m)}, 0, {v(m)}")
    k("s_waitcnt vmcnt(0)\ns_barrier")
    if stamps: k("s_memtime s[64:65]")
    k(f"v_lshrrev_b32 v13, 4, v0\nv_lshlrev_b32 v13, 5, v13\nv_add_u32 v13, {MODL}, v13")
    PR = M+6
    for t in range(2):
        k(f"v_mov_b32 {v(PR+4*t)}, {v(M+2*t+1)}\nv_mov_b32 {v(PR+4*t+1)}, {v(M+2*t+1)}\nv_mov_b32 {v(PR+4*t+2)}, {v(M+2*t)}\nv_mov_b32 {v(PR+4*t+3)}, {v(M+2*t)}")
    G = ACC; SA = ACC+16; T = ACC+32
    def modreads(ks):
        b = (ks % 2)*8
        return [f"ds_read_b128 {v(SA+b,4)}, v13 offset:{ks*128}", f"ds_read_b128 {v(SA+b+4,4)}, v13 offset:{ks*128+16}",
                f"ds_read_b128 {v(G+b,4)}, v13 offset:{2304+ks*128}", f"ds_read_b128 {v(G+b+4,4)}, v13 offset:{2304+ks*128+16}"]
    for o in modreads(0): k(o)
    for ks in range(18):
        if ks < 17:
            for o in modreads(ks+1): k(o)
            k("s_waitcnt lgkmcnt(4)")
        else: k("s_waitcnt lgkmcnt(0)")
        b = (ks % 2)*8
        for t in range(2):
            for j in range(4):
                r = xr(t,ks)+j; tt = T + (t*4+j)*2
                k(f"v_lshlrev_b32 {v(tt)}, 16, {v(r)}\nv_and_b32 {v(tt+1)}, 0xffff0000, {v(r)}")
            for j in range(4):
                tt = T + (t*4+j)*2
                k(f"v_pk_fma_f32 {v(tt,2)}, {v(tt,2)}, {v(PR+4*t,2)}, {v(PR+4*t+2,2)}")
            for j in range(4):
                tt = T + (t*4+j)*2
                k(f"v_pk_fma_f32 {v(tt,2)}, {v(tt,2)}, {v(G+b+2*j,2)}, {v(SA+b+2*j,2)}")
            for j in range(4):
                r = xr(t,ks)+j; tt = T + (t*4+j)*2
                k(f"v_cvt_pk_bf16_f32 {v(r)}, {v(tt)}, {v(tt+1)}")
    if stamps: k("s_memtime s[66:67]")
    def areads(ks, par):
        ops = []
        sl = (ks % NSL)*SLOT
        for u in range(9):
            r = par*36 + u*4
            ops.append(f"ds_read_b64_tr_b16 {a(r,2)}, {v(vA if sl < 57344 else M+17)} offset:{(sl if sl < 57344 else sl-57344) + u*32}" if False else None)
        return ops
    vAb = [vA, M+17, M+18]; vA2b = [vA2, M+19, 14]
    k(f"v_add_u32 {v(M+17)}, {7*SLOT}, {v(vA)}\nv_add_u32 {v(M+18)}, {14*SLOT}, {v(vA)}")
    k(f"v_add_u32 {v(M+19)}, {7*SLOT}, {v(vA2)}\nv_add_u32 v14, {14*SLOT}, {v(vA2)}")
    def areads(ks, par):
        ops = []
        slot = ks % NSL; bi = slot // 7; o = (slot % 7)*SLOT
        for u in range(9):
            r = par*36 + u*4
            ops.append(f"ds_read_b64_tr_b16 {a(r,2)}, {v(vAb[bi])} offset:{o + u*32}")
            ops.append(f"ds_read_b64_tr_b16 {a(r+2,2)}, {v(vA2b[bi])} offset:{o + u*32}")
        return ops
    def gemm(swapped, tag):
        for o in areads(0, 0): k(o)
        for ks in range(18):
            par = ks % 2
            k("s_waitcnt lgkmcnt(0)")
            pre = []
            if ks == 2:
                k("s_barrier")
                k(f"s_cmp_lt_u32 {s(sw)}, 2\ns_cbranch_scc0 L_k1_nodma_{tag}")
                wdma(4, 0)
                k(f"L_k1_nodma_{tag}:")
            if ks == 14:
                k("s_waitcnt vmcnt(0)\ns_barrier")
            fill = areads(ks+1, 1-par) if ks < 17 else []
            slots = spread(fill, 18)
            j = 0
            for u in range(9):
                for t in range(2):
                    c = "0" if ks == 0 else v(acc(u,t),4)
                    A_, B_ = a(par*36+u*4,4), v(xr(t,ks),4)
                    if swapped: A_, B_ = B_, A_
                    k(f"v_mfma_f32_16x16x32_bf16 {v(acc(u,t),4)}, {A_}, {B_}, {c}")
                    for o in slots[j]: k(o)
                    j += 1
    k(f"s_cmp_ge_u32 {s(scs)}, 8\ns_cbranch_scc1 L_k1_v")
    gemm(False, "qk")
    if stamps: k("s_memtime s[68:69]")
    RS = 296
    k("s_barrier")
    k(f"s_cmp_lt_u32 {s(scs)}, 4\ns_cselect_b32 {s(skind)}, 0x3eae1a93, 1.0")
    k(f"s_mul_i32 {s(stmp)}, {s(sw)}, {32*RS}")
    k(f"v_and_b32 v13, 15, v0\nv_mul_u32_u24 v13, {RS}, v13\nv_lshrrev_b32 v15, 4, v0\nv_lshlrev_b32 v15, 3, v15\nv_add_u32 v13, v13, v15\nv_add_u32 v13, {s(stmp)}, v13")
    for u in range(9):
        for t in range(2):
            r = acc(u,t)
            for e in range(4): k(f"v_mul_f32 {v(r+e)}, {s(skind)}, {v(r+e)}")
            k(f"v_cvt_pk_bf16_f32 {v(r)}, {v(r)}, {v(r+1)}\nv_cvt_pk_bf16_f32 {v(r+1)}, {v(r+2)}, {v(r+3)}")
            k(f"ds_write_b64 v13, {v(r,2)} offset:{t*16*RS + u*32}")
    k("s_waitcnt lgkmcnt(0)")
    k(f"v_and_b32 v13, 31, v0\nv_mul_u32_u24 v15, {RS}, v13\nv_lshrrev_b32 v14, 5, v0\nv_lshlrev_b32 v14, 4, v14\nv_add_u32 v15, v15, v14\nv_add_u32 v15, {s(stmp)}, v15")
    k(f"v_mul_u32_u24 v14, {RS}, v13\nv_add_u32 v14, {s(stmp)}, v14")
    R = X
    for h in range(8):
        k(f"ds_read2_b32 {v(R+8*h,2)}, v15 offset0:{9*h} offset1:{9*h+1}\nds_read2_b32 {v(R+8*h+2,2)}, v15 offset0:{9*h+2} offset1:{9*h+3}")
        k(f"ds_read_b32 {v(R+8*h+4)}, v14 offset:{36*h+32}")
    k(f"v_mov_b32 v11, 0x7fffffff\nv_cmp_gt_u32 vcc, 32, v0")
    k(f"s_and_b32 {s(sh0)}, {s(scs)}, 3\ns_lshl_b32 {s(sh0)}, {s(sh0)}, 3")
    k(f"s_cmp_lt_u32 {s(scs)}, 4\ns_cbranch_scc0 L_k1_kout")
    k("v_lshlrev_b32 v10, 2, v13\nv_cndmask_b32 v10, v11, v10, vcc")
    k(f"s_lshl_b32 {s(stmp)}, {s(sh0)}, 6\ns_add_u32 {s(stmp)}, {s(stmp)}, {s(sqt)}")
    k("s_waitcnt lgkmcnt(0)")
    for h in range(8):
        k(f"s_add_u32 {s(stmp2)}, {s(stmp)}, {64*h}\ns_lshl_b32 {s(ssrc)}, {s(stmp2)}, 10\nbuffer_store_dwordx4 {v(R+8*h,4)}, {v(vl16)}, {s(rQM,4)}, {s(ssrc)} offen")
        k(f"s_lshl_b32 {s(ssrc)}, {s(stmp2)}, 7\nbuffer_store_dword {v(R+8*h+4)}, v10, {s(rQR,4)}, {s(ssrc)} offen")
    k("s_branch L_k1_end")
    k("L_k1_kout:")
    k("v_lshlrev_b32 v10, 4, v13\nv_cndmask_b32 v10, v11, v10, vcc")
    k(f"s_mul_i32 {s(stmp)}, {s(sh0)}, {KV_STRIDE}\ns_lshl_b32 {s(stmp2)}, {s(sqt)}, 10\ns_add_u32 {s(stmp2)}, {s(stmp2)}, {s(stmp)}")
    k(f"s_lshl_b32 {s(ssrc)}, {s(srb)}, 9\ns_add_u32 {s(stmp)}, {s(stmp)}, {s(ssrc)}\ns_lshl_b32 {s(ssrc)}, {s(sw)}, 2\ns_add_u32 {s(stmp)}, {s(stmp)}, {s(ssrc)}\ns_add_u32 {s(stmp)}, {s(stmp)}, {KR_OFF}")
    k("s_waitcnt lgkmcnt(0)")
    for h in range(8):
        k(f"buffer_store_dwordx4 {v(R+8*h,4)}, {v(vl16)}, {s(rKV,4)}, {s(stmp2)} offen")
        k(f"buffer_store_dword {v(R+8*h+4)}, v10, {s(rKV,4)}, {s(stmp)} offen")
        if h < 7: k(f"s_add_u32 {s(stmp2)}, {s(stmp2)}, {KV_STRIDE}\ns_add_u32 {s(stmp)}, {s(stmp)}, {KV_STRIDE}")
    k("s_branch L_k1_end")
    k("L_k1_v:")
    gemm(True, "v")
    k(f"s_sub_u32 {s(sh0)}, {s(scs)}, 8\ns_lshl_b32 {s(sh0)}, {s(sh0)}, 3\ns_mul_i32 {s(stmp)}, {s(sh0)}, {KV_STRIDE}")
    k(f"s_mul_i32 {s(stmp2)}, {s(sqt)}, {2*608}\ns_add_u32 {s(stmp)}, {s(stmp)}, {s(stmp2)}\ns_add_u32 {s(stmp)}, {s(stmp)}, {VT_OFF}")
    k("v_lshrrev_b32 v13, 4, v0\nv_and_b32 v14, 1, v13\nv_mul_u32_u24 v14, 304, v14\nv_lshrrev_b32 v13, 1, v13\nv_lshlrev_b32 v13, 3, v13\nv_add_u32 v14, v14, v13")
    k(f"v_and_b32 v15, 15, v0\ns_mov_b32 {s(stmp2)}, {KV_STRIDE}")
    for u in range(9):
        k(f"v_add_u32 v10, {16*u}, v15\nv_mul_u32_u24 v11, 3641, v10\nv_lshrrev_b32 v11, 16, v11\nv_mul_u32_u24 v13, 18, v11\nv_sub_u32 v10, v10, v13")
        k(f"v_mul_lo_u32 v11, v11, {s(stmp2)}\nv_lshlrev_b32 v10, 4, v10\nv_add_u32 v10, v10, v11\nv_add_u32 v10, v10, v14")
        for t in range(2):
            r = acc(u,t)
            k(f"v_cvt_pk_bf16_f32 {v(r)}, {v(r)}, {v(r+1)}\nv_cvt_pk_bf16_f32 {v(r+1)}, {v(r+2)}, {v(r+3)}")
            k(f"buffer_store_dwordx2 {v(r,2)}, v10, {s(rKV,4)}, {s(stmp)} offen offset:{t*608}")
    k(f"v_lshrrev_b32 v10, 2, v0\nv_mul_lo_u32 v10, v10, {s(stmp2)}\nv_bfe_u32 v11, v0, 1, 1\nv_mul_u32_u24 v11, 608, v11\nv_add_u32 v10, v10, v11")
    k(f"v_and_b32 v11, 1, v0\nv_mul_u32_u24 v11, 304, v11\nv_add_u32 v10, v10, v11\nv_add_u32 v10, {18*16}, v10")
    k("v_mov_b32 v11, 0x7fffffff\nv_cmp_gt_u32 vcc, 32, v0\nv_cndmask_b32 v10, v11, v10, vcc")
    for e in range(4): k(f"v_mov_b32 {v(X+e)}, 0x3f803f80")
    k(f"buffer_store_dwordx4 {v(X,4)}, v10, {s(rKV,4)}, {s(stmp)} offen")
    k("L_k1_end:\ns_endpgm")
    return k, (192, 256, MODL + 5120)
```

```python
from asmgen import *
from layout import *
from k_g1 import srd, spread
from k_g2 import w_patterns

def gen_p3(stamps=False):
    k = Kern("p3_kernel", vgprs=172)
    sWS, sWO, sX = 4, 6, 8
    rWO, rOM, rOR, rMOD, rX, rX1 = 12, 16, 20, 24, 28, 44
    sw, srb, scs, stmp, stmp2, ssrc, slds = range(32, 39)
    vl16, vP, vA0, vA1, vA2, vA3, vR0, vR1, vom, vor, vx = 1, 2, 5, 6, 7, 8, 9, 10, 11, 12, 13
    BF = 16
    ACC = 88
    AF = 112
    k("s_cmp_ge_u32 s2, 192\ns_cbranch_scc1 L_p3_end")
    k(f"s_load_dwordx2 {s(sWS,2)}, s[0:1], {KA['ws']}")
    k(f"s_load_dwordx2 {s(sWO,2)}, s[0:1], {KA['wo']}")
    k(f"s_load_dwordx2 {s(sX,2)}, s[0:1], {KA['x']}")
    k("v_lshrrev_b32 v14, 6, v0\nv_and_b32 v0, 63, v0")
    k(f"v_readfirstlane_b32 {s(sw)}, v14")
    k(f"v_lshlrev_b32 {v(vl16)}, 4, v0")
    w_patterns(k, vP, 1152, 112)
    k(f"s_and_b32 {s(stmp)}, s2, 7\ns_lshl_b32 {s(srb)}, {s(stmp)}, 2\ns_lshr_b32 {s(stmp)}, s2, 3\ns_and_b32 {s(stmp2)}, {s(stmp)}, 3\ns_add_u32 {s(srb)}, {s(srb)}, {s(stmp2)}\ns_lshr_b32 {s(scs)}, {s(stmp)}, 2")
    k("v_lshrrev_b32 v112, 4, v0\nv_bfe_u32 v113, v0, 2, 2\nv_and_b32 v114, 3, v0\nv_and_b32 v115, 15, v0")
    k("v_lshrrev_b32 v116, 1, v112\nv_mul_u32_u24 v116, 18, v116\nv_and_b32 v117, 1, v112\nv_lshlrev_b32 v117, 2, v117\nv_add_u32 v116, v116, v117\nv_add_u32 v116, v116, v113")
    def mkaddr(row, d0, d1):
        k(f"v_lshrrev_b32 v117, 2, {v(row)}\nv_and_b32 v117, 1, v117\nv_lshlrev_b32 v117, 5, v117")
        k(f"v_mul_u32_u24 v118, 192, {v(row)}\nv_lshlrev_b32 v119, 3, v114\nv_add_u32 v118, v118, v119")
        k(f"v_add_u32 {v(d0)}, v118, v117\nv_xor_b32 v117, 32, v117\nv_add_u32 {v(d1)}, v118, v117")
    mkaddr(116, vA0, vA1)
    k(f"v_add_u32 {v(vA2)}, {8*6912}, {v(vA0)}\nv_add_u32 {v(vA3)}, {8*6912}, {v(vA1)}")
    k("v_lshlrev_b32 v116, 2, v112\nv_lshrrev_b32 v117, 1, v113\nv_add_u32 v116, v116, v117\nv_mul_u32_u24 v116, 18, v116\nv_and_b32 v117, 1, v113\nv_add_u32 v116, v116, v117\nv_add_u32 v116, 16, v116")
    mkaddr(116, vR0, vR1)
    k(f"s_lshl_b32 {s(stmp)}, {s(srb)}, 2\ns_add_u32 {s(stmp)}, {s(stmp)}, {s(sw)}\ns_lshl_b32 {s(stmp2)}, {s(stmp)}, 4\nv_add_u32 v116, {s(stmp2)}, v115")
    k(f"v_lshrrev_b32 v117, 1, v112\nv_lshlrev_b32 v117, 16, v117\nv_lshlrev_b32 v118, 5, v116\nv_add_u32 v117, v117, v118\nv_and_b32 v118, 1, v112\nv_lshlrev_b32 v118, 4, v118\nv_add_u32 {v(vom)}, v117, v118")
    k(f"v_lshlrev_b32 v117, 13, v112\nv_add_u32 v117, v117, v116\nv_lshlrev_b32 {v(vor)}, 2, v117")
    k(f"v_mul_u32_u24 v117, 1152, v116\nv_lshlrev_b32 v118, 3, v112\nv_add_u32 v117, v117, v118\ns_mul_i32 {s(stmp2)}, {s(scs)}, 192\nv_add_u32 {v(vx)}, {s(stmp2)}, v117")
    k("v_lshlrev_b32 v14, 4, v112")
    k("s_waitcnt lgkmcnt(0)")
    srd(k, rWO, sWO, 0, 576*1152); srd(k, rOM, sWS, WS["OM"], WS["OM_SZ"]); srd(k, rOR, sWS, WS["OR"], WS["OR_SZ"])
    srd(k, rMOD, sWS, WS["MOD"], WS["MOD_SZ"]); srd(k, rX, sX, 0, 2048*1152); srd(k, rX1, sWS, WS["X1F"], WS["X1F_SZ"])
    k(f"s_mul_i32 {s(ssrc)}, {s(sw)}, {16*1152}\ns_mul_i32 {s(stmp2)}, {s(scs)}, 192\ns_add_u32 {s(ssrc)}, {s(ssrc)}, {s(stmp2)}\ns_mul_i32 {s(slds)}, {s(sw)}, 3072")
    for g in range(9):
        for i in range(3):
            k(f"s_add_u32 m0, {s(slds)}, {g*4*3072 + i*1024}")
            k(f"s_add_u32 {s(stmp2)}, {s(ssrc)}, {g*4*16*1152}")
            k(f"buffer_load_dwordx4 {v(vP+i)}, {s(rWO,4)}, {s(stmp2)} offen lds")
    for sx in range(16):
        k(f"s_mov_b32 {s(stmp2)}, {sx*131072}\nbuffer_load_dwordx4 {v(BF+4*sx,4)}, {v(vom)}, {s(rOM,4)}, {s(stmp2)} offen")
    for sp in range(2):
        for jj in range(4):
            k(f"s_mov_b32 {s(stmp2)}, {(16*sp+jj)*8192}\nbuffer_load_dword {v(BF+64+4*sp+jj)}, {v(vor)}, {s(rOR,4)}, {s(stmp2)} offen")
    k("s_waitcnt vmcnt(24)\ns_barrier")
    XR = 160; GA = AF
    for dt in range(6): k(f"buffer_load_dwordx2 {v(XR+2*dt,2)}, {v(vx)}, {s(rX,4)}, 0 offen offset:{dt*32}")
    def areads(sx, par):
        ops = []
        for dt in range(6):
            r = AF + par*24 + dt*4
            if sx < 16:
                regs = (vA0, vA1) if sx < 8 else (vA2, vA3)
                ad = regs[(dt & 1) ^ (sx & 1)]
                o = (sx % 8)*6912 + (dt & ~1)*32
                ops.append(f"ds_read_b64_tr_b16 {v(r,2)}, {v(ad)} offset:{o}")
                ops.append(f"ds_read_b64_tr_b16 {v(r+2,2)}, {v(ad)} offset:{o+1536}")
            else:
                sp = sx - 16
                o = sp*288*192 + (dt & ~1)*32
                ops.append(f"ds_read_b64_tr_b16 {v(r,2)}, {v((vR0, vR1)[dt & 1])} offset:{o}")
                ops.append(f"ds_read_b64_tr_b16 {v(r+2,2)}, {v((vR0, vR1)[(dt & 1) ^ 1])} offset:{o + 36*192}")
        return ops
    for o in areads(0, 0): k(o)
    for sx in range(18):
        par = sx % 2
        nb = {0: 23}.get(sx)
        need = (16 - 1 - sx + 8 + 6) if sx < 16 else (6 + (4 if sx == 16 else 0))
        k(f"s_waitcnt vmcnt({need}) lgkmcnt(0)")
        fill = areads(sx+1, 1-par) if sx < 17 else []
        slots = spread(fill, 6)
        for dt in range(6):
            c = "0" if sx == 0 else v(ACC+4*dt,4)
            k(f"v_mfma_f32_16x16x32_bf16 {v(ACC+4*dt,4)}, {v(AF+par*24+dt*4,4)}, {v(BF+4*sx,4)}, {c}")
            for o in slots[dt]: k(o)
    k(f"s_mul_i32 {s(stmp2)}, {s(scs)}, {96*4}\ns_add_u32 {s(stmp2)}, {s(stmp2)}, {2*576*4}")
    GA = BF
    for dt in range(6): k(f"buffer_load_dwordx4 {v(GA+4*dt,4)}, v14, {s(rMOD,4)}, {s(stmp2)} offen offset:{dt*64}")
    k("s_waitcnt vmcnt(0)")
    T = AF
    for dt in range(6):
        xr = XR + 2*dt; t = T + 4*dt
        k(f"v_lshlrev_b32 {v(t)}, 16, {v(xr)}\nv_and_b32 {v(t+1)}, 0xffff0000, {v(xr)}")
        k(f"v_lshlrev_b32 {v(t+2)}, 16, {v(xr+1)}\nv_and_b32 {v(t+3)}, 0xffff0000, {v(xr+1)}")
        for r in range(4): k(f"v_fma_f32 {v(t+r)}, {v(GA+4*dt+r)}, {v(ACC+4*dt+r)}, {v(t+r)}")
        o = 40 + (dt >> 1)*4 + (dt & 1)*2
        k(f"v_cvt_pk_bf16_f32 {v(o)}, {v(t)}, {v(t+1)}\nv_cvt_pk_bf16_f32 {v(o+1)}, {v(t+2)}, {v(t+3)}")
    k(f"s_lshl_b32 {s(stmp)}, {s(srb)}, 2\ns_add_u32 {s(stmp)}, {s(stmp)}, {s(sw)}\ns_mul_i32 {s(stmp)}, {s(stmp)}, {18*1024}\ns_mul_i32 {s(stmp2)}, {s(scs)}, 3072\ns_add_u32 {s(stmp)}, {s(stmp)}, {s(stmp2)}")
    for j in range(3): k(f"buffer_store_dwordx4 {v(40+4*j,4)}, {v(vl16)}, {s(rX1,4)}, {s(stmp)} offen offset:{j*1024}")
    k("L_p3_end:\ns_endpgm")
    return k, (192, 256, 110592)

def gen_ln2():
    k = Kern("ln2_kernel", vgprs=128)
    sWS = 4; rX1, rH2, rMOD = 8, 12, 16
    stile, stmp = 32, 33
    X = 16; G = 88; SB = 96; T = 104
    k("s_cmp_ge_u32 s2, 128\ns_cbranch_scc1 L_ln2_end")
    k(f"s_load_dwordx2 {s(sWS,2)}, s[0:1], {KA['ws']}")
    k("v_lshlrev_b32 v1, 4, v0\nv_lshrrev_b32 v2, 4, v0\nv_lshlrev_b32 v2, 4, v2")
    k(f"s_mul_i32 {s(stile)}, s2, {18*1024}")
    k("s_waitcnt lgkmcnt(0)")
    srd(k, rX1, sWS, WS["X1F"], WS["X1F_SZ"]); srd(k, rH2, sWS, WS["H2F"], WS["H2F_SZ"]); srd(k, rMOD, sWS, WS["MOD"], WS["MOD_SZ"])
    for ks in range(18):
        k(f"s_add_u32 {s(stmp)}, {s(stile)}, {(ks>>2)*4096}\nbuffer_load_dwordx4 {v(X+4*ks,4)}, v1, {s(rX1,4)}, {s(stmp)} offen offset:{(ks&3)*1024}")
    k("v_mov_b32 v3, 0\nv_mov_b32 v4, 0\nv_mov_b32 v5, 0x3f803f80")
    for i in range(72):
        if i % 4 == 0: k(f"s_waitcnt vmcnt({17 - i//4})")
        k(f"v_dot2_f32_bf16 v3, {v(X+i)}, v5, v3\nv_dot2_f32_bf16 v4, {v(X+i)}, {v(X+i)}, v4")
    for r in ("v3", "v4"):
        k(f"v_mov_b32 v6, {r}\nv_permlane32_swap_b32 {r}, v6\nv_add_f32 {r}, {r}, v6\nv_mov_b32 v6, {r}\nv_permlane16_swap_b32 {r}, v6\nv_add_f32 {r}, {r}, v6")
    k("v_mul_f32 v3, 0x3ae38e39, v3\nv_mul_f32 v4, 0x3ae38e39, v4")
    k("v_fma_f32 v4, -v3, v3, v4\nv_max_f32 v4, 0, v4\nv_add_f32 v4, 0x3727c5ac, v4\nv_rsq_f32 v4, v4")
    k("s_nop 0\nv_mul_f32 v3, v3, v4\nv_sub_f32 v3, 0, v3")
    for ks in range(18):
        k(f"s_mov_b32 {s(stmp)}, {(4*576 + 32*ks)*4}")
        k(f"buffer_load_dwordx4 {v(G,4)}, v2, {s(rMOD,4)}, {s(stmp)} offen\nbuffer_load_dwordx4 {v(G+4,4)}, v2, {s(rMOD,4)}, {s(stmp)} offen offset:64")
        k(f"s_mov_b32 {s(stmp)}, {(3*576 + 32*ks)*4}")
        k(f"buffer_load_dwordx4 {v(SB,4)}, v2, {s(rMOD,4)}, {s(stmp)} offen\nbuffer_load_dwordx4 {v(SB+4,4)}, v2, {s(rMOD,4)}, {s(stmp)} offen offset:64")
        for j in range(4):
            x = X + 4*ks + j
            k(f"v_lshlrev_b32 {v(T+2*j)}, 16, {v(x)}\nv_and_b32 {v(T+2*j+1)}, 0xffff0000, {v(x)}")
        for e in range(8): k(f"v_fma_f32 {v(T+e)}, {v(T+e)}, v4, v3")
        k("s_waitcnt vmcnt(0)")
        for e in range(8): k(f"v_fma_f32 {v(T+e)}, {v(T+e)}, {v(G+e)}, {v(SB+e)}")
        for j in range(4): k(f"v_cvt_pk_bf16_f32 {v(X+4*ks+j)}, {v(T+2*j)}, {v(T+2*j+1)}")
        k(f"s_add_u32 {s(stmp)}, {s(stile)}, {ks*1024}\nbuffer_store_dwordx4 {v(X+4*ks,4)}, v1, {s(rH2,4)}, {s(stmp)} offen")
    k("L_ln2_end:\ns_endpgm")
    return k, (128, 64, 0)
```

```python
S_, D_, H_, DH_, F_ = 2048, 576, 32, 18, 4608
def al(x, a=65536): return (x + a - 1)//a*a
WS = {}
off = 0
def put(name, size):
    global off
    WS[name] = off; WS[name+"_SZ"] = size; off = al(off + size)
put("MOD", 3456*4)
put("QM", 32*64*1024)
put("QR", 32*2048*4)
KV_STRIDE = 151552
KM_OFF, KR_OFF, VT_OFF = 0, 65536, 73728
put("KV", 32*KV_STRIDE)
put("OM", 32*2048*32)
put("OR", 32*2048*4)
put("X1F", 128*18*1024)
put("H2F", 128*18*1024)
put("HHF", 128*144*1024)
put("W13F", 288*2*19*1024)
put("W2F", 144*36*1024)
put("PART", 4*128*18*1024)
put("STAT", 6*2048*8)
put("CNT", 192*128)
put("PART2", 64*4*4*8*2048)
put("AUX", 1<<20)
KA = dict(x=0, wqkv=8, wo=16, bx=24, w1=32, w3=40, w2=48, c=56, wmod=64, out=72, dbg=80, ws=88)
```

```python
import sys, build
import k_k01b, k_att, k_p3, k_g1b, k_g2c
GENS = [k_k01b.gen_k01, lambda: k_att.gen_att(helper=True), k_p3.gen_p3, k_p3.gen_ln2, lambda: k_g1b.gen_g1(wt_upto=4), k_g2c.gen_g2a, k_g2c.gen_g2r]
if __name__ == "__main__":
    path = sys.argv[1] if len(sys.argv) > 1 else "cdna_kernels/%s.s" % build.NAME
    build.check(GENS, path)
```

```python
from asmgen import *
from layout import *
from k_g1 import srd, spread

def gen_att(stamps=False, helper=False, dbg='', order=1):
    k = Kern("att_kernel", vgprs=140)
    sWS = 4
    rKV, rQM, rQR, rOM, rOR = 8, 12, 16, 20, 24
    sw, sh, sqt, stmp, stmp2, spass, sloop, snmax, skv = range(32, 41)
    soff = 44
    sstr = 49
    vl16, vK, vKR, vV, vt0, vt1, vom, vor = 1, 2, 3, 4, 5, 6, 7, 8
    QM, NEG, S0, S1, P, O = 12, 20, 36, 52, 68, 76
    KM = [92, 96]; KR = [100, 104]; VF = [108, 116]; QRJ = [124, 128, 132, 136]; QR = 16
    S = [S0, S1]
    k("s_cmp_ge_u32 s2, 256\ns_cbranch_scc1 L_att_end")
    k(f"s_load_dwordx2 {s(sWS,2)}, s[0:1], {KA['ws']}")
    if stamps: k("s_memtime s[60:61]\ns_memrealtime s[62:63]")
    k("v_lshrrev_b32 v9, 6, v0\nv_and_b32 v0, 63, v0")
    k(f"v_readfirstlane_b32 {s(sw)}, v9")
    k(f"v_lshlrev_b32 {v(vl16)}, 4, v0")
    if helper: k(f"s_cmp_eq_u32 {s(sw)}, 8\ns_cbranch_scc1 L_att_helper")
    k(f"s_and_b32 {s(stmp)}, s2, 7\ns_lshl_b32 {s(sh)}, {s(stmp)}, 2\ns_lshr_b32 {s(stmp)}, s2, 3\ns_and_b32 {s(stmp)}, {s(stmp)}, 3\ns_add_u32 {s(sh)}, {s(sh)}, {s(stmp)}")
    k(f"s_lshr_b32 {s(sqt)}, s2, 5\ns_lshl_b32 {s(sqt)}, {s(sqt)}, 3\ns_add_u32 {s(sqt)}, {s(sqt)}, {s(sw)}")
    k(f"s_mul_i32 {s(skv)}, {s(sh)}, {KV_STRIDE}")
    for e in range(5):
        n = stmp
        k(f"s_add_u32 {s(n)}, {s(sw)}, {8*e}\ns_min_u32 {s(n)}, {s(n)}, 36")
        k(f"s_lshl_b32 {s(stmp2)}, {s(n)}, 10")
        k(f"s_add_u32 {s(soff+e)}, {s(stmp2)}, {73728-18*1024}\ns_mov_b32 {s(sstr+e)}, 19456")
        k(f"s_cmp_lt_u32 {s(n)}, 18")
        k(f"s_cselect_b32 {s(sstr+e)}, 2048, {s(sstr+e)}")
        k(f"s_add_u32 s54, {s(stmp2)}, {65536-16*1024}")
        k(f"s_cmp_lt_u32 {s(n)}, 18\ns_cselect_b32 {s(soff+e)}, s54, {s(soff+e)}")
        k(f"s_cmp_lt_u32 {s(n)}, 16\ns_cselect_b32 {s(soff+e)}, {s(stmp2)}, {s(soff+e)}\ns_cselect_b32 {s(sstr+e)}, 16384, {s(sstr+e)}")
    k(f"v_mov_b32 {v(vK)}, {v(vl16)}")
    k(f"v_and_b32 v9, 31, v0\nv_lshlrev_b32 {v(vKR)}, 4, v9\nv_add_u32 {v(vKR)}, 65536, {v(vKR)}")
    k("v_mov_b32 v10, 4\nv_mov_b32 v11, 0")
    k("v_cmp_gt_u32 vcc, 20, v9\nv_cndmask_b32 v11, v11, v10, vcc")
    k("v_cmp_lt_u32 vcc, 27, v9\nv_cndmask_b32 v11, v11, v10, vcc")
    k("v_cmp_gt_u32 vcc, 19, v9\nv_cndmask_b32 v11, v11, v9, vcc")
    k(f"v_lshrrev_b32 v10, 5, v0\nv_mul_u32_u24 v10, 19, v10\nv_add_u32 v11, v11, v10\nv_lshlrev_b32 {v(vV)}, 4, v11\nv_add_u32 {v(vV)}, 73728, {v(vV)}")
    if True:
        k(f"v_cmp_gt_u32 vcc, 19, v9\nv_mov_b32 v10, 0x30000\nv_cndmask_b32 {v(vV)}, v10, {v(vV)}, vcc")
    k(f"v_lshlrev_b32 {v(vt0)}, 2, v9\nv_mov_b32 v10, 0x7fffffff\nv_cmp_gt_u32 vcc, 32, v0\nv_cndmask_b32 {v(vt1)}, v10, {v(vt0)}, vcc")
    k(f"v_mov_b32 {v(vor)}, {v(vt1)}")
    k(f"v_lshlrev_b32 {v(vom)}, 4, v9\nv_lshrrev_b32 v10, 5, v0\nv_lshlrev_b32 v10, 15, v10\nv_add_u32 {v(vom)}, {v(vom)}, v10")
    k("s_waitcnt lgkmcnt(0)")
    srd(k, rKV, sWS, WS["KV"], WS["KV_SZ"]); srd(k, rQM, sWS, WS["QM"], WS["QM_SZ"]); srd(k, rQR, sWS, WS["QR"], WS["QR_SZ"])
    srd(k, rOM, sWS, WS["OM"], WS["OM_SZ"]); srd(k, rOR, sWS, WS["OR"], WS["OR_SZ"])
    k(f"s_lshl_b32 {s(stmp)}, {s(sh)}, 6\ns_add_u32 {s(stmp)}, {s(stmp)}, {s(sqt)}")
    k(f"s_lshl_b32 {s(stmp2)}, {s(stmp)}, 10")
    k(f"buffer_load_dwordx4 {v(QM,4)}, {v(vl16)}, {s(rQM,4)}, {s(stmp2)} offen")
    k(f"s_lshl_b32 {s(stmp2)}, {s(stmp)}, 7")
    k(f"buffer_load_dword {v(QR)}, {v(vt1)}, {s(rQR,4)}, {s(stmp2)} offen")
    for seg in range(4):
        for e in range(5):
            k(f"s_mov_b32 m0, {s(soff+e)}\ns_add_u32 {s(stmp2)}, {s(skv)}, {s(soff+e)}")
            k(f"buffer_load_dwordx4 {v(vl16)}, {s(rKV,4)}, {s(stmp2)} offen lds")
            if seg < 3: k(f"s_add_u32 {s(soff+e)}, {s(soff+e)}, {s(sstr+e)}")
    for j in range(4):
        for e in range(4):
            if e != j: k(f"v_mov_b32 {v(QRJ[j]+e)}, 0")
    k(f"s_mov_b32 {s(spass)}, 0\ns_mov_b32 {s(snmax)}, 1")
    k("s_waitcnt vmcnt(20)")
    for j in range(4): k(f"v_mov_b32 {v(QRJ[j]+j)}, {v(QR)}")
    k("s_waitcnt vmcnt(15)\ns_barrier")
    if stamps: k("s_memtime s[64:65]")
    def mf(d, a_, b_, c_, tag=''):
        if tag and tag in dbg: return
        k(f"v_mfma_f32_32x32x16_bf16 {v(d,16)}, {v(a_,4)}, {v(b_,4)}, {c_}")
    k("L_att_max:")
    k(f"v_mov_b32 {v(vt0)}, 0xff800000\ns_mov_b32 {s(sloop)}, 0")
    k("L_att_maxloop:")
    k(f"ds_read_b128 {v(KR[0],4)}, {v(vKR)}")
    for j in range(4):
        k(f"ds_read_b128 {v(KM[0],4)}, {v(vK)} offset:{j*1024}")
        k("s_waitcnt lgkmcnt(0)")
        mf(S0, KM[0], QM, "0"); mf(S0, KR[0], QRJ[j], v(S0,16))
        for i in range(8): k(f"v_max3_f32 {v(vt0)}, {v(vt0)}, {v(S0+2*i)}, {v(S0+2*i+1)}")
        if j == 0: k(f"s_cmp_eq_u32 {s(spass)}, 0\ns_cbranch_scc1 L_att_maxdone")
    k(f"v_add_u32 {v(vK)}, 4096, {v(vK)}\nv_add_u32 {v(vKR)}, 512, {v(vKR)}")
    k(f"s_add_u32 {s(sloop)}, {s(sloop)}, 1\ns_cmp_lt_u32 {s(sloop)}, {s(snmax)}\ns_cbranch_scc1 L_att_maxloop")
    k("L_att_maxdone:")
    k(f"v_mov_b32 {v(vt1)}, {v(vt0)}")
    k(f"v_permlane32_swap_b32 {v(vt0)}, {v(vt1)}")
    k(f"v_max_f32 {v(vt0)}, {v(vt0)}, {v(vt1)}")
    for i in range(16): k(f"v_sub_f32 {v(NEG+i)}, 0, {v(vt0)}")
    k(f"v_mov_b32 {v(vK)}, {v(vl16)}\nv_and_b32 v9, 31, v0\nv_lshlrev_b32 {v(vKR)}, 4, v9\nv_add_u32 {v(vKR)}, 65536, {v(vKR)}")
    for i in range(16): k(f"v_mov_b32 {v(O+i)}, 0")
    k(f"ds_read_b128 {v(KR[0],4)}, {v(vKR)}\nds_read_b128 {v(KM[0],4)}, {v(vK)}")
    k(f"ds_read_b128 {v(KM[1],4)}, {v(vK)} offset:1024")
    k(f"ds_read_b128 {v(VF[0],4)}, {v(vV)}\nds_read_b128 {v(VF[0]+4,4)}, {v(vV)} offset:608")
    k("s_waitcnt lgkmcnt(3)")
    mf(S0, KM[0], QM, v(NEG,16)); mf(S0, KR[0], QRJ[0], v(S0,16))
    for i in range(8): k(f"v_mov_b32 {v(P+i)}, 0")
    for i in range(8): k(f"v_mov_b32 {v(VF[1]+i)}, 0")
    k(f"s_mov_b32 {s(sloop)}, 0")
    k("L_att_loop:")
    k(f"s_cmp_eq_u32 {s(sloop)}, 1\ns_cbranch_scc0 L_att_nobar")
    k(f"s_cmp_eq_u32 {s(spass)}, 0\ns_cbranch_scc0 L_att_nobar")
    k("s_waitcnt vmcnt(0)\ns_barrier")
    k("L_att_nobar:")
    ex = lambda r: None if 'E' in dbg else k(f"v_exp_f32 {v(r)}, {v(r)}")
    cv = lambda i, sa: k(f"v_cvt_pk_bf16_f32 {v(P+i)}, {v(sa+2*i)}, {v(sa+2*i+1)}")
    for t in range(8):
        sa = S[t % 2]; sb = S[1 - t % 2]; b = t % 2; nb = 1 - b
        g1 = ((t+1) >> 2) & 1; j1 = (t+1) & 3
        rdkr = (t % 4 == 1)
        k("s_waitcnt lgkmcnt(2)")
        mf(sb, KM[nb], QM, v(NEG,16), 'Q')
        k(f"ds_read_b128 {v(KM[b],4)}, {v(vK)} offset:{(t+2)*1024}")
        ex(sa+0); ex(sa+1); ex(sa+2); ex(sa+3); cv(0, sa); cv(1, sa)
        mf(O, VF[nb]+4, P+4, v(O,16), 'V')
        if rdkr: k(f"ds_read_b128 {v(KR[((t>>2)+1) & 1],4)}, {v(vKR)} offset:{((t>>2)+1)*512}")
        ex(sa+4); ex(sa+5); ex(sa+6); ex(sa+7); cv(2, sa); cv(3, sa)
        mf(sb, KR[g1], QRJ[j1], v(sb,16), 'Q')
        k(f"ds_read_b128 {v(VF[nb],4)}, {v(vV)} offset:{(2*t+2)*608}")
        ex(sa+8); ex(sa+9); ex(sa+10); ex(sa+11); cv(4, sa); cv(5, sa)
        k(f"s_waitcnt lgkmcnt({4 if rdkr else 3})")
        mf(O, VF[b], P, v(O,16), 'V')
        k(f"ds_read_b128 {v(VF[nb]+4,4)}, {v(vV)} offset:{(2*t+3)*608}")
        ex(sa+12); ex(sa+13); ex(sa+14); ex(sa+15); cv(6, sa); cv(7, sa)
    k(f"v_add_u32 {v(vK)}, 8192, {v(vK)}\nv_add_u32 {v(vKR)}, 1024, {v(vKR)}\nv_add_u32 {v(vV)}, {16*608}, {v(vV)}")
    k(f"s_add_u32 {s(sloop)}, {s(sloop)}, 1\ns_cmp_lt_u32 {s(sloop)}, 8\ns_cbranch_scc1 L_att_loop")
    mf(O, VF[1]+4, P+4, v(O,16))
    k("s_waitcnt lgkmcnt(0)")
    if stamps: k("s_memtime s[66:67]")
    k(f"v_mov_b32 {v(vt0)}, {v(O+10)}\nv_mov_b32 {v(vt1)}, {v(O+10)}")
    k(f"v_permlane32_swap_b32 {v(vt0)}, {v(vt1)}")
    k(f"s_cmp_eq_u32 {s(spass)}, {1 if dbg else 0}\ns_cbranch_scc0 L_att_fin")
    k(f"v_mov_b32 {v(vt1)}, 0x5f800000")
    k(f"v_cmp_nlt_f32 vcc, {v(vt0)}, {v(vt1)}")
    k("s_nop 1\ns_cmp_eq_u64 vcc, 0\ns_cbranch_scc1 L_att_fin")
    k(f"s_mov_b32 {s(spass)}, 1\ns_mov_b32 {s(snmax)}, 16")
    k(f"v_mov_b32 {v(vK)}, {v(vl16)}\nv_and_b32 v9, 31, v0\nv_lshlrev_b32 {v(vKR)}, 4, v9\nv_add_u32 {v(vKR)}, 65536, {v(vKR)}")
    k(f"v_subrev_u32 {v(vV)}, {8*16*608}, {v(vV)}")
    k("s_branch L_att_max")
    k("L_att_fin:")
    k(f"v_rcp_f32 {v(vt0)}, {v(vt0)}")
    k("s_nop 0")
    for i in range(10): k(f"v_mul_f32 {v(O+i)}, {v(O+i)}, {v(vt0)}")
    for i in range(5): k(f"v_cvt_pk_bf16_f32 {v(P+i)}, {v(O+2*i)}, {v(O+2*i+1)}")
    k(f"s_lshl_b32 {s(stmp)}, {s(sh)}, 6\ns_add_u32 {s(stmp)}, {s(stmp)}, {s(sqt)}")
    k(f"s_lshl_b32 {s(stmp2)}, {s(sh)}, 16\ns_lshl_b32 s54, {s(sqt)}, 9\ns_add_u32 {s(stmp2)}, {s(stmp2)}, s54")
    k(f"buffer_store_dwordx4 {v(P,4)}, {v(vom)}, {s(rOM,4)}, {s(stmp2)} offen")
    k(f"s_lshl_b32 {s(stmp2)}, {s(stmp)}, 7")
    k(f"buffer_store_dword {v(P+4)}, {v(vor)}, {s(rOR,4)}, {s(stmp2)} offen")
    if stamps:
        k("s_waitcnt vmcnt(0)\ns_memtime s[68:69]\ns_memrealtime s[70:71]\ns_waitcnt lgkmcnt(0)")
        srd(k, 24, sWS, WS["AUX"], WS["AUX_SZ"])
        k(f"s_lshl_b32 {s(stmp)}, s2, 3\ns_add_u32 {s(stmp)}, {s(stmp)}, {s(sw)}\ns_lshl_b32 {s(stmp)}, {s(stmp)}, 6\nv_mov_b32 v9, {s(stmp)}")
        for i, (x, y) in enumerate(((64,60),(66,60),(68,60),(70,62))):
            k(f"s_sub_u32 s72, s{x}, s{y}\nv_mov_b32 v10, s72\nbuffer_store_dword v10, v9, s[24:27], 0 offen offset:{4*i}")
        k(f"v_mov_b32 v10, s62\nbuffer_store_dword v10, v9, s[24:27], 0 offen offset:16")
        k(f"v_mov_b32 v10, {s(spass)}\nbuffer_store_dword v10, v9, s[24:27], 0 offen offset:20")
    if helper:
        k("s_branch L_att_end")
        gen_helper(k)
    k("L_att_end:\ns_endpgm")
    return k, (256, 576 if helper else 512, 163840 if helper else 151552 + 4096)


def gen_helper(k):
    HL = 151552
    sWS = 4; sW1, sW3, sW2 = 6, 8, 10
    rW1, rW3, rW2, rD13, rD2, rS = 12, 16, 20, 24, 28, 44
    sb, sm, sr, sks, slg, ssrc, sdst, sstr, stmp, sdstep = range(48, 58)
    rD = 64
    v13, v2s, vsrc, vrd = 2, 3, 4, 5
    R = 12
    k("L_att_helper:")
    k(f"s_load_dwordx2 {s(sW1,2)}, s[0:1], {KA['w1']}\ns_load_dwordx2 {s(sW3,2)}, s[0:1], {KA['w3']}\ns_load_dwordx2 {s(sW2,2)}, s[0:1], {KA['w2']}")
    k("v_lshrrev_b32 v9, 3, v0\nv_and_b32 v10, 7, v0\nv_lshrrev_b32 v11, 1, v10\nv_bfe_u32 v12, v0, 4, 2\nv_xor_b32 v11, v11, v12\nv_lshlrev_b32 v11, 5, v11\nv_and_b32 v10, 1, v10\nv_lshlrev_b32 v10, 4, v10\nv_add_u32 v10, v10, v11")
    k(f"v_mul_u32_u24 {v(v13)}, 9216, v9\nv_add_u32 {v(v13)}, {v(v13)}, v10\nv_mul_u32_u24 {v(v2s)}, 1152, v9\nv_add_u32 {v(v2s)}, {v(v2s)}, v10")
    k("v_lshrrev_b32 v9, 2, v0\nv_lshlrev_b32 v9, 7, v9\nv_and_b32 v10, 3, v0\nv_lshlrev_b32 v10, 3, v10\nv_add_u32 v9, v9, v10\nv_bfe_u32 v10, v0, 3, 2")
    for ct in range(4): k(f"v_xor_b32 v11, {ct}, v10\nv_lshlrev_b32 v11, 5, v11\nv_add_u32 v11, v11, v9\nv_add_u32 {v(vrd+ct)}, {HL}, v11")
    k("s_waitcnt lgkmcnt(0)")
    srd(k, rW1, sW1, 0, 576*9216); srd(k, rW3, sW3, 0, 576*9216); srd(k, rW2, sW2, 0, 4608*1152)
    srd(k, rD13, sWS, WS["W13F"], WS["W13F_SZ"]); srd(k, rD2, sWS, WS["W2F"], WS["W2F_SZ"])
    vm = []
    NBLK = 16
    def decode(n):
        k(f"s_add_u32 {s(sb)}, s2, {256*n}")
        k(f"s_cmp_ge_u32 {s(sb)}, 2592\ns_cbranch_scc1 L_att_h2_{n}")
        k(f"s_cmp_ge_u32 {s(sb)}, 1296\ns_cselect_b32 {s(sm)}, 1, 0\ns_cselect_b32 {s(rS)}, {s(sW3)}, {s(sW1)}\ns_cselect_b32 {s(rS+1)}, {s(sW3+1)}, {s(sW1+1)}")
        k(f"s_mov_b32 {s(rS+2)}, {576*9216}\ns_mov_b32 {s(rS+3)}, 0x20000")
        k(f"s_mul_i32 {s(stmp)}, {s(sm)}, 1296\ns_sub_u32 {s(sr)}, {s(sb)}, {s(stmp)}")
        k(f"s_mul_i32 {s(sks)}, {s(sr)}, 3641\ns_lshr_b32 {s(sks)}, {s(sks)}, 18\ns_mul_i32 {s(stmp)}, {s(sks)}, 72\ns_sub_u32 {s(slg)}, {s(sr)}, {s(stmp)}")
        k(f"s_mul_i32 {s(ssrc)}, {s(sks)}, {32*9216}\ns_lshl_b32 {s(stmp)}, {s(slg)}, 7\ns_add_u32 {s(ssrc)}, {s(ssrc)}, {s(stmp)}\ns_mov_b32 {s(sstr)}, {8*9216}")
        k(f"s_mul_i32 {s(sdst)}, {s(slg)}, {4*36864}\ns_lshl_b32 {s(stmp)}, {s(sks)}, 11\ns_add_u32 {s(sdst)}, {s(sdst)}, {s(stmp)}\ns_lshl_b32 {s(stmp)}, {s(sm)}, 10\ns_add_u32 {s(sdst)}, {s(sdst)}, {s(stmp)}\ns_mov_b32 {s(sdstep)}, 36864")
        k(f"v_mov_b32 {v(vsrc)}, {v(v13)}")
        k(f"s_branch L_att_h3_{n}")
        k(f"L_att_h2_{n}:")
        k(f"s_mov_b32 {s(rS)}, {s(sW2)}\ns_mov_b32 {s(rS+1)}, {s(sW2+1)}\ns_mov_b32 {s(rS+2)}, {4608*1152}\ns_mov_b32 {s(rS+3)}, 0x20000")
        k(f"s_sub_u32 {s(sr)}, {s(sb)}, 2592\ns_mul_i32 {s(sks)}, {s(sr)}, 7282\ns_lshr_b32 {s(sks)}, {s(sks)}, 16\ns_mul_i32 {s(stmp)}, {s(sks)}, 9\ns_sub_u32 {s(slg)}, {s(sr)}, {s(stmp)}")
        k(f"s_mul_i32 {s(ssrc)}, {s(sks)}, {32*1152}\ns_lshl_b32 {s(stmp)}, {s(slg)}, 7\ns_add_u32 {s(ssrc)}, {s(ssrc)}, {s(stmp)}\ns_mov_b32 {s(sstr)}, {8*1152}")
        k(f"s_mul_i32 {s(sdst)}, {s(sks)}, {36*1024}\ns_lshl_b32 {s(stmp)}, {s(slg)}, 12\ns_add_u32 {s(sdst)}, {s(sdst)}, {s(stmp)}\ns_mov_b32 {s(sdstep)}, 1024")
        k(f"s_add_u32 {s(sdst)}, {s(sdst)}, 0x80000000")
        k(f"v_mov_b32 {v(vsrc)}, {v(v2s)}")
        k(f"L_att_h3_{n}:")
        k(f"s_mov_b32 {s(68 + 2*(n % 4))}, {s(sdst)}\ns_mov_b32 {s(69 + 2*(n % 4))}, {s(sdstep)}")
    def dma(n):
        decode(n)
        for i in range(4):
            k(f"s_mov_b32 m0, {HL + (n % 3)*4096 + i*1024}\ns_nop 0\nbuffer_load_dwordx4 {v(vsrc)}, {s(rS,4)}, {s(ssrc)} offen lds")
            vm.append(('D', n))
            if i < 3: k(f"s_add_u32 {s(ssrc)}, {s(ssrc)}, {s(sstr)}")
    def proc(n):
        idx = [i for i, t in enumerate(vm) if t == ('D', n)]
        k(f"s_waitcnt vmcnt({len(vm) - 1 - max(idx)})")
        o = (n % 3)*4096
        for ct in range(4):
            k(f"ds_read_b64_tr_b16 {v(R+4*ct,2)}, {v(vrd+ct)} offset:{o}\nds_read_b64_tr_b16 {v(R+4*ct+2,2)}, {v(vrd+ct)} offset:{o+2048}")
        k("s_waitcnt lgkmcnt(0)")
    def stores(n):
        d, st = 68 + 2*(n % 4), 69 + 2*(n % 4)
        k(f"s_bitcmp1_b32 {s(d)}, 31")
        k(f"s_cselect_b32 {s(rD)}, {s(rD2)}, {s(rD13)}\ns_cselect_b32 {s(rD+1)}, {s(rD2+1)}, {s(rD13+1)}\ns_cselect_b32 {s(rD+2)}, {s(rD2+2)}, {s(rD13+2)}\ns_mov_b32 {s(rD+3)}, 0x20000")
        k(f"s_and_b32 {s(stmp)}, {s(d)}, 0x7fffffff")
        for ct in range(4):
            k(f"buffer_store_dwordx4 {v(R+4*ct,4)}, {v(vl16)}, {s(rD,4)}, {s(stmp)} offen sc1")
            vm.append(('S', n))
            if ct < 3: k(f"s_add_u32 {s(stmp)}, {s(stmp)}, {s(st)}")
    vl16 = 1
    k("s_barrier")
    for n in range(3): dma(n)
    k("s_barrier")
    for n in range(15):
        proc(n)
        if n + 3 < 15: dma(n+3)
        stores(n)
    k(f"s_cmp_lt_u32 s2, 48\ns_cbranch_scc0 L_att_end")
    k("s_waitcnt vmcnt(0)")
    vm.clear()
    dma(15); proc(15); stores(15)
```

```python
from asmgen import *
from layout import *
from k_g1 import srd

def gen_g1(stamps=False, PDS=3, cap=11, wt_upto=6):
    US = 36864
    k = Kern("g1_kernel", vgprs=216, agprs=256)
    sWS = 4
    rW, rH2, rHH = 12, 16, 20
    sw, srb, sg, stmp, stmp2, snl2e, sst, sw01s, sw01d, sw23s, sw23d, sfs, sfd, su8, sh0 = range(32, 47)
    sx = 48
    sso = 47
    vl16, vS, vst2 = 1, 2, 6
    XV, RING, ACC, OUT, TMP = 8, 40, 64, 192, 208
    def xr(t, ks):
        i = (ks*4 + t)*4
        return a(i, 4) if i < 256 else v(XV + i - 256, 4)
    k("s_cmp_ge_u32 s2, 256\ns_cbranch_scc1 L_g1_end")
    k(f"s_load_dwordx2 {s(sWS,2)}, s[0:1], {KA['ws']}")
    if stamps: k("s_memtime s[60:61]\ns_memrealtime s[62:63]")
    k(f"v_lshrrev_b32 v8, 6, v0\nv_and_b32 v0, 63, v0\nv_readfirstlane_b32 {s(sw)}, v8\nv_lshlrev_b32 {v(vl16)}, 4, v0")
    for i in range(4): k(f"v_add_u32 {v(vS+i)}, {i*US}, {v(vl16)}")
    k(f"s_and_b32 {s(stmp)}, s2, 1\ns_lshl_b32 {s(srb)}, {s(stmp)}, 2\ns_lshr_b32 {s(stmp)}, s2, 6\ns_add_u32 {s(srb)}, {s(srb)}, {s(stmp)}")
    k(f"s_lshr_b32 {s(sg)}, s2, 1\ns_and_b32 {s(sg)}, {s(sg)}, 3\ns_lshl_b32 {s(sg)}, {s(sg)}, 3\ns_lshr_b32 {s(stmp)}, s2, 3\ns_and_b32 {s(stmp)}, {s(stmp)}, 7\ns_add_u32 {s(sg)}, {s(sg)}, {s(stmp)}")
    k(f"s_lshl_b32 {s(stmp)}, {s(srb)}, 4\ns_lshl_b32 {s(stmp2)}, {s(sw)}, 2\ns_add_u32 {s(stmp)}, {s(stmp)}, {s(stmp2)}")
    k(f"s_mul_i32 {s(sx)}, {s(stmp)}, {18*1024}")
    for t in range(1, 4): k(f"s_add_u32 {s(sx+t)}, {s(sx)}, {t*18*1024}")
    k(f"s_mul_i32 {s(sh0)}, {s(stmp)}, {144*1024}")
    k(f"s_mul_i32 {s(sfs)}, {s(sg)}, {8*US}")
    k(f"s_add_u32 {s(su8)}, {s(sg)}, 256\ns_mul_i32 {s(su8)}, {s(su8)}, {US}")
    k(f"s_lshr_b32 {s(stmp)}, {s(sw)}, 1\ns_mul_i32 {s(stmp)}, {s(stmp)}, {US}\ns_and_b32 {s(stmp2)}, {s(sw)}, 1")
    k(f"s_lshl_b32 {s(sw01d)}, {s(stmp2)}, 11\ns_add_u32 {s(sw01d)}, {s(sw01d)}, {s(stmp)}\ns_add_u32 {s(sw01s)}, {s(sw01d)}, {s(sfs)}")
    k(f"s_lshl_b32 {s(sw23d)}, {s(stmp2)}, 10\ns_add_u32 {s(sw23d)}, {s(sw23d)}, {s(stmp)}\ns_add_u32 {s(sw23d)}, {s(sw23d)}, {2*US}\ns_add_u32 {s(sw23s)}, {s(sw23d)}, {s(sfs)}")
    k(f"s_mul_i32 {s(sfd)}, {s(sw)}, 9216")
    k(f"s_mov_b32 {s(snl2e)}, 0xbfb8aa3b")
    k(f"s_and_b32 {s(stmp)}, {s(sg)}, 1\ns_lshl_b32 {s(stmp)}, {s(stmp)}, 3\nv_add_u32 {v(vst2)}, {s(stmp)}, {v(vl16)}")
    k("s_waitcnt lgkmcnt(0)")
    srd(k, rW, sWS, WS["W13F"], WS["W13F_SZ"]); srd(k, rH2, sWS, WS["H2F"], WS["H2F_SZ"]); srd(k, rHH, sWS, WS["HHF"], WS["HHF_SZ"])

    vm = []
    def emit(op):
        if isinstance(op, tuple): k(op[0]); vm.append(op[1])
        else: k(op)
    def wait(*tags):
        idx = [i for i, t in enumerate(vm) if t in tags]
        n = len(vm) - 1 - max(idx)
        k(f"s_waitcnt vmcnt({min(n, 63)})")
    def LG(c):
        ops = []
        for ks in (2*c, 2*c+1):
            for t in range(4):
                o = f"buffer_load_dwordx4 {xr(t,ks)}, {v(vl16)}, {s(rH2,4)}, {s(sx+t)} offen offset:{(ks & 3)*1024}"
                if ks & 3 == 3: o += f"\ns_add_u32 {s(sx+t)}, {s(sx+t)}, 4096"
                ops.append((o, ('L', c)))
        ops.append((f"s_mov_b32 m0, {s(sw01d)}\ns_nop 0\nbuffer_load_dwordx4 {v(vl16)}, {s(rW,4)}, {s(sw01s)} offen lds", ('L', c)))
        ops.append((f"buffer_load_dwordx4 {v(vl16)}, {s(rW,4)}, {s(sw01s)} offen offset:1024 lds\ns_add_u32 {s(sw01s)}, {s(sw01s)}, 4096\ns_add_u32 {s(sw01d)}, {s(sw01d)}, 4096", ('L', c)))
        ops.append((f"s_mov_b32 m0, {s(sw23d)}\ns_nop 0\nbuffer_load_dwordx4 {v(vl16)}, {s(rW,4)}, {s(sw23s)} offen lds\ns_add_u32 {s(sw23s)}, {s(sw23s)}, 2048\ns_add_u32 {s(sw23d)}, {s(sw23d)}, 2048", ('L', c)))
        return ops
    def dma9(srcbase_expr_setup, dst_setup, tag):
        ops = []
        for c in range(3):
            n = 4 if c < 2 else 1
            for i in range(n):
                hd = ""
                if i == 0:
                    hd = (srcbase_expr_setup + "\n" + dst_setup + "\n" if c == 0 else f"s_add_u32 {s(sst)}, {s(sst)}, 4096\ns_add_u32 {s(stmp2)}, {s(stmp2)}, 4096\n") + f"s_mov_b32 m0, {s(stmp2)}\ns_nop 0\n"
                ops.append((hd + f"buffer_load_dwordx4 {v(vl16)}, {s(rW,4)}, {s(sst)} offen offset:{i*1024} lds", tag))
        return ops
    def W23rest():
        src = (f"s_lshr_b32 {s(stmp)}, {s(sw)}, 1\ns_add_u32 {s(stmp)}, {s(stmp)}, 2\ns_mul_i32 {s(stmp)}, {s(stmp)}, {US}\ns_and_b32 {s(stmp2)}, {s(sw)}, 1\ns_mul_i32 {s(stmp2)}, {s(stmp2)}, 9216\n"
               f"s_add_u32 {s(stmp2)}, {s(stmp2)}, {s(stmp)}\ns_add_u32 {s(stmp2)}, {s(stmp2)}, 18432\ns_add_u32 {s(sst)}, {s(stmp2)}, {s(sfs)}")
        return dma9(src, "", ('R',))
    def UD(u):
        slot = u % 4
        if u < 8: src = f"s_add_u32 {s(sst)}, {s(sfs)}, {u*US}\ns_add_u32 {s(sst)}, {s(sst)}, {s(sfd)}"
        else: src = f"s_add_u32 {s(sst)}, {s(su8)}, {s(sfd)}"
        return dma9(src, f"s_add_u32 {s(stmp2)}, {s(sfd)}, {slot*US}", ('U', u))
    def fixdma(ops):
        return [(o.replace("\n\n", "\n"), t) for o, t in ops]

    steps = []
    for c in range(9): steps += [(0, 2*c), (1, 2*c), (2, c), (0, 2*c+1), (1, 2*c+1), (3, c)]
    for kk in range(9, 18): steps += [(2, kk), (3, kk)]
    for u in range(4, 9): steps += [(u, ks) for ks in range(18)]
    N = len(steps); assert N == 162
    last_step = {u: max(i for i, (uu, _) in enumerate(steps) if uu == u) for u in range(9)}
    first_step = {u: min(i for i, (uu, _) in enumerate(steps) if uu == u) for u in range(9)}
    def reads(i):
        u, ks = steps[i]; slot = RING + 8*(i % 3); b = vS + (u % 4)
        return [f"ds_read_b128 {v(slot,4)}, {v(b)} offset:{ks*2048}", f"ds_read_b128 {v(slot+4,4)}, {v(b)} offset:{ks*2048+1024}"]
    def epi(u):
        X = ACC + 32*(u % 4); p = u % 2; ops = []
        g = lambda e: X + e; uu = lambda e: X + 16 + e
        for b in (0, 8):
            es = range(b, b+8); t = lambda e: TMP + e - b
            ops += [(f"v_mul_f32 {v(t(e))}, {s(snl2e)}, {v(g(e))}", 1) for e in es]
            ops += [(f"v_exp_f32 {v(t(e))}, {v(t(e))}", 2) for e in es]
            ops += [(f"v_mul_f32 {v(uu(e))}, {v(g(e))}, {v(uu(e))}", 1) for e in es]
            ops += [(f"v_add_f32 {v(t(e))}, 1.0, {v(t(e))}", 1) for e in es]
            ops += [(f"v_rcp_f32 {v(t(e))}, {v(t(e))}", 2) for e in es]
            ops += [(f"v_mul_f32 {v(uu(e))}, {v(uu(e))}, {v(t(e))}", 1) for e in es]
            for e in es:
                if e % 2 == 0:
                    tt = e // 4; h = (e % 4)//2
                    dst = OUT + 4*tt + (2*p if u < 8 else 0) + h
                    ops.append((f"v_cvt_pk_bf16_f32 {v(dst)}, {v(uu(e))}, {v(uu(e+1))}", 1))
        out = [(o, c, None) for o, c in ops]
        if u < 8 and p == 1:
            for tt in range(4):
                hd = (f"s_lshl_b32 {s(sso)}, {s(sg)}, 2\ns_add_u32 {s(sso)}, {s(sso)}, {u >> 1}\ns_lshl_b32 {s(sso)}, {s(sso)}, 10\ns_add_u32 {s(sso)}, {s(sso)}, {s(sh0)}\n" if tt == 0 else f"s_add_u32 {s(sso)}, {s(sso)}, {144*1024}\n")
                out.append((hd + f"buffer_store_dwordx4 {v(OUT+4*tt,4)}, {v(vl16)}, {s(rHH,4)}, {s(sso)} offen" + (" sc1" if u < wt_upto else ""), 2, ('S', u)))
        if u == 8:
            for tt in range(4):
                hd = (f"s_lshr_b32 {s(sso)}, {s(sg)}, 1\ns_add_u32 {s(sso)}, {s(sso)}, 128\ns_lshl_b32 {s(sso)}, {s(sso)}, 10\ns_add_u32 {s(sso)}, {s(sso)}, {s(sh0)}\n" if tt == 0 else f"s_add_u32 {s(sso)}, {s(sso)}, {144*1024}\n")
                out.append((hd + f"buffer_store_dwordx2 {v(OUT+4*tt,2)}, {v(vst2)}, {s(rHH,4)}, {s(sso)} offen", 2, ('S', u)))
        return out
    epiq = []
    done_units = set()
    def emit_epi(o):
        if o[4] is not None: k(o[2]); vm.append(o[4])
        else: k(o[2])
    for o in LG(0): emit(o)
    for c in range(1, PDS):
        for o in LG(c): emit(o)
    wait(('L', 0)); k("s_barrier")
    if stamps: k("s_memtime s[64:65]")
    for o in reads(0) + reads(1): k(o)
    vq = []
    busy9 = [0]
    for i in range(N):
        u, ks = steps[i]
        pre_bar = False
        if i < 54 and (i + 2) < 54 and (i + 2) % 6 == 0:
            c = (i + 2)//6
            while any(t == ('L', c) for _, t in vq): emit(vq.pop(0))
            wait(('L', c)); k("s_barrier")
        if i == 52:
            while vq: emit(vq.pop(0))
            k("s_waitcnt lgkmcnt(0)"); wait(('R',)); k("s_barrier")
            vq += fixdma(UD(4)) + fixdma(UD(5))
        if i == 70:
            while any(t == ('U', 4) for _, t in vq): emit(vq.pop(0))
            k("s_waitcnt lgkmcnt(0)"); wait(('U', 4)); k("s_barrier")
            vq += fixdma(UD(6)) + fixdma(UD(7))
        if i == 88:
            while any(t == ('U', 5) for _, t in vq): emit(vq.pop(0))
            k("s_waitcnt lgkmcnt(0)"); wait(('U', 5)); k("s_barrier")
            vq += fixdma(UD(8))
        for uu_, at in ((6, 106), (7, 124), (8, 142)):
            if i == at:
                while any(t == ('U', uu_) for _, t in vq): emit(vq.pop(0))
                wait(('U', uu_)); k("s_barrier")
        if i < 54 and i % 6 == 0:
            c = i//6 + PDS
            if c < 9: vq += LG(c)
            if i//6 == 9 - PDS or (PDS > 8 and i == 0): vq += fixdma(W23rest())
        if u >= 4 and i == first_step[u]:
            while any(o[1] == u - 4 for o in epiq): emit_epi(epiq.pop(0))
        rd = reads(i+2) if i + 2 < N else []
        synced = i in (52, 70, 88)
        if not synced:
            nout = (2 if i + 1 < N else 0)
            k(f"s_waitcnt lgkmcnt({nout})")
        X = ACC + 32*(u % 4); slot = RING + 8*(i % 3)
        budget = cap
        nv = -(-len(vq) // max(1, 6 if i < 54 else 9)) if vq else 0
        nv = min(nv, 3)
        for j in range(8):
            m, t = j // 4, j % 4
            acc = X + 16*m + 4*t
            c = "0" if ks == 0 else v(acc, 4)
            k(f"v_mfma_f32_16x16x32_bf16 {v(acc,4)}, {v(slot+4*m,4)}, {xr(t,ks)}, {c}")
            used = 0
            if rd and j in (0, 1): k(rd.pop(0)); used += 1
            if vq and nv > 0 and j in (2, 4, 6):
                emit(vq.pop(0)); nv -= 1; used += 2; budget -= 2
            while epiq and epiq[0][0] <= i and used < 2 and budget > 0:
                o = epiq[0]
                if used + min(o[3], 2) > 2 and used > 0: break
                epiq.pop(0); emit_epi(o); used += o[3]; budget -= o[3]
        if i == last_step[u]:
            epiq += [(i + 2, u, o, c, tg) for o, c, tg in epi(u)]
    if stamps: k("s_memtime s[66:67]")
    k("s_nop 7")
    while epiq: emit_epi(epiq.pop(0))
    if stamps:
        k("s_waitcnt vmcnt(0)\ns_memtime s[68:69]\ns_memrealtime s[70:71]\ns_waitcnt lgkmcnt(0)")
        srd(k, 24, sWS, WS["AUX"], WS["AUX_SZ"])
        k(f"s_lshl_b32 {s(stmp)}, s2, 3\ns_add_u32 {s(stmp)}, {s(stmp)}, {s(sw)}\ns_lshl_b32 {s(stmp)}, {s(stmp)}, 6\nv_mov_b32 v9, {s(stmp)}")
        for i, (x, y) in enumerate(((64,60),(66,60),(68,60),(70,62))):
            k(f"s_sub_u32 s72, s{x}, s{y}\nv_mov_b32 v8, s72\nbuffer_store_dword v8, v9, s[24:27], 0 offen offset:{4*i}")
        k(f"v_mov_b32 v8, s62\nbuffer_store_dword v8, v9, s[24:27], 0 offen offset:16")
    k("L_g1_end:\ns_endpgm")
    return k, (256, 256, 4*US)
```

```python
from asmgen import *
from layout import *
from k_g1 import srd, spread

def gen_g2a(stamps=False, NB=6):
    GS = 36864
    k = Kern("g2a_kernel", vgprs=160, agprs=8*NB)
    sWS = 4
    rW2, rHH, rP = 12, 16, 20
    sw, srb, scs, skq, sa_, sb0, sb1, stmp, stmp2, sloop, slds, sp = range(32, 44)
    vl16, vA = 1, 2
    ACC = 8
    AF = 80
    acc = lambda t, dt: ACC + (t*9+dt)*4
    Bf = lambda sm, t: sm*8 + t*4
    k("s_cmp_ge_u32 s2, 256\ns_cbranch_scc1 L_g2a_end")
    k(f"s_load_dwordx2 {s(sWS,2)}, s[0:1], {KA['ws']}")
    if stamps: k("s_memtime s[60:61]\ns_memrealtime s[62:63]")
    k(f"v_lshrrev_b32 v8, 6, v0\nv_and_b32 v0, 63, v0\nv_readfirstlane_b32 {s(sw)}, v8\nv_lshlrev_b32 {v(vl16)}, 4, v0")
    for i in range(3): k(f"v_add_u32 {v(vA+i)}, {i*GS}, {v(vl16)}")
    k(f"s_lshr_b32 {s(skq)}, s2, 1\ns_and_b32 {s(skq)}, {s(skq)}, 3\ns_and_b32 {s(stmp)}, s2, 1\ns_lshl_b32 {s(srb)}, {s(stmp)}, 3")
    k(f"s_lshr_b32 {s(stmp)}, s2, 3\ns_and_b32 {s(stmp2)}, {s(stmp)}, 7\ns_add_u32 {s(srb)}, {s(srb)}, {s(stmp2)}\ns_lshr_b32 {s(scs)}, {s(stmp)}, 3")
    k(f"s_lshl_b32 {s(stmp)}, {s(srb)}, 3\ns_lshl_b32 {s(stmp2)}, {s(sw)}, 1\ns_add_u32 {s(stmp)}, {s(stmp)}, {s(stmp2)}")
    k(f"s_mul_i32 {s(sb0)}, {s(stmp)}, {144*1024}\ns_mul_i32 {s(stmp2)}, {s(skq)}, {36*1024}\ns_add_u32 {s(sb0)}, {s(sb0)}, {s(stmp2)}\ns_add_u32 {s(sb1)}, {s(sb0)}, {144*1024}")
    k(f"s_lshl_b32 {s(stmp2)}, {s(skq)}, 7\ns_add_u32 {s(stmp2)}, {s(stmp2)}, {s(stmp)}\ns_mul_i32 {s(sp)}, {s(stmp2)}, {18*1024}")
    k(f"s_mul_i32 {s(sa_)}, {s(skq)}, 36\ns_add_u32 {s(sa_)}, {s(sa_)}, {s(sw)}\ns_mul_i32 {s(sa_)}, {s(sa_)}, {36*1024}\ns_mul_i32 {s(stmp2)}, {s(scs)}, {9*1024}\ns_add_u32 {s(sa_)}, {s(sa_)}, {s(stmp2)}")
    k(f"s_mul_i32 {s(slds)}, {s(sw)}, 9216")
    k("s_waitcnt lgkmcnt(0)")
    srd(k, rW2, sWS, WS["W2F"], WS["W2F_SZ"]); srd(k, rHH, sWS, WS["HHF"], WS["HHF_SZ"]); srd(k, rP, sWS, WS["PART"], WS["PART_SZ"])
    vm = []
    def wdma(g):
        ops = []
        for c in range(3):
            n = 4 if c < 2 else 1
            hd = f"s_add_u32 m0, {s(slds)}, {(g % 3)*GS + c*4096}\ns_add_u32 {s(stmp)}, {s(sa_)}, {c*4096}\n"
            for i in range(n):
                ops.append((hd if i == 0 else "") + f"buffer_load_dwordx4 {v(vl16)}, {s(rW2,4)}, {s(stmp)} offen offset:{i*1024} lds")
        ops[-1] += f"\ns_add_u32 {s(sa_)}, {s(sa_)}, {4*36*1024}"
        return [(o, ('W', g)) for o in ops]
    def bload(st):
        sm = st % NB
        return [(f"buffer_load_dwordx4 {a(Bf(sm,0),4)}, {v(vl16)}, {s(rHH,4)}, {s(sb0)} offen", ('B', st)),
                (f"buffer_load_dwordx4 {a(Bf(sm,1),4)}, {v(vl16)}, {s(rHH,4)}, {s(sb1)} offen\ns_add_u32 {s(sb0)}, {s(sb0)}, 1024\ns_add_u32 {s(sb1)}, {s(sb1)}, 1024", ('B', st))]
    def emit(op):
        if isinstance(op, tuple): k(op[0]); vm.append(op[1])
        else: k(op)
    def wait(*tags):
        idx = [i for i, t in enumerate(vm) if t in tags]
        n = len(vm) - 1 - max(idx)
        k(f"s_waitcnt vmcnt({min(n, 63)})")
    def areads(st):
        g = st // 4; par = st % 2
        return [f"ds_read_b128 {v(AF+par*36+dt*4,4)}, {v(vA + g % 3)} offset:{(st % 4)*9216 + dt*1024}" for dt in range(9)]
    PB = NB - 1
    for o in wdma(0): emit(o)
    for st in range(2):
        for o in bload(st): emit(o)
    for o in wdma(1): emit(o)
    for st in range(2, PB):
        for o in bload(st): emit(o)
    for o in wdma(2): emit(o)
    wait(('W', 0)); k("s_barrier")
    for o in areads(0): k(o)
    if stamps: k("s_memtime s[64:65]")
    for st in range(36):
        g = st // 4; par = st % 2
        fill = []
        if st % 4 == 3 and g < 8:
            k("s_waitcnt lgkmcnt(0)")
            wait(('W', g+1)); k("s_barrier")
            if g + 3 <= 8: fill += wdma(g+3)
        else:
            k("s_waitcnt lgkmcnt(0)")
        wait(('B', st))
        rd = areads(st+1) if st < 35 else []
        if st + PB < 36: fill = bload(st + PB) + fill
        fill = rd + fill
        slots = spread(fill, 18)
        j = 0
        for dt in range(9):
            for t in range(2):
                c = "0" if st == 0 else v(acc(t,dt),4)
                k(f"v_mfma_f32_16x16x32_bf16 {v(acc(t,dt),4)}, {v(AF+par*36+dt*4,4)}, {a(Bf(st % NB,t),4)}, {c}")
                for o in slots[j]: emit(o)
                j += 1
    if stamps: k("s_memtime s[66:67]")
    k(f"v_lshlrev_b32 v5, 4, v0\nv_add_u32 v6, 8, v5")
    k(f"s_mul_i32 {s(stmp)}, {s(scs)}, 9\ns_lshr_b32 {s(stmp)}, {s(stmp)}, 1\ns_lshl_b32 {s(stmp)}, {s(stmp)}, 10\ns_add_u32 {s(sp)}, {s(sp)}, {s(stmp)}")
    k("s_nop 4")
    for t in range(2):
        for dt in range(9):
            r = acc(t,dt)
            k(f"v_cvt_pk_bf16_f32 {v(r)}, {v(r)}, {v(r+1)}\nv_cvt_pk_bf16_f32 {v(r+1)}, {v(r+2)}, {v(r+3)}")
    k(f"s_and_b32 {s(stmp)}, {s(scs)}, 1\ns_cmp_eq_u32 {s(stmp)}, 0\ns_cbranch_scc0 L_g2a_odd")
    def pairs(first, ksoff0):
        for t in range(2):
            k(f"s_add_u32 {s(stmp2)}, {s(sp)}, {t*18*1024}")
            for p in range(4):
                d0 = first + 2*p; r0, r1 = acc(t,d0), acc(t,d0+1)
                k(f"v_mov_b32 {v(r0+2)}, {v(r1)}\nv_mov_b32 {v(r0+3)}, {v(r1+1)}")
                ko = ksoff0 + p
                k(f"s_add_u32 {s(stmp)}, {s(stmp2)}, {ko*1024}\nbuffer_store_dwordx4 {v(r0,4)}, {v(vl16)}, {s(rP,4)}, {s(stmp)} offen")
            sd = 8 if first == 0 else 0; ko = 4 if first == 0 else 0
            k(f"s_add_u32 {s(stmp)}, {s(stmp2)}, {ko*1024}\nbuffer_store_dwordx2 {v(acc(t,sd),2)}, {'v5' if first == 0 else 'v6'}, {s(rP,4)}, {s(stmp)} offen")
    pairs(0, 0)
    k("s_branch L_g2a_done")
    k("L_g2a_odd:")
    pairs(1, 1)
    k("L_g2a_done:")
    if stamps:
        k("s_waitcnt vmcnt(0)\ns_memtime s[68:69]\ns_memrealtime s[70:71]\ns_waitcnt lgkmcnt(0)")
        srd(k, 24, sWS, WS["AUX"], WS["AUX_SZ"])
        k(f"s_lshl_b32 {s(stmp)}, s2, 3\ns_add_u32 {s(stmp)}, {s(stmp)}, {s(sw)}\ns_lshl_b32 {s(stmp)}, {s(stmp)}, 6\nv_mov_b32 v9, {s(stmp)}")
        for i, (x, y) in enumerate(((64,60),(66,60),(68,60),(70,62))):
            k(f"s_sub_u32 s72, s{x}, s{y}\nv_mov_b32 v8, s72\nbuffer_store_dword v8, v9, s[24:27], 0 offen offset:{4*i}")
        k(f"v_mov_b32 v8, s62\nbuffer_store_dword v8, v9, s[24:27], 0 offen offset:16")
    k("L_g2a_end:\ns_endpgm")
    return k, (256, 256, 3*GS)

def gen_g2r():
    k = Kern("g2r_kernel", vgprs=96)
    sWS, sOUT = 4, 6
    rP, rX1, rMOD, rOUT = 8, 12, 16, 20
    sw, sf, stile, sks, stmp, stmp2 = range(32, 38)
    k("s_cmp_ge_u32 s2, 288\ns_cbranch_scc1 L_g2r_end")
    k(f"s_load_dwordx2 {s(sWS,2)}, s[0:1], {KA['ws']}\ns_load_dwordx2 {s(sOUT,2)}, s[0:1], {KA['out']}")
    k(f"v_lshrrev_b32 v8, 6, v0\nv_and_b32 v0, 63, v0\nv_readfirstlane_b32 {s(sw)}, v8\nv_lshlrev_b32 v1, 4, v0")
    k(f"s_lshl_b32 {s(sf)}, s2, 2\ns_add_u32 {s(sf)}, {s(sf)}, {s(sw)}\ns_lshl_b32 {s(sf)}, {s(sf)}, 1")
    k(f"s_mul_i32 {s(stile)}, {s(sf)}, 3641\ns_lshr_b32 {s(stile)}, {s(stile)}, 16\ns_mul_i32 {s(stmp)}, {s(stile)}, 18\ns_sub_u32 {s(sks)}, {s(sf)}, {s(stmp)}")
    k("v_lshrrev_b32 v2, 4, v0\nv_lshlrev_b32 v3, 4, v2")
    k(f"v_and_b32 v4, 15, v0\ns_lshl_b32 {s(stmp)}, {s(stile)}, 4\nv_add_u32 v4, {s(stmp)}, v4\nv_mul_u32_u24 v4, 1152, v4\nv_lshlrev_b32 v5, 3, v2\nv_add_u32 v4, v4, v5")
    k(f"s_lshl_b32 {s(stmp)}, {s(sks)}, 6\nv_add_u32 v4, {s(stmp)}, v4")
    k("s_waitcnt lgkmcnt(0)")
    srd(k, rP, sWS, WS["PART"], WS["PART_SZ"]); srd(k, rX1, sWS, WS["X1F"], WS["X1F_SZ"]); srd(k, rMOD, sWS, WS["MOD"], WS["MOD_SZ"]); srd(k, rOUT, sOUT, 0, 2048*1152)
    P = 8; X = 40; G = 48; T = 64
    k(f"s_lshl_b32 {s(stmp)}, {s(sf)}, 10")
    for kq in range(4):
        k(f"s_add_u32 {s(stmp2)}, {s(stmp)}, {kq*128*18*1024}")
        for f in range(2): k(f"buffer_load_dwordx4 {v(P+(f*4+kq)*4,4)}, v1, {s(rP,4)}, {s(stmp2)} offen offset:{f*1024}")
    for f in range(2): k(f"buffer_load_dwordx4 {v(X+f*4,4)}, v1, {s(rX1,4)}, {s(stmp)} offen offset:{f*1024}")
    k(f"s_lshl_b32 {s(stmp2)}, {s(sks)}, 7\ns_add_u32 {s(stmp2)}, {s(stmp2)}, {5*576*4}")
    for f in range(2):
        for h in range(2): k(f"buffer_load_dwordx4 {v(G+(f*2+h)*4,4)}, v3, {s(rMOD,4)}, {s(stmp2)} offen offset:{f*128+h*64}")
    k("s_waitcnt vmcnt(0)")
    for f in range(2):
        for j in range(4):
            lo, hi = T+2*j, T+2*j+1
            p0 = P + (f*4)*4 + j
            k(f"v_lshlrev_b32 {v(lo)}, 16, {v(p0)}\nv_and_b32 {v(hi)}, 0xffff0000, {v(p0)}")
            for kq in range(1, 4):
                p = P + (f*4+kq)*4 + j
                k(f"v_lshlrev_b32 v6, 16, {v(p)}\nv_and_b32 v7, 0xffff0000, {v(p)}\nv_add_f32 {v(lo)}, {v(lo)}, v6\nv_add_f32 {v(hi)}, {v(hi)}, v7")
            x = X + f*4 + j; g = G + f*8 + 2*j
            k(f"v_lshlrev_b32 v6, 16, {v(x)}\nv_and_b32 v7, 0xffff0000, {v(x)}\nv_fma_f32 {v(lo)}, {v(g)}, {v(lo)}, v6\nv_fma_f32 {v(hi)}, {v(g+1)}, {v(hi)}, v7")
        for j in range(4): k(f"v_cvt_pk_bf16_f32 {v(T+8+j)}, {v(T+2*j)}, {v(T+2*j+1)}")
        k(f"buffer_store_dwordx2 {v(T+8,2)}, v4, {s(rOUT,4)}, 0 offen offset:{f*64}\nbuffer_store_dwordx2 {v(T+10,2)}, v4, {s(rOUT,4)}, 0 offen offset:{f*64+32}")
    k("L_g2r_end:\ns_endpgm")
    return k, (288, 256, 0)
```

```python
from asmgen import *
from layout import *
from k_g1 import srd, spread

def gen_k0():
    k = Kern("k0_kernel", vgprs=128)
    sWS, sC, sW = 4, 6, 8
    rW, rC, rMOD = 12, 16, 20
    stmp, spart = 32, 33
    k("s_cmp_ge_u32 s2, 54\ns_cbranch_scc1 L_k0_end")
    k(f"s_load_dwordx2 {s(sWS,2)}, s[0:1], {KA['ws']}\ns_load_dwordx2 {s(sC,2)}, s[0:1], {KA['c']}\ns_load_dwordx2 {s(sW,2)}, s[0:1], {KA['wmod']}")
    k("v_and_b32 v1, 7, v0\nv_lshrrev_b32 v2, 3, v0")
    k("v_mul_u32_u24 v3, 6912, v2\nv_lshlrev_b32 v4, 4, v1\nv_add_u32 v3, v3, v4")
    k(f"s_lshl_b32 {s(stmp)}, s2, 7\nv_add_u32 v3, {s(stmp)}, v3")
    k("v_lshlrev_b32 v4, 1, v2")
    k("s_waitcnt lgkmcnt(0)")
    srd(k, rW, sW, 0, 576*6912); srd(k, rC, sC, 0, 1152); srd(k, rMOD, sWS, WS["MOD"], WS["MOD_SZ"])
    C = 8; W = 28
    for i in range(18): k(f"buffer_load_ushort {v(C+i)}, v4, {s(rC,4)}, 0 offen offset:{64*i}")
    for i in range(18): k(f"s_mov_b32 {s(stmp)}, {i*32*6912}\nbuffer_load_dwordx4 {v(W+4*i,4)}, v3, {s(rW,4)}, {s(stmp)} offen")
    k("s_waitcnt vmcnt(18)")
    T = 100
    for i in range(18): k(f"v_lshlrev_b32 {v(C+i)}, 16, {v(C+i)}")
    for b in range(0, 18, 6):
        es = range(b, b+6)
        for i in es: k(f"v_mul_f32 {v(T+i-b)}, 0xbfb8aa3b, {v(C+i)}")
        for i in es: k(f"v_exp_f32 {v(T+i-b)}, {v(T+i-b)}")
        for i in es: k(f"v_add_f32 {v(T+i-b)}, 1.0, {v(T+i-b)}")
        for i in es: k(f"v_rcp_f32 {v(T+i-b)}, {v(T+i-b)}")
        for i in es: k(f"v_mul_f32 {v(C+i)}, {v(C+i)}, {v(T+i-b)}")
        for i in es: k(f"v_cvt_pk_bf16_f32 {v(C+i)}, {v(C+i)}, {v(C+i)}")
        for i in es: k(f"v_lshlrev_b32 {v(C+i)}, 16, {v(C+i)}")
    A = 108
    for e in range(8): k(f"v_mov_b32 {v(A+e)}, 0")
    for i in range(18):
        k(f"s_waitcnt vmcnt({17-i})")
        for j in range(4):
            k(f"v_lshlrev_b32 {v(T)}, 16, {v(W+4*i+j)}\nv_and_b32 {v(T+1)}, 0xffff0000, {v(W+4*i+j)}")
            k(f"v_fmac_f32 {v(A+2*j)}, {v(T)}, {v(C+i)}\nv_fmac_f32 {v(A+2*j+1)}, {v(T+1)}, {v(C+i)}")
    k("v_lshlrev_b32 v5, 8, v2\nv_lshlrev_b32 v6, 5, v1\nv_add_u32 v5, v5, v6")
    k(f"ds_write_b128 v5, {v(A,4)}\nds_write_b128 v5, {v(A+4,4)} offset:16")
    k("s_waitcnt lgkmcnt(0)\ns_barrier")
    k("v_cmp_gt_u32 vcc, 64, v0\ns_and_saveexec_b64 s[40:41], vcc\ns_cbranch_execz L_k0_end")
    k("v_lshlrev_b32 v5, 2, v0")
    for r in range(32): k(f"ds_read_b32 {v(W+r)}, v5 offset:{r*256}")
    k("s_waitcnt lgkmcnt(0)")
    for st in (16, 8, 4, 2, 1):
        for r in range(st): k(f"v_add_f32 {v(W+r)}, {v(W+r)}, {v(W+r+st)}")
    k(f"v_cvt_pk_bf16_f32 {v(W)}, {v(W)}, {v(W)}\nv_lshlrev_b32 {v(W)}, 16, {v(W)}")
    k(f"s_mul_i32 {s(spart)}, s2, 7282\ns_lshr_b32 {s(spart)}, {s(spart)}, 16")
    k(f"s_cmp_eq_u32 {s(spart)}, 1\ns_cbranch_scc1 L_k0_add\ns_cmp_eq_u32 {s(spart)}, 4\ns_cbranch_scc0 L_k0_st")
    k("L_k0_add:")
    k(f"v_add_f32 {v(W)}, 1.0, {v(W)}\nv_cvt_pk_bf16_f32 {v(W)}, {v(W)}, {v(W)}\nv_lshlrev_b32 {v(W)}, 16, {v(W)}")
    k("L_k0_st:")
    k(f"s_lshl_b32 {s(stmp)}, s2, 8\nbuffer_store_dword {v(W)}, v5, {s(rMOD,4)}, {s(stmp)} offen")
    k("L_k0_end:\ns_endpgm")
    return k, (54, 256, 8192)

def gen_k1(stamps=False):
    k = Kern("k1_kernel", vgprs=252, agprs=72)
    SLOT = 9216; NSL = 16; MODL = NSL*SLOT
    sWS, sX, sW = 4, 6, 8
    rW, rX, rMOD, rQM, rQR, rKV = 12, 16, 20, 24, 28, 44
    sw, srb, scs, stmp, stmp2, ssrc, sqt, sh0, skind = range(32, 41)
    vP = 1
    vx, vA, vl16, vt = 10, 11, 12, 13
    X = 16
    ACC = 160
    M = 232
    xr = lambda t, ks: X + (t*18+ks)*4
    acc = lambda u, t: ACC + (u*2+t)*4
    k("s_cmp_ge_u32 s2, 192\ns_cbranch_scc1 L_k1_end")
    k(f"s_load_dwordx2 {s(sWS,2)}, s[0:1], {KA['ws']}\ns_load_dwordx2 {s(sX,2)}, s[0:1], {KA['x']}\ns_load_dwordx2 {s(sW,2)}, s[0:1], {KA['wqkv']}")
    if stamps: k("s_memtime s[60:61]\ns_memrealtime s[62:63]")
    k(f"v_lshrrev_b32 v14, 6, v0\nv_and_b32 v0, 63, v0\nv_readfirstlane_b32 {s(sw)}, v14")
    k(f"v_lshlrev_b32 {v(vl16)}, 4, v0")
    k(f"s_and_b32 {s(stmp)}, s2, 7\ns_lshl_b32 {s(srb)}, {s(stmp)}, 1\ns_lshr_b32 {s(stmp)}, s2, 3\ns_and_b32 {s(stmp2)}, {s(stmp)}, 1\ns_add_u32 {s(srb)}, {s(srb)}, {s(stmp2)}\ns_lshr_b32 {s(scs)}, {s(stmp)}, 1")
    k(f"s_lshl_b32 {s(sqt)}, {s(srb)}, 2\ns_add_u32 {s(sqt)}, {s(sqt)}, {s(sw)}")
    for i in range(9):
        k(f"v_add_u32 v13, {64*i}, v0\nv_mul_u32_u24 v14, 3641, v13\nv_lshrrev_b32 v14, 16, v14\nv_mul_u32_u24 v15, 18, v14\nv_sub_u32 v13, v13, v15")
        k(f"v_lshrrev_b32 v15, 1, v14\nv_and_b32 v15, 4, v15\nv_xor_b32 v14, v14, v15\nv_mul_u32_u24 v14, 3456, v14\nv_lshlrev_b32 v13, 4, v13\nv_add_u32 {v(vP+i)}, v13, v14")
    k(f"v_and_b32 v13, 15, v0\ns_lshl_b32 {s(stmp)}, {s(sqt)}, 5\nv_add_u32 v13, {s(stmp)}, v13\nv_mul_u32_u24 v13, 1152, v13\nv_lshrrev_b32 v14, 4, v0\nv_lshlrev_b32 v14, 4, v14\nv_add_u32 {v(vx)}, v13, v14")
    k("v_lshrrev_b32 v13, 4, v0\nv_lshlrev_b32 v13, 3, v13\nv_bfe_u32 v14, v0, 2, 2\nv_add_u32 v13, v13, v14")
    k("v_lshrrev_b32 v14, 1, v13\nv_and_b32 v14, 4, v14\nv_xor_b32 v15, v13, v14")
    k(f"v_mul_u32_u24 v15, 288, v15\nv_and_b32 v14, 3, v0\nv_lshlrev_b32 v14, 3, v14\nv_add_u32 {v(vA)}, v15, v14")
    k("v_add_u32 v13, 4, v13\nv_lshrrev_b32 v15, 1, v13\nv_and_b32 v15, 4, v15\nv_xor_b32 v15, v13, v15")
    k(f"v_mul_u32_u24 v15, 288, v15\nv_add_u32 {v(M+16)}, v15, v14")
    vA2 = M+16
    k("s_waitcnt lgkmcnt(0)")
    srd(k, rW, sW, 0, 576*3456); srd(k, rX, sX, 0, 2048*1152); srd(k, rMOD, sWS, WS["MOD"], WS["MOD_SZ"])
    srd(k, rQM, sWS, WS["QM"], WS["QM_SZ"]); srd(k, rQR, sWS, WS["QR"], WS["QR_SZ"]); srd(k, rKV, sWS, WS["KV"], WS["KV_SZ"])
    for ks in range(18):
        for t in range(2):
            k(f"s_mov_b32 {s(stmp)}, {t*16*1152}\nbuffer_load_dwordx4 {v(xr(t,ks),4)}, {v(vx)}, {s(rX,4)}, {s(stmp)} offen offset:{ks*64}")
    k(f"s_lshl_b32 {s(stmp)}, {s(sw)}, 10\ns_add_u32 m0, {s(stmp)}, {MODL}\ns_nop 0\nbuffer_load_dwordx4 {v(vl16)}, {s(rMOD,4)}, {s(stmp)} offen lds")
    k(f"s_mov_b32 {s(stmp)}, 4096\ns_mov_b32 m0, {MODL+4096}\ns_nop 0\nbuffer_load_dwordx4 {v(vl16)}, {s(rMOD,4)}, {s(stmp)} offen lds")
    k(f"s_mul_i32 {s(ssrc)}, {s(scs)}, 288\ns_mul_i32 {s(stmp)}, {s(sw)}, {32*3456}\ns_add_u32 {s(ssrc)}, {s(ssrc)}, {s(stmp)}\ns_mul_i32 {s(sh0)}, {s(sw)}, {SLOT}")
    def wdma(g, slotbase):
        for i in range(9):
            k(f"s_add_u32 m0, {s(sh0)}, {slotbase + i*1024}\ns_add_u32 {s(stmp)}, {s(ssrc)}, {g*4*32*3456}\nbuffer_load_dwordx4 {v(vP+i)}, {s(rW,4)}, {s(stmp)} offen lds")
    wdma(0, 0)
    for t in range(2): k(f"v_mov_b32 {v(M+2*t)}, 0\nv_mov_b32 {v(M+2*t+1)}, 0")
    k(f"v_mov_b32 {v(M+4)}, 0x3f803f80")
    for ks in range(18):
        k(f"s_waitcnt vmcnt({11 + 2*(17-ks)})")
        for t in range(2):
            for j in range(4):
                r = xr(t,ks)+j
                k(f"v_dot2_f32_bf16 {v(M+2*t)}, {v(r)}, {v(M+4)}, {v(M+2*t)}\nv_dot2_f32_bf16 {v(M+2*t+1)}, {v(r)}, {v(r)}, {v(M+2*t+1)}")
        if ks in (2, 6, 10): wdma(ks//4 + 1, (ks//4 + 1)*4*SLOT)
    for i in range(4):
        r = v(M+i)
        k(f"v_mov_b32 v13, {r}\nv_permlane32_swap_b32 {r}, v13\nv_add_f32 {r}, {r}, v13\nv_mov_b32 v13, {r}\nv_permlane16_swap_b32 {r}, v13\nv_add_f32 {r}, {r}, v13")
    for t in range(2):
        m, q = M+2*t, M+2*t+1
        k(f"v_mul_f32 {v(m)}, 0x3ae38e39, {v(m)}\nv_mul_f32 {v(q)}, 0x3ae38e39, {v(q)}")
        k(f"v_fma_f32 {v(q)}, -{v(m)}, {v(m)}, {v(q)}\nv_max_f32 {v(q)}, 0, {v(q)}\nv_add_f32 {v(q)}, 0x3727c5ac, {v(q)}\nv_rsq_f32 {v(q)}, {v(q)}")
        k(f"s_nop 0\nv_mul_f32 {v(m)}, {v(m)}, {v(q)}\nv_sub_f32 {v(m)}, 0, {v(m)}")
    k("s_waitcnt vmcnt(0)\ns_barrier")
    if stamps: k("s_memtime s[64:65]")
    k(f"v_lshrrev_b32 v13, 4, v0\nv_lshlrev_b32 v13, 5, v13\nv_add_u32 v13, {MODL}, v13")
    PR = M+6
    for t in range(2):
        k(f"v_mov_b32 {v(PR+4*t)}, {v(M+2*t+1)}\nv_mov_b32 {v(PR+4*t+1)}, {v(M+2*t+1)}\nv_mov_b32 {v(PR+4*t+2)}, {v(M+2*t)}\nv_mov_b32 {v(PR+4*t+3)}, {v(M+2*t)}")
    G = ACC; SA = ACC+16; T = ACC+32
    def modreads(ks):
        b = (ks % 2)*8
        return [f"ds_read_b128 {v(SA+b,4)}, v13 offset:{ks*128}", f"ds_read_b128 {v(SA+b+4,4)}, v13 offset:{ks*128+16}",
                f"ds_read_b128 {v(G+b,4)}, v13 offset:{2304+ks*128}", f"ds_read_b128 {v(G+b+4,4)}, v13 offset:{2304+ks*128+16}"]
    for o in modreads(0): k(o)
    for ks in range(18):
        if ks < 17:
            for o in modreads(ks+1): k(o)
            k("s_waitcnt lgkmcnt(4)")
        else: k("s_waitcnt lgkmcnt(0)")
        b = (ks % 2)*8
        for t in range(2):
            for j in range(4):
                r = xr(t,ks)+j; tt = T + (t*4+j)*2
                k(f"v_lshlrev_b32 {v(tt)}, 16, {v(r)}\nv_and_b32 {v(tt+1)}, 0xffff0000, {v(r)}")
            for j in range(4):
                tt = T + (t*4+j)*2
                k(f"v_pk_fma_f32 {v(tt,2)}, {v(tt,2)}, {v(PR+4*t,2)}, {v(PR+4*t+2,2)}")
            for j in range(4):
                tt = T + (t*4+j)*2
                k(f"v_pk_fma_f32 {v(tt,2)}, {v(tt,2)}, {v(G+b+2*j,2)}, {v(SA+b+2*j,2)}")
            for j in range(4):
                r = xr(t,ks)+j; tt = T + (t*4+j)*2
                k(f"v_cvt_pk_bf16_f32 {v(r)}, {v(tt)}, {v(tt+1)}")
    if stamps: k("s_memtime s[66:67]")
    def areads(ks, par):
        ops = []
        sl = (ks % NSL)*SLOT
        for u in range(9):
            r = par*36 + u*4
            ops.append(f"ds_read_b64_tr_b16 {a(r,2)}, {v(vA if sl < 57344 else M+17)} offset:{(sl if sl < 57344 else sl-57344) + u*32}" if False else None)
        return ops
    vAb = [vA, M+17, M+18]; vA2b = [vA2, M+19, 14]
    k(f"v_add_u32 {v(M+17)}, {7*SLOT}, {v(vA)}\nv_add_u32 {v(M+18)}, {14*SLOT}, {v(vA)}")
    k(f"v_add_u32 {v(M+19)}, {7*SLOT}, {v(vA2)}\nv_add_u32 v14, {14*SLOT}, {v(vA2)}")
    def areads(ks, par):
        ops = []
        slot = ks % NSL; bi = slot // 7; o = (slot % 7)*SLOT
        for u in range(9):
            r = par*36 + u*4
            ops.append(f"ds_read_b64_tr_b16 {a(r,2)}, {v(vAb[bi])} offset:{o + u*32}")
            ops.append(f"ds_read_b64_tr_b16 {a(r+2,2)}, {v(vA2b[bi])} offset:{o + u*32}")
        return ops
    def gemm(swapped, tag):
        for o in areads(0, 0): k(o)
        for ks in range(18):
            par = ks % 2
            k("s_waitcnt lgkmcnt(0)")
            pre = []
            if ks == 2:
                k("s_barrier")
                k(f"s_cmp_lt_u32 {s(sw)}, 2\ns_cbranch_scc0 L_k1_nodma_{tag}")
                wdma(4, 0)
                k(f"L_k1_nodma_{tag}:")
            if ks == 14:
                k("s_waitcnt vmcnt(0)\ns_barrier")
            fill = areads(ks+1, 1-par) if ks < 17 else []
            slots = spread(fill, 18)
            j = 0
            for u in range(9):
                for t in range(2):
                    c = "0" if ks == 0 else v(acc(u,t),4)
                    A_, B_ = a(par*36+u*4,4), v(xr(t,ks),4)
                    if swapped: A_, B_ = B_, A_
                    k(f"v_mfma_f32_16x16x32_bf16 {v(acc(u,t),4)}, {A_}, {B_}, {c}")
                    for o in slots[j]: k(o)
                    j += 1
    k(f"s_cmp_ge_u32 {s(scs)}, 8\ns_cbranch_scc1 L_k1_v")
    gemm(False, "qk")
    if stamps: k("s_memtime s[68:69]")
    RS = 296
    k("s_barrier")
    k(f"s_cmp_lt_u32 {s(scs)}, 4\ns_cselect_b32 {s(skind)}, 0x3eae1a93, 1.0")
    k(f"s_mul_i32 {s(stmp)}, {s(sw)}, {32*RS}")
    k(f"v_and_b32 v13, 15, v0\nv_mul_u32_u24 v13, {RS}, v13\nv_lshrrev_b32 v15, 4, v0\nv_lshlrev_b32 v15, 3, v15\nv_add_u32 v13, v13, v15\nv_add_u32 v13, {s(stmp)}, v13")
    for u in range(9):
        for t in range(2):
            r = acc(u,t)
            for e in range(4): k(f"v_mul_f32 {v(r+e)}, {s(skind)}, {v(r+e)}")
            k(f"v_cvt_pk_bf16_f32 {v(r)}, {v(r)}, {v(r+1)}\nv_cvt_pk_bf16_f32 {v(r+1)}, {v(r+2)}, {v(r+3)}")
            k(f"ds_write_b64 v13, {v(r,2)} offset:{t*16*RS + u*32}")
    k("s_waitcnt lgkmcnt(0)")
    k(f"v_and_b32 v13, 31, v0\nv_mul_u32_u24 v15, {RS}, v13\nv_lshrrev_b32 v14, 5, v0\nv_lshlrev_b32 v14, 4, v14\nv_add_u32 v15, v15, v14\nv_add_u32 v15, {s(stmp)}, v15")
    k(f"v_mul_u32_u24 v14, {RS}, v13\nv_add_u32 v14, {s(stmp)}, v14")
    R = X
    for h in range(8):
        k(f"ds_read2_b32 {v(R+8*h,2)}, v15 offset0:{9*h} offset1:{9*h+1}\nds_read2_b32 {v(R+8*h+2,2)}, v15 offset0:{9*h+2} offset1:{9*h+3}")
        k(f"ds_read_b32 {v(R+8*h+4)}, v14 offset:{36*h+32}")
    k(f"v_mov_b32 v11, 0x7fffffff\nv_cmp_gt_u32 vcc, 32, v0")
    k(f"s_and_b32 {s(sh0)}, {s(scs)}, 3\ns_lshl_b32 {s(sh0)}, {s(sh0)}, 3")
    k(f"s_cmp_lt_u32 {s(scs)}, 4\ns_cbranch_scc0 L_k1_kout")
    k("v_lshlrev_b32 v10, 2, v13\nv_cndmask_b32 v10, v11, v10, vcc")
    k(f"s_lshl_b32 {s(stmp)}, {s(sh0)}, 6\ns_add_u32 {s(stmp)}, {s(stmp)}, {s(sqt)}")
    k("s_waitcnt lgkmcnt(0)")
    for h in range(8):
        k(f"s_add_u32 {s(stmp2)}, {s(stmp)}, {64*h}\ns_lshl_b32 {s(ssrc)}, {s(stmp2)}, 10\nbuffer_store_dwordx4 {v(R+8*h,4)}, {v(vl16)}, {s(rQM,4)}, {s(ssrc)} offen")
        k(f"s_lshl_b32 {s(ssrc)}, {s(stmp2)}, 7\nbuffer_store_dword {v(R+8*h+4)}, v10, {s(rQR,4)}, {s(ssrc)} offen")
    k("s_branch L_k1_fin")
    k("L_k1_kout:")
    k("v_lshlrev_b32 v10, 4, v13\nv_cndmask_b32 v10, v11, v10, vcc")
    k(f"s_mul_i32 {s(stmp)}, {s(sh0)}, {KV_STRIDE}\ns_lshl_b32 {s(stmp2)}, {s(sqt)}, 10\ns_add_u32 {s(stmp2)}, {s(stmp2)}, {s(stmp)}")
    k(f"s_lshl_b32 {s(ssrc)}, {s(srb)}, 9\ns_add_u32 {s(stmp)}, {s(stmp)}, {s(ssrc)}\ns_lshl_b32 {s(ssrc)}, {s(sw)}, 2\ns_add_u32 {s(stmp)}, {s(stmp)}, {s(ssrc)}\ns_add_u32 {s(stmp)}, {s(stmp)}, {KR_OFF}")
    k("s_waitcnt lgkmcnt(0)")
    for h in range(8):
        k(f"buffer_store_dwordx4 {v(R+8*h,4)}, {v(vl16)}, {s(rKV,4)}, {s(stmp2)} offen")
        k(f"buffer_store_dword {v(R+8*h+4)}, v10, {s(rKV,4)}, {s(stmp)} offen")
        if h < 7: k(f"s_add_u32 {s(stmp2)}, {s(stmp2)}, {KV_STRIDE}\ns_add_u32 {s(stmp)}, {s(stmp)}, {KV_STRIDE}")
    k("s_branch L_k1_fin")
    k("L_k1_v:")
    gemm(True, "v")
    if stamps: k("s_memtime s[68:69]")
    k(f"s_sub_u32 {s(sh0)}, {s(scs)}, 8\ns_lshl_b32 {s(sh0)}, {s(sh0)}, 3\ns_mul_i32 {s(stmp)}, {s(sh0)}, {KV_STRIDE}")
    k(f"s_mul_i32 {s(stmp2)}, {s(sqt)}, {2*608}\ns_add_u32 {s(stmp)}, {s(stmp)}, {s(stmp2)}\ns_add_u32 {s(stmp)}, {s(stmp)}, {VT_OFF}")
    k("v_lshrrev_b32 v13, 4, v0\nv_and_b32 v14, 1, v13\nv_mul_u32_u24 v14, 304, v14\nv_lshrrev_b32 v13, 1, v13\nv_lshlrev_b32 v13, 3, v13\nv_add_u32 v14, v14, v13")
    k(f"v_and_b32 v15, 15, v0\ns_mov_b32 {s(stmp2)}, {KV_STRIDE}")
    for u in range(9):
        k(f"v_add_u32 v10, {16*u}, v15\nv_mul_u32_u24 v11, 3641, v10\nv_lshrrev_b32 v11, 16, v11\nv_mul_u32_u24 v13, 18, v11\nv_sub_u32 v10, v10, v13")
        k(f"v_mul_lo_u32 v11, v11, {s(stmp2)}\nv_lshlrev_b32 v10, 4, v10\nv_add_u32 v10, v10, v11\nv_add_u32 v10, v10, v14")
        for t in range(2):
            r = acc(u,t)
            k(f"v_cvt_pk_bf16_f32 {v(r)}, {v(r)}, {v(r+1)}\nv_cvt_pk_bf16_f32 {v(r+1)}, {v(r+2)}, {v(r+3)}")
            k(f"buffer_store_dwordx2 {v(r,2)}, v10, {s(rKV,4)}, {s(stmp)} offen offset:{t*608}")
    k(f"v_lshrrev_b32 v10, 2, v0\nv_mul_lo_u32 v10, v10, {s(stmp2)}\nv_bfe_u32 v11, v0, 1, 1\nv_mul_u32_u24 v11, 608, v11\nv_add_u32 v10, v10, v11")
    k(f"v_and_b32 v11, 1, v0\nv_mul_u32_u24 v11, 304, v11\nv_add_u32 v10, v10, v11\nv_add_u32 v10, {18*16}, v10")
    k("v_mov_b32 v11, 0x7fffffff\nv_cmp_gt_u32 vcc, 32, v0\nv_cndmask_b32 v10, v11, v10, vcc")
    for e in range(4): k(f"v_mov_b32 {v(X+e)}, 0x3f803f80")
    k(f"buffer_store_dwordx4 {v(X,4)}, v10, {s(rKV,4)}, {s(stmp)} offen")
    k("L_k1_fin:")
    if stamps:
        k("s_waitcnt vmcnt(0)\ns_memtime s[70:71]\ns_memrealtime s[72:73]\ns_waitcnt lgkmcnt(0)")
        srd(k, 24, sWS, WS["AUX"], WS["AUX_SZ"])
        k(f"s_lshl_b32 {s(stmp)}, s2, 3\ns_add_u32 {s(stmp)}, {s(stmp)}, {s(sw)}\ns_lshl_b32 {s(stmp)}, {s(stmp)}, 6\nv_mov_b32 v9, {s(stmp)}")
        for i, (x, y) in enumerate(((64,60),(66,60),(68,60),(70,60),(72,62))):
            k(f"s_sub_u32 s74, s{x}, s{y}\nv_mov_b32 v10, s74\nbuffer_store_dword v10, v9, s[24:27], 0 offen offset:{4*i}")
        k(f"v_mov_b32 v10, s62\nbuffer_store_dword v10, v9, s[24:27], 0 offen offset:20")
    k("L_k1_end:\ns_endpgm")
    return k, (192, 256, MODL + 5120)
```

```python
import build, gen_all
from asmgen import *
def nop():
    k = Kern("nop_kernel", vgprs=8); k("s_endpgm"); return k, (256, 64, 0)
build.check(gen_all.GENS, "p_base.s")
build.check([nop]*4 + gen_all.GENS, "p_pre4.s")
build.check(gen_all.GENS + [nop]*4, "p_post4.s")
build.check(gen_all.GENS[:3] + [nop]*4 + gen_all.GENS[3:], "p_mid4.s")
```

```python
import re

def v(i, n=1): return "v%d" % i if n == 1 else "v[%d:%d]" % (i, i+n-1)
def a(i, n=1): return "a%d" % i if n == 1 else "a[%d:%d]" % (i, i+n-1)
def s(i, n=1): return "s%d" % i if n == 1 else "s[%d:%d]" % (i, i+n-1)

TRANS = ("v_exp_f32", "v_log_f32", "v_rcp_f32", "v_rsq_f32", "v_sqrt_f32", "v_sin_f32", "v_cos_f32", "v_rcp_iflag_f32")
_reg_re = re.compile(r"^(-|\|)?(abs\()?([vas])(?:(\d+)|\[(\d+):(\d+)\])\)?\|?$")

def regs_of(op):
    op = op.strip()
    if op in ("vcc",): return {("s", "vcc_lo"), ("s", "vcc_hi")}
    if op in ("vcc_lo", "vcc_hi", "m0", "exec_lo", "exec_hi"): return {("s", op)}
    if op == "exec": return {("s", "exec_lo"), ("s", "exec_hi")}
    m = _reg_re.match(op)
    if not m: return set()
    k = m.group(3)
    if m.group(4) is not None: return {(k, int(m.group(4)))}
    return {(k, i) for i in range(int(m.group(5)), int(m.group(6))+1)}

class Ins:
    __slots__ = ("text", "mn", "ops", "mods", "kind", "defs", "uses", "srcA", "srcB", "srcC", "passes", "trans", "label", "target", "ws", "storedata")
    def __init__(self, text):
        self.text = text
        t = text.split(";")[0].strip()
        self.label = None; self.target = None; self.kind = "none"; self.defs = set(); self.uses = set()
        self.srcA = self.srcB = self.srcC = set(); self.passes = 0; self.trans = False; self.ws = 0; self.mn = ""; self.ops = []; self.mods = ""
        self.storedata = set()
        if not t or t.startswith("."): return
        if t.endswith(":"):
            self.label = t[:-1]; self.kind = "label"; return
        parts = t.split(None, 1)
        mn = parts[0]; rest = parts[1] if len(parts) > 1 else ""
        for suf in ("_e32", "_e64"):
            if mn.endswith(suf): mn = mn[:-len(suf)]
        self.mn = mn
        ops = []; depth = 0; cur = ""
        for ch in rest:
            if ch == "[": depth += 1
            if ch == "]": depth -= 1
            if ch == "," and depth == 0: ops.append(cur.strip()); cur = ""
            else: cur += ch
        if cur.strip(): ops.append(cur.strip())
        mods = ""
        if ops:
            last = ops[-1].split(None, 1)
            if len(last) > 1: ops[-1] = last[0]; mods = last[1]
        self.ops = ops; self.mods = mods; self.ws = 1
        R = regs_of
        allu = lambda lst: set().union(*[R(o) for o in lst]) if lst else set()
        if mn.startswith("v_mfma"):
            self.kind = "mfma"; self.defs = R(ops[0]); self.srcA = R(ops[1]); self.srcB = R(ops[2]); self.srcC = R(ops[3])
            self.uses = self.srcA | self.srcB | self.srcC
            self.passes = 8 if "32x32x16" in mn else 4 if "16x16x32" in mn else None
            assert self.passes, text
        elif mn.startswith("v_"):
            self.kind = "valu"; base = mn.replace("_dpp", "").replace("_sdwa", "")
            self.trans = base in TRANS
            if base.startswith("v_cmp"):
                self.defs = R(ops[0]); self.uses = allu(ops[1:])
                if base.startswith("v_cmpx"): raise ValueError("no cmpx please")
            elif base in ("v_add_co_u32", "v_sub_co_u32", "v_subrev_co_u32"):
                self.defs = R(ops[0]) | R(ops[1]); self.uses = allu(ops[2:])
            elif base in ("v_addc_co_u32", "v_subb_co_u32"):
                self.defs = R(ops[0]) | R(ops[1]); self.uses = allu(ops[2:])
            elif base.startswith("v_permlane") or base == "v_swap_b32":
                self.defs = allu(ops[:2]); self.uses = allu(ops[:2])
            else:
                self.defs = R(ops[0]); self.uses = allu(ops[1:])
                if base.startswith(("v_fmac", "v_dot2c", "v_pk_fmac", "v_writelane")) or "dpp" in mn or "row_" in mods or "quad_perm" in mods or "PRESERVE" in mods:
                    self.uses |= R(ops[0])
        elif mn.startswith(("buffer_", "global_")):
            self.kind = "vmem"
            if mn in ("buffer_wbl2", "buffer_inv"): pass
            elif mn.startswith("buffer_load"):
                if re.search(r"\blds\b", mods): self.uses = allu(ops) | {("s", "m0")}
                else: self.defs = R(ops[0]); self.uses = allu(ops[1:])
            elif mn.startswith("buffer_store"):
                self.uses = allu(ops)
                if "x3" in mn or "x4" in mn: self.storedata = R(ops[0])
            elif mn.startswith("buffer_atomic"):
                self.uses = allu(ops)
                if "sc0" in mods: self.defs = R(ops[0])
            elif mn.startswith("global_load_lds"): self.uses = allu(ops) | {("s", "m0")}
            elif mn.startswith("global_load"): self.defs = R(ops[0]); self.uses = allu(ops[1:])
            elif mn.startswith("global_store"):
                self.uses = allu(ops)
                if "x3" in mn or "x4" in mn: self.storedata = R(ops[1])
            elif mn.startswith("global_atomic"):
                if "sc0" in mods: self.defs = R(ops[0]); self.uses = allu(ops[1:])
                else: self.uses = allu(ops)
            else: raise ValueError(text)
        elif mn.startswith("ds_"):
            self.kind = "ds"
            if mn.startswith(("ds_read", "ds_bpermute", "ds_permute", "ds_swizzle")): self.defs = R(ops[0]); self.uses = allu(ops[1:])
            else: self.uses = allu(ops)
        elif mn.startswith("s_"):
            self.kind = "salu"
            if mn == "s_nop": self.ws = int(ops[0], 0) + 1
            elif mn in ("s_branch",) or mn.startswith("s_cbranch"): self.target = ops[0]
            elif mn.startswith(("s_cmp", "s_waitcnt", "s_barrier", "s_setprio", "s_sleep", "s_endpgm", "s_bitcmp")): self.uses = allu(ops)
            else:
                self.defs = R(ops[0]); self.uses = allu(ops[1:])
                if "saveexec" in mn: self.defs |= R("exec"); self.uses |= R("exec")
        else:
            raise ValueError("unknown instruction: " + text)

def isv(r): return r[0] in ("v", "a")
def iss(r): return r[0] == "s"

def gap(p, c):
    need = 0
    pv = {r for r in p.defs if isv(r)}; ps = {r for r in p.defs if iss(r)}
    if p.kind == "valu":
        if c.kind == "mfma" and pv & c.uses: need = max(need, 2)
        if p.trans and c.kind in ("valu", "vmem", "ds") and pv & c.uses: need = max(need, 1)
        if c.kind == "valu":
            b = c.mn
            if b.startswith(("v_readlane", "v_readfirstlane")) and pv & c.uses: need = max(need, 1)
            if b.startswith("v_permlane") and pv & c.uses: need = max(need, 2)
            if ("dpp" in b or "row_" in c.mods or "quad_perm" in c.mods) and pv & c.uses: need = max(need, 2)
            if ps & c.uses:
                need = max(need, 4 if b.startswith(("v_readlane", "v_writelane")) else 2)
            if ("sdwa" in p.mn or p.mn.startswith(("v_fma_mixhi", "v_fma_mixlo"))) and pv & (c.uses | c.defs): need = max(need, 1)
        if p.mn.startswith("v_dot"):
            hit = pv & (c.uses | c.defs)
            if hit:
                same_c = c.mn == p.mn and c.kind == "valu" and not (pv & set().union(*[regs_of(o) for o in c.ops[1:3]]))
                if not same_c: need = max(need, 3)
        if c.kind == "vmem" and ps & c.uses: need = max(need, 5)
        if c.kind == "salu" and ps & c.uses: need = max(need, 1)
    if p.kind == "mfma":
        n = p.passes
        if c.kind == "mfma":
            if pv & (c.srcA | c.srcB): need = max(need, {4: 8, 8: 12}[n])
            if pv & c.srcC:
                if not (pv == c.srcC and c.passes == n): need = max(need, {4: 6, 8: 10}[n])
            elif pv & c.defs:
                need = max(need, {4: 6, 8: 10}[n])
        elif c.kind == "valu":
            if pv & (c.uses | c.defs): need = max(need, {4: 8, 8: 12}[n])
            if p.srcC & c.defs: need = max(need, {4: 3, 8: 7}[n])
        elif c.kind in ("vmem", "ds"):
            if pv & (c.uses | c.defs): need = max(need, {4: 8, 8: 12}[n])
            if p.srcC & c.defs: need = max(need, {4: 3, 8: 7}[n])
    if p.kind == "vmem" and p.storedata:
        if c.kind == "valu" and p.storedata & c.defs: need = max(need, 2)
        elif c.kind != "valu" and p.storedata & c.defs: need = max(need, 1)
    if p.kind == "salu" and ("s", "m0") in p.defs and c.kind in ("vmem", "ds") and ("s", "m0") in c.uses: need = max(need, 1)
    if p.kind == "salu" and any(r in p.defs for r in (("s", "exec_lo"), ("s", "exec_hi"))) and c.kind == "mfma": need = max(need, 4)
    return need

MAXD = 14
def fix_hazards(lines, verbose=False):
    ins = [Ins(l) for l in lines]
    total_nops = 0
    changed = True
    while changed:
        changed = False
        labels = {x.label: i for i, x in enumerate(ins) if x.label}
        br_to = {}
        for i, x in enumerate(ins):
            if x.target in labels: br_to.setdefault(labels[x.target], []).append(i)
        def deficiency(ci):
            c = ins[ci]; worst = 0
            stack = [(ci-1, 0)]; seen = set()
            while stack:
                i, d = stack.pop()
                while i >= 0 and d < MAXD:
                    if (i, d) in seen: break
                    seen.add((i, d))
                    x = ins[i]
                    if x.kind == "label":
                        for b in br_to.get(i, []): stack.append((b, d))
                        j = i-1
                        while j >= 0 and ins[j].kind in ("none", "label"): j -= 1
                        if j >= 0 and ins[j].mn in ("s_branch", "s_endpgm"): break
                        i -= 1; continue
                    if x.kind == "none": i -= 1; continue
                    g = gap(x, c)
                    if g > d: worst = max(worst, g-d)
                    d += x.ws; i -= 1
            return worst
        for ci, c in enumerate(ins):
            if c.kind in ("none", "label"): continue
            df = deficiency(ci)
            if df > 0:
                if verbose: print("hazard: +%d before: %s" % (df, c.text.strip()))
                ins.insert(ci, Ins("    s_nop %d" % (df-1)))
                total_nops += 1; changed = True
                break
        if changed: continue
    return [x.text for x in ins], total_nops

def fix_hazards_fast(lines, verbose=False):
    ins = [Ins(l) for l in lines]
    total = 0
    for it in range(50):
        labels = {x.label: i for i, x in enumerate(ins) if x.label}
        br_to = {}
        for i, x in enumerate(ins):
            if x.target in labels: br_to.setdefault(labels[x.target], []).append(i)
        out = []; inserted = 0
        def deficiency(ci):
            c = ins[ci]; worst = 0
            stack = [(ci-1, extra.get(ci, 0))]; seen = set()
            while stack:
                i, d = stack.pop()
                while i >= 0 and d < MAXD:
                    if (i, d) in seen: break
                    seen.add((i, d))
                    x = ins[i]
                    if x.kind == "label":
                        for b in br_to.get(i, []): stack.append((b, d))
                        j = i-1
                        while j >= 0 and ins[j].kind in ("none", "label"): j -= 1
                        if j >= 0 and ins[j].mn in ("s_branch", "s_endpgm"): break
                        i -= 1; continue
                    if x.kind == "none": i -= 1; continue
                    g = gap(x, c)
                    if g > d: worst = max(worst, g-d)
                    d += x.ws + extra.get(i, 0); i -= 1
            return worst
        extra = {}
        for ci, c in enumerate(ins):
            if c.kind in ("none", "label"): continue
            df = deficiency(ci)
            if df > 0:
                extra[ci] = extra.get(ci, 0) + df
                if verbose: print("hazard: +%d before: %s" % (df, c.text.strip()))
        if not extra: break
        new = []
        for i, x in enumerate(ins):
            if i in extra: new.append(Ins("    s_nop %d" % (extra[i]-1))); total += 1
            new.append(x)
        ins = new
    else:
        raise RuntimeError("hazard fixing did not converge")
    return [x.text for x in ins], total

WT_STORES = ()

class Kern:
    def __init__(self, name, vgprs, agprs=0, sgprs=102):
        self.name = name; self.L = []; self.vgprs = vgprs; self.agprs = agprs; self.sgprs = sgprs; self.nlab = 0
    def __call__(self, t):
        for l in t.split("\n"):
            l = l.strip()
            if not l: continue
            self.L.append(l if l.endswith(":") else "    " + l)
    def lab(self, base):
        self.nlab += 1; return "L_%s_%s%d" % (self.name.replace("_kernel", ""), base, self.nlab)
    def text(self, verbose=False):
        if WT_STORES:
            L = []
            for l in self.L:
                if any(l.strip().startswith(p) for p in WT_STORES) and " sc1" not in l: l = l + " sc1"
                L.append(l)
            self.L = L
        body, n = fix_hazards_fast(self.L, verbose)
        mv = ma = -1
        for l in body:
            x = Ins(l)
            for r in x.defs | x.uses:
                if r[0] == "v": mv = max(mv, r[1])
                if r[0] == "a": ma = max(ma, r[1])
                if r[0] == "s" and isinstance(r[1], int): assert r[1] < self.sgprs, l
        assert mv < self.vgprs, (self.name, mv, self.vgprs)
        assert ma < self.agprs or ma < 0, (self.name, ma, self.agprs)
        hdr = ".globl %s\n.p2align 8\n.type %s,@function\n%s:\n" % (self.name, self.name, self.name)
        self.stats = dict(n_ins=sum(1 for l in body if not l.endswith(":")), nops=n, maxv=mv, maxa=ma)
        return hdr + "\n".join(body) + "\n"
    def desc(self):
        acc = (self.vgprs + 3)//4*4
        nfv = acc + self.agprs if self.agprs else self.vgprs
        return (".amdhsa_kernel %s\n  .amdhsa_next_free_vgpr %d\n  .amdhsa_next_free_sgpr %d\n  .amdhsa_accum_offset %d\n"
                "  .amdhsa_group_segment_fixed_size 0\n  .amdhsa_kernarg_size 96\n  .amdhsa_user_sgpr_count 2\n"
                "  .amdhsa_user_sgpr_kernarg_segment_ptr 1\n  .amdhsa_system_sgpr_workgroup_id_x 1\n"
                "  .amdhsa_float_denorm_mode_32 3\n.end_amdhsa_kernel\n") % (self.name, nfv, self.sgprs, acc)
```

```python
from asmgen import *
from layout import *
from k_g1 import srd, spread

def gen_g2a(stamps=False, NB=6):
    GS = 36864
    k = Kern("g2a_kernel", vgprs=160, agprs=8*NB)
    sWS = 4
    rW2, rHH, rP = 12, 16, 20
    sw, srb, scs, skq, sa_, sb0, sb1, stmp, stmp2, sloop, slds, sp = range(32, 44)
    vl16, vA = 1, 2
    ACC = 8
    AF = 80
    acc = lambda t, dt: ACC + (t*9+dt)*4
    Bf = lambda sm, t: sm*8 + t*4
    k("s_cmp_ge_u32 s2, 256\ns_cbranch_scc1 L_g2a_end")
    k(f"s_load_dwordx2 {s(sWS,2)}, s[0:1], {KA['ws']}")
    if stamps: k("s_memtime s[60:61]\ns_memrealtime s[62:63]")
    k(f"v_lshrrev_b32 v8, 6, v0\nv_and_b32 v0, 63, v0\nv_readfirstlane_b32 {s(sw)}, v8\nv_lshlrev_b32 {v(vl16)}, 4, v0")
    for i in range(3): k(f"v_add_u32 {v(vA+i)}, {i*GS}, {v(vl16)}")
    k(f"s_lshr_b32 {s(skq)}, s2, 1\ns_and_b32 {s(skq)}, {s(skq)}, 3\ns_and_b32 {s(stmp)}, s2, 1\ns_lshl_b32 {s(srb)}, {s(stmp)}, 3")
    k(f"s_lshr_b32 {s(stmp)}, s2, 3\ns_and_b32 {s(stmp2)}, {s(stmp)}, 7\ns_add_u32 {s(srb)}, {s(srb)}, {s(stmp2)}\ns_lshr_b32 {s(scs)}, {s(stmp)}, 3")
    k(f"s_lshl_b32 {s(stmp)}, {s(srb)}, 3\ns_lshl_b32 {s(stmp2)}, {s(sw)}, 1\ns_add_u32 {s(stmp)}, {s(stmp)}, {s(stmp2)}")
    k(f"s_mul_i32 {s(sb0)}, {s(stmp)}, {144*1024}\ns_mul_i32 {s(stmp2)}, {s(skq)}, {36*1024}\ns_add_u32 {s(sb0)}, {s(sb0)}, {s(stmp2)}\ns_add_u32 {s(sb1)}, {s(sb0)}, {144*1024}")
    k(f"s_lshl_b32 {s(stmp2)}, {s(skq)}, 7\ns_add_u32 {s(stmp2)}, {s(stmp2)}, {s(stmp)}\ns_mul_i32 {s(sp)}, {s(stmp2)}, {18*1024}")
    k(f"s_mul_i32 {s(sa_)}, {s(skq)}, 36\ns_add_u32 {s(sa_)}, {s(sa_)}, {s(sw)}\ns_mul_i32 {s(sa_)}, {s(sa_)}, {36*1024}\ns_mul_i32 {s(stmp2)}, {s(scs)}, {9*1024}\ns_add_u32 {s(sa_)}, {s(sa_)}, {s(stmp2)}")
    k(f"s_mul_i32 {s(slds)}, {s(sw)}, 9216")
    k("s_waitcnt lgkmcnt(0)")
    srd(k, rW2, sWS, WS["W2F"], WS["W2F_SZ"]); srd(k, rHH, sWS, WS["HHF"], WS["HHF_SZ"]); srd(k, rP, sWS, WS["PART"], WS["PART_SZ"])
    vm = []
    def wdma(g):
        ops = []
        for c in range(3):
            n = 4 if c < 2 else 1
            hd = f"s_add_u32 m0, {s(slds)}, {(g % 3)*GS + c*4096}\ns_add_u32 {s(stmp)}, {s(sa_)}, {c*4096}\n"
            for i in range(n):
                ops.append((hd if i == 0 else "") + f"buffer_load_dwordx4 {v(vl16)}, {s(rW2,4)}, {s(stmp)} offen offset:{i*1024} lds")
        ops[-1] += f"\ns_add_u32 {s(sa_)}, {s(sa_)}, {4*36*1024}"
        return [(o, ('W', g)) for o in ops]
    def bload(st):
        sm = st % NB
        return [(f"buffer_load_dwordx4 {a(Bf(sm,0),4)}, {v(vl16)}, {s(rHH,4)}, {s(sb0)} offen", ('B', st)),
                (f"buffer_load_dwordx4 {a(Bf(sm,1),4)}, {v(vl16)}, {s(rHH,4)}, {s(sb1)} offen\ns_add_u32 {s(sb0)}, {s(sb0)}, 1024\ns_add_u32 {s(sb1)}, {s(sb1)}, 1024", ('B', st))]
    def emit(op):
        if isinstance(op, tuple): k(op[0]); vm.append(op[1])
        else: k(op)
    def wait(*tags):
        idx = [i for i, t in enumerate(vm) if t in tags]
        n = len(vm) - 1 - max(idx)
        k(f"s_waitcnt vmcnt({min(n, 63)})")
    def areads(st):
        g = st // 4; par = st % 2
        return [f"ds_read_b128 {v(AF+par*36+dt*4,4)}, {v(vA + g % 3)} offset:{(st % 4)*9216 + dt*1024}" for dt in range(9)]
    PB = NB - 1
    for o in wdma(0): emit(o)
    for st in range(2):
        for o in bload(st): emit(o)
    for o in wdma(1): emit(o)
    for st in range(2, PB):
        for o in bload(st): emit(o)
    for o in wdma(2): emit(o)
    wait(('W', 0)); k("s_barrier")
    for o in areads(0): k(o)
    if stamps: k("s_memtime s[64:65]")
    for st in range(36):
        g = st // 4; par = st % 2
        fill = []
        if st % 4 == 3 and g < 8:
            k("s_waitcnt lgkmcnt(0)")
            wait(('W', g+1)); k("s_barrier")
            if g + 3 <= 8: fill += wdma(g+3)
        else:
            k("s_waitcnt lgkmcnt(0)")
        wait(('B', st))
        rd = areads(st+1) if st < 35 else []
        if st + PB < 36: fill = bload(st + PB) + fill
        fill = rd + fill
        slots = spread(fill, 18)
        j = 0
        for dt in range(9):
            for t in range(2):
                c = "0" if st == 0 else v(acc(t,dt),4)
                k(f"v_mfma_f32_16x16x32_bf16 {v(acc(t,dt),4)}, {v(AF+par*36+dt*4,4)}, {a(Bf(st % NB,t),4)}, {c}")
                for o in slots[j]: emit(o)
                j += 1
    if stamps: k("s_memtime s[66:67]")
    k(f"v_lshlrev_b32 v5, 4, v0\nv_add_u32 v6, 8, v5")
    k(f"s_mul_i32 {s(stmp)}, {s(scs)}, 9\ns_lshr_b32 {s(stmp)}, {s(stmp)}, 1\ns_lshl_b32 {s(stmp)}, {s(stmp)}, 10\ns_add_u32 {s(sp)}, {s(sp)}, {s(stmp)}")
    k("s_nop 4")
    for t in range(2):
        for dt in range(9):
            r = acc(t,dt)
            k(f"v_cvt_pk_bf16_f32 {v(r)}, {v(r)}, {v(r+1)}\nv_cvt_pk_bf16_f32 {v(r+1)}, {v(r+2)}, {v(r+3)}")
    k(f"s_and_b32 {s(stmp)}, {s(scs)}, 1\ns_cmp_eq_u32 {s(stmp)}, 0\ns_cbranch_scc0 L_g2a_odd")
    def pairs(first, ksoff0):
        for t in range(2):
            k(f"s_add_u32 {s(stmp2)}, {s(sp)}, {t*18*1024}")
            for p in range(4):
                d0 = first + 2*p; r0, r1 = acc(t,d0), acc(t,d0+1)
                k(f"v_mov_b32 {v(r0+2)}, {v(r1)}\nv_mov_b32 {v(r0+3)}, {v(r1+1)}")
                ko = ksoff0 + p
                k(f"s_add_u32 {s(stmp)}, {s(stmp2)}, {ko*1024}\nbuffer_store_dwordx4 {v(r0,4)}, {v(vl16)}, {s(rP,4)}, {s(stmp)} offen")
            sd = 8 if first == 0 else 0; ko = 4 if first == 0 else 0
            k(f"s_add_u32 {s(stmp)}, {s(stmp2)}, {ko*1024}\nbuffer_store_dwordx2 {v(acc(t,sd),2)}, {'v5' if first == 0 else 'v6'}, {s(rP,4)}, {s(stmp)} offen")
    pairs(0, 0)
    k("s_branch L_g2a_done")
    k("L_g2a_odd:")
    pairs(1, 1)
    k("L_g2a_done:")
    if stamps:
        k("s_waitcnt vmcnt(0)\ns_memtime s[68:69]\ns_memrealtime s[70:71]\ns_waitcnt lgkmcnt(0)")
        srd(k, 24, sWS, WS["AUX"], WS["AUX_SZ"])
        k(f"s_lshl_b32 {s(stmp)}, s2, 3\ns_add_u32 {s(stmp)}, {s(stmp)}, {s(sw)}\ns_lshl_b32 {s(stmp)}, {s(stmp)}, 6\nv_mov_b32 v9, {s(stmp)}")
        for i, (x, y) in enumerate(((64,60),(66,60),(68,60),(70,62))):
            k(f"s_sub_u32 s72, s{x}, s{y}\nv_mov_b32 v8, s72\nbuffer_store_dword v8, v9, s[24:27], 0 offen offset:{4*i}")
        k(f"v_mov_b32 v8, s62\nbuffer_store_dword v8, v9, s[24:27], 0 offen offset:16")
    k("L_g2a_end:\ns_endpgm")
    return k, (256, 256, 3*GS)

def gen_g2r():
    k = Kern("g2r_kernel", vgprs=96)
    sWS, sOUT = 4, 6
    rP, rX1, rMOD, rOUT = 8, 12, 16, 20
    sw, sf, stile, sks, stmp, stmp2 = range(32, 38)
    k("s_cmp_ge_u32 s2, 288\ns_cbranch_scc1 L_g2r_end")
    k(f"s_load_dwordx2 {s(sWS,2)}, s[0:1], {KA['ws']}\ns_load_dwordx2 {s(sOUT,2)}, s[0:1], {KA['out']}")
    k(f"v_lshrrev_b32 v8, 6, v0\nv_and_b32 v0, 63, v0\nv_readfirstlane_b32 {s(sw)}, v8\nv_lshlrev_b32 v1, 4, v0")
    k(f"s_lshl_b32 {s(sf)}, s2, 2\ns_add_u32 {s(sf)}, {s(sf)}, {s(sw)}\ns_lshl_b32 {s(sf)}, {s(sf)}, 1")
    k(f"s_mul_i32 {s(stile)}, {s(sf)}, 3641\ns_lshr_b32 {s(stile)}, {s(stile)}, 16\ns_mul_i32 {s(stmp)}, {s(stile)}, 18\ns_sub_u32 {s(sks)}, {s(sf)}, {s(stmp)}")
    k("v_lshrrev_b32 v2, 4, v0\nv_lshlrev_b32 v3, 4, v2")
    k(f"v_lshrrev_b32 v4, 3, v0\ns_lshl_b32 {s(stmp)}, {s(stile)}, 4\nv_add_u32 v4, {s(stmp)}, v4\nv_mul_u32_u24 v4, 1152, v4\nv_and_b32 v5, 7, v0\nv_lshlrev_b32 v5, 4, v5\nv_add_u32 v4, v4, v5")
    k(f"s_lshl_b32 {s(stmp)}, {s(sks)}, 6\nv_add_u32 v4, {s(stmp)}, v4")
    k(f"s_mul_i32 {s(stmp)}, {s(sw)}, 2304\nv_and_b32 v5, 15, v0\nv_mul_u32_u24 v5, 144, v5\nv_lshlrev_b32 v6, 3, v2\nv_add_u32 v5, v5, v6\nv_add_u32 v5, {s(stmp)}, v5")
    k(f"v_lshrrev_b32 v6, 3, v0\nv_mul_u32_u24 v6, 144, v6\nv_and_b32 v7, 7, v0\nv_lshlrev_b32 v7, 4, v7\nv_add_u32 v6, v6, v7\nv_add_u32 v6, {s(stmp)}, v6")
    k("s_waitcnt lgkmcnt(0)")
    srd(k, rP, sWS, WS["PART"], WS["PART_SZ"]); srd(k, rX1, sWS, WS["X1F"], WS["X1F_SZ"]); srd(k, rMOD, sWS, WS["MOD"], WS["MOD_SZ"]); srd(k, rOUT, sOUT, 0, 2048*1152)
    P = 8; X = 40; G = 48; T = 64
    k(f"s_lshl_b32 {s(stmp)}, {s(sf)}, 10")
    for kq in range(4):
        k(f"s_add_u32 {s(stmp2)}, {s(stmp)}, {kq*128*18*1024}")
        for f in range(2): k(f"buffer_load_dwordx4 {v(P+(f*4+kq)*4,4)}, v1, {s(rP,4)}, {s(stmp2)} offen offset:{f*1024}")
    for f in range(2): k(f"buffer_load_dwordx4 {v(X+f*4,4)}, v1, {s(rX1,4)}, {s(stmp)} offen offset:{f*1024}")
    k(f"s_lshl_b32 {s(stmp2)}, {s(sks)}, 7\ns_add_u32 {s(stmp2)}, {s(stmp2)}, {5*576*4}")
    for f in range(2):
        for h in range(2): k(f"buffer_load_dwordx4 {v(G+(f*2+h)*4,4)}, v3, {s(rMOD,4)}, {s(stmp2)} offen offset:{f*128+h*64}")
    k("s_waitcnt vmcnt(0)")
    for f in range(2):
        for j in range(4):
            lo, hi = T+2*j, T+2*j+1
            p0 = P + (f*4)*4 + j
            k(f"v_lshlrev_b32 {v(lo)}, 16, {v(p0)}\nv_and_b32 {v(hi)}, 0xffff0000, {v(p0)}")
            for kq in range(1, 4):
                p = P + (f*4+kq)*4 + j
                k(f"v_lshlrev_b32 v76, 16, {v(p)}\nv_and_b32 v77, 0xffff0000, {v(p)}\nv_add_f32 {v(lo)}, {v(lo)}, v76\nv_add_f32 {v(hi)}, {v(hi)}, v77")
            x = X + f*4 + j; g = G + f*8 + 2*j
            k(f"v_lshlrev_b32 v76, 16, {v(x)}\nv_and_b32 v77, 0xffff0000, {v(x)}\nv_fma_f32 {v(lo)}, {v(g)}, {v(lo)}, v76\nv_fma_f32 {v(hi)}, {v(g+1)}, {v(hi)}, v77")
        for j in range(4): k(f"v_cvt_pk_bf16_f32 {v(T+8+j)}, {v(T+2*j)}, {v(T+2*j+1)}")
        k(f"ds_write_b64 v5, {v(T+8,2)} offset:{f*64}\nds_write_b64 v5, {v(T+10,2)} offset:{f*64+32}")
    k("s_waitcnt lgkmcnt(0)")
    k(f"ds_read_b128 {v(P,4)}, v6\nds_read_b128 {v(P+4,4)}, v6 offset:{8*144}")
    k("s_waitcnt lgkmcnt(0)")
    k(f"buffer_store_dwordx4 {v(P,4)}, v4, {s(rOUT,4)}, 0 offen\ns_mov_b32 {s(stmp)}, {8*1152}\nbuffer_store_dwordx4 {v(P+4,4)}, v4, {s(rOUT,4)}, {s(stmp)} offen")
    k("L_g2r_end:\ns_endpgm")
    return k, (288, 256, 4*2304)
```

```python
from asmgen import *
from layout import *
from k_g1 import srd, spread

NCRIT = 18

def mod_role(k, sWS):
    sC, sW, sD = 6, 8, 10
    rW, rC, rMOD, rDBG = 12, 16, 20, 24
    stmp, spart, sj = 32, 33, 34
    k("L_k01_mod:")
    k(f"s_sub_u32 {s(sj)}, s2, 192")
    k(f"s_load_dwordx2 {s(sC,2)}, s[0:1], {KA['c']}\ns_load_dwordx2 {s(sW,2)}, s[0:1], {KA['wmod']}\ns_load_dwordx2 {s(sD,2)}, s[0:1], {KA['dbg']}")
    k("v_and_b32 v1, 7, v0\nv_lshrrev_b32 v2, 3, v0")
    k("v_mul_u32_u24 v3, 6912, v2\nv_lshlrev_b32 v4, 4, v1\nv_add_u32 v3, v3, v4")
    k(f"s_lshl_b32 {s(stmp)}, {s(sj)}, 7\nv_add_u32 v3, {s(stmp)}, v3")
    k("v_lshlrev_b32 v4, 1, v2")
    k("s_waitcnt lgkmcnt(0)")
    srd(k, rW, sW, 0, 576*6912); srd(k, rC, sC, 0, 1152); srd(k, rMOD, sWS, WS["MOD"], WS["MOD_SZ"]); srd(k, rDBG, sD, 0, 256)
    C = 8; W = 28
    for i in range(18): k(f"buffer_load_ushort {v(C+i)}, v4, {s(rC,4)}, 0 offen offset:{64*i}")
    for i in range(18): k(f"s_mov_b32 {s(stmp)}, {i*32*6912}\nbuffer_load_dwordx4 {v(W+4*i,4)}, v3, {s(rW,4)}, {s(stmp)} offen")
    k("s_waitcnt vmcnt(18)")
    T = 100
    for i in range(18): k(f"v_lshlrev_b32 {v(C+i)}, 16, {v(C+i)}")
    for b in range(0, 18, 6):
        es = range(b, b+6)
        for i in es: k(f"v_mul_f32 {v(T+i-b)}, 0xbfb8aa3b, {v(C+i)}")
        for i in es: k(f"v_exp_f32 {v(T+i-b)}, {v(T+i-b)}")
        for i in es: k(f"v_add_f32 {v(T+i-b)}, 1.0, {v(T+i-b)}")
        for i in es: k(f"v_rcp_f32 {v(T+i-b)}, {v(T+i-b)}")
        for i in es: k(f"v_mul_f32 {v(C+i)}, {v(C+i)}, {v(T+i-b)}")
        for i in es: k(f"v_cvt_pk_bf16_f32 {v(C+i)}, {v(C+i)}, {v(C+i)}")
        for i in es: k(f"v_lshlrev_b32 {v(C+i)}, 16, {v(C+i)}")
    A = 108
    for e in range(8): k(f"v_mov_b32 {v(A+e)}, 0")
    for i in range(18):
        k(f"s_waitcnt vmcnt({17-i})")
        for j in range(4):
            k(f"v_lshlrev_b32 {v(T+2*(j%2))}, 16, {v(W+4*i+j)}\nv_and_b32 {v(T+2*(j%2)+1)}, 0xffff0000, {v(W+4*i+j)}")
            k(f"v_fmac_f32 {v(A+2*j)}, {v(T+2*(j%2))}, {v(C+i)}\nv_fmac_f32 {v(A+2*j+1)}, {v(T+2*(j%2)+1)}, {v(C+i)}")
    k("v_lshlrev_b32 v5, 8, v2\nv_lshlrev_b32 v6, 5, v1\nv_add_u32 v5, v5, v6")
    k(f"ds_write_b128 v5, {v(A,4)}\nds_write_b128 v5, {v(A+4,4)} offset:16")
    k("s_waitcnt lgkmcnt(0)\ns_barrier")
    k("v_cmp_gt_u32 vcc, 64, v0\ns_and_saveexec_b64 s[40:41], vcc\ns_cbranch_execz L_k01_end")
    k("v_lshlrev_b32 v5, 2, v0")
    for r in range(32): k(f"ds_read_b32 {v(W+r)}, v5 offset:{r*256}")
    k("s_waitcnt lgkmcnt(0)")
    for st in (16, 8, 4, 2, 1):
        for r in range(st): k(f"v_add_f32 {v(W+r)}, {v(W+r)}, {v(W+r+st)}")
    k(f"v_cvt_pk_bf16_f32 {v(W)}, {v(W)}, {v(W)}\nv_lshlrev_b32 {v(W)}, 16, {v(W)}")
    k(f"s_mul_i32 {s(spart)}, {s(sj)}, 7282\ns_lshr_b32 {s(spart)}, {s(spart)}, 16")
    k(f"s_cmp_eq_u32 {s(spart)}, 1\ns_cbranch_scc1 L_k01_madd\ns_cmp_eq_u32 {s(spart)}, 4\ns_cbranch_scc0 L_k01_mst")
    k("L_k01_madd:")
    k(f"v_add_f32 {v(W)}, 1.0, {v(W)}\nv_cvt_pk_bf16_f32 {v(W)}, {v(W)}, {v(W)}\nv_lshlrev_b32 {v(W)}, 16, {v(W)}")
    k("L_k01_mst:")
    k(f"s_lshl_b32 {s(stmp)}, {s(sj)}, 8\nbuffer_store_dword {v(W)}, v5, {s(rMOD,4)}, {s(stmp)} offen sc1")
    k(f"s_cmp_lt_u32 {s(sj)}, {NCRIT}\ns_cbranch_scc0 L_k01_end")
    k("s_waitcnt vmcnt(0)")
    k("v_mov_b32 v6, 0\nv_mov_b32 v7, 1\ns_mov_b64 exec, 1")
    k(f"buffer_atomic_add v7, v6, {s(rDBG,4)}, 0 offen sc1")
    k("s_branch L_k01_end")

def gen_k01(stamps=False, touch=True):
    k = Kern("k01_kernel", vgprs=256, agprs=84)
    SLOT = 9216; NSL = 16; MODL = NSL*SLOT
    sWS, sX, sW, sD = 4, 6, 8, 10
    rW, rX, rMOD, rQM, rQR, rKV, rDBG = 12, 16, 20, 24, 28, 44, 48
    sw, srb, scs, stmp, stmp2, ssrc, sqt, sh0, skind, sspin = range(32, 42)
    vl16 = 1
    vAb = [2, 3, 4]; vA2b = [5, 6, 7]; vM = 8
    vPk = [1, 9, 10]
    X = 16; ACC = 160; GS = 232; T = 248
    PAT = ACC
    xr = lambda t, ks: X + (t*18+ks)*4
    acc = lambda u, t: ACC + (u*2+t)*4
    k("s_cmp_ge_u32 s2, 246\ns_cbranch_scc1 L_k01_end")
    k(f"s_load_dwordx2 {s(sWS,2)}, s[0:1], {KA['ws']}")
    k("s_cmp_ge_u32 s2, 192\ns_cbranch_scc1 L_k01_mod")
    k(f"s_load_dwordx2 {s(sX,2)}, s[0:1], {KA['x']}\ns_load_dwordx2 {s(sW,2)}, s[0:1], {KA['wqkv']}\ns_load_dwordx2 {s(sD,2)}, s[0:1], {KA['dbg']}")
    if stamps: k("s_memtime s[60:61]\ns_memrealtime s[62:63]")
    k(f"v_lshrrev_b32 v14, 6, v0\nv_and_b32 v0, 63, v0\nv_readfirstlane_b32 {s(sw)}, v14")
    k(f"v_lshlrev_b32 {v(vl16)}, 4, v0")
    k(f"s_and_b32 {s(stmp)}, s2, 3\ns_lshl_b32 {s(srb)}, {s(stmp)}, 2\ns_lshr_b32 {s(stmp)}, s2, 3\ns_and_b32 {s(stmp2)}, {s(stmp)}, 3\ns_add_u32 {s(srb)}, {s(srb)}, {s(stmp2)}")
    k(f"s_lshr_b32 {s(scs)}, {s(stmp)}, 2\ns_bfe_u32 {s(stmp)}, s2, 0x10002\ns_mul_i32 {s(stmp)}, {s(stmp)}, 6\ns_add_u32 {s(scs)}, {s(scs)}, {s(stmp)}")
    k(f"s_lshl_b32 {s(sqt)}, {s(srb)}, 2\ns_add_u32 {s(sqt)}, {s(sqt)}, {s(sw)}")
    SXW = 36864
    k("s_waitcnt lgkmcnt(0)")
    srd(k, rX, sX, 0, 2048*1152); srd(k, rW, sW, 0, 576*3456)
    if stamps: k("s_memtime s[76:77]")
    vm = []
    def wait(*tags):
        idx = [i for i, t in enumerate(vm) if t in tags]
        k(f"s_waitcnt vmcnt({min(63, len(vm) - 1 - max(idx))})")
    if touch:
        k(f"s_mul_i32 {s(stmp)}, {s(scs)}, 43691\ns_lshr_b32 {s(stmp)}, {s(stmp)}, 18\ns_mul_i32 {s(stmp)}, {s(stmp)}, 6\ns_sub_u32 {s(stmp)}, {s(scs)}, {s(stmp)}")
        k(f"s_lshl_b32 {s(stmp)}, {s(stmp)}, 2\ns_add_u32 {s(stmp)}, {s(stmp)}, {s(sw)}\ns_mul_i32 {s(stmp)}, {s(stmp)}, {48*128}\ns_mul_i32 {s(stmp2)}, {s(srb)}, {128*1152}\ns_add_u32 {s(stmp)}, {s(stmp)}, {s(stmp2)}")
        k(f"v_lshlrev_b32 v12, 7, v0\nbuffer_load_dword a82, v12, {s(rX,4)}, {s(stmp)} offen"); vm.append(('t',))
    if touch: k(f"s_and_b32 {s(stmp)}, {s(srb)}, 3\ns_lshl_b32 {s(stmp)}, {s(stmp)}, 2\ns_add_u32 {s(stmp)}, {s(stmp)}, {s(sw)}\ns_mul_i32 {s(stmp)}, {s(stmp)}, 36")
    if touch: k(f"v_mul_u32_u24 v12, 21846, v0\nv_lshrrev_b32 v12, 16, v12\nv_mul_u32_u24 v13, 3, v12\nv_sub_u32 v13, v0, v13\nv_lshlrev_b32 v13, 7, v13")
    if touch: k(f"v_add_u32 v12, {s(stmp)}, v12\nv_mul_u32_u24 v12, 3456, v12\nv_add_u32 v12, v12, v13\ns_mul_i32 {s(stmp)}, {s(scs)}, 288\ns_and_b32 {s(stmp)}, {s(stmp)}, 0xffffff80")
    if touch: k(f"buffer_load_dword a83, v12, {s(rW,4)}, {s(stmp)} offen"); vm.append(('t',))
    if touch: k(f"v_add_u32 v12, {21*3456}, v12\nbuffer_load_dword a83, v12, {s(rW,4)}, {s(stmp)} offen"); vm.append(('t',))
    k(f"s_mul_i32 {s(sh0)}, {s(sw)}, {SXW}\ns_lshl_b32 {s(ssrc)}, {s(sqt)}, 5\ns_mul_i32 {s(ssrc)}, {s(ssrc)}, 1152")
    for r in range(32):
        i = r & 15; fp = ((i >> 1) & 7) | ((i & 1) << 3)
        k(f"v_xor_b32 {v(10 + (r & 1))}, {fp << 4}, {v(vl16)}\ns_add_u32 m0, {s(sh0)}, {r*1024}\ns_add_u32 {s(stmp)}, {s(ssrc)}, {r*1152}")
        k(f"buffer_load_dwordx4 {v(10 + (r & 1))}, {s(rX,4)}, {s(stmp)} offen lds"); vm.append(('x',))
    k("v_lshrrev_b32 v13, 3, v0\nv_mul_u32_u24 v13, 1152, v13\nv_add_u32 v13, 1024, v13\nv_and_b32 v14, 7, v0\nv_lshrrev_b32 v15, 4, v0")
    for m in range(4):
        k(f"v_add_u32 v11, {4*(m & 1)}, v15\nv_xor_b32 v11, v11, v14\nv_lshlrev_b32 v11, 4, v11\nv_add_u32 v11, v11, v13")
        k(f"s_add_u32 m0, {s(sh0)}, {32768 + m*1024}\ns_add_u32 {s(stmp)}, {s(ssrc)}, {m*8*1152}")
        k(f"buffer_load_dwordx4 v11, {s(rX,4)}, {s(stmp)} offen lds"); vm.append(('x',))
    if stamps: k("s_memtime s[78:79]")
    srd(k, rMOD, sWS, WS["MOD"], WS["MOD_SZ"]); srd(k, rDBG, sD, 0, 256)
    srd(k, rQM, sWS, WS["QM"], WS["QM_SZ"]); srd(k, rQR, sWS, WS["QR"], WS["QR_SZ"]); srd(k, rKV, sWS, WS["KV"], WS["KV_SZ"])
    for i in range(9):
        k(f"v_add_u32 v13, {64*i}, v0\nv_mul_u32_u24 v14, 3641, v13\nv_lshrrev_b32 v14, 16, v14\nv_mul_u32_u24 v15, 18, v14\nv_sub_u32 v13, v13, v15")
        k(f"v_lshrrev_b32 v15, 1, v14\nv_and_b32 v15, 4, v15\nv_xor_b32 v14, v14, v15\nv_mul_u32_u24 v14, 3456, v14\nv_lshlrev_b32 v13, 4, v13\nv_add_u32 {v(PAT+i)}, v13, v14")
    k(f"s_mul_i32 {s(ssrc)}, {s(scs)}, 288\ns_mul_i32 {s(stmp)}, {s(sw)}, {32*3456}\ns_add_u32 {s(ssrc)}, {s(ssrc)}, {s(stmp)}")
    def wdma_ops(g, slotbase, from_acc=False):
        ops = []
        for i in range(9):
            pr = PAT+i; pre = ""
            if from_acc:
                pr = T + (i % 4); pre = f"v_accvgpr_read_b32 {v(pr)}, {a(72+i)}\n"
            ops.append((pre + f"s_add_u32 m0, {s(sh0)}, {slotbase + i*1024}\ns_add_u32 {s(stmp)}, {s(ssrc)}, {g*4*32*3456}\nbuffer_load_dwordx4 {v(pr)}, {s(rW,4)}, {s(stmp)} offen lds", ('w', g)))
        return ops
    def wdma(g, slotbase, from_acc=False):
        for o, tg in wdma_ops(g, slotbase, from_acc): k(o); vm.append(tg)
    def wpop():
        if wq: o, tg = wq.pop(0); k(o); vm.append(tg)
    k("v_and_b32 v13, 15, v0\nv_lshrrev_b32 v14, 1, v13\nv_and_b32 v15, 1, v13\nv_lshlrev_b32 v15, 3, v15\nv_or_b32 v15, v15, v14")
    k(f"v_lshrrev_b32 v12, 4, v0\nv_lshlrev_b32 v11, 10, v13\nv_add_u32 v11, {s(sh0)}, v11")
    RB = GS
    for l0 in range(2):
        for b in range(2):
            k(f"v_add_u32 v9, {8*l0 + 4*b}, v12\nv_xor_b32 v9, v9, v15\nv_lshlrev_b32 v9, 4, v9\nv_add_u32 {v(RB + 2*l0 + b)}, v9, v11")
    k(f"v_lshlrev_b32 v11, 7, v13\nv_add_u32 v11, {s(sh0)}, v11\nv_add_u32 v11, 32768, v11")
    for b in range(2): k(f"v_add_u32 v9, {4*b}, v12\nv_xor_b32 v9, v9, v14\nv_lshlrev_b32 v9, 4, v9\nv_add_u32 {v(RB + 4 + b)}, v9, v11")
    wait(('x',))
    if stamps: k("s_memtime s[80:81]")
    for ks in range(18):
        for t in range(2):
            if ks < 16:
                L2, l0, b = ks >> 2, (ks >> 1) & 1, ks & 1
                k(f"ds_read_b128 {v(xr(t,ks),4)}, {v(RB + 2*l0 + b)} offset:{t*16384 + 256*L2}")
            else:
                k(f"ds_read_b128 {v(xr(t,ks),4)}, {v(RB + 4 + (ks & 1))} offset:{t*2048}")
    k("s_waitcnt lgkmcnt(0)\ns_barrier")
    if stamps: k("s_memtime s[82:83]")
    k(f"s_mul_i32 {s(ssrc)}, {s(scs)}, 288\ns_mul_i32 {s(stmp)}, {s(sw)}, {32*3456}\ns_add_u32 {s(ssrc)}, {s(ssrc)}, {s(stmp)}\ns_mul_i32 {s(sh0)}, {s(sw)}, {SLOT}")
    wq = []
    for g in range(4): wq += wdma_ops(g, g*4*SLOT)
    k("v_lshrrev_b32 v13, 4, v0\nv_lshlrev_b32 v13, 3, v13\nv_bfe_u32 v14, v0, 2, 2\nv_add_u32 v13, v13, v14")
    k("v_lshrrev_b32 v14, 1, v13\nv_and_b32 v14, 4, v14\nv_xor_b32 v15, v13, v14")
    k(f"v_mul_u32_u24 v15, 288, v15\nv_and_b32 v14, 3, v0\nv_lshlrev_b32 v14, 3, v14\nv_add_u32 {v(vAb[0])}, v15, v14")
    k("v_add_u32 v13, 4, v13\nv_lshrrev_b32 v15, 1, v13\nv_and_b32 v15, 4, v15\nv_xor_b32 v15, v13, v15")
    k(f"v_mul_u32_u24 v15, 288, v15\nv_add_u32 {v(vA2b[0])}, v15, v14")
    for i in (1, 2): k(f"v_add_u32 {v(vAb[i])}, {7*i*SLOT}, {v(vAb[0])}\nv_add_u32 {v(vA2b[i])}, {7*i*SLOT}, {v(vA2b[0])}")
    k(f"v_lshrrev_b32 v13, 4, v0\nv_lshlrev_b32 v13, 5, v13\nv_add_u32 {v(vM)}, {MODL}, v13")
    M = GS
    for t in range(2): k(f"v_mov_b32 {v(M+2*t)}, 0\nv_mov_b32 {v(M+2*t+1)}, 0")
    k(f"v_mov_b32 {v(M+4)}, 0x3f803f80")
    for ks in range(18):
        for t in range(2):
            for j in range(4):
                r = xr(t,ks)+j
                k(f"v_dot2_f32_bf16 {v(M+2*t)}, {v(r)}, {v(M+4)}, {v(M+2*t)}\nv_dot2_f32_bf16 {v(M+2*t+1)}, {v(r)}, {v(r)}, {v(M+2*t+1)}")
            wpop()
    if stamps: k("s_memtime s[84:85]")
    while wq: wpop()
    for i in range(9): k(f"v_accvgpr_write_b32 {a(72+i)}, {v(PAT+i)}")
    for i in range(4):
        r = v(M+i)
        k(f"v_mov_b32 v13, {r}\nv_permlane32_swap_b32 {r}, v13\nv_add_f32 {r}, {r}, v13\nv_mov_b32 v13, {r}\nv_permlane16_swap_b32 {r}, v13\nv_add_f32 {r}, {r}, v13")
    for t in range(2):
        m, q = M+2*t, M+2*t+1
        k(f"v_mul_f32 {v(m)}, 0x3ae38e39, {v(m)}\nv_mul_f32 {v(q)}, 0x3ae38e39, {v(q)}")
        k(f"v_fma_f32 {v(q)}, -{v(m)}, {v(m)}, {v(q)}\nv_max_f32 {v(q)}, 0, {v(q)}\nv_add_f32 {v(q)}, 0x3727c5ac, {v(q)}\nv_rsq_f32 {v(q)}, {v(q)}")
        k(f"s_nop 0\nv_mul_f32 {v(m)}, {v(m)}, {v(q)}\nv_sub_f32 {v(m)}, 0, {v(m)}")
    PR = M+6
    for t in range(2):
        k(f"v_mov_b32 {v(PR+4*t)}, {v(M+2*t+1)}\nv_mov_b32 {v(PR+4*t+1)}, {v(M+2*t+1)}\nv_mov_b32 {v(PR+4*t+2)}, {v(M+2*t)}\nv_mov_b32 {v(PR+4*t+3)}, {v(M+2*t)}")
    for t in range(2):
        for ks in range(18):
            for j in range(4):
                r = xr(t,ks)+j; tt = T + 2*j
                k(f"v_lshlrev_b32 {v(tt)}, 16, {v(r)}\nv_and_b32 {v(tt+1)}, 0xffff0000, {v(r)}")
            for j in range(4):
                tt = T + 2*j
                k(f"v_pk_fma_f32 {v(tt,2)}, {v(tt,2)}, {v(PR+4*t,2)}, {v(PR+4*t+2,2)}")
            for j in range(4):
                r = xr(t,ks)+j; tt = T + 2*j
                k(f"v_cvt_pk_f16_f32 {v(r)}, {v(tt)}, {v(tt+1)}")
    k(f"v_add_u32 v11, {s(sh0)}, {v(vAb[0])}\nv_add_u32 v12, {s(sh0)}, {v(vA2b[0])}\nv_add_u32 v9, {s(sh0)}, {v(vl16)}")
    for g in range(4):
        wait(('w', g))
        o = (g % 2)*4*SLOT
        if g == 2: k(f"v_add_u32 v11, {8*SLOT}, v11\nv_add_u32 v12, {8*SLOT}, v12\nv_add_u32 v9, {8*SLOT}, v9")
        for u in range(9):
            k(f"ds_read_b64_tr_b16 {v(ACC+16+4*u,2)}, v11 offset:{o + u*32}\nds_read_b64_tr_b16 {v(ACC+16+4*u+2,2)}, v12 offset:{o + u*32}")
        k("s_waitcnt lgkmcnt(0)")
        for u in range(9): k(f"ds_write_b128 v9, {v(ACC+16+4*u,4)} offset:{o + u*1024}")
        k("s_waitcnt lgkmcnt(0)")
    if stamps: k("s_memtime s[64:65]")
    k(f"s_cmp_eq_u32 {s(sw)}, 0\ns_cbranch_scc0 L_k01_polled")
    k(f"v_mov_b32 v13, 0\ns_mov_b32 {s(sspin)}, 0")
    k("L_k01_poll:")
    k(f"buffer_load_dword v14, v13, {s(rDBG,4)}, 0 offen sc1")
    k("s_waitcnt vmcnt(0)")
    k(f"v_readfirstlane_b32 {s(stmp)}, v14")
    k(f"s_cmp_ge_u32 {s(stmp)}, {NCRIT}\ns_cbranch_scc1 L_k01_polled")
    k(f"s_add_u32 {s(sspin)}, {s(sspin)}, 1\ns_cmp_lt_u32 {s(sspin)}, 0x100000\ns_cbranch_scc0 L_k01_polled")
    k("s_sleep 1\ns_branch L_k01_poll")
    k("L_k01_polled:")
    k("s_barrier")
    if stamps: k("s_memtime s[66:67]")
    k(f"s_lshl_b32 {s(stmp)}, {s(sw)}, 10\nv_add_u32 v13, {s(stmp)}, {v(vl16)}")
    k(f"buffer_load_dwordx4 {v(GS,4)}, v13, {s(rMOD,4)}, 0 offen sc1")
    k(f"s_mov_b32 {s(stmp)}, 4096\nbuffer_load_dwordx4 {v(GS+4,4)}, {v(vl16)}, {s(rMOD,4)}, {s(stmp)} offen sc1")
    k(f"v_add_u32 v13, {MODL}, v13\nv_add_u32 v14, {MODL+4096}, {v(vl16)}")
    k("s_waitcnt vmcnt(0)")
    k(f"ds_write_b128 v13, {v(GS,4)}\nds_write_b128 v14, {v(GS+4,4)}")
    k("s_waitcnt lgkmcnt(0)\ns_barrier")
    vm.clear()
    k(f"v_add_u32 v9, {7*SLOT}, {v(vl16)}\nv_add_u32 v10, {14*SLOT}, {v(vl16)}")
    def areads(ks, par):
        ops = []
        slot = ks % NSL; bi = slot // 7; o = (slot % 7)*SLOT
        for u in range(9):
            r = par*36 + u*4
            if ks < 16:
                ops.append(f"ds_read_b128 {a(r,4)}, {v(vPk[bi])} offset:{o + u*1024}")
            else:
                ops.append(f"ds_read_b64_tr_b16 {a(r,2)}, {v(vAb[bi])} offset:{o + u*32}")
                ops.append(f"ds_read_b64_tr_b16 {a(r+2,2)}, {v(vA2b[bi])} offset:{o + u*32}")
        return ops
    def gsreads(ks):
        o = ks*128
        return [f"ds_read_b128 {v(GS,4)}, {v(vM)} offset:{o}", f"ds_read_b128 {v(GS+4,4)}, {v(vM)} offset:{o+16}",
                f"ds_read_b128 {v(GS+8,4)}, {v(vM)} offset:{2304+o}", f"ds_read_b128 {v(GS+12,4)}, {v(vM)} offset:{2304+o+16}"]
    def modulate(ks):
        ops = []
        for t in range(2):
            for j in range(4):
                r = xr(t,ks)+j; tt = T + 2*(j % 4)
                ops.append(f"v_fma_mix_f32 {v(tt)}, {v(r)}, {v(GS+8+2*j)}, {v(GS+2*j)} op_sel_hi:[1,0,0]")
                ops.append(f"v_fma_mix_f32 {v(tt+1)}, {v(r)}, {v(GS+8+2*j+1)}, {v(GS+2*j+1)} op_sel:[1,0,0] op_sel_hi:[1,0,0]")
            for j in range(4):
                r = xr(t,ks)+j; tt = T + 2*(j % 4)
                ops.append(f"v_cvt_pk_bf16_f32 {v(r)}, {v(tt)}, {v(tt+1)}")
        return ops
    def gemm(swapped, tag):
        for o in gsreads(0) + areads(0, 0): k(o)
        k("s_waitcnt lgkmcnt(15)\ns_waitcnt lgkmcnt(14)" if False else "s_waitcnt lgkmcnt(0)")
        for o in modulate(0): k(o)
        for ks in range(18):
            par = ks % 2
            k("s_waitcnt lgkmcnt(0)")
            if ks == 2:
                k("s_barrier")
                k(f"s_cmp_lt_u32 {s(sw)}, 2\ns_cbranch_scc0 L_k01_nodma_{tag}")
                wdma(4, 0, from_acc=True)
                k(f"L_k01_nodma_{tag}:")
            if ks == 14:
                k("s_waitcnt vmcnt(0)\ns_barrier")
            gs = gsreads(ks+1) if ks < 17 else []
            rd = areads(ks+1, 1-par) if ks < 17 else []
            md = modulate(ks+1) if ks < 17 else []
            nrd = len(rd); early = 3 if nrd <= 9 else 6
            per = 1 if nrd <= 9 else 2
            j = 0
            for u in range(9):
                for t in range(2):
                    c = "0" if ks == 0 else v(acc(u,t),4)
                    A_, B_ = a(par*36+u*4,4), v(xr(t,ks),4)
                    if swapped: A_, B_ = B_, A_
                    k(f"v_mfma_f32_16x16x32_bf16 {v(acc(u,t),4)}, {A_}, {B_}, {c}")
                    if j == 0:
                        for o in gs: k(o)
                    elif j <= 3:
                        for _ in range(per):
                            if rd: k(rd.pop(0))
                    elif j == 4 and md:
                        k(f"s_waitcnt lgkmcnt({early})")
                    if j >= 4:
                        if rd and j >= 5: k(rd.pop(0))
                        n = 2 if j < 16 else len(md)
                        for _ in range(n):
                            if md: k(md.pop(0))
                    j += 1
            assert not rd and not md
    k(f"s_cmp_ge_u32 {s(scs)}, 8\ns_cbranch_scc1 L_k01_v")
    gemm(False, "qk")
    if stamps: k("s_memtime s[68:69]")
    RS = 296
    k("s_barrier")
    k(f"s_cmp_lt_u32 {s(scs)}, 4\ns_cselect_b32 {s(skind)}, 0x3eae1a93, 1.0")
    k(f"s_mul_i32 {s(stmp)}, {s(sw)}, {32*RS}")
    k(f"v_and_b32 v13, 15, v0\nv_mul_u32_u24 v13, {RS}, v13\nv_lshrrev_b32 v15, 4, v0\nv_lshlrev_b32 v15, 3, v15\nv_add_u32 v13, v13, v15\nv_add_u32 v13, {s(stmp)}, v13")
    for u in range(9):
        for t in range(2):
            r = acc(u,t)
            for e in range(4): k(f"v_mul_f32 {v(r+e)}, {s(skind)}, {v(r+e)}")
            k(f"v_cvt_pk_bf16_f32 {v(r)}, {v(r)}, {v(r+1)}\nv_cvt_pk_bf16_f32 {v(r+1)}, {v(r+2)}, {v(r+3)}")
            k(f"ds_write_b64 v13, {v(r,2)} offset:{t*16*RS + u*32}")
    k("s_waitcnt lgkmcnt(0)")
    k(f"v_and_b32 v13, 31, v0\nv_mul_u32_u24 v15, {RS}, v13\nv_lshrrev_b32 v14, 5, v0\nv_lshlrev_b32 v14, 4, v14\nv_add_u32 v15, v15, v14\nv_add_u32 v15, {s(stmp)}, v15")
    k(f"v_mul_u32_u24 v14, {RS}, v13\nv_add_u32 v14, {s(stmp)}, v14")
    R = X
    for h in range(8):
        k(f"ds_read2_b32 {v(R+8*h,2)}, v15 offset0:{9*h} offset1:{9*h+1}\nds_read2_b32 {v(R+8*h+2,2)}, v15 offset0:{9*h+2} offset1:{9*h+3}")
        k(f"ds_read_b32 {v(R+8*h+4)}, v14 offset:{36*h+32}")
    k(f"v_mov_b32 v11, 0x7fffffff\nv_cmp_gt_u32 vcc, 32, v0")
    k(f"s_and_b32 {s(sh0)}, {s(scs)}, 3\ns_lshl_b32 {s(sh0)}, {s(sh0)}, 3")
    k(f"s_cmp_lt_u32 {s(scs)}, 4\ns_cbranch_scc0 L_k01_kout")
    k("v_lshlrev_b32 v10, 2, v13\nv_cndmask_b32 v10, v11, v10, vcc")
    k(f"s_lshl_b32 {s(stmp)}, {s(sh0)}, 6\ns_add_u32 {s(stmp)}, {s(stmp)}, {s(sqt)}")
    k("s_waitcnt lgkmcnt(0)")
    for h in range(8):
        k(f"s_add_u32 {s(stmp2)}, {s(stmp)}, {64*h}\ns_lshl_b32 {s(ssrc)}, {s(stmp2)}, 10\nbuffer_store_dwordx4 {v(R+8*h,4)}, {v(vl16)}, {s(rQM,4)}, {s(ssrc)} offen")
        k(f"s_lshl_b32 {s(ssrc)}, {s(stmp2)}, 7\nbuffer_store_dword {v(R+8*h+4)}, v10, {s(rQR,4)}, {s(ssrc)} offen")
    k("s_branch L_k01_fin")
    k("L_k01_kout:")
    k("v_lshlrev_b32 v10, 4, v13\nv_cndmask_b32 v10, v11, v10, vcc")
    k(f"s_mul_i32 {s(stmp)}, {s(sh0)}, {KV_STRIDE}\ns_lshl_b32 {s(stmp2)}, {s(sqt)}, 10\ns_add_u32 {s(stmp2)}, {s(stmp2)}, {s(stmp)}")
    k(f"s_lshl_b32 {s(ssrc)}, {s(srb)}, 9\ns_add_u32 {s(stmp)}, {s(stmp)}, {s(ssrc)}\ns_lshl_b32 {s(ssrc)}, {s(sw)}, 2\ns_add_u32 {s(stmp)}, {s(stmp)}, {s(ssrc)}\ns_add_u32 {s(stmp)}, {s(stmp)}, {KR_OFF}")
    k("s_waitcnt lgkmcnt(0)")
    for h in range(8):
        k(f"buffer_store_dwordx4 {v(R+8*h,4)}, {v(vl16)}, {s(rKV,4)}, {s(stmp2)} offen")
        k(f"buffer_store_dword {v(R+8*h+4)}, v10, {s(rKV,4)}, {s(stmp)} offen")
        if h < 7: k(f"s_add_u32 {s(stmp2)}, {s(stmp2)}, {KV_STRIDE}\ns_add_u32 {s(stmp)}, {s(stmp)}, {KV_STRIDE}")
    k("s_branch L_k01_fin")
    k("L_k01_v:")
    gemm(True, "v")
    if stamps: k("s_memtime s[68:69]")
    k(f"s_sub_u32 {s(sh0)}, {s(scs)}, 8\ns_lshl_b32 {s(sh0)}, {s(sh0)}, 3\ns_mul_i32 {s(stmp)}, {s(sh0)}, {KV_STRIDE}")
    k(f"s_mul_i32 {s(stmp2)}, {s(sqt)}, {2*608}\ns_add_u32 {s(stmp)}, {s(stmp)}, {s(stmp2)}\ns_add_u32 {s(stmp)}, {s(stmp)}, {VT_OFF}")
    k("v_lshrrev_b32 v13, 4, v0\nv_and_b32 v14, 1, v13\nv_mul_u32_u24 v14, 304, v14\nv_lshrrev_b32 v13, 1, v13\nv_lshlrev_b32 v13, 3, v13\nv_add_u32 v14, v14, v13")
    k(f"v_and_b32 v15, 15, v0\ns_mov_b32 {s(stmp2)}, {KV_STRIDE}")
    for u in range(9):
        k(f"v_add_u32 v10, {16*u}, v15\nv_mul_u32_u24 v11, 3641, v10\nv_lshrrev_b32 v11, 16, v11\nv_mul_u32_u24 v13, 18, v11\nv_sub_u32 v10, v10, v13")
        k(f"v_mul_lo_u32 v11, v11, {s(stmp2)}\nv_lshlrev_b32 v10, 4, v10\nv_add_u32 v10, v10, v11\nv_add_u32 v10, v10, v14")
        for t in range(2):
            r = acc(u,t)
            k(f"v_cvt_pk_bf16_f32 {v(r)}, {v(r)}, {v(r+1)}\nv_cvt_pk_bf16_f32 {v(r+1)}, {v(r+2)}, {v(r+3)}")
            k(f"buffer_store_dwordx2 {v(r,2)}, v10, {s(rKV,4)}, {s(stmp)} offen offset:{t*608}")
    k(f"v_lshrrev_b32 v10, 2, v0\nv_mul_lo_u32 v10, v10, {s(stmp2)}\nv_bfe_u32 v11, v0, 1, 1\nv_mul_u32_u24 v11, 608, v11\nv_add_u32 v10, v10, v11")
    k(f"v_and_b32 v11, 1, v0\nv_mul_u32_u24 v11, 304, v11\nv_add_u32 v10, v10, v11\nv_add_u32 v10, {18*16}, v10")
    k("v_mov_b32 v11, 0x7fffffff\nv_cmp_gt_u32 vcc, 32, v0\nv_cndmask_b32 v10, v11, v10, vcc")
    for e in range(4): k(f"v_mov_b32 {v(X+e)}, 0x3f803f80")
    k(f"buffer_store_dwordx4 {v(X,4)}, v10, {s(rKV,4)}, {s(stmp)} offen")
    k("L_k01_fin:")
    if stamps:
        k("s_waitcnt vmcnt(0)\ns_memtime s[70:71]\ns_memrealtime s[72:73]\ns_waitcnt lgkmcnt(0)")
        srd(k, 24, sWS, WS["AUX"], WS["AUX_SZ"])
        k(f"s_lshl_b32 {s(stmp)}, s2, 3\ns_add_u32 {s(stmp)}, {s(stmp)}, {s(sw)}\ns_lshl_b32 {s(stmp)}, {s(stmp)}, 6\nv_mov_b32 v9, {s(stmp)}")
        for i, (x, y) in enumerate(((64,60),(66,60),(68,60),(70,60),(72,62))):
            k(f"s_sub_u32 s74, s{x}, s{y}\nv_mov_b32 v10, s74\nbuffer_store_dword v10, v9, s[24:27], 0 offen offset:{4*i}")
        k(f"v_mov_b32 v10, s62\nbuffer_store_dword v10, v9, s[24:27], 0 offen offset:20")
        for i, x in enumerate((76, 78, 80, 82, 84)):
            k(f"s_sub_u32 s74, s{x}, s60\nv_mov_b32 v10, s74\nbuffer_store_dword v10, v9, s[24:27], 0 offen offset:{24+4*i}")
    k("s_branch L_k01_end")
    mod_role(k, sWS)
    k("L_k01_end:\ns_endpgm")
    return k, (246, 256, MODL + 5120)
```

```python
from asmgen import *
from layout import *
from k_g1 import srd, spread
from k_g2 import w_patterns

def gen_p3(stamps=False):
    k = Kern("p3_kernel", vgprs=176)
    sWS, sWO, sX = 4, 6, 8
    rWO, rOM, rOR, rMOD, rX, rX1 = 12, 16, 20, 24, 28, 44
    sw, srb, scs, stmp, stmp2, ssrc, slds = range(32, 39)
    vl16, vP, vA0, vA1, vA2, vA3, vR0, vR1, vom, vor, vx = 1, 2, 5, 6, 7, 8, 9, 10, 11, 12, 13
    BF = 16
    ACC = 88
    AF = 112
    k("s_cmp_ge_u32 s2, 192\ns_cbranch_scc1 L_p3_end")
    k(f"s_load_dwordx2 {s(sWS,2)}, s[0:1], {KA['ws']}")
    k(f"s_load_dwordx2 {s(sWO,2)}, s[0:1], {KA['wo']}")
    k(f"s_load_dwordx2 {s(sX,2)}, s[0:1], {KA['x']}")
    k("v_lshrrev_b32 v14, 6, v0\nv_and_b32 v0, 63, v0")
    k(f"v_readfirstlane_b32 {s(sw)}, v14")
    k(f"v_lshlrev_b32 {v(vl16)}, 4, v0")
    w_patterns(k, vP, 1152, 112)
    k(f"s_and_b32 {s(stmp)}, s2, 7\ns_lshl_b32 {s(srb)}, {s(stmp)}, 2\ns_lshr_b32 {s(stmp)}, s2, 3\ns_and_b32 {s(stmp2)}, {s(stmp)}, 3\ns_add_u32 {s(srb)}, {s(srb)}, {s(stmp2)}\ns_lshr_b32 {s(scs)}, {s(stmp)}, 2")
    k("v_lshrrev_b32 v112, 4, v0\nv_bfe_u32 v113, v0, 2, 2\nv_and_b32 v114, 3, v0\nv_and_b32 v115, 15, v0")
    k("v_lshrrev_b32 v116, 1, v112\nv_mul_u32_u24 v116, 18, v116\nv_and_b32 v117, 1, v112\nv_lshlrev_b32 v117, 2, v117\nv_add_u32 v116, v116, v117\nv_add_u32 v116, v116, v113")
    def mkaddr(row, d0, d1):
        k(f"v_lshrrev_b32 v117, 2, {v(row)}\nv_and_b32 v117, 1, v117\nv_lshlrev_b32 v117, 5, v117")
        k(f"v_mul_u32_u24 v118, 192, {v(row)}\nv_lshlrev_b32 v119, 3, v114\nv_add_u32 v118, v118, v119")
        k(f"v_add_u32 {v(d0)}, v118, v117\nv_xor_b32 v117, 32, v117\nv_add_u32 {v(d1)}, v118, v117")
    mkaddr(116, vA0, vA1)
    k(f"v_add_u32 {v(vA2)}, {8*6912}, {v(vA0)}\nv_add_u32 {v(vA3)}, {8*6912}, {v(vA1)}")
    k("v_lshlrev_b32 v116, 2, v112\nv_lshrrev_b32 v117, 1, v113\nv_add_u32 v116, v116, v117\nv_mul_u32_u24 v116, 18, v116\nv_and_b32 v117, 1, v113\nv_add_u32 v116, v116, v117\nv_add_u32 v116, 16, v116")
    mkaddr(116, vR0, vR1)
    k(f"s_lshl_b32 {s(stmp)}, {s(srb)}, 2\ns_add_u32 {s(stmp)}, {s(stmp)}, {s(sw)}\ns_lshl_b32 {s(stmp2)}, {s(stmp)}, 4\nv_add_u32 v116, {s(stmp2)}, v115")
    k(f"v_lshlrev_b32 v117, 15, v112\nv_lshlrev_b32 v118, 4, v116\nv_add_u32 {v(vom)}, v117, v118")
    k(f"v_lshlrev_b32 v117, 13, v112\nv_add_u32 v117, v117, v116\nv_lshlrev_b32 {v(vor)}, 2, v117")
    XL = 110592
    for e in range(3):
        k(f"v_add_u32 v117, {64*e}, v0\nv_mul_u32_u24 v118, 21846, v117\nv_lshrrev_b32 v118, 18, v118\nv_mul_u32_u24 v119, 12, v118\nv_sub_u32 v117, v117, v119\nv_lshlrev_b32 v117, 4, v117\nv_mul_u32_u24 v118, 1152, v118\nv_add_u32 {v(164+8+e)}, v117, v118")
    k(f"v_mul_u32_u24 v117, 192, v115\nv_lshlrev_b32 v118, 3, v112\nv_add_u32 v117, v117, v118\ns_mul_i32 {s(stmp2)}, {s(sw)}, 3072\ns_add_u32 {s(stmp2)}, {s(stmp2)}, {XL}\nv_add_u32 {v(vx)}, {s(stmp2)}, v117")
    k("v_lshlrev_b32 v14, 4, v112")
    k("s_waitcnt lgkmcnt(0)")
    srd(k, rWO, sWO, 0, 576*1152); srd(k, rOM, sWS, WS["OM"], WS["OM_SZ"]); srd(k, rOR, sWS, WS["OR"], WS["OR_SZ"])
    srd(k, rMOD, sWS, WS["MOD"], WS["MOD_SZ"]); srd(k, rX, sX, 0, 2048*1152); srd(k, rX1, sWS, WS["X1F"], WS["X1F_SZ"])
    k(f"s_lshl_b32 {s(stmp)}, {s(srb)}, 2\ns_add_u32 {s(stmp)}, {s(stmp)}, {s(sw)}\ns_mul_i32 {s(stmp)}, {s(stmp)}, {16*1152}\ns_mul_i32 {s(stmp2)}, {s(scs)}, 192\ns_add_u32 {s(stmp)}, {s(stmp)}, {s(stmp2)}\ns_mul_i32 {s(slds)}, {s(sw)}, 3072")
    for e in range(3):
        k(f"s_add_u32 m0, {s(slds)}, {110592 + e*1024}\ns_nop 0\nbuffer_load_dwordx4 {v(172+e)}, {s(rX,4)}, {s(stmp)} offen lds")
    k(f"s_mul_i32 {s(ssrc)}, {s(sw)}, {16*1152}\ns_mul_i32 {s(stmp2)}, {s(scs)}, 192\ns_add_u32 {s(ssrc)}, {s(ssrc)}, {s(stmp2)}\ns_mul_i32 {s(slds)}, {s(sw)}, 3072")
    for g in range(9):
        for i in range(3):
            k(f"s_add_u32 m0, {s(slds)}, {g*4*3072 + i*1024}")
            k(f"s_add_u32 {s(stmp2)}, {s(ssrc)}, {g*4*16*1152}")
            k(f"buffer_load_dwordx4 {v(vP+i)}, {s(rWO,4)}, {s(stmp2)} offen lds")
    for sx in range(16):
        k(f"s_mov_b32 {s(stmp2)}, {sx*131072}\nbuffer_load_dwordx4 {v(BF+4*sx,4)}, {v(vom)}, {s(rOM,4)}, {s(stmp2)} offen")
    for sp in range(2):
        for jj in range(4):
            k(f"s_mov_b32 {s(stmp2)}, {(16*sp+jj)*8192}\nbuffer_load_dword {v(BF+64+4*sp+jj)}, {v(vor)}, {s(rOR,4)}, {s(stmp2)} offen")
    k("s_waitcnt vmcnt(24)\ns_barrier")
    XR = 160
    def areads(sx, par):
        ops = []
        for dt in range(6):
            r = AF + par*24 + dt*4
            if sx < 16:
                regs = (vA0, vA1) if sx < 8 else (vA2, vA3)
                ad = regs[(dt & 1) ^ (sx & 1)]
                o = (sx % 8)*6912 + (dt & ~1)*32
                ops.append(f"ds_read_b64_tr_b16 {v(r,2)}, {v(ad)} offset:{o}")
                ops.append(f"ds_read_b64_tr_b16 {v(r+2,2)}, {v(ad)} offset:{o+1536}")
            else:
                sp = sx - 16
                o = sp*288*192 + (dt & ~1)*32
                ops.append(f"ds_read_b64_tr_b16 {v(r,2)}, {v((vR0, vR1)[dt & 1])} offset:{o}")
                ops.append(f"ds_read_b64_tr_b16 {v(r+2,2)}, {v((vR0, vR1)[(dt & 1) ^ 1])} offset:{o + 36*192}")
        return ops
    for o in areads(0, 0): k(o)
    for sx in range(18):
        par = sx % 2
        nb = {0: 23}.get(sx)
        need = (16 - 1 - sx + 8) if sx < 16 else (4 if sx == 16 else 0)
        k(f"s_waitcnt vmcnt({need}) lgkmcnt(0)")
        fill = areads(sx+1, 1-par) if sx < 17 else []
        slots = spread(fill, 6)
        for dt in range(6):
            c = "0" if sx == 0 else v(ACC+4*dt,4)
            k(f"v_mfma_f32_16x16x32_bf16 {v(ACC+4*dt,4)}, {v(AF+par*24+dt*4,4)}, {v(BF+4*sx,4)}, {c}")
            for o in slots[dt]: k(o)
    k(f"s_mul_i32 {s(stmp2)}, {s(scs)}, {96*4}\ns_add_u32 {s(stmp2)}, {s(stmp2)}, {2*576*4}")
    GA = BF
    for dt in range(6): k(f"buffer_load_dwordx4 {v(GA+4*dt,4)}, v14, {s(rMOD,4)}, {s(stmp2)} offen offset:{dt*64}")
    for dt in range(6): k(f"ds_read_b64 {v(XR+2*dt,2)}, {v(vx)} offset:{dt*32}")
    k("s_waitcnt vmcnt(0) lgkmcnt(0)")
    T = AF
    for dt in range(6):
        xr = XR + 2*dt; t = T + 4*dt
        k(f"v_lshlrev_b32 {v(t)}, 16, {v(xr)}\nv_and_b32 {v(t+1)}, 0xffff0000, {v(xr)}")
        k(f"v_lshlrev_b32 {v(t+2)}, 16, {v(xr+1)}\nv_and_b32 {v(t+3)}, 0xffff0000, {v(xr+1)}")
        for r in range(4): k(f"v_fma_f32 {v(t+r)}, {v(GA+4*dt+r)}, {v(ACC+4*dt+r)}, {v(t+r)}")
        o = 40 + (dt >> 1)*4 + (dt & 1)*2
        k(f"v_cvt_pk_bf16_f32 {v(o)}, {v(t)}, {v(t+1)}\nv_cvt_pk_bf16_f32 {v(o+1)}, {v(t+2)}, {v(t+3)}")
    k(f"s_lshl_b32 {s(stmp)}, {s(srb)}, 2\ns_add_u32 {s(stmp)}, {s(stmp)}, {s(sw)}\ns_mul_i32 {s(stmp)}, {s(stmp)}, {18*1024}\ns_mul_i32 {s(stmp2)}, {s(scs)}, 3072\ns_add_u32 {s(stmp)}, {s(stmp)}, {s(stmp2)}")
    for j in range(3): k(f"buffer_store_dwordx4 {v(40+4*j,4)}, {v(vl16)}, {s(rX1,4)}, {s(stmp)} offen offset:{j*1024}")
    k("L_p3_end:\ns_endpgm")
    return k, (192, 256, 110592 + 12288)

def gen_ln2():
    k = Kern("ln2_kernel", vgprs=128)
    sWS = 4; rX1, rH2, rMOD = 8, 12, 16
    stile, stmp = 32, 33
    X = 16; G = 88; SB = 96; T = 104
    k("s_cmp_ge_u32 s2, 128\ns_cbranch_scc1 L_ln2_end")
    k(f"s_load_dwordx2 {s(sWS,2)}, s[0:1], {KA['ws']}")
    k("v_lshlrev_b32 v1, 4, v0\nv_lshrrev_b32 v2, 4, v0\nv_lshlrev_b32 v2, 4, v2")
    k(f"s_mul_i32 {s(stile)}, s2, {18*1024}")
    k("s_waitcnt lgkmcnt(0)")
    srd(k, rX1, sWS, WS["X1F"], WS["X1F_SZ"]); srd(k, rH2, sWS, WS["H2F"], WS["H2F_SZ"]); srd(k, rMOD, sWS, WS["MOD"], WS["MOD_SZ"])
    for ks in range(18):
        k(f"s_add_u32 {s(stmp)}, {s(stile)}, {(ks>>2)*4096}\nbuffer_load_dwordx4 {v(X+4*ks,4)}, v1, {s(rX1,4)}, {s(stmp)} offen offset:{(ks&3)*1024}")
    k("v_mov_b32 v3, 0\nv_mov_b32 v4, 0\nv_mov_b32 v5, 0x3f803f80")
    for i in range(72):
        if i % 4 == 0: k(f"s_waitcnt vmcnt({17 - i//4})")
        k(f"v_dot2_f32_bf16 v3, {v(X+i)}, v5, v3\nv_dot2_f32_bf16 v4, {v(X+i)}, {v(X+i)}, v4")
    for r in ("v3", "v4"):
        k(f"v_mov_b32 v6, {r}\nv_permlane32_swap_b32 {r}, v6\nv_add_f32 {r}, {r}, v6\nv_mov_b32 v6, {r}\nv_permlane16_swap_b32 {r}, v6\nv_add_f32 {r}, {r}, v6")
    k("v_mul_f32 v3, 0x3ae38e39, v3\nv_mul_f32 v4, 0x3ae38e39, v4")
    k("v_fma_f32 v4, -v3, v3, v4\nv_max_f32 v4, 0, v4\nv_add_f32 v4, 0x3727c5ac, v4\nv_rsq_f32 v4, v4")
    k("s_nop 0\nv_mul_f32 v3, v3, v4\nv_sub_f32 v3, 0, v3")
    for ks in range(18):
        k(f"s_mov_b32 {s(stmp)}, {(4*576 + 32*ks)*4}")
        k(f"buffer_load_dwordx4 {v(G,4)}, v2, {s(rMOD,4)}, {s(stmp)} offen\nbuffer_load_dwordx4 {v(G+4,4)}, v2, {s(rMOD,4)}, {s(stmp)} offen offset:64")
        k(f"s_mov_b32 {s(stmp)}, {(3*576 + 32*ks)*4}")
        k(f"buffer_load_dwordx4 {v(SB,4)}, v2, {s(rMOD,4)}, {s(stmp)} offen\nbuffer_load_dwordx4 {v(SB+4,4)}, v2, {s(rMOD,4)}, {s(stmp)} offen offset:64")
        for j in range(4):
            x = X + 4*ks + j
            k(f"v_lshlrev_b32 {v(T+2*j)}, 16, {v(x)}\nv_and_b32 {v(T+2*j+1)}, 0xffff0000, {v(x)}")
        for e in range(8): k(f"v_fma_f32 {v(T+e)}, {v(T+e)}, v4, v3")
        k("s_waitcnt vmcnt(0)")
        for e in range(8): k(f"v_fma_f32 {v(T+e)}, {v(T+e)}, {v(G+e)}, {v(SB+e)}")
        for j in range(4): k(f"v_cvt_pk_bf16_f32 {v(X+4*ks+j)}, {v(T+2*j)}, {v(T+2*j+1)}")
        k(f"s_add_u32 {s(stmp)}, {s(stile)}, {ks*1024}\nbuffer_store_dwordx4 {v(X+4*ks,4)}, v1, {s(rH2,4)}, {s(stmp)} offen")
    k("L_ln2_end:\ns_endpgm")
    return k, (128, 64, 0)
```

```python
import re

def v(i, n=1): return "v%d" % i if n == 1 else "v[%d:%d]" % (i, i+n-1)
def a(i, n=1): return "a%d" % i if n == 1 else "a[%d:%d]" % (i, i+n-1)
def s(i, n=1): return "s%d" % i if n == 1 else "s[%d:%d]" % (i, i+n-1)

TRANS = ("v_exp_f32", "v_log_f32", "v_rcp_f32", "v_rsq_f32", "v_sqrt_f32", "v_sin_f32", "v_cos_f32", "v_rcp_iflag_f32")
_reg_re = re.compile(r"^(-|\|)?(abs\()?([vas])(?:(\d+)|\[(\d+):(\d+)\])\)?\|?$")

def regs_of(op):
    op = op.strip()
    if op in ("vcc",): return {("s", "vcc_lo"), ("s", "vcc_hi")}
    if op in ("vcc_lo", "vcc_hi", "m0", "exec_lo", "exec_hi"): return {("s", op)}
    if op == "exec": return {("s", "exec_lo"), ("s", "exec_hi")}
    m = _reg_re.match(op)
    if not m: return set()
    k = m.group(3)
    if m.group(4) is not None: return {(k, int(m.group(4)))}
    return {(k, i) for i in range(int(m.group(5)), int(m.group(6))+1)}

class Ins:
    __slots__ = ("text", "mn", "ops", "mods", "kind", "defs", "uses", "srcA", "srcB", "srcC", "passes", "trans", "label", "target", "ws", "storedata")
    def __init__(self, text):
        self.text = text
        t = text.split(";")[0].strip()
        self.label = None; self.target = None; self.kind = "none"; self.defs = set(); self.uses = set()
        self.srcA = self.srcB = self.srcC = set(); self.passes = 0; self.trans = False; self.ws = 0; self.mn = ""; self.ops = []; self.mods = ""
        self.storedata = set()
        if not t or t.startswith("."): return
        if t.endswith(":"):
            self.label = t[:-1]; self.kind = "label"; return
        parts = t.split(None, 1)
        mn = parts[0]; rest = parts[1] if len(parts) > 1 else ""
        for suf in ("_e32", "_e64"):
            if mn.endswith(suf): mn = mn[:-len(suf)]
        self.mn = mn
        ops = []; depth = 0; cur = ""
        for ch in rest:
            if ch == "[": depth += 1
            if ch == "]": depth -= 1
            if ch == "," and depth == 0: ops.append(cur.strip()); cur = ""
            else: cur += ch
        if cur.strip(): ops.append(cur.strip())
        mods = ""
        if ops:
            last = ops[-1].split(None, 1)
            if len(last) > 1: ops[-1] = last[0]; mods = last[1]
        self.ops = ops; self.mods = mods; self.ws = 1
        R = regs_of
        allu = lambda lst: set().union(*[R(o) for o in lst]) if lst else set()
        if mn.startswith("v_mfma"):
            self.kind = "mfma"; self.defs = R(ops[0]); self.srcA = R(ops[1]); self.srcB = R(ops[2]); self.srcC = R(ops[3])
            self.uses = self.srcA | self.srcB | self.srcC
            self.passes = 8 if "32x32x16" in mn else 4 if "16x16x32" in mn else None
            assert self.passes, text
        elif mn.startswith("v_"):
            self.kind = "valu"; base = mn.replace("_dpp", "").replace("_sdwa", "")
            self.trans = base in TRANS
            if base.startswith("v_cmp"):
                self.defs = R(ops[0]); self.uses = allu(ops[1:])
                if base.startswith("v_cmpx"): raise ValueError("no cmpx please")
            elif base in ("v_add_co_u32", "v_sub_co_u32", "v_subrev_co_u32"):
                self.defs = R(ops[0]) | R(ops[1]); self.uses = allu(ops[2:])
            elif base in ("v_addc_co_u32", "v_subb_co_u32"):
                self.defs = R(ops[0]) | R(ops[1]); self.uses = allu(ops[2:])
            elif base.startswith("v_permlane") or base == "v_swap_b32":
                self.defs = allu(ops[:2]); self.uses = allu(ops[:2])
            else:
                self.defs = R(ops[0]); self.uses = allu(ops[1:])
                if base.startswith(("v_fmac", "v_dot2c", "v_pk_fmac", "v_writelane")) or "dpp" in mn or "row_" in mods or "quad_perm" in mods or "PRESERVE" in mods:
                    self.uses |= R(ops[0])
        elif mn.startswith(("buffer_", "global_")):
            self.kind = "vmem"
            if mn in ("buffer_wbl2", "buffer_inv"): pass
            elif mn.startswith("buffer_load"):
                if re.search(r"\blds\b", mods): self.uses = allu(ops) | {("s", "m0")}
                else: self.defs = R(ops[0]); self.uses = allu(ops[1:])
            elif mn.startswith("buffer_store"):
                self.uses = allu(ops)
                if "x3" in mn or "x4" in mn: self.storedata = R(ops[0])
            elif mn.startswith("buffer_atomic"):
                self.uses = allu(ops)
                if "sc0" in mods: self.defs = R(ops[0])
            elif mn.startswith("global_load_lds"): self.uses = allu(ops) | {("s", "m0")}
            elif mn.startswith("global_load"): self.defs = R(ops[0]); self.uses = allu(ops[1:])
            elif mn.startswith("global_store"):
                self.uses = allu(ops)
                if "x3" in mn or "x4" in mn: self.storedata = R(ops[1])
            elif mn.startswith("global_atomic"):
                if "sc0" in mods: self.defs = R(ops[0]); self.uses = allu(ops[1:])
                else: self.uses = allu(ops)
            else: raise ValueError(text)
        elif mn.startswith("ds_"):
            self.kind = "ds"
            if mn.startswith(("ds_read", "ds_bpermute", "ds_permute", "ds_swizzle")): self.defs = R(ops[0]); self.uses = allu(ops[1:])
            else: self.uses = allu(ops)
        elif mn.startswith("s_"):
            self.kind = "salu"
            if mn == "s_nop": self.ws = int(ops[0], 0) + 1
            elif mn in ("s_branch",) or mn.startswith("s_cbranch"): self.target = ops[0]
            elif mn.startswith(("s_cmp", "s_waitcnt", "s_barrier", "s_setprio", "s_sleep", "s_endpgm", "s_bitcmp")): self.uses = allu(ops)
            else:
                self.defs = R(ops[0]); self.uses = allu(ops[1:])
                if "saveexec" in mn: self.defs |= R("exec"); self.uses |= R("exec")
        else:
            raise ValueError("unknown instruction: " + text)

def isv(r): return r[0] in ("v", "a")
def iss(r): return r[0] == "s"

def gap(p, c):
    need = 0
    pv = {r for r in p.defs if isv(r)}; ps = {r for r in p.defs if iss(r)}
    if p.kind == "valu":
        if c.kind == "mfma" and pv & c.uses: need = max(need, 2)
        if p.trans and c.kind in ("valu", "vmem", "ds") and pv & c.uses: need = max(need, 1)
        if c.kind == "valu":
            b = c.mn
            if b.startswith(("v_readlane", "v_readfirstlane")) and pv & c.uses: need = max(need, 1)
            if b.startswith("v_permlane") and pv & c.uses: need = max(need, 2)
            if ("dpp" in b or "row_" in c.mods or "quad_perm" in c.mods) and pv & c.uses: need = max(need, 2)
            if ps & c.uses:
                need = max(need, 4 if b.startswith(("v_readlane", "v_writelane")) else 2)
            if ("sdwa" in p.mn or p.mn.startswith(("v_fma_mixhi", "v_fma_mixlo"))) and pv & (c.uses | c.defs): need = max(need, 1)
        if p.mn.startswith("v_dot"):
            hit = pv & (c.uses | c.defs)
            if hit:
                same_c = c.mn == p.mn and c.kind == "valu" and not (pv & set().union(*[regs_of(o) for o in c.ops[1:3]]))
                if not same_c: need = max(need, 3)
        if c.kind == "vmem" and ps & c.uses: need = max(need, 5)
        if c.kind == "salu" and ps & c.uses: need = max(need, 1)
    if p.kind == "mfma":
        n = p.passes
        if c.kind == "mfma":
            if pv & (c.srcA | c.srcB): need = max(need, {4: 8, 8: 12}[n])
            if pv & c.srcC:
                if not (pv == c.srcC and c.passes == n): need = max(need, {4: 6, 8: 10}[n])
            elif pv & c.defs:
                need = max(need, {4: 6, 8: 10}[n])
        elif c.kind == "valu":
            if pv & (c.uses | c.defs): need = max(need, {4: 8, 8: 12}[n])
            if p.srcC & c.defs: need = max(need, {4: 3, 8: 7}[n])
        elif c.kind in ("vmem", "ds"):
            if pv & (c.uses | c.defs): need = max(need, {4: 8, 8: 12}[n])
            if p.srcC & c.defs: need = max(need, {4: 3, 8: 7}[n])
    if p.kind == "vmem" and p.storedata:
        if c.kind == "valu" and p.storedata & c.defs: need = max(need, 2)
        elif c.kind != "valu" and p.storedata & c.defs: need = max(need, 1)
    if p.kind == "salu" and ("s", "m0") in p.defs and c.kind in ("vmem", "ds") and ("s", "m0") in c.uses: need = max(need, 1)
    if p.kind == "salu" and any(r in p.defs for r in (("s", "exec_lo"), ("s", "exec_hi"))) and c.kind == "mfma": need = max(need, 4)
    return need

MAXD = 14
def fix_hazards(lines, verbose=False):
    ins = [Ins(l) for l in lines]
    total_nops = 0
    changed = True
    while changed:
        changed = False
        labels = {x.label: i for i, x in enumerate(ins) if x.label}
        br_to = {}
        for i, x in enumerate(ins):
            if x.target in labels: br_to.setdefault(labels[x.target], []).append(i)
        def deficiency(ci):
            c = ins[ci]; worst = 0
            stack = [(ci-1, 0)]; seen = set()
            while stack:
                i, d = stack.pop()
                while i >= 0 and d < MAXD:
                    if (i, d) in seen: break
                    seen.add((i, d))
                    x = ins[i]
                    if x.kind == "label":
                        for b in br_to.get(i, []): stack.append((b, d))
                        j = i-1
                        while j >= 0 and ins[j].kind in ("none", "label"): j -= 1
                        if j >= 0 and ins[j].mn in ("s_branch", "s_endpgm"): break
                        i -= 1; continue
                    if x.kind == "none": i -= 1; continue
                    g = gap(x, c)
                    if g > d: worst = max(worst, g-d)
                    d += x.ws; i -= 1
            return worst
        for ci, c in enumerate(ins):
            if c.kind in ("none", "label"): continue
            df = deficiency(ci)
            if df > 0:
                if verbose: print("hazard: +%d before: %s" % (df, c.text.strip()))
                ins.insert(ci, Ins("    s_nop %d" % (df-1)))
                total_nops += 1; changed = True
                break
        if changed: continue
    return [x.text for x in ins], total_nops

def fix_hazards_fast(lines, verbose=False):
    ins = [Ins(l) for l in lines]
    total = 0
    for it in range(50):
        labels = {x.label: i for i, x in enumerate(ins) if x.label}
        br_to = {}
        for i, x in enumerate(ins):
            if x.target in labels: br_to.setdefault(labels[x.target], []).append(i)
        out = []; inserted = 0
        def deficiency(ci):
            c = ins[ci]; worst = 0
            stack = [(ci-1, extra.get(ci, 0))]; seen = set()
            while stack:
                i, d = stack.pop()
                while i >= 0 and d < MAXD:
                    if (i, d) in seen: break
                    seen.add((i, d))
                    x = ins[i]
                    if x.kind == "label":
                        for b in br_to.get(i, []): stack.append((b, d))
                        j = i-1
                        while j >= 0 and ins[j].kind in ("none", "label"): j -= 1
                        if j >= 0 and ins[j].mn in ("s_branch", "s_endpgm"): break
                        i -= 1; continue
                    if x.kind == "none": i -= 1; continue
                    g = gap(x, c)
                    if g > d: worst = max(worst, g-d)
                    d += x.ws + extra.get(i, 0); i -= 1
            return worst
        extra = {}
        for ci, c in enumerate(ins):
            if c.kind in ("none", "label"): continue
            df = deficiency(ci)
            if df > 0:
                extra[ci] = extra.get(ci, 0) + df
                if verbose: print("hazard: +%d before: %s" % (df, c.text.strip()))
        if not extra: break
        new = []
        for i, x in enumerate(ins):
            if i in extra: new.append(Ins("    s_nop %d" % (extra[i]-1))); total += 1
            new.append(x)
        ins = new
    else:
        raise RuntimeError("hazard fixing did not converge")
    return [x.text for x in ins], total

WT_STORES = ()

class Kern:
    def __init__(self, name, vgprs, agprs=0, sgprs=102):
        self.name = name; self.L = []; self.vgprs = vgprs; self.agprs = agprs; self.sgprs = sgprs; self.nlab = 0
    def __call__(self, t):
        for l in t.split("\n"):
            l = l.strip()
            if not l: continue
            self.L.append(l if l.endswith(":") else "    " + l)
    def lab(self, base):
        self.nlab += 1; return "L_%s_%s%d" % (self.name.replace("_kernel", ""), base, self.nlab)
    def text(self, verbose=False):
        if WT_STORES:
            L = []
            for l in self.L:
                if any(l.strip().startswith(p) for p in WT_STORES) and " sc1" not in l: l = l + " sc1"
                L.append(l)
            self.L = L
        body, n = fix_hazards_fast(self.L, verbose)
        mv = ma = -1
        for l in body:
            x = Ins(l)
            for r in x.defs | x.uses:
                if r[0] == "v": mv = max(mv, r[1])
                if r[0] == "a": ma = max(ma, r[1])
                if r[0] == "s" and isinstance(r[1], int): assert r[1] < self.sgprs, l
        assert mv < self.vgprs, (self.name, mv, self.vgprs)
        assert ma < self.agprs or ma < 0, (self.name, ma, self.agprs)
        hdr = ".globl %s\n.p2align 8\n.type %s,@function\n%s:\n" % (self.name, self.name, self.name)
        self.stats = dict(n_ins=sum(1 for l in body if not l.endswith(":")), nops=n, maxv=mv, maxa=ma)
        return hdr + "\n".join(body) + "\n%s_codeend:\n" % self.name
    def desc(self):
        acc = (self.vgprs + 3)//4*4
        nfv = acc + self.agprs if self.agprs else self.vgprs
        return (".amdhsa_kernel %s\n  .amdhsa_next_free_vgpr %d\n  .amdhsa_next_free_sgpr %d\n  .amdhsa_accum_offset %d\n"
                "  .amdhsa_group_segment_fixed_size 0\n  .amdhsa_kernarg_size 96\n  .amdhsa_user_sgpr_count 2\n"
                "  .amdhsa_user_sgpr_kernarg_segment_ptr 1\n  .amdhsa_system_sgpr_workgroup_id_x 1\n"
                "  .amdhsa_float_denorm_mode_32 3\n.end_amdhsa_kernel\n") % (self.name, nfv, self.sgprs, acc)


def touch_code(k, name, nslices, lane="v0", vt=2, sp=84, dst=None, end=None):
    lab = k.lab("pc")
    dst = dst or v(vt+3)
    end = end or name + "_codeend"
    k(f"s_getpc_b64 {s(sp,2)}")
    k(f"{lab}:")
    k(f"s_add_u32 {s(sp)}, {s(sp)}, {name}-{lab}")
    k(f"s_addc_u32 {s(sp+1)}, {s(sp+1)}, 0")
    for i in range(nslices):
        k(f"v_lshlrev_b32 {v(vt)}, 7, {lane}")
        k(f"v_add_u32 {v(vt)}, {i*8192}, {v(vt)}")
        k(f"v_min_u32 {v(vt)}, {end}-{name}-4, {v(vt)}")
        k(f"v_mov_b32 {v(vt+1)}, {s(sp+1)}")
        k(f"v_add_co_u32 {v(vt)}, vcc, {s(sp)}, {v(vt)}")
        k(f"v_addc_co_u32 {v(vt+1)}, vcc, 0, {v(vt+1)}, vcc")
        k(f"global_load_dword {dst}, {v(vt,2)}, off")
```

```python
import sys, importlib
from asmgen import *
from layout import *
NAME = "adaLN_cond__mha_block__glu_gated_swiglu__prompt"
def header():
    return open("cdna_kernels/%s.s.ref" % NAME).read().split("; Override launch geometry")[0]
def add_timeline(k, idx):
    end = max(i for i, l in enumerate(k.L) if l.strip() == "s_endpgm")
    tail = f"""s_mov_b64 exec, -1
s_waitcnt vmcnt(0) lgkmcnt(0)
s_memrealtime s[98:99]
s_memtime s[88:89]
s_load_dwordx2 s[92:93], s[0:1], 88
s_waitcnt lgkmcnt(0)
s_sub_u32 s88, s88, s90
s_add_u32 s92, s92, {WS['AUX'] + 0x80000 + idx*4096}
s_addc_u32 s93, s93, 0
s_mov_b32 s94, 4096
s_mov_b32 s95, 0x20000
s_lshl_b32 s100, s2, 3
s_cmp_eq_u32 s32, 8
s_cselect_b32 s101, 32768, 0
s_add_u32 s100, s100, s101
s_mov_b32 s94, 65536
v_mov_b32 v0, s100
v_mov_b32 v1, s96
v_mov_b32 v2, s98
v_cmp_eq_u32 vcc, 0, v3
s_mov_b64 exec, 1
buffer_atomic_umin v1, v0, s[92:95], 0 offen
buffer_atomic_umax v2, v0, s[92:95], 0 offen offset:4
s_lshl_b32 s100, s2, 2
s_add_u32 s100, s100, {0x10000 - idx*4096 + idx*2048}
s_mov_b32 s94, 0x20000
v_mov_b32 v0, s100
v_mov_b32 v1, s88
s_nop 4
buffer_atomic_umax v1, v0, s[92:95], 0 offen
s_endpgm""".split("\n")
    tail = [t for t in tail if not t.startswith("v_cmp")]
    k.L[end:end+1] = ["    " + t for t in tail]
    k.L.insert(0, "    s_memrealtime s[96:97]")
    k.L.insert(0, "    s_memtime s[90:91]")

def build(gens, path, timeline=False):
    ks = [g() for g in gens]
    if timeline:
        for i, (k, _) in enumerate(ks): add_timeline(k, i)
    txt = header()
    for k, (grid, block, lds) in ks:
        txt += "; @launch kernel=%s grid=(%d,1,1) block=(%d,1,1) lds=%d\n" % (k.name, grid, block, lds)
    txt += '.amdgcn_target "amdgcn-amd-amdhsa--gfx950"\n.text\n'
    seen = set()
    for k, _ in ks:
        if k.name in seen: continue
        seen.add(k.name); txt += k.text()
    txt += '.section .rodata,"a"\n'
    seen = set()
    for k, _ in ks:
        if k.name in seen: continue
        seen.add(k.name); txt += ".p2align 6\n" + k.desc()
    open(path, "w").write(txt)
    return [(k.name, g) for k, g in ks], {k.name: k.stats for k, _ in ks if hasattr(k, 'stats')}

def check(gens, path="_chk.s"):
    import subprocess, sys
    r = build(gens, path)
    sys.path.insert(0, "cdna_kernels")
    from cdna_launch import with_harness_metadata, launch_list_of, address_register_problem, launch_list_kernel_names
    asm = open(path).read()
    open(path + ".h.s", "w").write(with_harness_metadata(asm, "x", 12, launch_lists=True))
    p = subprocess.run(["clang", "-x", "assembler", "-target", "amdgcn-amd-amdhsa", "-mcpu=gfx950", path + ".h.s", "-o", path + ".co"], capture_output=True, text=True)
    if p.returncode: print(p.stderr[:1500]); raise SystemExit("ASSEMBLE FAILED")
    pr = address_register_problem(path + ".co", "x", launch_list_kernel_names(launch_list_of(asm, True)))
    print("OK" if pr is None else pr, r[1])
```

```python
from asmgen import *
from layout import *
from k_g1 import srd, spread

def gen_att(stamps=False, helper=False, dbg='', order=1, touch_on=False, prefetch=None, alg=True, pol=' sc1'):
    k = Kern("att_kernel", vgprs=140)
    sWS = 4
    rKV, rQM, rQR, rOM, rOR = 8, 12, 16, 20, 24
    sw, sh, sqt, stmp, stmp2, spass, sloop, snmax, skv = range(32, 41)
    soff = 44
    sstr = 49
    vl16, vK, vKR, vV, vt0, vt1, vom, vor = 1, 2, 3, 4, 5, 6, 7, 8
    QM, NEG, S0, S1, P, O = 12, 20, 36, 52, 68, 76
    KM = [92, 96]; KR = [100, 104]; VF = [108, 116]; QRJ = [124, 128, 132, 136]; QR = 16
    S = [S0, S1]
    k("s_cmp_ge_u32 s2, 256\ns_cbranch_scc1 L_att_end")
    k(f"s_load_dwordx2 {s(sWS,2)}, s[0:1], {KA['ws']}")
    if stamps: k("s_memtime s[60:61]\ns_memrealtime s[62:63]")
    k("v_lshrrev_b32 v9, 6, v0\nv_and_b32 v0, 63, v0")
    k(f"v_readfirstlane_b32 {s(sw)}, v9")
    k(f"v_lshlrev_b32 {v(vl16)}, 4, v0")
    if helper: k(f"s_cmp_eq_u32 {s(sw)}, 8\ns_cbranch_scc1 L_att_helper")
    k(f"s_and_b32 {s(stmp)}, s2, 7\ns_lshl_b32 {s(sh)}, {s(stmp)}, 2\ns_lshr_b32 {s(stmp)}, s2, 3\ns_and_b32 {s(stmp)}, {s(stmp)}, 3\ns_add_u32 {s(sh)}, {s(sh)}, {s(stmp)}")
    k(f"s_lshr_b32 {s(sqt)}, s2, 5\ns_lshl_b32 {s(sqt)}, {s(sqt)}, 3\ns_add_u32 {s(sqt)}, {s(sqt)}, {s(sw)}")
    k(f"s_mul_i32 {s(skv)}, {s(sh)}, {KV_STRIDE}")
    for e in range(5):
        n = stmp
        k(f"s_add_u32 {s(n)}, {s(sw)}, {8*e}\ns_min_u32 {s(n)}, {s(n)}, 36")
        k(f"s_lshl_b32 {s(stmp2)}, {s(n)}, 10")
        k(f"s_add_u32 {s(soff+e)}, {s(stmp2)}, {73728-18*1024}\ns_mov_b32 {s(sstr+e)}, 19456")
        k(f"s_cmp_lt_u32 {s(n)}, 18")
        k(f"s_cselect_b32 {s(sstr+e)}, 2048, {s(sstr+e)}")
        k(f"s_add_u32 s54, {s(stmp2)}, {65536-16*1024}")
        k(f"s_cmp_lt_u32 {s(n)}, 18\ns_cselect_b32 {s(soff+e)}, s54, {s(soff+e)}")
        k(f"s_cmp_lt_u32 {s(n)}, 16\ns_cselect_b32 {s(soff+e)}, {s(stmp2)}, {s(soff+e)}\ns_cselect_b32 {s(sstr+e)}, 16384, {s(sstr+e)}")
    k(f"v_mov_b32 {v(vK)}, {v(vl16)}")
    k(f"v_and_b32 v9, 31, v0\nv_lshlrev_b32 {v(vKR)}, 4, v9\nv_add_u32 {v(vKR)}, 65536, {v(vKR)}")
    k("v_mov_b32 v10, 4\nv_mov_b32 v11, 0")
    k("v_cmp_gt_u32 vcc, 20, v9\nv_cndmask_b32 v11, v11, v10, vcc")
    k("v_cmp_lt_u32 vcc, 27, v9\nv_cndmask_b32 v11, v11, v10, vcc")
    k("v_cmp_gt_u32 vcc, 19, v9\nv_cndmask_b32 v11, v11, v9, vcc")
    k(f"v_lshrrev_b32 v10, 5, v0\nv_mul_u32_u24 v10, 19, v10\nv_add_u32 v11, v11, v10\nv_lshlrev_b32 {v(vV)}, 4, v11\nv_add_u32 {v(vV)}, 73728, {v(vV)}")
    if True:
        k(f"v_cmp_gt_u32 vcc, 19, v9\nv_mov_b32 v10, 0x30000\nv_cndmask_b32 {v(vV)}, v10, {v(vV)}, vcc")
    k(f"v_lshlrev_b32 {v(vt0)}, 2, v9\nv_mov_b32 v10, 0x7fffffff\nv_cmp_gt_u32 vcc, 32, v0\nv_cndmask_b32 {v(vt1)}, v10, {v(vt0)}, vcc")
    k(f"v_mov_b32 {v(vor)}, {v(vt1)}")
    k(f"v_lshlrev_b32 {v(vom)}, 4, v9\nv_lshrrev_b32 v10, 5, v0\nv_lshlrev_b32 v10, 15, v10\nv_add_u32 {v(vom)}, {v(vom)}, v10")
    k("s_waitcnt lgkmcnt(0)")
    srd(k, rKV, sWS, WS["KV"], WS["KV_SZ"]); srd(k, rQM, sWS, WS["QM"], WS["QM_SZ"]); srd(k, rQR, sWS, WS["QR"], WS["QR_SZ"])
    srd(k, rOM, sWS, WS["OM"], WS["OM_SZ"]); srd(k, rOR, sWS, WS["OR"], WS["OR_SZ"])
    k(f"s_lshl_b32 {s(stmp)}, {s(sh)}, 6\ns_add_u32 {s(stmp)}, {s(stmp)}, {s(sqt)}")
    k(f"s_lshl_b32 {s(stmp2)}, {s(stmp)}, 10")
    k(f"buffer_load_dwordx4 {v(QM,4)}, {v(vl16)}, {s(rQM,4)}, {s(stmp2)} offen")
    k(f"s_lshl_b32 {s(stmp2)}, {s(stmp)}, 7")
    k(f"buffer_load_dword {v(QR)}, {v(vt1)}, {s(rQR,4)}, {s(stmp2)} offen")
    for seg in range(4):
        for e in range(5):
            k(f"s_mov_b32 m0, {s(soff+e)}\ns_add_u32 {s(stmp2)}, {s(skv)}, {s(soff+e)}")
            k(f"buffer_load_dwordx4 {v(vl16)}, {s(rKV,4)}, {s(stmp2)} offen lds")
            if seg < 3: k(f"s_add_u32 {s(soff+e)}, {s(soff+e)}, {s(sstr+e)}")
    for j in range(4):
        for e in range(4):
            if e != j: k(f"v_mov_b32 {v(QRJ[j]+e)}, 0")
    k(f"s_mov_b32 {s(spass)}, 0\ns_mov_b32 {s(snmax)}, 1")
    k("s_waitcnt vmcnt(20)")
    for j in range(4): k(f"v_mov_b32 {v(QRJ[j]+j)}, {v(QR)}")
    k("s_waitcnt vmcnt(15)\ns_barrier")
    if stamps: k("s_memtime s[64:65]")
    def mf(d, a_, b_, c_, tag=''):
        if tag and tag in dbg: return
        k(f"v_mfma_f32_32x32x16_bf16 {v(d,16)}, {v(a_,4)}, {v(b_,4)}, {c_}")
    k("L_att_max:")
    k(f"v_mov_b32 {v(vt0)}, 0xff800000\ns_mov_b32 {s(sloop)}, 0")
    k("L_att_maxloop:")
    k(f"ds_read_b128 {v(KR[0],4)}, {v(vKR)}")
    for j in range(4):
        k(f"ds_read_b128 {v(KM[0],4)}, {v(vK)} offset:{j*1024}")
        k("s_waitcnt lgkmcnt(0)")
        mf(S0, KM[0], QM, "0"); mf(S0, KR[0], QRJ[j], v(S0,16))
        for i in range(8): k(f"v_max3_f32 {v(vt0)}, {v(vt0)}, {v(S0+2*i)}, {v(S0+2*i+1)}")
        if j == 0: k(f"s_cmp_eq_u32 {s(spass)}, 0\ns_cbranch_scc1 L_att_maxdone")
    k(f"v_add_u32 {v(vK)}, 4096, {v(vK)}\nv_add_u32 {v(vKR)}, 512, {v(vKR)}")
    k(f"s_add_u32 {s(sloop)}, {s(sloop)}, 1\ns_cmp_lt_u32 {s(sloop)}, {s(snmax)}\ns_cbranch_scc1 L_att_maxloop")
    k("L_att_maxdone:")
    k(f"v_mov_b32 {v(vt1)}, {v(vt0)}")
    k(f"v_permlane32_swap_b32 {v(vt0)}, {v(vt1)}")
    k(f"v_max_f32 {v(vt0)}, {v(vt0)}, {v(vt1)}")
    for i in range(16): k(f"v_sub_f32 {v(NEG+i)}, 0, {v(vt0)}")
    k(f"v_mov_b32 {v(vK)}, {v(vl16)}\nv_and_b32 v9, 31, v0\nv_lshlrev_b32 {v(vKR)}, 4, v9\nv_add_u32 {v(vKR)}, 65536, {v(vKR)}")
    for i in range(16): k(f"v_mov_b32 {v(O+i)}, 0")
    k(f"ds_read_b128 {v(KR[0],4)}, {v(vKR)}\nds_read_b128 {v(KM[0],4)}, {v(vK)}")
    k(f"ds_read_b128 {v(KM[1],4)}, {v(vK)} offset:1024")
    k(f"ds_read_b128 {v(VF[0],4)}, {v(vV)}\nds_read_b128 {v(VF[0]+4,4)}, {v(vV)} offset:608")
    k("s_waitcnt lgkmcnt(3)")
    mf(S0, KM[0], QM, v(NEG,16)); mf(S0, KR[0], QRJ[0], v(S0,16))
    for i in range(8): k(f"v_mov_b32 {v(P+i)}, 0")
    for i in range(8): k(f"v_mov_b32 {v(VF[1]+i)}, 0")
    k(f"s_mov_b32 {s(sloop)}, 0")
    k("L_att_loop:")
    k(f"s_cmp_eq_u32 {s(sloop)}, 1\ns_cbranch_scc0 L_att_nobar")
    k(f"s_cmp_eq_u32 {s(spass)}, 0\ns_cbranch_scc0 L_att_nobar")
    k("s_waitcnt vmcnt(0)\ns_barrier")
    k("L_att_nobar:")
    ex = lambda r: None if 'E' in dbg else k(f"v_exp_f32 {v(r)}, {v(r)}")
    cv = lambda i, sa: k(f"v_cvt_pk_bf16_f32 {v(P+i)}, {v(sa+2*i)}, {v(sa+2*i+1)}")
    for t in range(8):
        sa = S[t % 2]; sb = S[1 - t % 2]; b = t % 2; nb = 1 - b
        g1 = ((t+1) >> 2) & 1; j1 = (t+1) & 3
        rdkr = (t % 4 == 1)
        k("s_waitcnt lgkmcnt(2)")
        mf(sb, KM[nb], QM, v(NEG,16), 'Q')
        k(f"ds_read_b128 {v(KM[b],4)}, {v(vK)} offset:{(t+2)*1024}")
        ex(sa+0); ex(sa+1); ex(sa+2); ex(sa+3); cv(0, sa); cv(1, sa)
        mf(O, VF[nb]+4, P+4, v(O,16), 'V')
        if rdkr: k(f"ds_read_b128 {v(KR[((t>>2)+1) & 1],4)}, {v(vKR)} offset:{((t>>2)+1)*512}")
        ex(sa+4); ex(sa+5); ex(sa+6); ex(sa+7); cv(2, sa); cv(3, sa)
        mf(sb, KR[g1], QRJ[j1], v(sb,16), 'Q')
        k(f"ds_read_b128 {v(VF[nb],4)}, {v(vV)} offset:{(2*t+2)*608}")
        ex(sa+8); ex(sa+9); ex(sa+10); ex(sa+11); cv(4, sa); cv(5, sa)
        k(f"s_waitcnt lgkmcnt({4 if rdkr else 3})")
        mf(O, VF[b], P, v(O,16), 'V')
        k(f"ds_read_b128 {v(VF[nb]+4,4)}, {v(vV)} offset:{(2*t+3)*608}")
        ex(sa+12); ex(sa+13); ex(sa+14); ex(sa+15); cv(6, sa); cv(7, sa)
    k(f"v_add_u32 {v(vK)}, 8192, {v(vK)}\nv_add_u32 {v(vKR)}, 1024, {v(vKR)}\nv_add_u32 {v(vV)}, {16*608}, {v(vV)}")
    k(f"s_add_u32 {s(sloop)}, {s(sloop)}, 1\ns_cmp_lt_u32 {s(sloop)}, 8\ns_cbranch_scc1 L_att_loop")
    k("s_waitcnt lgkmcnt(0)")
    mf(O, VF[1]+4, P+4, v(O,16))
    k("s_waitcnt lgkmcnt(0)")
    if stamps: k("s_memtime s[66:67]")
    k(f"v_mov_b32 {v(vt0)}, {v(O+10)}\nv_mov_b32 {v(vt1)}, {v(O+10)}")
    k(f"v_permlane32_swap_b32 {v(vt0)}, {v(vt1)}")
    k(f"s_cmp_eq_u32 {s(spass)}, {1 if dbg else 0}\ns_cbranch_scc0 L_att_fin")
    k(f"v_mov_b32 {v(vt1)}, 0x5f800000")
    k(f"v_cmp_nlt_f32 vcc, {v(vt0)}, {v(vt1)}")
    k("s_nop 1\ns_cmp_eq_u64 vcc, 0\ns_cbranch_scc1 L_att_fin")
    k(f"s_mov_b32 {s(spass)}, 1\ns_mov_b32 {s(snmax)}, 16")
    k(f"v_mov_b32 {v(vK)}, {v(vl16)}\nv_and_b32 v9, 31, v0\nv_lshlrev_b32 {v(vKR)}, 4, v9\nv_add_u32 {v(vKR)}, 65536, {v(vKR)}")
    k(f"v_subrev_u32 {v(vV)}, {8*16*608}, {v(vV)}")
    k("s_branch L_att_max")
    k("L_att_fin:")
    k(f"v_rcp_f32 {v(vt0)}, {v(vt0)}")
    k("s_nop 0")
    for i in range(10): k(f"v_mul_f32 {v(O+i)}, {v(O+i)}, {v(vt0)}")
    for i in range(5): k(f"v_cvt_pk_bf16_f32 {v(P+i)}, {v(O+2*i)}, {v(O+2*i+1)}")
    k(f"s_lshl_b32 {s(stmp)}, {s(sh)}, 6\ns_add_u32 {s(stmp)}, {s(stmp)}, {s(sqt)}")
    k(f"s_lshl_b32 {s(stmp2)}, {s(sh)}, 16\ns_lshl_b32 s54, {s(sqt)}, 9\ns_add_u32 {s(stmp2)}, {s(stmp2)}, s54")
    k(f"buffer_store_dwordx4 {v(P,4)}, {v(vom)}, {s(rOM,4)}, {s(stmp2)} offen")
    k(f"s_lshl_b32 {s(stmp2)}, {s(stmp)}, 7")
    k(f"buffer_store_dword {v(P+4)}, {v(vor)}, {s(rOR,4)}, {s(stmp2)} offen")
    if stamps:
        k("s_waitcnt vmcnt(0)\ns_memtime s[68:69]\ns_memrealtime s[70:71]\ns_waitcnt lgkmcnt(0)")
        srd(k, 24, sWS, WS["AUX"], WS["AUX_SZ"])
        k(f"s_lshl_b32 {s(stmp)}, s2, 3\ns_add_u32 {s(stmp)}, {s(stmp)}, {s(sw)}\ns_lshl_b32 {s(stmp)}, {s(stmp)}, 6\nv_mov_b32 v9, {s(stmp)}")
        for i, (x, y) in enumerate(((64,60),(66,60),(68,60),(70,62))):
            k(f"s_sub_u32 s72, s{x}, s{y}\nv_mov_b32 v10, s72\nbuffer_store_dword v10, v9, s[24:27], 0 offen offset:{4*i}")
        k(f"v_mov_b32 v10, s62\nbuffer_store_dword v10, v9, s[24:27], 0 offen offset:16")
        k(f"v_mov_b32 v10, {s(spass)}\nbuffer_store_dword v10, v9, s[24:27], 0 offen offset:20")
    if helper:
        k("s_branch L_att_end")
        if alg:
            from k_help import gen_helper2
            gen_helper2(k, prefetch, pol)
        else:
            gen_helper(k, touch_on, prefetch)
    k("L_att_end:\ns_endpgm")
    return k, (256, 576 if helper else 512, 163840 if helper else 151552 + 4096)


def gen_helper(k, touch_on=True, prefetch=None):
    HL = 151552
    sWS = 4; sW1, sW3, sW2 = 6, 8, 10
    rW1, rW3, rW2, rD13, rD2, rS = 12, 16, 20, 24, 28, 44
    sb, sm, sr, sks, slg, ssrc, sdst, sstr, stmp, sdstep = range(48, 58)
    rD = 64
    v13, v2s, vsrc, vrd = 2, 3, 4, 5
    R = 12
    k("L_att_helper:")
    k(f"s_load_dwordx2 {s(sW1,2)}, s[0:1], {KA['w1']}\ns_load_dwordx2 {s(sW3,2)}, s[0:1], {KA['w3']}\ns_load_dwordx2 {s(sW2,2)}, s[0:1], {KA['w2']}")
    k("v_lshrrev_b32 v9, 3, v0\nv_and_b32 v10, 7, v0\nv_lshrrev_b32 v11, 1, v10\nv_bfe_u32 v12, v0, 4, 2\nv_xor_b32 v11, v11, v12\nv_lshlrev_b32 v11, 5, v11\nv_and_b32 v10, 1, v10\nv_lshlrev_b32 v10, 4, v10\nv_add_u32 v10, v10, v11")
    k(f"v_mul_u32_u24 {v(v13)}, 9216, v9\nv_add_u32 {v(v13)}, {v(v13)}, v10\nv_mul_u32_u24 {v(v2s)}, 1152, v9\nv_add_u32 {v(v2s)}, {v(v2s)}, v10")
    k("v_lshrrev_b32 v9, 2, v0\nv_lshlrev_b32 v9, 7, v9\nv_and_b32 v10, 3, v0\nv_lshlrev_b32 v10, 3, v10\nv_add_u32 v9, v9, v10\nv_bfe_u32 v10, v0, 3, 2")
    for ct in range(4): k(f"v_xor_b32 v11, {ct}, v10\nv_lshlrev_b32 v11, 5, v11\nv_add_u32 v11, v11, v9\nv_add_u32 {v(vrd+ct)}, {HL}, v11")
    k("s_waitcnt lgkmcnt(0)")
    srd(k, rW1, sW1, 0, 576*9216); srd(k, rW3, sW3, 0, 576*9216); srd(k, rW2, sW2, 0, 4608*1152)
    srd(k, rD13, sWS, WS["W13F"], WS["W13F_SZ"]); srd(k, rD2, sWS, WS["W2F"], WS["W2F_SZ"])
    vm = []
    NBLK = 16
    def decode(n):
        k(f"s_add_u32 {s(sb)}, s2, {256*n}")
        k(f"s_cmp_ge_u32 {s(sb)}, 2592\ns_cbranch_scc1 L_att_h2_{n}")
        k(f"s_cmp_ge_u32 {s(sb)}, 1296\ns_cselect_b32 {s(sm)}, 1, 0\ns_cselect_b32 {s(rS)}, {s(sW3)}, {s(sW1)}\ns_cselect_b32 {s(rS+1)}, {s(sW3+1)}, {s(sW1+1)}")
        k(f"s_mov_b32 {s(rS+2)}, {576*9216}\ns_mov_b32 {s(rS+3)}, 0x20000")
        k(f"s_mul_i32 {s(stmp)}, {s(sm)}, 1296\ns_sub_u32 {s(sr)}, {s(sb)}, {s(stmp)}")
        k(f"s_mul_i32 {s(sks)}, {s(sr)}, 3641\ns_lshr_b32 {s(sks)}, {s(sks)}, 18\ns_mul_i32 {s(stmp)}, {s(sks)}, 72\ns_sub_u32 {s(slg)}, {s(sr)}, {s(stmp)}")
        k(f"s_mul_i32 {s(ssrc)}, {s(sks)}, {32*9216}\ns_lshl_b32 {s(stmp)}, {s(slg)}, 7\ns_add_u32 {s(ssrc)}, {s(ssrc)}, {s(stmp)}\ns_mov_b32 {s(sstr)}, {8*9216}")
        k(f"s_mul_i32 {s(sdst)}, {s(slg)}, {4*36864}\ns_lshl_b32 {s(stmp)}, {s(sks)}, 11\ns_add_u32 {s(sdst)}, {s(sdst)}, {s(stmp)}\ns_lshl_b32 {s(stmp)}, {s(sm)}, 10\ns_add_u32 {s(sdst)}, {s(sdst)}, {s(stmp)}\ns_mov_b32 {s(sdstep)}, 36864")
        k(f"v_mov_b32 {v(vsrc)}, {v(v13)}")
        k(f"s_branch L_att_h3_{n}")
        k(f"L_att_h2_{n}:")
        k(f"s_mov_b32 {s(rS)}, {s(sW2)}\ns_mov_b32 {s(rS+1)}, {s(sW2+1)}\ns_mov_b32 {s(rS+2)}, {4608*1152}\ns_mov_b32 {s(rS+3)}, 0x20000")
        k(f"s_sub_u32 {s(sr)}, {s(sb)}, 2592\ns_mul_i32 {s(sks)}, {s(sr)}, 7282\ns_lshr_b32 {s(sks)}, {s(sks)}, 16\ns_mul_i32 {s(stmp)}, {s(sks)}, 9\ns_sub_u32 {s(slg)}, {s(sr)}, {s(stmp)}")
        k(f"s_mul_i32 {s(ssrc)}, {s(sks)}, {32*1152}\ns_lshl_b32 {s(stmp)}, {s(slg)}, 7\ns_add_u32 {s(ssrc)}, {s(ssrc)}, {s(stmp)}\ns_mov_b32 {s(sstr)}, {8*1152}")
        k(f"s_mul_i32 {s(sdst)}, {s(sks)}, {36*1024}\ns_lshl_b32 {s(stmp)}, {s(slg)}, 12\ns_add_u32 {s(sdst)}, {s(sdst)}, {s(stmp)}\ns_mov_b32 {s(sdstep)}, 1024")
        k(f"s_add_u32 {s(sdst)}, {s(sdst)}, 0x80000000")
        k(f"v_mov_b32 {v(vsrc)}, {v(v2s)}")
        k(f"L_att_h3_{n}:")
        k(f"s_mov_b32 {s(68 + 2*(n % 4))}, {s(sdst)}\ns_mov_b32 {s(69 + 2*(n % 4))}, {s(sdstep)}")
    def dma(n):
        decode(n)
        for i in range(4):
            k(f"s_mov_b32 m0, {HL + (n % 3)*4096 + i*1024}\ns_nop 0\nbuffer_load_dwordx4 {v(vsrc)}, {s(rS,4)}, {s(ssrc)} offen lds")
            vm.append(('D', n))
            if i < 3: k(f"s_add_u32 {s(ssrc)}, {s(ssrc)}, {s(sstr)}")
    def proc(n):
        idx = [i for i, t in enumerate(vm) if t == ('D', n)]
        k(f"s_waitcnt vmcnt({len(vm) - 1 - max(idx)})")
        o = (n % 3)*4096
        for ct in range(4):
            k(f"ds_read_b64_tr_b16 {v(R+4*ct,2)}, {v(vrd+ct)} offset:{o}\nds_read_b64_tr_b16 {v(R+4*ct+2,2)}, {v(vrd+ct)} offset:{o+2048}")
        k("s_waitcnt lgkmcnt(0)")
    def stores(n):
        d, st = 68 + 2*(n % 4), 69 + 2*(n % 4)
        k(f"s_bitcmp1_b32 {s(d)}, 31")
        k(f"s_cselect_b32 {s(rD)}, {s(rD2)}, {s(rD13)}\ns_cselect_b32 {s(rD+1)}, {s(rD2+1)}, {s(rD13+1)}\ns_cselect_b32 {s(rD+2)}, {s(rD2+2)}, {s(rD13+2)}\ns_mov_b32 {s(rD+3)}, 0x20000")
        k(f"s_and_b32 {s(stmp)}, {s(d)}, 0x7fffffff")
        for ct in range(4):
            k(f"buffer_store_dwordx4 {v(R+4*ct,4)}, {v(vl16)}, {s(rD,4)}, {s(stmp)} offen sc1")
            vm.append(('S', n))
            if ct < 3: k(f"s_add_u32 {s(stmp)}, {s(stmp)}, {s(st)}")
    vl16 = 1
    k("s_barrier")
    k("v_and_b32 v9, 31, v0\nv_mul_u32_u24 v10, 9216, v9\nv_mul_u32_u24 v11, 1152, v9")
    def touch(n):
        k(f"s_add_u32 {s(sb)}, s2, {256*n}")
        if n == 15: k(f"s_cmp_lt_u32 s2, 48\ns_cbranch_scc0 L_att_t_done")
        k(f"s_cmp_ge_u32 {s(sb)}, 2592\ns_cbranch_scc1 L_att_t2_{n}")
        k(f"s_cmp_ge_u32 {s(sb)}, 1296\ns_cselect_b32 {s(sm)}, 1, 0\ns_cselect_b32 {s(rS)}, {s(sW3)}, {s(sW1)}\ns_cselect_b32 {s(rS+1)}, {s(sW3+1)}, {s(sW1+1)}")
        k(f"s_mov_b32 {s(rS+2)}, {576*9216}\ns_mov_b32 {s(rS+3)}, 0x20000")
        k(f"s_mul_i32 {s(stmp)}, {s(sm)}, 1296\ns_sub_u32 {s(sr)}, {s(sb)}, {s(stmp)}")
        k(f"s_mul_i32 {s(sks)}, {s(sr)}, 3641\ns_lshr_b32 {s(sks)}, {s(sks)}, 18\ns_mul_i32 {s(stmp)}, {s(sks)}, 72\ns_sub_u32 {s(slg)}, {s(sr)}, {s(stmp)}")
        k(f"s_mul_i32 {s(ssrc)}, {s(sks)}, {32*9216}\ns_lshl_b32 {s(stmp)}, {s(slg)}, 7\ns_add_u32 {s(ssrc)}, {s(ssrc)}, {s(stmp)}")
        k(f"buffer_load_dword v40, v10, {s(rS,4)}, {s(ssrc)} offen")
        k(f"s_branch L_att_t3_{n}")
        k(f"L_att_t2_{n}:")
        k(f"s_sub_u32 {s(sr)}, {s(sb)}, 2592\ns_mul_i32 {s(sks)}, {s(sr)}, 7282\ns_lshr_b32 {s(sks)}, {s(sks)}, 16\ns_mul_i32 {s(stmp)}, {s(sks)}, 9\ns_sub_u32 {s(slg)}, {s(sr)}, {s(stmp)}")
        k(f"s_mul_i32 {s(ssrc)}, {s(sks)}, {32*1152}\ns_lshl_b32 {s(stmp)}, {s(slg)}, 7\ns_add_u32 {s(ssrc)}, {s(ssrc)}, {s(stmp)}")
        k(f"buffer_load_dword v40, v11, {s(rW2,4)}, {s(ssrc)} offen")
        k(f"L_att_t3_{n}:")
    if touch_on:
        for n in range(3, 16): touch(n)
        k("L_att_t_done:")
        k("s_nop 0")
    for n in range(3): dma(n)
    k("s_barrier")
    for n in range(15):
        proc(n)
        if n + 3 < 15: dma(n+3)
        stores(n)
        if n == 2 and prefetch:
            k("s_cmp_lt_u32 s2, 8\ns_cbranch_scc0 L_att_nopf")
            for nm, ns in prefetch: touch_code(k, nm, ns, vt=42)
            k("L_att_nopf:")
            k("s_nop 0")
    k(f"s_cmp_lt_u32 s2, 48\ns_cbranch_scc0 L_att_end")
    k("s_waitcnt vmcnt(0)")
    vm.clear()
    dma(15); proc(15); stores(15)
```

```python
from asmgen import *
from layout import *
from k_g1 import srd

def gen_g1(stamps=False, PDS=3, cap=11, wt_upto=6, prefetch=None, alg=True):
    NK = 19 if alg else 18
    US = NK*2048
    k = Kern("g1_kernel", vgprs=(248 if alg else 220), agprs=256)
    B19, VA, VS2, PFV = 216, 232, 236, 240
    sWS = 4
    rW, rH2, rHH = 12, 16, 20
    sw, srb, sg, stmp, stmp2, snl2e, sst, sw01s, sw01d, sw23s, sw23d, sfs, sfd, su8, sh0 = range(32, 47)
    sx = 48
    sso = 47
    vl16, vS, vst2 = 1, 2, 6
    XV, RING, ACC, OUT, TMP = 8, 40, 64, 192, 208
    def xr(t, ks):
        if ks == 18: return v(B19 + 4*t, 4)
        i = (ks*4 + t)*4
        return a(i, 4) if i < 256 else v(XV + i - 256, 4)
    k("s_cmp_ge_u32 s2, 256\ns_cbranch_scc1 L_g1_end")
    k(f"s_load_dwordx2 {s(sWS,2)}, s[0:1], {KA['ws']}")
    if stamps: k("s_memtime s[60:61]\ns_memrealtime s[62:63]")
    k(f"v_lshrrev_b32 v8, 6, v0\nv_and_b32 v0, 63, v0\nv_readfirstlane_b32 {s(sw)}, v8\nv_lshlrev_b32 {v(vl16)}, 4, v0")
    for i in range(4): k(f"v_add_u32 {v(vS+i)}, {i*US}, {v(vl16)}")
    k(f"s_and_b32 {s(stmp)}, s2, 1\ns_lshl_b32 {s(srb)}, {s(stmp)}, 2\ns_lshr_b32 {s(stmp)}, s2, 6\ns_add_u32 {s(srb)}, {s(srb)}, {s(stmp)}")
    k(f"s_lshr_b32 {s(sg)}, s2, 1\ns_and_b32 {s(sg)}, {s(sg)}, 3\ns_lshl_b32 {s(sg)}, {s(sg)}, 3\ns_lshr_b32 {s(stmp)}, s2, 3\ns_and_b32 {s(stmp)}, {s(stmp)}, 7\ns_add_u32 {s(sg)}, {s(sg)}, {s(stmp)}")
    k(f"s_lshl_b32 {s(stmp)}, {s(srb)}, 4\ns_lshl_b32 {s(stmp2)}, {s(sw)}, 2\ns_add_u32 {s(stmp)}, {s(stmp)}, {s(stmp2)}")
    k(f"s_mul_i32 {s(sx)}, {s(stmp)}, {18*1024}")
    for t in range(1, 4): k(f"s_add_u32 {s(sx+t)}, {s(sx)}, {t*18*1024}")
    k(f"s_mul_i32 {s(sh0)}, {s(stmp)}, {144*1024}")
    k(f"s_mul_i32 {s(sfs)}, {s(sg)}, {8*US}")
    k(f"s_add_u32 {s(su8)}, {s(sg)}, 256\ns_mul_i32 {s(su8)}, {s(su8)}, {US}")
    k(f"s_lshr_b32 {s(stmp)}, {s(sw)}, 1\ns_mul_i32 {s(stmp)}, {s(stmp)}, {US}\ns_and_b32 {s(stmp2)}, {s(sw)}, 1")
    k(f"s_lshl_b32 {s(sw01d)}, {s(stmp2)}, 11\ns_add_u32 {s(sw01d)}, {s(sw01d)}, {s(stmp)}\ns_add_u32 {s(sw01s)}, {s(sw01d)}, {s(sfs)}")
    k(f"s_lshl_b32 {s(sw23d)}, {s(stmp2)}, 10\ns_add_u32 {s(sw23d)}, {s(sw23d)}, {s(stmp)}\ns_add_u32 {s(sw23d)}, {s(sw23d)}, {2*US}\ns_add_u32 {s(sw23s)}, {s(sw23d)}, {s(sfs)}")
    if alg: k(f"s_mul_i32 {s(sfd)}, {s(sw)}, 10\ns_min_u32 {s(sfd)}, {s(sfd)}, 28\ns_lshl_b32 {s(sfd)}, {s(sfd)}, 10")
    else: k(f"s_mul_i32 {s(sfd)}, {s(sw)}, 9216")
    k(f"s_mov_b32 {s(snl2e)}, 0xbfb8aa3b")
    k(f"s_and_b32 {s(stmp)}, {s(sg)}, 1\ns_lshl_b32 {s(stmp)}, {s(stmp)}, 3\nv_add_u32 {v(vst2)}, {s(stmp)}, {v(vl16)}")
    k("s_waitcnt lgkmcnt(0)")
    srd(k, rW, sWS, WS["W13F"], WS["W13F_SZ"]); srd(k, rH2, sWS, WS["H2F"], WS["H2F_SZ"]); srd(k, rHH, sWS, WS["HHF"], WS["HHF_SZ"])
    rST = 24
    if alg: srd(k, rST, sWS, WS["STAT"], WS["STAT_SZ"])

    vm = []
    def emit(op):
        if isinstance(op, tuple): k(op[0]); vm.append(op[1])
        else: k(op)
    def wait(*tags):
        idx = [i for i, t in enumerate(vm) if t in tags]
        n = len(vm) - 1 - max(idx)
        k(f"s_waitcnt vmcnt({min(n, 63)})")
    def LG(c):
        ops = []
        for ks in (2*c, 2*c+1):
            for t in range(4):
                o = f"buffer_load_dwordx4 {xr(t,ks)}, {v(vl16)}, {s(rH2,4)}, {s(sx+t)} offen offset:{(ks & 3)*1024}"
                if ks & 3 == 3: o += f"\ns_add_u32 {s(sx+t)}, {s(sx+t)}, 4096"
                ops.append((o, ('L', c)))
        ops.append((f"s_mov_b32 m0, {s(sw01d)}\ns_nop 0\nbuffer_load_dwordx4 {v(vl16)}, {s(rW,4)}, {s(sw01s)} offen lds", ('L', c)))
        ops.append((f"buffer_load_dwordx4 {v(vl16)}, {s(rW,4)}, {s(sw01s)} offen offset:1024 lds\ns_add_u32 {s(sw01s)}, {s(sw01s)}, 4096\ns_add_u32 {s(sw01d)}, {s(sw01d)}, 4096", ('L', c)))
        ops.append((f"s_mov_b32 m0, {s(sw23d)}\ns_nop 0\nbuffer_load_dwordx4 {v(vl16)}, {s(rW,4)}, {s(sw23s)} offen lds\ns_add_u32 {s(sw23s)}, {s(sw23s)}, 2048\ns_add_u32 {s(sw23d)}, {s(sw23d)}, 2048", ('L', c)))
        return ops
    def dma9(srcbase_expr_setup, dst_setup, tag):
        NP = 10 if alg else 9
        ops = []
        for c in range(3):
            n = 4 if c < 2 else NP - 8
            for i in range(n):
                hd = ""
                if i == 0:
                    hd = (srcbase_expr_setup + "\n" + dst_setup + "\n" if c == 0 else f"s_add_u32 {s(sst)}, {s(sst)}, 4096\ns_add_u32 {s(stmp2)}, {s(stmp2)}, 4096\n") + f"s_mov_b32 m0, {s(stmp2)}\ns_nop 0\n"
                ops.append((hd + f"buffer_load_dwordx4 {v(vl16)}, {s(rW,4)}, {s(sst)} offen offset:{i*1024} lds", tag))
        return ops
    def W23rest():
        src = (f"s_lshr_b32 {s(stmp)}, {s(sw)}, 1\ns_add_u32 {s(stmp)}, {s(stmp)}, 2\ns_mul_i32 {s(stmp)}, {s(stmp)}, {US}\ns_and_b32 {s(stmp2)}, {s(sw)}, 1\ns_mul_i32 {s(stmp2)}, {s(stmp2)}, {10240 if alg else 9216}\n"
               f"s_add_u32 {s(stmp2)}, {s(stmp2)}, {s(stmp)}\ns_add_u32 {s(stmp2)}, {s(stmp2)}, 18432\ns_add_u32 {s(sst)}, {s(stmp2)}, {s(sfs)}")
        return dma9(src, "", ('R',))
    def LG9():
        return [(f"s_lshr_b32 {s(stmp)}, {s(sw)}, 1\ns_mul_i32 {s(stmp)}, {s(stmp)}, {US}\ns_and_b32 {s(stmp2)}, {s(sw)}, 1\ns_lshl_b32 {s(stmp2)}, {s(stmp2)}, 10\ns_add_u32 {s(stmp2)}, {s(stmp2)}, {s(stmp)}\n"
                 f"s_add_u32 {s(stmp2)}, {s(stmp2)}, {18*2048}\ns_add_u32 {s(sst)}, {s(stmp2)}, {s(sfs)}\ns_mov_b32 m0, {s(stmp2)}\ns_nop 0\nbuffer_load_dwordx4 {v(vl16)}, {s(rW,4)}, {s(sst)} offen lds", ('R',))]
    def UD(u):
        slot = u % 4
        if u < 8: src = f"s_add_u32 {s(sst)}, {s(sfs)}, {u*US}\ns_add_u32 {s(sst)}, {s(sst)}, {s(sfd)}"
        else: src = f"s_add_u32 {s(sst)}, {s(su8)}, {s(sfd)}"
        return dma9(src, f"s_add_u32 {s(stmp2)}, {s(sfd)}, {slot*US}", ('U', u))
    def fixdma(ops):
        return [(o.replace("\n\n", "\n"), t) for o, t in ops]

    steps = []
    for c in range(9): steps += [(0, 2*c), (1, 2*c), (2, c), (0, 2*c+1), (1, 2*c+1), (3, c)]
    if alg: steps += [(0, 18), (1, 18)]
    PA = len(steps)
    for kk in range(9, NK): steps += [(2, kk), (3, kk)]
    PB = len(steps)
    for u in range(4, 9): steps += [(u, ks) for ks in range(NK)]
    N = len(steps); assert N == 9*NK
    last_step = {u: max(i for i, (uu, _) in enumerate(steps) if uu == u) for u in range(9)}
    first_step = {u: min(i for i, (uu, _) in enumerate(steps) if uu == u) for u in range(9)}
    def reads(i):
        u, ks = steps[i]; slot = RING + 8*(i % 3); b = vS + (u % 4)
        return [f"ds_read_b128 {v(slot,4)}, {v(b)} offset:{ks*2048}", f"ds_read_b128 {v(slot+4,4)}, {v(b)} offset:{ks*2048+1024}"]
    def epi(u):
        X = ACC + 32*(u % 4); p = u % 2; ops = []
        g = lambda e: X + e; uu = lambda e: X + 16 + e
        for b in (0, 8):
            es = range(b, b+8); t = lambda e: TMP + e - b
            if alg: ops += [(f"v_mul_f32 {v(t(e))}, {v(VA + e//4)}, {v(g(e))}", 1) for e in es]
            else: ops += [(f"v_mul_f32 {v(t(e))}, {s(snl2e)}, {v(g(e))}", 1) for e in es]
            ops += [(f"v_exp_f32 {v(t(e))}, {v(t(e))}", 2) for e in es]
            ops += [(f"v_mul_f32 {v(uu(e))}, {v(g(e))}, {v(uu(e))}", 1) for e in es]
            if alg: ops += [(f"v_fma_f32 {v(t(e))}, {v(t(e))}, {v(VS2 + e//4)}, {v(VS2 + e//4)}", 1) for e in es]
            else: ops += [(f"v_add_f32 {v(t(e))}, 1.0, {v(t(e))}", 1) for e in es]
            ops += [(f"v_rcp_f32 {v(t(e))}, {v(t(e))}", 2) for e in es]
            ops += [(f"v_mul_f32 {v(uu(e))}, {v(uu(e))}, {v(t(e))}", 1) for e in es]
            for e in es:
                if e % 2 == 0:
                    tt = e // 4; h = (e % 4)//2
                    dst = OUT + 4*tt + (2*p if u < 8 else 0) + h
                    ops.append((f"v_cvt_pk_bf16_f32 {v(dst)}, {v(uu(e))}, {v(uu(e+1))}", 1))
        out = [(o, c, None) for o, c in ops]
        if u < 8 and p == 1:
            for tt in range(4):
                hd = (f"s_lshl_b32 {s(sso)}, {s(sg)}, 2\ns_add_u32 {s(sso)}, {s(sso)}, {u >> 1}\ns_lshl_b32 {s(sso)}, {s(sso)}, 10\ns_add_u32 {s(sso)}, {s(sso)}, {s(sh0)}\n" if tt == 0 else f"s_add_u32 {s(sso)}, {s(sso)}, {144*1024}\n")
                out.append((hd + f"buffer_store_dwordx4 {v(OUT+4*tt,4)}, {v(vl16)}, {s(rHH,4)}, {s(sso)} offen" + (" sc1" if u < wt_upto else ""), 2, ('S', u)))
        if u == 8:
            for tt in range(4):
                hd = (f"s_lshr_b32 {s(sso)}, {s(sg)}, 1\ns_add_u32 {s(sso)}, {s(sso)}, 128\ns_lshl_b32 {s(sso)}, {s(sso)}, 10\ns_add_u32 {s(sso)}, {s(sso)}, {s(sh0)}\n" if tt == 0 else f"s_add_u32 {s(sso)}, {s(sso)}, {144*1024}\n")
                out.append((hd + f"buffer_store_dwordx2 {v(OUT+4*tt,2)}, {v(vst2)}, {s(rHH,4)}, {s(sso)} offen", 2, ('S', u)))
        return out
    epiq = []
    done_units = set()
    def emit_epi(o):
        if o[4] is not None: k(o[2]); vm.append(o[4])
        else: k(o[2])
    if alg:
        k(f"v_lshrrev_b32 v8, 4, v0\nv_lshlrev_b32 v8, 14, v8\nv_and_b32 v9, 15, v0\nv_lshlrev_b32 v9, 3, v9\nv_add_u32 v8, v8, v9")
        k(f"v_add_u32 v9, {4*16384}, v8\nv_mov_b32 v10, 0x7fffffff\nv_cmp_gt_u32 vcc, 32, v0\nv_cndmask_b32 v9, v10, v9, vcc")
        k(f"s_lshl_b32 {s(stmp)}, {s(srb)}, 4\ns_lshl_b32 {s(stmp2)}, {s(sw)}, 2\ns_add_u32 {s(stmp)}, {s(stmp)}, {s(stmp2)}\ns_lshl_b32 {s(stmp)}, {s(stmp)}, 7")
        for t in range(4):
            emit((f"buffer_load_dwordx2 {v(ACC+4*t,2)}, v8, {s(rST,4)}, {s(stmp)} offen offset:{t*128}", ('T',)))
            emit((f"buffer_load_dwordx2 {v(ACC+4*t+2,2)}, v9, {s(rST,4)}, {s(stmp)} offen offset:{t*128}", ('T',)))
    for o in LG(0): emit(o)
    for c in range(1, PDS):
        for o in LG(c): emit(o)
    if alg:
        wait(('T',))
        for t in range(4):
            a0 = ACC + 4*t; m_, q_, tm = a0, a0+1, TMP
            k(f"v_add_f32 {v(m_)}, {v(a0)}, {v(a0+2)}\nv_add_f32 {v(q_)}, {v(a0+1)}, {v(a0+3)}")
            for r in (m_, q_):
                k(f"v_mov_b32 {v(tm)}, {v(r)}\nv_permlane32_swap_b32 {v(r)}, {v(tm)}\nv_add_f32 {v(r)}, {v(r)}, {v(tm)}\nv_mov_b32 {v(tm)}, {v(r)}\nv_permlane16_swap_b32 {v(r)}, {v(tm)}\nv_add_f32 {v(r)}, {v(r)}, {v(tm)}")
            k(f"v_mul_f32 {v(m_)}, 0x3ae38e39, {v(m_)}\nv_mul_f32 {v(q_)}, 0x3ae38e39, {v(q_)}")
            k(f"v_fma_f32 {v(q_)}, -{v(m_)}, {v(m_)}, {v(q_)}\nv_max_f32 {v(q_)}, 0, {v(q_)}\nv_add_f32 {v(VS2+t)}, 0x3727c5ac, {v(q_)}")
            k(f"v_rsq_f32 {v(tm)}, {v(VS2+t)}\ns_nop 0\nv_mul_f32 {v(VA+t)}, {s(snl2e)}, {v(tm)}\nv_mul_f32 {v(q_)}, {v(VS2+t)}, {v(tm)}")
            k(f"v_sub_f32 {v(m_)}, 0, {v(m_)}")
            k(f"v_cmp_gt_u32 vcc, 16, v0\nv_cndmask_b32 {v(m_)}, 0, {v(m_)}, vcc\nv_cndmask_b32 {v(q_)}, 0, {v(q_)}, vcc")
            b = B19 + 4*t
            k(f"v_cvt_pk_bf16_f32 {v(tm)}, {v(m_)}, {v(m_)}\nv_lshlrev_b32 {v(tm)}, 16, {v(tm)}\nv_sub_f32 {v(tm)}, {v(m_)}, {v(tm)}\nv_cvt_pk_bf16_f32 {v(b)}, {v(m_)}, {v(tm)}")
            k(f"v_cvt_pk_bf16_f32 {v(b+1)}, {v(m_)}, {v(q_)}")
            k(f"v_cvt_pk_bf16_f32 {v(tm)}, {v(q_)}, {v(q_)}\nv_lshlrev_b32 {v(tm)}, 16, {v(tm)}\nv_sub_f32 {v(tm)}, {v(q_)}, {v(tm)}\nv_cvt_pk_bf16_f32 {v(b+2)}, {v(tm)}, {v(q_)}\nv_mov_b32 {v(b+3)}, 0")
    wait(('L', 0)); k("s_barrier")
    if stamps: k("s_memtime s[64:65]")
    for o in reads(0) + reads(1): k(o)
    vq = []
    busy9 = [0]
    for i in range(N):
        u, ks = steps[i]
        pre_bar = False
        if (i + 2) < 54 and (i + 2) % 6 == 0:
            c = (i + 2)//6
            while any(t == ('L', c) for _, t in vq): emit(vq.pop(0))
            wait(('L', c)); k("s_barrier")
        if alg and i == 52:
            while vq: emit(vq.pop(0))
            wait(('R',)); k("s_barrier")
        if i == PA - 2:
            while vq: emit(vq.pop(0))
            k("s_waitcnt lgkmcnt(0)"); wait(('R',)); k("s_barrier")
            vq += fixdma(UD(4)) + fixdma(UD(5))
        if i == PB - 2:
            while any(t == ('U', 4) for _, t in vq): emit(vq.pop(0))
            k("s_waitcnt lgkmcnt(0)"); wait(('U', 4)); k("s_barrier")
            vq += fixdma(UD(6)) + fixdma(UD(7))
        if i == PB + NK - 2:
            while any(t == ('U', 5) for _, t in vq): emit(vq.pop(0))
            k("s_waitcnt lgkmcnt(0)"); wait(('U', 5)); k("s_barrier")
            vq += fixdma(UD(8))
        for uu_, at in ((6, PB + 2*NK - 2), (7, PB + 3*NK - 2), (8, PB + 4*NK - 2)):
            if i == at:
                while any(t == ('U', uu_) for _, t in vq): emit(vq.pop(0))
                wait(('U', uu_)); k("s_barrier")
        if i == PB + 4*NK + 2 and prefetch:
            k(f"s_cmp_lt_u32 s2, 8\ns_cbranch_scc0 L_g1_nopf\ns_cmp_eq_u32 {s(sw)}, 0\ns_cbranch_scc0 L_g1_nopf")
            for nm, ns in prefetch: touch_code(k, nm, ns, vt=PFV if alg else 216)
            k("L_g1_nopf:")
            k("s_nop 0")
        if i < 54 and i % 6 == 0:
            c = i//6 + PDS
            if c < 9: vq += LG(c)
            if i//6 == 9 - PDS or (PDS > 8 and i == 0): vq += fixdma(W23rest()) + (LG9() if alg else [])
        if u >= 4 and i == first_step[u]:
            while any(o[1] == u - 4 for o in epiq): emit_epi(epiq.pop(0))
        rd = reads(i+2) if i + 2 < N else []
        synced = i in (PA - 2, PB - 2, PB + NK - 2)
        if not synced:
            nout = (2 if i + 1 < N else 0)
            k(f"s_waitcnt lgkmcnt({nout})")
        X = ACC + 32*(u % 4); slot = RING + 8*(i % 3)
        budget = cap
        nv = -(-len(vq) // max(1, 6 if i < PA else 9)) if vq else 0
        nv = min(nv, 3)
        for j in range(8):
            m, t = j // 4, j % 4
            acc = X + 16*m + 4*t
            c = "0" if ks == 0 else v(acc, 4)
            k(f"v_mfma_f32_16x16x32_bf16 {v(acc,4)}, {v(slot+4*m,4)}, {xr(t,ks)}, {c}")
            used = 0
            if rd and j in (0, 1): k(rd.pop(0)); used += 1
            if vq and nv > 0 and j in (2, 4, 6):
                emit(vq.pop(0)); nv -= 1; used += 2; budget -= 2
            while epiq and epiq[0][0] <= i and used < 2 and budget > 0:
                o = epiq[0]
                if used + min(o[3], 2) > 2 and used > 0: break
                epiq.pop(0); emit_epi(o); used += o[3]; budget -= o[3]
        if i == last_step[u]:
            epiq += [(i + 2, u, o, c, tg) for o, c, tg in epi(u)]
    if stamps: k("s_memtime s[66:67]")
    k("s_nop 7")
    while epiq: emit_epi(epiq.pop(0))
    if stamps:
        k("s_waitcnt vmcnt(0)\ns_memtime s[68:69]\ns_memrealtime s[70:71]\ns_waitcnt lgkmcnt(0)")
        srd(k, 24, sWS, WS["AUX"], WS["AUX_SZ"])
        k(f"s_lshl_b32 {s(stmp)}, s2, 3\ns_add_u32 {s(stmp)}, {s(stmp)}, {s(sw)}\ns_lshl_b32 {s(stmp)}, {s(stmp)}, 6\nv_mov_b32 v9, {s(stmp)}")
        for i, (x, y) in enumerate(((64,60),(66,60),(68,60),(70,62))):
            k(f"s_sub_u32 s72, s{x}, s{y}\nv_mov_b32 v8, s72\nbuffer_store_dword v8, v9, s[24:27], 0 offen offset:{4*i}")
        k(f"v_mov_b32 v8, s62\nbuffer_store_dword v8, v9, s[24:27], 0 offen offset:16")
    k("L_g1_end:\ns_endpgm")
    return k, (256, 256, 4*US)
```

```python
from asmgen import *
from layout import *
from k_g1 import srd

def gen_helper2(k, prefetch=None, pol=' sc1'):
    HL = 151552
    US = 19*2048
    sWS = 4; sW1, sW3, sW2 = 6, 8, 10
    rW2, rD13, rD2, rS, rMOD = 20, 24, 28, 44, 12
    sm, sr, sks, slg, ssrc, sdst, stmp, sq = range(48, 56)
    v13, v2s, vrd, vgs = 2, 3, 5, 9
    vl16 = 1
    R = 12; BG = 28; ACC = 32; GT = 48
    k("L_att_helper:")
    k(f"s_load_dwordx2 {s(sW1,2)}, s[0:1], {KA['w1']}\ns_load_dwordx2 {s(sW3,2)}, s[0:1], {KA['w3']}\ns_load_dwordx2 {s(sW2,2)}, s[0:1], {KA['w2']}")
    k("v_lshrrev_b32 v9, 3, v0\nv_and_b32 v10, 7, v0\nv_lshrrev_b32 v11, 1, v10\nv_bfe_u32 v12, v0, 4, 2\nv_xor_b32 v11, v11, v12\nv_lshlrev_b32 v11, 5, v11\nv_and_b32 v10, 1, v10\nv_lshlrev_b32 v10, 4, v10\nv_add_u32 v10, v10, v11")
    k(f"v_mul_u32_u24 {v(v13)}, 9216, v9\nv_add_u32 {v(v13)}, {v(v13)}, v10\nv_mul_u32_u24 {v(v2s)}, 1152, v9\nv_add_u32 {v(v2s)}, {v(v2s)}, v10")
    k("v_lshrrev_b32 v9, 2, v0\nv_lshlrev_b32 v9, 7, v9\nv_and_b32 v10, 3, v0\nv_lshlrev_b32 v10, 3, v10\nv_add_u32 v9, v9, v10\nv_bfe_u32 v10, v0, 3, 2")
    for ct in range(4): k(f"v_xor_b32 v11, {ct}, v10\nv_lshlrev_b32 v11, 5, v11\nv_add_u32 v11, v11, v9\nv_add_u32 {v(vrd+ct)}, {HL}, v11")
    k("v_and_b32 v10, 15, v0\nv_lshrrev_b32 v11, 4, v0\nv_lshlrev_b32 v11, 4, v11")
    k(f"v_mul_u32_u24 v12, 2304, v10\nv_sub_u32 v12, {4*576*4}, v12\nv_add_u32 v12, v12, v11\nv_mov_b32 v13, 0x7fffffff\nv_cmp_gt_u32 vcc, 2, v10\nv_cndmask_b32 {v(vgs)}, v13, v12, vcc")
    k("s_waitcnt lgkmcnt(0)")
    srd(k, rW2, sW2, 0, 4608*1152); srd(k, rMOD, sWS, WS["MOD"], WS["MOD_SZ"])
    srd(k, rD13, sWS, WS["W13F"], WS["W13F_SZ"]); srd(k, rD2, sWS, WS["W2F"], WS["W2F_SZ"])
    vm = []
    def wait(tag):
        idx = [i for i, t in enumerate(vm) if t == tag]
        k(f"s_waitcnt vmcnt({len(vm) - 1 - max(idx)})")
    def reads(n):
        o = (n % 3)*4096
        for ct in range(4):
            k(f"ds_read_b64_tr_b16 {v(R+4*ct,2)}, {v(vrd+ct)} offset:{o}\nds_read_b64_tr_b16 {v(R+4*ct+2,2)}, {v(vrd+ct)} offset:{o+2048}")
        k("s_waitcnt lgkmcnt(0)")
    k("s_cmp_ge_u32 s2, 144\ns_cbranch_scc1 L_att_hB")
    k(f"s_cmp_ge_u32 s2, 72\ns_cselect_b32 {s(sm)}, 1, 0\ns_cselect_b32 {s(rS)}, {s(sW3)}, {s(sW1)}\ns_cselect_b32 {s(rS+1)}, {s(sW3+1)}, {s(sW1+1)}")
    k(f"s_mov_b32 {s(rS+2)}, {576*9216}\ns_mov_b32 {s(rS+3)}, 0x20000")
    k(f"s_mul_i32 {s(stmp)}, {s(sm)}, 72\ns_sub_u32 {s(slg)}, s2, {s(stmp)}\ns_lshl_b32 {s(ssrc)}, {s(slg)}, 7")
    k(f"s_mul_i32 {s(sdst)}, {s(slg)}, {4*US}\ns_lshl_b32 {s(stmp)}, {s(sm)}, 10\ns_add_u32 {s(sdst)}, {s(sdst)}, {s(stmp)}")
    def dmaA(n):
        for i in range(4):
            k(f"s_mov_b32 m0, {HL + (n % 3)*4096 + i*1024}\ns_add_u32 {s(stmp)}, {s(ssrc)}, {(32*n + 8*i)*9216}\nbuffer_load_dwordx4 {v(v13)}, {s(rS,4)}, {s(stmp)} offen lds"); vm.append(('D', n))
    def gsload(n):
        t = GT + 8*(n % 3)
        k(f"s_mov_b32 {s(stmp)}, {n*128}\nbuffer_load_dwordx4 {v(t,4)}, {v(vgs)}, {s(rMOD,4)}, {s(stmp)} offen"); vm.append(('G', n))
        k(f"buffer_load_dwordx4 {v(t+4,4)}, {v(vgs)}, {s(rMOD,4)}, {s(stmp)} offen offset:64"); vm.append(('G', n))
    k("s_barrier")
    for n in range(3): dmaA(n)
    gsload(0); gsload(1)
    k("s_barrier")
    for n in range(18):
        wait(('D', n)); reads(n)
        if n + 3 < 18: dmaA(n+3)
        if n + 2 < 18: gsload(n+2)
        wait(('G', n))
        t = GT + 8*(n % 3)
        for j in range(4): k(f"v_cvt_pk_bf16_f32 {v(BG+j)}, {v(t+2*j)}, {v(t+2*j+1)}")
        for ct in range(4):
            k(f"s_add_u32 {s(stmp)}, {s(sdst)}, {ct*US + n*2048}\nbuffer_store_dwordx4 {v(R+4*ct,4)}, {v(vl16)}, {s(rD13,4)}, {s(stmp)} offen{pol}"); vm.append(('S', n))
        for ct in range(4):
            c = "0" if n == 0 else v(ACC+4*ct,4)
            k(f"v_mfma_f32_16x16x32_bf16 {v(ACC+4*ct,4)}, {v(R+4*ct,4)}, {v(BG,4)}, {c}")
        if n == 2 and prefetch:
            k("s_cmp_lt_u32 s2, 8\ns_cbranch_scc0 L_att_nopf")
            for nm, ns in prefetch: touch_code(k, nm, ns, vt=80)
            k("L_att_nopf:")
            k("s_nop 0")
    k(f"v_and_b32 v10, 15, v0\nv_lshrrev_b32 v11, 4, v0\nv_lshlrev_b32 v11, 5, v11\nv_lshlrev_b32 v12, 2, v10\nv_add_u32 v11, v11, v12\nv_add_u32 v11, {HL}, v11")
    k("v_mov_b32 v13, 0x30000\nv_cmp_gt_u32 vcc, 2, v10\nv_cndmask_b32 v11, v13, v11, vcc")
    for ct in range(4):
        for r in range(4): k(f"ds_write_b32 v11, {v(ACC+4*ct+r)} offset:{(16*ct + r)*8}")
    k(f"v_lshlrev_b32 v12, 3, v0\nv_add_u32 v12, {HL}, v12\nv_cmp_gt_u32 vcc, 16, v0\nv_cndmask_b32 v12, v13, v12, vcc")
    k("s_waitcnt lgkmcnt(0)")
    for ct in range(4): k(f"ds_read_b64 {v(GT+2*ct,2)}, v12 offset:{ct*128}")
    k("s_waitcnt lgkmcnt(0)")
    for ct in range(4):
        u_, v_ = GT+2*ct, GT+2*ct+1; o = R+4*ct; t = GT+8
        k(f"v_cvt_pk_bf16_f32 {v(o)}, {v(u_)}, {v(u_)}\nv_lshlrev_b32 {v(t)}, 16, {v(o)}\nv_sub_f32 {v(t)}, {v(u_)}, {v(t)}")
        k(f"v_cvt_pk_bf16_f32 {v(t+1)}, {v(v_)}, {v(v_)}\nv_lshlrev_b32 {v(t+1)}, 16, {v(t+1)}\nv_sub_f32 {v(t+1)}, {v(v_)}, {v(t+1)}")
        k(f"v_cvt_pk_bf16_f32 {v(o+1)}, {v(t)}, {v(v_)}\nv_cvt_pk_bf16_f32 {v(o+2)}, {v(v_)}, {v(t+1)}\nv_mov_b32 {v(o+3)}, 0")
        k(f"s_add_u32 {s(stmp)}, {s(sdst)}, {ct*US + 18*2048}\nbuffer_store_dwordx4 {v(o,4)}, {v(vl16)}, {s(rD13,4)}, {s(stmp)} offen")
    k("s_branch L_att_end")
    k("L_att_hB:")
    vm.clear()
    k(f"s_sub_u32 {s(sq)}, s2, 144")
    def dmaB(n):
        k(f"s_add_u32 {s(sr)}, {s(sq)}, {112*n}\ns_mul_i32 {s(sks)}, {s(sr)}, 7282\ns_lshr_b32 {s(sks)}, {s(sks)}, 16\ns_mul_i32 {s(stmp)}, {s(sks)}, 9\ns_sub_u32 {s(slg)}, {s(sr)}, {s(stmp)}")
        k(f"s_mul_i32 {s(ssrc)}, {s(sks)}, {32*1152}\ns_lshl_b32 {s(stmp)}, {s(slg)}, 7\ns_add_u32 {s(ssrc)}, {s(ssrc)}, {s(stmp)}")
        k(f"s_mul_i32 {s(sdst)}, {s(sks)}, {36*1024}\ns_lshl_b32 {s(stmp)}, {s(slg)}, 12\ns_add_u32 {s(56 + n % 4)}, {s(sdst)}, {s(stmp)}")
        for i in range(4):
            k(f"s_mov_b32 m0, {HL + (n % 3)*4096 + i*1024}\ns_add_u32 {s(stmp)}, {s(ssrc)}, {8*i*1152}\nbuffer_load_dwordx4 {v(v2s)}, {s(rW2,4)}, {s(stmp)} offen lds"); vm.append(('D', n))
    def storesB(n):
        for ct in range(4):
            k(f"s_add_u32 {s(stmp)}, {s(56 + n % 4)}, {ct*1024}\nbuffer_store_dwordx4 {v(R+4*ct,4)}, {v(vl16)}, {s(rD2,4)}, {s(stmp)} offen{pol}"); vm.append(('S', n))
    k("s_barrier")
    for n in range(3): dmaB(n)
    k("s_barrier")
    for n in range(11):
        wait(('D', n)); reads(n)
        if n + 3 < 11: dmaB(n+3)
        storesB(n)
    k(f"s_cmp_lt_u32 {s(sq)}, 64\ns_cbranch_scc0 L_att_end")
    k("s_waitcnt vmcnt(0)")
    vm.clear()
    dmaB(11); wait(('D', 11)); reads(11); storesB(11)
```

```python
from asmgen import *
from layout import *
from k_g1 import srd, spread

NCRIT = 18

def mod_role(k, sWS):
    sC, sW, sD = 6, 8, 10
    rW, rC, rMOD, rDBG = 12, 16, 20, 24
    stmp, spart, sj = 32, 33, 34
    k("L_k01_mod:")
    k(f"s_sub_u32 {s(sj)}, s2, 192")
    k(f"s_load_dwordx2 {s(sC,2)}, s[0:1], {KA['c']}\ns_load_dwordx2 {s(sW,2)}, s[0:1], {KA['wmod']}\ns_load_dwordx2 {s(sD,2)}, s[0:1], {KA['dbg']}")
    k("v_and_b32 v1, 7, v0\nv_lshrrev_b32 v2, 3, v0")
    k("v_mul_u32_u24 v3, 6912, v2\nv_lshlrev_b32 v4, 4, v1\nv_add_u32 v3, v3, v4")
    k(f"s_lshl_b32 {s(stmp)}, {s(sj)}, 7\nv_add_u32 v3, {s(stmp)}, v3")
    k("v_lshlrev_b32 v4, 1, v2")
    k("s_waitcnt lgkmcnt(0)")
    srd(k, rW, sW, 0, 576*6912); srd(k, rC, sC, 0, 1152); srd(k, rMOD, sWS, WS["MOD"], WS["MOD_SZ"]); srd(k, rDBG, sD, 0, 256)
    C = 8; W = 28
    for i in range(18): k(f"buffer_load_ushort {v(C+i)}, v4, {s(rC,4)}, 0 offen offset:{64*i}")
    for i in range(18): k(f"s_mov_b32 {s(stmp)}, {i*32*6912}\nbuffer_load_dwordx4 {v(W+4*i,4)}, v3, {s(rW,4)}, {s(stmp)} offen")
    k("s_waitcnt vmcnt(18)")
    T = 100
    for i in range(18): k(f"v_lshlrev_b32 {v(C+i)}, 16, {v(C+i)}")
    for b in range(0, 18, 6):
        es = range(b, b+6)
        for i in es: k(f"v_mul_f32 {v(T+i-b)}, 0xbfb8aa3b, {v(C+i)}")
        for i in es: k(f"v_exp_f32 {v(T+i-b)}, {v(T+i-b)}")
        for i in es: k(f"v_add_f32 {v(T+i-b)}, 1.0, {v(T+i-b)}")
        for i in es: k(f"v_rcp_f32 {v(T+i-b)}, {v(T+i-b)}")
        for i in es: k(f"v_mul_f32 {v(C+i)}, {v(C+i)}, {v(T+i-b)}")
        for i in es: k(f"v_cvt_pk_bf16_f32 {v(C+i)}, {v(C+i)}, {v(C+i)}")
        for i in es: k(f"v_lshlrev_b32 {v(C+i)}, 16, {v(C+i)}")
    A = 108
    for e in range(8): k(f"v_mov_b32 {v(A+e)}, 0")
    for i in range(18):
        k(f"s_waitcnt vmcnt({17-i})")
        for j in range(4):
            k(f"v_lshlrev_b32 {v(T+2*(j%2))}, 16, {v(W+4*i+j)}\nv_and_b32 {v(T+2*(j%2)+1)}, 0xffff0000, {v(W+4*i+j)}")
            k(f"v_fmac_f32 {v(A+2*j)}, {v(T+2*(j%2))}, {v(C+i)}\nv_fmac_f32 {v(A+2*j+1)}, {v(T+2*(j%2)+1)}, {v(C+i)}")
    k("v_lshlrev_b32 v5, 8, v2\nv_lshlrev_b32 v6, 5, v1\nv_add_u32 v5, v5, v6")
    k(f"ds_write_b128 v5, {v(A,4)}\nds_write_b128 v5, {v(A+4,4)} offset:16")
    k("s_waitcnt lgkmcnt(0)\ns_barrier")
    k("v_cmp_gt_u32 vcc, 64, v0\ns_and_saveexec_b64 s[40:41], vcc\ns_cbranch_execz L_k01_end")
    k("v_lshlrev_b32 v5, 2, v0")
    for r in range(32): k(f"ds_read_b32 {v(W+r)}, v5 offset:{r*256}")
    k("s_waitcnt lgkmcnt(0)")
    for st in (16, 8, 4, 2, 1):
        for r in range(st): k(f"v_add_f32 {v(W+r)}, {v(W+r)}, {v(W+r+st)}")
    k(f"v_cvt_pk_bf16_f32 {v(W)}, {v(W)}, {v(W)}\nv_lshlrev_b32 {v(W)}, 16, {v(W)}")
    k(f"s_mul_i32 {s(spart)}, {s(sj)}, 7282\ns_lshr_b32 {s(spart)}, {s(spart)}, 16")
    k(f"s_cmp_eq_u32 {s(spart)}, 1\ns_cbranch_scc1 L_k01_madd\ns_cmp_eq_u32 {s(spart)}, 4\ns_cbranch_scc0 L_k01_mst")
    k("L_k01_madd:")
    k(f"v_add_f32 {v(W)}, 1.0, {v(W)}\nv_cvt_pk_bf16_f32 {v(W)}, {v(W)}, {v(W)}\nv_lshlrev_b32 {v(W)}, 16, {v(W)}")
    k("L_k01_mst:")
    k(f"s_lshl_b32 {s(stmp)}, {s(sj)}, 8\nbuffer_store_dword {v(W)}, v5, {s(rMOD,4)}, {s(stmp)} offen sc1")
    k(f"s_cmp_lt_u32 {s(sj)}, {NCRIT}\ns_cbranch_scc0 L_k01_end")
    k("s_waitcnt vmcnt(0)")
    k("v_mov_b32 v6, 0\nv_mov_b32 v7, 1\ns_mov_b64 exec, 1")
    k(f"buffer_atomic_add v7, v6, {s(rDBG,4)}, 0 offen sc1")
    k("s_branch L_k01_end")

def gen_k01(stamps=False, touch=True, prefetch=True):
    k = Kern("k01_kernel", vgprs=256, agprs=84)
    SLOT = 9216; NSL = 16; MODL = NSL*SLOT
    sWS, sX, sW, sD = 4, 6, 8, 10
    rW, rX, rMOD, rQM, rQR, rKV, rDBG = 12, 16, 20, 24, 28, 44, 48
    sw, srb, scs, stmp, stmp2, ssrc, sqt, sh0, skind, sspin = range(32, 42)
    vl16 = 1
    vAb = [2, 3, 4]; vA2b = [5, 6, 7]; vM = 8
    vPk = [1, 9, 10]
    X = 16; ACC = 160; GS = 232; T = 248
    PAT = ACC
    xr = lambda t, ks: X + (t*18+ks)*4
    acc = lambda u, t: ACC + (u*2+t)*4
    k("s_cmp_ge_u32 s2, 254\ns_cbranch_scc1 L_k01_end")
    if prefetch:
        k("s_cmp_ge_u32 s2, 246\ns_cbranch_scc0 L_k01_main")
        k("v_cmp_gt_u32 vcc, 64, v0\ns_and_saveexec_b64 s[40:41], vcc\ns_cbranch_execz L_k01_end")
        touch_code(k, "L_k01_main", 5, end="k01_kernel_codeend")
        touch_code(k, "att_kernel", 3, vt=6)
        k("s_branch L_k01_end")
        k("L_k01_main:")
    else:
        k("s_cmp_ge_u32 s2, 246\ns_cbranch_scc1 L_k01_end")
    k(f"s_load_dwordx2 {s(sWS,2)}, s[0:1], {KA['ws']}")
    k("s_cmp_ge_u32 s2, 192\ns_cbranch_scc1 L_k01_mod")
    k(f"s_load_dwordx2 {s(sX,2)}, s[0:1], {KA['x']}\ns_load_dwordx2 {s(sW,2)}, s[0:1], {KA['wqkv']}\ns_load_dwordx2 {s(sD,2)}, s[0:1], {KA['dbg']}")
    if stamps: k("s_memtime s[60:61]\ns_memrealtime s[62:63]")
    k(f"v_lshrrev_b32 v14, 6, v0\nv_and_b32 v0, 63, v0\nv_readfirstlane_b32 {s(sw)}, v14")
    k(f"v_lshlrev_b32 {v(vl16)}, 4, v0")
    k(f"s_and_b32 {s(stmp)}, s2, 3\ns_lshl_b32 {s(srb)}, {s(stmp)}, 2\ns_lshr_b32 {s(stmp)}, s2, 3\ns_and_b32 {s(stmp2)}, {s(stmp)}, 3\ns_add_u32 {s(srb)}, {s(srb)}, {s(stmp2)}")
    k(f"s_lshr_b32 {s(scs)}, {s(stmp)}, 2\ns_bfe_u32 {s(stmp)}, s2, 0x10002\ns_mul_i32 {s(stmp)}, {s(stmp)}, 6\ns_add_u32 {s(scs)}, {s(scs)}, {s(stmp)}")
    k(f"s_lshl_b32 {s(sqt)}, {s(srb)}, 2\ns_add_u32 {s(sqt)}, {s(sqt)}, {s(sw)}")
    SXW = 36864
    k("s_waitcnt lgkmcnt(0)")
    srd(k, rX, sX, 0, 2048*1152); srd(k, rW, sW, 0, 576*3456)
    if stamps: k("s_memtime s[76:77]")
    vm = []
    def wait(*tags):
        idx = [i for i, t in enumerate(vm) if t in tags]
        k(f"s_waitcnt vmcnt({min(63, len(vm) - 1 - max(idx))})")
    if touch:
        k(f"s_mul_i32 {s(stmp)}, {s(scs)}, 43691\ns_lshr_b32 {s(stmp)}, {s(stmp)}, 18\ns_mul_i32 {s(stmp)}, {s(stmp)}, 6\ns_sub_u32 {s(stmp)}, {s(scs)}, {s(stmp)}")
        k(f"s_lshl_b32 {s(stmp)}, {s(stmp)}, 2\ns_add_u32 {s(stmp)}, {s(stmp)}, {s(sw)}\ns_mul_i32 {s(stmp)}, {s(stmp)}, {48*128}\ns_mul_i32 {s(stmp2)}, {s(srb)}, {128*1152}\ns_add_u32 {s(stmp)}, {s(stmp)}, {s(stmp2)}")
        k(f"v_lshlrev_b32 v12, 7, v0\nbuffer_load_dword a82, v12, {s(rX,4)}, {s(stmp)} offen"); vm.append(('t',))
    if touch: k(f"s_and_b32 {s(stmp)}, {s(srb)}, 3\ns_lshl_b32 {s(stmp)}, {s(stmp)}, 2\ns_add_u32 {s(stmp)}, {s(stmp)}, {s(sw)}\ns_mul_i32 {s(stmp)}, {s(stmp)}, 36")
    if touch: k(f"v_mul_u32_u24 v12, 21846, v0\nv_lshrrev_b32 v12, 16, v12\nv_mul_u32_u24 v13, 3, v12\nv_sub_u32 v13, v0, v13\nv_lshlrev_b32 v13, 7, v13")
    if touch: k(f"v_add_u32 v12, {s(stmp)}, v12\nv_mul_u32_u24 v12, 3456, v12\nv_add_u32 v12, v12, v13\ns_mul_i32 {s(stmp)}, {s(scs)}, 288\ns_and_b32 {s(stmp)}, {s(stmp)}, 0xffffff80")
    if touch: k(f"buffer_load_dword a83, v12, {s(rW,4)}, {s(stmp)} offen"); vm.append(('t',))
    if touch: k(f"v_add_u32 v12, {21*3456}, v12\nbuffer_load_dword a83, v12, {s(rW,4)}, {s(stmp)} offen"); vm.append(('t',))
    k(f"s_mul_i32 {s(sh0)}, {s(sw)}, {SXW}\ns_lshl_b32 {s(ssrc)}, {s(sqt)}, 5\ns_mul_i32 {s(ssrc)}, {s(ssrc)}, 1152")
    for r in range(32):
        i = r & 15; fp = ((i >> 1) & 7) | ((i & 1) << 3)
        k(f"v_xor_b32 {v(10 + (r & 1))}, {fp << 4}, {v(vl16)}\ns_add_u32 m0, {s(sh0)}, {r*1024}\ns_add_u32 {s(stmp)}, {s(ssrc)}, {r*1152}")
        k(f"buffer_load_dwordx4 {v(10 + (r & 1))}, {s(rX,4)}, {s(stmp)} offen lds"); vm.append(('x',))
    k("v_lshrrev_b32 v13, 3, v0\nv_mul_u32_u24 v13, 1152, v13\nv_add_u32 v13, 1024, v13\nv_and_b32 v14, 7, v0\nv_lshrrev_b32 v15, 4, v0")
    for m in range(4):
        k(f"v_add_u32 v11, {4*(m & 1)}, v15\nv_xor_b32 v11, v11, v14\nv_lshlrev_b32 v11, 4, v11\nv_add_u32 v11, v11, v13")
        k(f"s_add_u32 m0, {s(sh0)}, {32768 + m*1024}\ns_add_u32 {s(stmp)}, {s(ssrc)}, {m*8*1152}")
        k(f"buffer_load_dwordx4 v11, {s(rX,4)}, {s(stmp)} offen lds"); vm.append(('x',))
    if stamps: k("s_memtime s[78:79]")
    srd(k, rMOD, sWS, WS["MOD"], WS["MOD_SZ"]); srd(k, rDBG, sD, 0, 256)
    srd(k, rQM, sWS, WS["QM"], WS["QM_SZ"]); srd(k, rQR, sWS, WS["QR"], WS["QR_SZ"]); srd(k, rKV, sWS, WS["KV"], WS["KV_SZ"])
    for i in range(9):
        k(f"v_add_u32 v13, {64*i}, v0\nv_mul_u32_u24 v14, 3641, v13\nv_lshrrev_b32 v14, 16, v14\nv_mul_u32_u24 v15, 18, v14\nv_sub_u32 v13, v13, v15")
        k(f"v_lshrrev_b32 v15, 1, v14\nv_and_b32 v15, 4, v15\nv_xor_b32 v14, v14, v15\nv_mul_u32_u24 v14, 3456, v14\nv_lshlrev_b32 v13, 4, v13\nv_add_u32 {v(PAT+i)}, v13, v14")
    k(f"s_mul_i32 {s(ssrc)}, {s(scs)}, 288\ns_mul_i32 {s(stmp)}, {s(sw)}, {32*3456}\ns_add_u32 {s(ssrc)}, {s(ssrc)}, {s(stmp)}")
    def wdma_ops(g, slotbase, from_acc=False):
        ops = []
        for i in range(9):
            pr = PAT+i; pre = ""
            if from_acc:
                pr = T + (i % 4); pre = f"v_accvgpr_read_b32 {v(pr)}, {a(72+i)}\n"
            ops.append((pre + f"s_add_u32 m0, {s(sh0)}, {slotbase + i*1024}\ns_add_u32 {s(stmp)}, {s(ssrc)}, {g*4*32*3456}\nbuffer_load_dwordx4 {v(pr)}, {s(rW,4)}, {s(stmp)} offen lds", ('w', g)))
        return ops
    def wdma(g, slotbase, from_acc=False):
        for o, tg in wdma_ops(g, slotbase, from_acc): k(o); vm.append(tg)
    def wpop():
        if wq: o, tg = wq.pop(0); k(o); vm.append(tg)
    k("v_and_b32 v13, 15, v0\nv_lshrrev_b32 v14, 1, v13\nv_and_b32 v15, 1, v13\nv_lshlrev_b32 v15, 3, v15\nv_or_b32 v15, v15, v14")
    k(f"v_lshrrev_b32 v12, 4, v0\nv_lshlrev_b32 v11, 10, v13\nv_add_u32 v11, {s(sh0)}, v11")
    RB = GS
    for l0 in range(2):
        for b in range(2):
            k(f"v_add_u32 v9, {8*l0 + 4*b}, v12\nv_xor_b32 v9, v9, v15\nv_lshlrev_b32 v9, 4, v9\nv_add_u32 {v(RB + 2*l0 + b)}, v9, v11")
    k(f"v_lshlrev_b32 v11, 7, v13\nv_add_u32 v11, {s(sh0)}, v11\nv_add_u32 v11, 32768, v11")
    for b in range(2): k(f"v_add_u32 v9, {4*b}, v12\nv_xor_b32 v9, v9, v14\nv_lshlrev_b32 v9, 4, v9\nv_add_u32 {v(RB + 4 + b)}, v9, v11")
    wait(('x',))
    if stamps: k("s_memtime s[80:81]")
    for ks in range(18):
        for t in range(2):
            if ks < 16:
                L2, l0, b = ks >> 2, (ks >> 1) & 1, ks & 1
                k(f"ds_read_b128 {v(xr(t,ks),4)}, {v(RB + 2*l0 + b)} offset:{t*16384 + 256*L2}")
            else:
                k(f"ds_read_b128 {v(xr(t,ks),4)}, {v(RB + 4 + (ks & 1))} offset:{t*2048}")
    k("s_waitcnt lgkmcnt(0)\ns_barrier")
    if stamps: k("s_memtime s[82:83]")
    k(f"s_mul_i32 {s(ssrc)}, {s(scs)}, 288\ns_mul_i32 {s(stmp)}, {s(sw)}, {32*3456}\ns_add_u32 {s(ssrc)}, {s(ssrc)}, {s(stmp)}\ns_mul_i32 {s(sh0)}, {s(sw)}, {SLOT}")
    wq = []
    for g in range(4): wq += wdma_ops(g, g*4*SLOT)
    k("v_lshrrev_b32 v13, 4, v0\nv_lshlrev_b32 v13, 3, v13\nv_bfe_u32 v14, v0, 2, 2\nv_add_u32 v13, v13, v14")
    k("v_lshrrev_b32 v14, 1, v13\nv_and_b32 v14, 4, v14\nv_xor_b32 v15, v13, v14")
    k(f"v_mul_u32_u24 v15, 288, v15\nv_and_b32 v14, 3, v0\nv_lshlrev_b32 v14, 3, v14\nv_add_u32 {v(vAb[0])}, v15, v14")
    k("v_add_u32 v13, 4, v13\nv_lshrrev_b32 v15, 1, v13\nv_and_b32 v15, 4, v15\nv_xor_b32 v15, v13, v15")
    k(f"v_mul_u32_u24 v15, 288, v15\nv_add_u32 {v(vA2b[0])}, v15, v14")
    for i in (1, 2): k(f"v_add_u32 {v(vAb[i])}, {7*i*SLOT}, {v(vAb[0])}\nv_add_u32 {v(vA2b[i])}, {7*i*SLOT}, {v(vA2b[0])}")
    k(f"v_lshrrev_b32 v13, 4, v0\nv_lshlrev_b32 v13, 5, v13\nv_add_u32 {v(vM)}, {MODL}, v13")
    M = GS
    for t in range(2): k(f"v_mov_b32 {v(M+2*t)}, 0\nv_mov_b32 {v(M+2*t+1)}, 0")
    k(f"v_mov_b32 {v(M+4)}, 0x3f803f80")
    for ks in range(18):
        for t in range(2):
            for j in range(4):
                r = xr(t,ks)+j
                k(f"v_dot2_f32_bf16 {v(M+2*t)}, {v(r)}, {v(M+4)}, {v(M+2*t)}\nv_dot2_f32_bf16 {v(M+2*t+1)}, {v(r)}, {v(r)}, {v(M+2*t+1)}")
            wpop()
    if stamps: k("s_memtime s[84:85]")
    while wq: wpop()
    for i in range(9): k(f"v_accvgpr_write_b32 {a(72+i)}, {v(PAT+i)}")
    for i in range(4):
        r = v(M+i)
        k(f"v_mov_b32 v13, {r}\nv_permlane32_swap_b32 {r}, v13\nv_add_f32 {r}, {r}, v13\nv_mov_b32 v13, {r}\nv_permlane16_swap_b32 {r}, v13\nv_add_f32 {r}, {r}, v13")
    for t in range(2):
        m, q = M+2*t, M+2*t+1
        k(f"v_mul_f32 {v(m)}, 0x3ae38e39, {v(m)}\nv_mul_f32 {v(q)}, 0x3ae38e39, {v(q)}")
        k(f"v_fma_f32 {v(q)}, -{v(m)}, {v(m)}, {v(q)}\nv_max_f32 {v(q)}, 0, {v(q)}\nv_add_f32 {v(q)}, 0x3727c5ac, {v(q)}\nv_rsq_f32 {v(q)}, {v(q)}")
        k(f"s_nop 0\nv_mul_f32 {v(m)}, {v(m)}, {v(q)}\nv_sub_f32 {v(m)}, 0, {v(m)}")
    PR = M+6
    for t in range(2):
        k(f"v_mov_b32 {v(PR+4*t)}, {v(M+2*t+1)}\nv_mov_b32 {v(PR+4*t+1)}, {v(M+2*t+1)}\nv_mov_b32 {v(PR+4*t+2)}, {v(M+2*t)}\nv_mov_b32 {v(PR+4*t+3)}, {v(M+2*t)}")
    for t in range(2):
        for ks in range(18):
            for j in range(4):
                r = xr(t,ks)+j; tt = T + 2*j
                k(f"v_lshlrev_b32 {v(tt)}, 16, {v(r)}\nv_and_b32 {v(tt+1)}, 0xffff0000, {v(r)}")
            for j in range(4):
                tt = T + 2*j
                k(f"v_pk_fma_f32 {v(tt,2)}, {v(tt,2)}, {v(PR+4*t,2)}, {v(PR+4*t+2,2)}")
            for j in range(4):
                r = xr(t,ks)+j; tt = T + 2*j
                k(f"v_cvt_pk_f16_f32 {v(r)}, {v(tt)}, {v(tt+1)}")
    k(f"v_add_u32 v11, {s(sh0)}, {v(vAb[0])}\nv_add_u32 v12, {s(sh0)}, {v(vA2b[0])}\nv_add_u32 v9, {s(sh0)}, {v(vl16)}")
    for g in range(4):
        wait(('w', g))
        o = (g % 2)*4*SLOT
        if g == 2: k(f"v_add_u32 v11, {8*SLOT}, v11\nv_add_u32 v12, {8*SLOT}, v12\nv_add_u32 v9, {8*SLOT}, v9")
        for u in range(9):
            k(f"ds_read_b64_tr_b16 {v(ACC+16+4*u,2)}, v11 offset:{o + u*32}\nds_read_b64_tr_b16 {v(ACC+16+4*u+2,2)}, v12 offset:{o + u*32}")
        k("s_waitcnt lgkmcnt(0)")
        for u in range(9): k(f"ds_write_b128 v9, {v(ACC+16+4*u,4)} offset:{o + u*1024}")
        k("s_waitcnt lgkmcnt(0)")
    if stamps: k("s_memtime s[64:65]")
    k(f"s_cmp_eq_u32 {s(sw)}, 0\ns_cbranch_scc0 L_k01_polled")
    k(f"v_mov_b32 v13, 0\ns_mov_b32 {s(sspin)}, 0")
    k("L_k01_poll:")
    k(f"buffer_load_dword v14, v13, {s(rDBG,4)}, 0 offen sc1")
    k("s_waitcnt vmcnt(0)")
    k(f"v_readfirstlane_b32 {s(stmp)}, v14")
    k(f"s_cmp_ge_u32 {s(stmp)}, {NCRIT}\ns_cbranch_scc1 L_k01_polled")
    k(f"s_add_u32 {s(sspin)}, {s(sspin)}, 1\ns_cmp_lt_u32 {s(sspin)}, 0x100000\ns_cbranch_scc0 L_k01_polled")
    k("s_sleep 1\ns_branch L_k01_poll")
    k("L_k01_polled:")
    k("s_barrier")
    if stamps: k("s_memtime s[66:67]")
    k(f"s_lshl_b32 {s(stmp)}, {s(sw)}, 10\nv_add_u32 v13, {s(stmp)}, {v(vl16)}")
    k(f"buffer_load_dwordx4 {v(GS,4)}, v13, {s(rMOD,4)}, 0 offen sc1")
    k(f"s_mov_b32 {s(stmp)}, 4096\nbuffer_load_dwordx4 {v(GS+4,4)}, {v(vl16)}, {s(rMOD,4)}, {s(stmp)} offen sc1")
    k(f"v_add_u32 v13, {MODL}, v13\nv_add_u32 v14, {MODL+4096}, {v(vl16)}")
    k("s_waitcnt vmcnt(0)")
    k(f"ds_write_b128 v13, {v(GS,4)}\nds_write_b128 v14, {v(GS+4,4)}")
    k("s_waitcnt lgkmcnt(0)\ns_barrier")
    vm.clear()
    k(f"v_add_u32 v9, {7*SLOT}, {v(vl16)}\nv_add_u32 v10, {14*SLOT}, {v(vl16)}")
    def areads(ks, par):
        ops = []
        slot = ks % NSL; bi = slot // 7; o = (slot % 7)*SLOT
        for u in range(9):
            r = par*36 + u*4
            if ks < 16:
                ops.append(f"ds_read_b128 {a(r,4)}, {v(vPk[bi])} offset:{o + u*1024}")
            else:
                ops.append(f"ds_read_b64_tr_b16 {a(r,2)}, {v(vAb[bi])} offset:{o + u*32}")
                ops.append(f"ds_read_b64_tr_b16 {a(r+2,2)}, {v(vA2b[bi])} offset:{o + u*32}")
        return ops
    def gsreads(ks):
        o = ks*128
        return [f"ds_read_b128 {v(GS,4)}, {v(vM)} offset:{o}", f"ds_read_b128 {v(GS+4,4)}, {v(vM)} offset:{o+16}",
                f"ds_read_b128 {v(GS+8,4)}, {v(vM)} offset:{2304+o}", f"ds_read_b128 {v(GS+12,4)}, {v(vM)} offset:{2304+o+16}"]
    def modulate(ks):
        ops = []
        for t in range(2):
            for j in range(4):
                r = xr(t,ks)+j; tt = T + 2*(j % 4)
                ops.append(f"v_fma_mix_f32 {v(tt)}, {v(r)}, {v(GS+8+2*j)}, {v(GS+2*j)} op_sel_hi:[1,0,0]")
                ops.append(f"v_fma_mix_f32 {v(tt+1)}, {v(r)}, {v(GS+8+2*j+1)}, {v(GS+2*j+1)} op_sel:[1,0,0] op_sel_hi:[1,0,0]")
            for j in range(4):
                r = xr(t,ks)+j; tt = T + 2*(j % 4)
                ops.append(f"v_cvt_pk_bf16_f32 {v(r)}, {v(tt)}, {v(tt+1)}")
        return ops
    def gemm(swapped, tag):
        for o in gsreads(0) + areads(0, 0): k(o)
        k("s_waitcnt lgkmcnt(15)\ns_waitcnt lgkmcnt(14)" if False else "s_waitcnt lgkmcnt(0)")
        for o in modulate(0): k(o)
        for ks in range(18):
            par = ks % 2
            k("s_waitcnt lgkmcnt(0)")
            if ks == 2:
                k("s_barrier")
                k(f"s_cmp_lt_u32 {s(sw)}, 2\ns_cbranch_scc0 L_k01_nodma_{tag}")
                wdma(4, 0, from_acc=True)
                k(f"L_k01_nodma_{tag}:")
            if ks == 14:
                k("s_waitcnt vmcnt(0)\ns_barrier")
            gs = gsreads(ks+1) if ks < 17 else []
            rd = areads(ks+1, 1-par) if ks < 17 else []
            md = modulate(ks+1) if ks < 17 else []
            nrd = len(rd); early = 3 if nrd <= 9 else 6
            per = 1 if nrd <= 9 else 2
            j = 0
            for u in range(9):
                for t in range(2):
                    c = "0" if ks == 0 else v(acc(u,t),4)
                    A_, B_ = a(par*36+u*4,4), v(xr(t,ks),4)
                    if swapped: A_, B_ = B_, A_
                    k(f"v_mfma_f32_16x16x32_bf16 {v(acc(u,t),4)}, {A_}, {B_}, {c}")
                    if j == 0:
                        for o in gs: k(o)
                    elif j <= 3:
                        for _ in range(per):
                            if rd: k(rd.pop(0))
                    elif j == 4 and md:
                        k(f"s_waitcnt lgkmcnt({early})")
                    if j >= 4:
                        if rd and j >= 5: k(rd.pop(0))
                        n = 2 if j < 16 else len(md)
                        for _ in range(n):
                            if md: k(md.pop(0))
                    j += 1
            assert not rd and not md
    k(f"s_cmp_ge_u32 {s(scs)}, 8\ns_cbranch_scc1 L_k01_v")
    gemm(False, "qk")
    if stamps: k("s_memtime s[68:69]")
    RS = 296
    k("s_barrier")
    k(f"s_cmp_lt_u32 {s(scs)}, 4\ns_cselect_b32 {s(skind)}, 0x3eae1a93, 1.0")
    k(f"s_mul_i32 {s(stmp)}, {s(sw)}, {32*RS}")
    k(f"v_and_b32 v13, 15, v0\nv_mul_u32_u24 v13, {RS}, v13\nv_lshrrev_b32 v15, 4, v0\nv_lshlrev_b32 v15, 3, v15\nv_add_u32 v13, v13, v15\nv_add_u32 v13, {s(stmp)}, v13")
    for u in range(9):
        for t in range(2):
            r = acc(u,t)
            for e in range(4): k(f"v_mul_f32 {v(r+e)}, {s(skind)}, {v(r+e)}")
            k(f"v_cvt_pk_bf16_f32 {v(r)}, {v(r)}, {v(r+1)}\nv_cvt_pk_bf16_f32 {v(r+1)}, {v(r+2)}, {v(r+3)}")
            k(f"ds_write_b64 v13, {v(r,2)} offset:{t*16*RS + u*32}")
    k("s_waitcnt lgkmcnt(0)")
    k(f"v_and_b32 v13, 31, v0\nv_mul_u32_u24 v15, {RS}, v13\nv_lshrrev_b32 v14, 5, v0\nv_lshlrev_b32 v14, 4, v14\nv_add_u32 v15, v15, v14\nv_add_u32 v15, {s(stmp)}, v15")
    k(f"v_mul_u32_u24 v14, {RS}, v13\nv_add_u32 v14, {s(stmp)}, v14")
    R = X
    for h in range(8):
        k(f"ds_read2_b32 {v(R+8*h,2)}, v15 offset0:{9*h} offset1:{9*h+1}\nds_read2_b32 {v(R+8*h+2,2)}, v15 offset0:{9*h+2} offset1:{9*h+3}")
        k(f"ds_read_b32 {v(R+8*h+4)}, v14 offset:{36*h+32}")
    k(f"v_mov_b32 v11, 0x7fffffff\nv_cmp_gt_u32 vcc, 32, v0")
    k(f"s_and_b32 {s(sh0)}, {s(scs)}, 3\ns_lshl_b32 {s(sh0)}, {s(sh0)}, 3")
    k(f"s_cmp_lt_u32 {s(scs)}, 4\ns_cbranch_scc0 L_k01_kout")
    k("v_lshlrev_b32 v10, 2, v13\nv_cndmask_b32 v10, v11, v10, vcc")
    k(f"s_lshl_b32 {s(stmp)}, {s(sh0)}, 6\ns_add_u32 {s(stmp)}, {s(stmp)}, {s(sqt)}")
    k("s_waitcnt lgkmcnt(0)")
    for h in range(8):
        k(f"s_add_u32 {s(stmp2)}, {s(stmp)}, {64*h}\ns_lshl_b32 {s(ssrc)}, {s(stmp2)}, 10\nbuffer_store_dwordx4 {v(R+8*h,4)}, {v(vl16)}, {s(rQM,4)}, {s(ssrc)} offen")
        k(f"s_lshl_b32 {s(ssrc)}, {s(stmp2)}, 7\nbuffer_store_dword {v(R+8*h+4)}, v10, {s(rQR,4)}, {s(ssrc)} offen")
    k("s_branch L_k01_fin")
    k("L_k01_kout:")
    k("v_lshlrev_b32 v10, 4, v13\nv_cndmask_b32 v10, v11, v10, vcc")
    k(f"s_mul_i32 {s(stmp)}, {s(sh0)}, {KV_STRIDE}\ns_lshl_b32 {s(stmp2)}, {s(sqt)}, 10\ns_add_u32 {s(stmp2)}, {s(stmp2)}, {s(stmp)}")
    k(f"s_lshl_b32 {s(ssrc)}, {s(srb)}, 9\ns_add_u32 {s(stmp)}, {s(stmp)}, {s(ssrc)}\ns_lshl_b32 {s(ssrc)}, {s(sw)}, 2\ns_add_u32 {s(stmp)}, {s(stmp)}, {s(ssrc)}\ns_add_u32 {s(stmp)}, {s(stmp)}, {KR_OFF}")
    k("s_waitcnt lgkmcnt(0)")
    for h in range(8):
        k(f"buffer_store_dwordx4 {v(R+8*h,4)}, {v(vl16)}, {s(rKV,4)}, {s(stmp2)} offen")
        k(f"buffer_store_dword {v(R+8*h+4)}, v10, {s(rKV,4)}, {s(stmp)} offen")
        if h < 7: k(f"s_add_u32 {s(stmp2)}, {s(stmp2)}, {KV_STRIDE}\ns_add_u32 {s(stmp)}, {s(stmp)}, {KV_STRIDE}")
    k("s_branch L_k01_fin")
    k("L_k01_v:")
    gemm(True, "v")
    if stamps: k("s_memtime s[68:69]")
    k(f"s_sub_u32 {s(sh0)}, {s(scs)}, 8\ns_lshl_b32 {s(sh0)}, {s(sh0)}, 3\ns_mul_i32 {s(stmp)}, {s(sh0)}, {KV_STRIDE}")
    k(f"s_mul_i32 {s(stmp2)}, {s(sqt)}, {2*608}\ns_add_u32 {s(stmp)}, {s(stmp)}, {s(stmp2)}\ns_add_u32 {s(stmp)}, {s(stmp)}, {VT_OFF}")
    k("v_lshrrev_b32 v13, 4, v0\nv_and_b32 v14, 1, v13\nv_mul_u32_u24 v14, 304, v14\nv_lshrrev_b32 v13, 1, v13\nv_lshlrev_b32 v13, 3, v13\nv_add_u32 v14, v14, v13")
    k(f"v_and_b32 v15, 15, v0\ns_mov_b32 {s(stmp2)}, {KV_STRIDE}")
    for u in range(9):
        k(f"v_add_u32 v10, {16*u}, v15\nv_mul_u32_u24 v11, 3641, v10\nv_lshrrev_b32 v11, 16, v11\nv_mul_u32_u24 v13, 18, v11\nv_sub_u32 v10, v10, v13")
        k(f"v_mul_lo_u32 v11, v11, {s(stmp2)}\nv_lshlrev_b32 v10, 4, v10\nv_add_u32 v10, v10, v11\nv_add_u32 v10, v10, v14")
        for t in range(2):
            r = acc(u,t)
            k(f"v_cvt_pk_bf16_f32 {v(r)}, {v(r)}, {v(r+1)}\nv_cvt_pk_bf16_f32 {v(r+1)}, {v(r+2)}, {v(r+3)}")
            k(f"buffer_store_dwordx2 {v(r,2)}, v10, {s(rKV,4)}, {s(stmp)} offen offset:{t*608}")
    k(f"v_lshrrev_b32 v10, 2, v0\nv_mul_lo_u32 v10, v10, {s(stmp2)}\nv_bfe_u32 v11, v0, 1, 1\nv_mul_u32_u24 v11, 608, v11\nv_add_u32 v10, v10, v11")
    k(f"v_and_b32 v11, 1, v0\nv_mul_u32_u24 v11, 304, v11\nv_add_u32 v10, v10, v11\nv_add_u32 v10, {18*16}, v10")
    k("v_mov_b32 v11, 0x7fffffff\nv_cmp_gt_u32 vcc, 32, v0\nv_cndmask_b32 v10, v11, v10, vcc")
    for e in range(4): k(f"v_mov_b32 {v(X+e)}, 0x3f803f80")
    k(f"buffer_store_dwordx4 {v(X,4)}, v10, {s(rKV,4)}, {s(stmp)} offen")
    k("L_k01_fin:")
    if stamps:
        k("s_waitcnt vmcnt(0)\ns_memtime s[70:71]\ns_memrealtime s[72:73]\ns_waitcnt lgkmcnt(0)")
        srd(k, 24, sWS, WS["AUX"], WS["AUX_SZ"])
        k(f"s_lshl_b32 {s(stmp)}, s2, 3\ns_add_u32 {s(stmp)}, {s(stmp)}, {s(sw)}\ns_lshl_b32 {s(stmp)}, {s(stmp)}, 6\nv_mov_b32 v9, {s(stmp)}")
        for i, (x, y) in enumerate(((64,60),(66,60),(68,60),(70,60),(72,62))):
            k(f"s_sub_u32 s74, s{x}, s{y}\nv_mov_b32 v10, s74\nbuffer_store_dword v10, v9, s[24:27], 0 offen offset:{4*i}")
        k(f"v_mov_b32 v10, s62\nbuffer_store_dword v10, v9, s[24:27], 0 offen offset:20")
        for i, x in enumerate((76, 78, 80, 82, 84)):
            k(f"s_sub_u32 s74, s{x}, s60\nv_mov_b32 v10, s74\nbuffer_store_dword v10, v9, s[24:27], 0 offen offset:{24+4*i}")
    k("s_branch L_k01_end")
    mod_role(k, sWS)
    k("L_k01_end:\ns_endpgm")
    return k, (254, 256, MODL + 5120)
```

```python
from asmgen import *
from layout import *
from k_g1 import srd, spread
from k_g2 import w_patterns

def gen_p3(stamps=False, alg=True):
    k = Kern("p3_kernel", vgprs=224)
    sWS, sWO, sX = 4, 6, 8
    rWO, rOM, rOR, rMOD, rX, rX1, rY, rST = 12, 16, 20, 24, 28, 44, 48, 52
    sw, srb, scs, stmp, stmp2, ssrc, slds = range(32, 39)
    vl16, vP, vA0, vA1, vA2, vA3, vR0, vR1, vom, vor, vx = 1, 2, 5, 6, 7, 8, 9, 10, 11, 12, 13
    BF = 16
    ACC = 88
    AF = 112
    k("s_cmp_ge_u32 s2, 192\ns_cbranch_scc1 L_p3_end")
    k(f"s_load_dwordx2 {s(sWS,2)}, s[0:1], {KA['ws']}")
    k(f"s_load_dwordx2 {s(sWO,2)}, s[0:1], {KA['wo']}")
    k(f"s_load_dwordx2 {s(sX,2)}, s[0:1], {KA['x']}")
    k("v_lshrrev_b32 v14, 6, v0\nv_and_b32 v0, 63, v0")
    k(f"v_readfirstlane_b32 {s(sw)}, v14")
    k(f"v_lshlrev_b32 {v(vl16)}, 4, v0")
    w_patterns(k, vP, 1152, 112)
    k(f"s_and_b32 {s(stmp)}, s2, 7\ns_lshl_b32 {s(srb)}, {s(stmp)}, 2\ns_lshr_b32 {s(stmp)}, s2, 3\ns_and_b32 {s(stmp2)}, {s(stmp)}, 3\ns_add_u32 {s(srb)}, {s(srb)}, {s(stmp2)}\ns_lshr_b32 {s(scs)}, {s(stmp)}, 2")
    k("v_lshrrev_b32 v112, 4, v0\nv_bfe_u32 v113, v0, 2, 2\nv_and_b32 v114, 3, v0\nv_and_b32 v115, 15, v0")
    k("v_lshrrev_b32 v116, 1, v112\nv_mul_u32_u24 v116, 18, v116\nv_and_b32 v117, 1, v112\nv_lshlrev_b32 v117, 2, v117\nv_add_u32 v116, v116, v117\nv_add_u32 v116, v116, v113")
    def mkaddr(row, d0, d1):
        k(f"v_lshrrev_b32 v117, 2, {v(row)}\nv_and_b32 v117, 1, v117\nv_lshlrev_b32 v117, 5, v117")
        k(f"v_mul_u32_u24 v118, 192, {v(row)}\nv_lshlrev_b32 v119, 3, v114\nv_add_u32 v118, v118, v119")
        k(f"v_add_u32 {v(d0)}, v118, v117\nv_xor_b32 v117, 32, v117\nv_add_u32 {v(d1)}, v118, v117")
    mkaddr(116, vA0, vA1)
    k(f"v_add_u32 {v(vA2)}, {8*6912}, {v(vA0)}\nv_add_u32 {v(vA3)}, {8*6912}, {v(vA1)}")
    k("v_lshlrev_b32 v116, 2, v112\nv_lshrrev_b32 v117, 1, v113\nv_add_u32 v116, v116, v117\nv_mul_u32_u24 v116, 18, v116\nv_and_b32 v117, 1, v113\nv_add_u32 v116, v116, v117\nv_add_u32 v116, 16, v116")
    mkaddr(116, vR0, vR1)
    k(f"s_lshl_b32 {s(stmp)}, {s(srb)}, 2\ns_add_u32 {s(stmp)}, {s(stmp)}, {s(sw)}\ns_lshl_b32 {s(stmp2)}, {s(stmp)}, 4\nv_add_u32 v116, {s(stmp2)}, v115")
    k(f"v_lshlrev_b32 v117, 15, v112\nv_lshlrev_b32 v118, 4, v116\nv_add_u32 {v(vom)}, v117, v118")
    k(f"v_lshlrev_b32 v117, 13, v112\nv_add_u32 v117, v117, v116\nv_lshlrev_b32 {v(vor)}, 2, v117")
    XL = 110592
    for e in range(3):
        k(f"v_add_u32 v117, {64*e}, v0\nv_mul_u32_u24 v118, 21846, v117\nv_lshrrev_b32 v118, 18, v118\nv_mul_u32_u24 v119, 12, v118\nv_sub_u32 v117, v117, v119\nv_lshlrev_b32 v117, 4, v117\nv_mul_u32_u24 v118, 1152, v118\nv_add_u32 {v(164+8+e)}, v117, v118")
    k(f"v_mul_u32_u24 v117, 192, v115\nv_lshlrev_b32 v118, 3, v112\nv_add_u32 v117, v117, v118\ns_mul_i32 {s(stmp2)}, {s(sw)}, 3072\ns_add_u32 {s(stmp2)}, {s(stmp2)}, {XL}\nv_add_u32 {v(vx)}, {s(stmp2)}, v117")
    k("v_lshlrev_b32 v14, 4, v112")
    k("s_waitcnt lgkmcnt(0)")
    srd(k, rWO, sWO, 0, 576*1152); srd(k, rOM, sWS, WS["OM"], WS["OM_SZ"]); srd(k, rOR, sWS, WS["OR"], WS["OR_SZ"])
    srd(k, rMOD, sWS, WS["MOD"], WS["MOD_SZ"]); srd(k, rX, sX, 0, 2048*1152); srd(k, rX1, sWS, WS["X1F"], WS["X1F_SZ"])
    if alg: srd(k, rY, sWS, WS["H2F"], WS["H2F_SZ"]); srd(k, rST, sWS, WS["STAT"], WS["STAT_SZ"])
    k(f"s_lshl_b32 {s(stmp)}, {s(srb)}, 2\ns_add_u32 {s(stmp)}, {s(stmp)}, {s(sw)}\ns_mul_i32 {s(stmp)}, {s(stmp)}, {16*1152}\ns_mul_i32 {s(stmp2)}, {s(scs)}, 192\ns_add_u32 {s(stmp)}, {s(stmp)}, {s(stmp2)}\ns_mul_i32 {s(slds)}, {s(sw)}, 3072")
    for e in range(3):
        k(f"s_add_u32 m0, {s(slds)}, {110592 + e*1024}\ns_nop 0\nbuffer_load_dwordx4 {v(172+e)}, {s(rX,4)}, {s(stmp)} offen lds")
    k(f"s_mul_i32 {s(ssrc)}, {s(sw)}, {16*1152}\ns_mul_i32 {s(stmp2)}, {s(scs)}, 192\ns_add_u32 {s(ssrc)}, {s(ssrc)}, {s(stmp2)}\ns_mul_i32 {s(slds)}, {s(sw)}, 3072")
    for g in range(9):
        for i in range(3):
            k(f"s_add_u32 m0, {s(slds)}, {g*4*3072 + i*1024}")
            k(f"s_add_u32 {s(stmp2)}, {s(ssrc)}, {g*4*16*1152}")
            k(f"buffer_load_dwordx4 {v(vP+i)}, {s(rWO,4)}, {s(stmp2)} offen lds")
    for sx in range(16):
        k(f"s_mov_b32 {s(stmp2)}, {sx*131072}\nbuffer_load_dwordx4 {v(BF+4*sx,4)}, {v(vom)}, {s(rOM,4)}, {s(stmp2)} offen")
    for sp in range(2):
        for jj in range(4):
            k(f"s_mov_b32 {s(stmp2)}, {(16*sp+jj)*8192}\nbuffer_load_dword {v(BF+64+4*sp+jj)}, {v(vor)}, {s(rOR,4)}, {s(stmp2)} offen")
    k("s_waitcnt vmcnt(24)\ns_barrier")
    XR = 160; GA = 176; G2 = 200
    k(f"s_mul_i32 {s(stmp2)}, {s(scs)}, {96*4}\ns_add_u32 {s(stmp)}, {s(stmp2)}, {2*576*4}")
    for dt in range(6): k(f"buffer_load_dwordx4 {v(GA+4*dt,4)}, v14, {s(rMOD,4)}, {s(stmp)} offen offset:{dt*64}")
    NG = 6
    if alg:
        k(f"s_add_u32 {s(stmp)}, {s(stmp2)}, {4*576*4}")
        for dt in range(6): k(f"buffer_load_dwordx4 {v(G2+4*dt,4)}, v14, {s(rMOD,4)}, {s(stmp)} offen offset:{dt*64}")
        NG = 12
    def areads(sx, par):
        ops = []
        for dt in range(6):
            r = AF + par*24 + dt*4
            if sx < 16:
                regs = (vA0, vA1) if sx < 8 else (vA2, vA3)
                ad = regs[(dt & 1) ^ (sx & 1)]
                o = (sx % 8)*6912 + (dt & ~1)*32
                ops.append(f"ds_read_b64_tr_b16 {v(r,2)}, {v(ad)} offset:{o}")
                ops.append(f"ds_read_b64_tr_b16 {v(r+2,2)}, {v(ad)} offset:{o+1536}")
            else:
                sp = sx - 16
                o = sp*288*192 + (dt & ~1)*32
                ops.append(f"ds_read_b64_tr_b16 {v(r,2)}, {v((vR0, vR1)[dt & 1])} offset:{o}")
                ops.append(f"ds_read_b64_tr_b16 {v(r+2,2)}, {v((vR0, vR1)[(dt & 1) ^ 1])} offset:{o + 36*192}")
        return ops
    for o in areads(0, 0): k(o)
    for sx in range(18):
        par = sx % 2
        nb = {0: 23}.get(sx)
        need = ((16 - 1 - sx + 8) if sx < 16 else (4 if sx == 16 else 0)) + NG
        k(f"s_waitcnt vmcnt({need}) lgkmcnt(0)")
        fill = areads(sx+1, 1-par) if sx < 17 else []
        slots = spread(fill, 6)
        for dt in range(6):
            c = "0" if sx == 0 else v(ACC+4*dt,4)
            k(f"v_mfma_f32_16x16x32_bf16 {v(ACC+4*dt,4)}, {v(AF+par*24+dt*4,4)}, {v(BF+4*sx,4)}, {c}")
            for o in slots[dt]: k(o)
    for dt in range(6): k(f"ds_read_b64 {v(XR+2*dt,2)}, {v(vx)} offset:{dt*32}")
    k("s_waitcnt vmcnt(0) lgkmcnt(0)")
    T = AF; OY = BF + 16; O1 = BF
    if alg: k("v_mov_b32 v14, 0\nv_mov_b32 v15, 0")
    for dt in range(6):
        xr = XR + 2*dt; t = T + 4*dt
        k(f"v_lshlrev_b32 {v(t)}, 16, {v(xr)}\nv_and_b32 {v(t+1)}, 0xffff0000, {v(xr)}")
        k(f"v_lshlrev_b32 {v(t+2)}, 16, {v(xr+1)}\nv_and_b32 {v(t+3)}, 0xffff0000, {v(xr+1)}")
        for r in range(4): k(f"v_fma_f32 {v(t+r)}, {v(GA+4*dt+r)}, {v(ACC+4*dt+r)}, {v(t+r)}")
        o = O1 + (dt >> 1)*4 + (dt & 1)*2
        k(f"v_cvt_pk_bf16_f32 {v(o)}, {v(t)}, {v(t+1)}\nv_cvt_pk_bf16_f32 {v(o+1)}, {v(t+2)}, {v(t+3)}")
        if alg:
            for r in range(4): k(f"v_add_f32 v14, v14, {v(t+r)}\nv_fmac_f32 v15, {v(t+r)}, {v(t+r)}")
            for r in range(4): k(f"v_mul_f32 {v(t+r)}, {v(G2+4*dt+r)}, {v(t+r)}")
            o = OY + (dt >> 1)*4 + (dt & 1)*2
            k(f"v_cvt_pk_bf16_f32 {v(o)}, {v(t)}, {v(t+1)}\nv_cvt_pk_bf16_f32 {v(o+1)}, {v(t+2)}, {v(t+3)}")
    k(f"s_lshl_b32 {s(stmp)}, {s(srb)}, 2\ns_add_u32 {s(stmp)}, {s(stmp)}, {s(sw)}\ns_mul_i32 {s(ssrc)}, {s(stmp)}, {18*1024}\ns_mul_i32 {s(stmp2)}, {s(scs)}, 3072\ns_add_u32 {s(ssrc)}, {s(ssrc)}, {s(stmp2)}")
    if alg:
        for j in range(3): k(f"buffer_store_dwordx4 {v(OY+4*j,4)}, {v(vl16)}, {s(rY,4)}, {s(ssrc)} offen offset:{j*1024}")
    for j in range(3): k(f"buffer_store_dwordx4 {v(O1+4*j,4)}, {v(vl16)}, {s(rX1,4)}, {s(ssrc)} offen offset:{j*1024}")
    if alg:
        for r in ("v14", "v15"):
            k(f"v_mov_b32 v13, {r}\nv_permlane32_swap_b32 {r}, v13\nv_add_f32 {r}, {r}, v13\nv_mov_b32 v13, {r}\nv_permlane16_swap_b32 {r}, v13\nv_add_f32 {r}, {r}, v13")
        k(f"v_lshlrev_b32 v12, 3, v0\nv_mov_b32 v13, 0x7fffffff\nv_cmp_gt_u32 vcc, 16, v0\nv_cndmask_b32 v12, v13, v12, vcc")
        k(f"s_lshl_b32 {s(stmp)}, {s(stmp)}, 7\ns_lshl_b32 {s(stmp2)}, {s(scs)}, 14\ns_add_u32 {s(stmp)}, {s(stmp)}, {s(stmp2)}")
        k(f"buffer_store_dwordx2 v[14:15], v12, {s(rST,4)}, {s(stmp)} offen")
    k("L_p3_end:\ns_endpgm")
    return k, (192, 256, 110592 + 12288)

def gen_ln2():
    k = Kern("ln2_kernel", vgprs=128)
    sWS = 4; rX1, rH2, rMOD = 8, 12, 16
    stile, stmp = 32, 33
    X = 16; G = 88; SB = 96; T = 104
    k("s_cmp_ge_u32 s2, 128\ns_cbranch_scc1 L_ln2_end")
    k(f"s_load_dwordx2 {s(sWS,2)}, s[0:1], {KA['ws']}")
    k("v_lshlrev_b32 v1, 4, v0\nv_lshrrev_b32 v2, 4, v0\nv_lshlrev_b32 v2, 4, v2")
    k(f"s_mul_i32 {s(stile)}, s2, {18*1024}")
    k("s_waitcnt lgkmcnt(0)")
    srd(k, rX1, sWS, WS["X1F"], WS["X1F_SZ"]); srd(k, rH2, sWS, WS["H2F"], WS["H2F_SZ"]); srd(k, rMOD, sWS, WS["MOD"], WS["MOD_SZ"])
    for ks in range(18):
        k(f"s_add_u32 {s(stmp)}, {s(stile)}, {(ks>>2)*4096}\nbuffer_load_dwordx4 {v(X+4*ks,4)}, v1, {s(rX1,4)}, {s(stmp)} offen offset:{(ks&3)*1024}")
    k("v_mov_b32 v3, 0\nv_mov_b32 v4, 0\nv_mov_b32 v5, 0x3f803f80")
    for i in range(72):
        if i % 4 == 0: k(f"s_waitcnt vmcnt({17 - i//4})")
        k(f"v_dot2_f32_bf16 v3, {v(X+i)}, v5, v3\nv_dot2_f32_bf16 v4, {v(X+i)}, {v(X+i)}, v4")
    for r in ("v3", "v4"):
        k(f"v_mov_b32 v6, {r}\nv_permlane32_swap_b32 {r}, v6\nv_add_f32 {r}, {r}, v6\nv_mov_b32 v6, {r}\nv_permlane16_swap_b32 {r}, v6\nv_add_f32 {r}, {r}, v6")
    k("v_mul_f32 v3, 0x3ae38e39, v3\nv_mul_f32 v4, 0x3ae38e39, v4")
    k("v_fma_f32 v4, -v3, v3, v4\nv_max_f32 v4, 0, v4\nv_add_f32 v4, 0x3727c5ac, v4\nv_rsq_f32 v4, v4")
    k("s_nop 0\nv_mul_f32 v3, v3, v4\nv_sub_f32 v3, 0, v3")
    for ks in range(18):
        k(f"s_mov_b32 {s(stmp)}, {(4*576 + 32*ks)*4}")
        k(f"buffer_load_dwordx4 {v(G,4)}, v2, {s(rMOD,4)}, {s(stmp)} offen\nbuffer_load_dwordx4 {v(G+4,4)}, v2, {s(rMOD,4)}, {s(stmp)} offen offset:64")
        k(f"s_mov_b32 {s(stmp)}, {(3*576 + 32*ks)*4}")
        k(f"buffer_load_dwordx4 {v(SB,4)}, v2, {s(rMOD,4)}, {s(stmp)} offen\nbuffer_load_dwordx4 {v(SB+4,4)}, v2, {s(rMOD,4)}, {s(stmp)} offen offset:64")
        for j in range(4):
            x = X + 4*ks + j
            k(f"v_lshlrev_b32 {v(T+2*j)}, 16, {v(x)}\nv_and_b32 {v(T+2*j+1)}, 0xffff0000, {v(x)}")
        for e in range(8): k(f"v_fma_f32 {v(T+e)}, {v(T+e)}, v4, v3")
        k("s_waitcnt vmcnt(0)")
        for e in range(8): k(f"v_fma_f32 {v(T+e)}, {v(T+e)}, {v(G+e)}, {v(SB+e)}")
        for j in range(4): k(f"v_cvt_pk_bf16_f32 {v(X+4*ks+j)}, {v(T+2*j)}, {v(T+2*j+1)}")
        k(f"s_add_u32 {s(stmp)}, {s(stile)}, {ks*1024}\nbuffer_store_dwordx4 {v(X+4*ks,4)}, v1, {s(rH2,4)}, {s(stmp)} offen")
    k("L_ln2_end:\ns_endpgm")
    return k, (128, 64, 0)
```

```python
import sys, build
import k_k01b, k_att, k_p3, k_g1b, k_g2d
GENS = [k_k01b.gen_k01,
        lambda: k_att.gen_att(helper=True, prefetch=[("p3_kernel", 1), ("g1_kernel", 4)]),
        k_p3.gen_p3,
        lambda: k_g1b.gen_g1(wt_upto=4, prefetch=[("g2a_kernel", 7)]),
        k_g2d.gen_g2]
if __name__ == "__main__":
    path = sys.argv[1] if len(sys.argv) > 1 else "cdna_kernels/%s.s" % build.NAME
    build.check(GENS, path)
```

```python
from asmgen import *
from layout import *
from k_g1 import srd

def gen_g1(stamps=False, PDS=3, cap=11, wt_upto=6, prefetch=None, alg=True):
    NK = 19 if alg else 18
    US = NK*2048
    k = Kern("g1_kernel", vgprs=(248 if alg else 220), agprs=256)
    B19, VA, VS2, PFV = 216, 232, 236, 240
    sWS = 4
    rW, rH2, rHH = 12, 16, 20
    sw, srb, sg, stmp, stmp2, snl2e, sst, sw01s, sw01d, sw23s, sw23d, sfs, sfd, su8, sh0 = range(32, 47)
    sx = 48
    sso = 47
    vl16, vS, vst2 = 1, 2, 6
    XV, RING, ACC, OUT, TMP = 8, 40, 64, 192, 208
    def xr(t, ks):
        if ks == 18: return v(B19 + 4*t, 4)
        i = (ks*4 + t)*4
        return a(i, 4) if i < 256 else v(XV + i - 256, 4)
    k("s_cmp_ge_u32 s2, 256\ns_cbranch_scc1 L_g1_end")
    k(f"s_load_dwordx2 {s(sWS,2)}, s[0:1], {KA['ws']}")
    if stamps: k("s_memtime s[60:61]\ns_memrealtime s[62:63]")
    k(f"v_lshrrev_b32 v8, 6, v0\nv_and_b32 v0, 63, v0\nv_readfirstlane_b32 {s(sw)}, v8\nv_lshlrev_b32 {v(vl16)}, 4, v0")
    for i in range(4): k(f"v_add_u32 {v(vS+i)}, {i*US}, {v(vl16)}")
    k(f"s_and_b32 {s(stmp)}, s2, 1\ns_lshl_b32 {s(srb)}, {s(stmp)}, 2\ns_lshr_b32 {s(stmp)}, s2, 6\ns_add_u32 {s(srb)}, {s(srb)}, {s(stmp)}")
    k(f"s_lshr_b32 {s(sg)}, s2, 1\ns_and_b32 {s(sg)}, {s(sg)}, 3\ns_lshl_b32 {s(sg)}, {s(sg)}, 3\ns_lshr_b32 {s(stmp)}, s2, 3\ns_and_b32 {s(stmp)}, {s(stmp)}, 7\ns_add_u32 {s(sg)}, {s(sg)}, {s(stmp)}")
    k(f"s_lshl_b32 {s(stmp)}, {s(srb)}, 4\ns_lshl_b32 {s(stmp2)}, {s(sw)}, 2\ns_add_u32 {s(stmp)}, {s(stmp)}, {s(stmp2)}")
    k(f"s_mul_i32 {s(sx)}, {s(stmp)}, {18*1024}")
    for t in range(1, 4): k(f"s_add_u32 {s(sx+t)}, {s(sx)}, {t*18*1024}")
    k(f"s_mul_i32 {s(sh0)}, {s(stmp)}, {144*1024}")
    k(f"s_mul_i32 {s(sfs)}, {s(sg)}, {8*US}")
    k(f"s_add_u32 {s(su8)}, {s(sg)}, 256\ns_mul_i32 {s(su8)}, {s(su8)}, {US}")
    k(f"s_lshr_b32 {s(stmp)}, {s(sw)}, 1\ns_mul_i32 {s(stmp)}, {s(stmp)}, {US}\ns_and_b32 {s(stmp2)}, {s(sw)}, 1")
    k(f"s_lshl_b32 {s(sw01d)}, {s(stmp2)}, 11\ns_add_u32 {s(sw01d)}, {s(sw01d)}, {s(stmp)}\ns_add_u32 {s(sw01s)}, {s(sw01d)}, {s(sfs)}")
    k(f"s_lshl_b32 {s(sw23d)}, {s(stmp2)}, 10\ns_add_u32 {s(sw23d)}, {s(sw23d)}, {s(stmp)}\ns_add_u32 {s(sw23d)}, {s(sw23d)}, {2*US}\ns_add_u32 {s(sw23s)}, {s(sw23d)}, {s(sfs)}")
    if alg: k(f"s_mul_i32 {s(sfd)}, {s(sw)}, 10\ns_min_u32 {s(sfd)}, {s(sfd)}, 28\ns_lshl_b32 {s(sfd)}, {s(sfd)}, 10")
    else: k(f"s_mul_i32 {s(sfd)}, {s(sw)}, 9216")
    k(f"s_mov_b32 {s(snl2e)}, 0xbfb8aa3b")
    k(f"s_and_b32 {s(stmp)}, {s(sg)}, 1\ns_lshl_b32 {s(stmp)}, {s(stmp)}, 3\nv_add_u32 {v(vst2)}, {s(stmp)}, {v(vl16)}")
    k("s_waitcnt lgkmcnt(0)")
    srd(k, rW, sWS, WS["W13F"], WS["W13F_SZ"]); srd(k, rH2, sWS, WS["H2F"], WS["H2F_SZ"]); srd(k, rHH, sWS, WS["HHF"], WS["HHF_SZ"])
    rST = 24
    if alg: srd(k, rST, sWS, WS["STAT"], WS["STAT_SZ"])

    vm = []
    def emit(op):
        if isinstance(op, tuple): k(op[0]); vm.append(op[1])
        else: k(op)
    def wait(*tags):
        idx = [i for i, t in enumerate(vm) if t in tags]
        n = len(vm) - 1 - max(idx)
        k(f"s_waitcnt vmcnt({min(n, 63)})")
    def LG(c):
        ops = []
        for ks in (2*c, 2*c+1):
            for t in range(4):
                o = f"buffer_load_dwordx4 {xr(t,ks)}, {v(vl16)}, {s(rH2,4)}, {s(sx+t)} offen offset:{(ks & 3)*1024}"
                if ks & 3 == 3: o += f"\ns_add_u32 {s(sx+t)}, {s(sx+t)}, 4096"
                ops.append((o, ('L', c)))
        ops.append((f"s_mov_b32 m0, {s(sw01d)}\ns_nop 0\nbuffer_load_dwordx4 {v(vl16)}, {s(rW,4)}, {s(sw01s)} offen lds", ('L', c)))
        ops.append((f"buffer_load_dwordx4 {v(vl16)}, {s(rW,4)}, {s(sw01s)} offen offset:1024 lds\ns_add_u32 {s(sw01s)}, {s(sw01s)}, 4096\ns_add_u32 {s(sw01d)}, {s(sw01d)}, 4096", ('L', c)))
        ops.append((f"s_mov_b32 m0, {s(sw23d)}\ns_nop 0\nbuffer_load_dwordx4 {v(vl16)}, {s(rW,4)}, {s(sw23s)} offen lds\ns_add_u32 {s(sw23s)}, {s(sw23s)}, 2048\ns_add_u32 {s(sw23d)}, {s(sw23d)}, 2048", ('L', c)))
        return ops
    def dma9(srcbase_expr_setup, dst_setup, tag):
        NP = 10 if alg else 9
        ops = []
        for c in range(3):
            n = 4 if c < 2 else NP - 8
            for i in range(n):
                hd = ""
                if i == 0:
                    hd = (srcbase_expr_setup + "\n" + dst_setup + "\n" if c == 0 else f"s_add_u32 {s(sst)}, {s(sst)}, 4096\ns_add_u32 {s(stmp2)}, {s(stmp2)}, 4096\n") + f"s_mov_b32 m0, {s(stmp2)}\ns_nop 0\n"
                ops.append((hd + f"buffer_load_dwordx4 {v(vl16)}, {s(rW,4)}, {s(sst)} offen offset:{i*1024} lds", tag))
        return ops
    def W23rest():
        src = (f"s_lshr_b32 {s(stmp)}, {s(sw)}, 1\ns_add_u32 {s(stmp)}, {s(stmp)}, 2\ns_mul_i32 {s(stmp)}, {s(stmp)}, {US}\ns_and_b32 {s(stmp2)}, {s(sw)}, 1\ns_mul_i32 {s(stmp2)}, {s(stmp2)}, {10240 if alg else 9216}\n"
               f"s_add_u32 {s(stmp2)}, {s(stmp2)}, {s(stmp)}\ns_add_u32 {s(stmp2)}, {s(stmp2)}, 18432\ns_add_u32 {s(sst)}, {s(stmp2)}, {s(sfs)}")
        return dma9(src, "", ('R',))
    def LG9():
        return [(f"s_lshr_b32 {s(stmp)}, {s(sw)}, 1\ns_mul_i32 {s(stmp)}, {s(stmp)}, {US}\ns_and_b32 {s(stmp2)}, {s(sw)}, 1\ns_lshl_b32 {s(stmp2)}, {s(stmp2)}, 10\ns_add_u32 {s(stmp2)}, {s(stmp2)}, {s(stmp)}\n"
                 f"s_add_u32 {s(stmp2)}, {s(stmp2)}, {18*2048}\ns_add_u32 {s(sst)}, {s(stmp2)}, {s(sfs)}\ns_mov_b32 m0, {s(stmp2)}\ns_nop 0\nbuffer_load_dwordx4 {v(vl16)}, {s(rW,4)}, {s(sst)} offen lds", ('R',))]
    def UD(u):
        slot = u % 4
        if u < 8: src = f"s_add_u32 {s(sst)}, {s(sfs)}, {u*US}\ns_add_u32 {s(sst)}, {s(sst)}, {s(sfd)}"
        else: src = f"s_add_u32 {s(sst)}, {s(su8)}, {s(sfd)}"
        return dma9(src, f"s_add_u32 {s(stmp2)}, {s(sfd)}, {slot*US}", ('U', u))
    def fixdma(ops):
        return [(o.replace("\n\n", "\n"), t) for o, t in ops]

    steps = []
    for c in range(9): steps += [(0, 2*c), (1, 2*c), (2, c), (0, 2*c+1), (1, 2*c+1), (3, c)]
    if alg: steps += [(0, 18), (1, 18)]
    PA = len(steps)
    for kk in range(9, NK): steps += [(2, kk), (3, kk)]
    PB = len(steps)
    for u in range(4, 9): steps += [(u, ks) for ks in range(NK)]
    N = len(steps); assert N == 9*NK
    last_step = {u: max(i for i, (uu, _) in enumerate(steps) if uu == u) for u in range(9)}
    first_step = {u: min(i for i, (uu, _) in enumerate(steps) if uu == u) for u in range(9)}
    def reads(i):
        u, ks = steps[i]; slot = RING + 8*(i % 3); b = vS + (u % 4)
        return [f"ds_read_b128 {v(slot,4)}, {v(b)} offset:{ks*2048}", f"ds_read_b128 {v(slot+4,4)}, {v(b)} offset:{ks*2048+1024}"]
    def epi(u):
        X = ACC + 32*(u % 4); p = u % 2; ops = []
        g = lambda e: X + e; uu = lambda e: X + 16 + e
        for b in (0, 8):
            es = range(b, b+8); t = lambda e: TMP + e - b
            if alg: ops += [(f"v_mul_f32 {v(t(e))}, {v(VA + e//4)}, {v(g(e))}", 1) for e in es]
            else: ops += [(f"v_mul_f32 {v(t(e))}, {s(snl2e)}, {v(g(e))}", 1) for e in es]
            ops += [(f"v_exp_f32 {v(t(e))}, {v(t(e))}", 2) for e in es]
            ops += [(f"v_mul_f32 {v(uu(e))}, {v(g(e))}, {v(uu(e))}", 1) for e in es]
            if alg: ops += [(f"v_fma_f32 {v(t(e))}, {v(t(e))}, {v(VS2 + e//4)}, {v(VS2 + e//4)}", 1) for e in es]
            else: ops += [(f"v_add_f32 {v(t(e))}, 1.0, {v(t(e))}", 1) for e in es]
            ops += [(f"v_rcp_f32 {v(t(e))}, {v(t(e))}", 2) for e in es]
            ops += [(f"v_mul_f32 {v(uu(e))}, {v(uu(e))}, {v(t(e))}", 1) for e in es]
            for e in es:
                if e % 2 == 0:
                    tt = e // 4; h = (e % 4)//2
                    dst = OUT + 4*tt + (2*p if u < 8 else 0) + h
                    ops.append((f"v_cvt_pk_bf16_f32 {v(dst)}, {v(uu(e))}, {v(uu(e+1))}", 1))
        out = [(o, c, None) for o, c in ops]
        if u < 8 and p == 1:
            for tt in range(4):
                hd = (f"s_lshl_b32 {s(sso)}, {s(sg)}, 2\ns_add_u32 {s(sso)}, {s(sso)}, {u >> 1}\ns_lshl_b32 {s(sso)}, {s(sso)}, 10\ns_add_u32 {s(sso)}, {s(sso)}, {s(sh0)}\n" if tt == 0 else f"s_add_u32 {s(sso)}, {s(sso)}, {144*1024}\n")
                out.append((hd + f"buffer_store_dwordx4 {v(OUT+4*tt,4)}, {v(vl16)}, {s(rHH,4)}, {s(sso)} offen" + (" sc1" if u < wt_upto else ""), 2, ('S', u)))
        if u == 8:
            for tt in range(4):
                hd = (f"s_lshr_b32 {s(sso)}, {s(sg)}, 1\ns_add_u32 {s(sso)}, {s(sso)}, 128\ns_lshl_b32 {s(sso)}, {s(sso)}, 10\ns_add_u32 {s(sso)}, {s(sso)}, {s(sh0)}\n" if tt == 0 else f"s_add_u32 {s(sso)}, {s(sso)}, {144*1024}\n")
                out.append((hd + f"buffer_store_dwordx2 {v(OUT+4*tt,2)}, {v(vst2)}, {s(rHH,4)}, {s(sso)} offen", 2, ('S', u)))
        return out
    epiq = []
    done_units = set()
    def emit_epi(o):
        if o[4] is not None: k(o[2]); vm.append(o[4])
        else: k(o[2])
    if alg:
        k(f"v_lshrrev_b32 v8, 4, v0\nv_lshlrev_b32 v8, 14, v8\nv_and_b32 v9, 15, v0\nv_lshlrev_b32 v9, 3, v9\nv_add_u32 v8, v8, v9")
        k(f"v_add_u32 v9, {4*16384}, v8\nv_mov_b32 v10, 0x7fffffff\nv_cmp_gt_u32 vcc, 32, v0\nv_cndmask_b32 v9, v10, v9, vcc")
        k(f"s_lshl_b32 {s(stmp)}, {s(srb)}, 4\ns_lshl_b32 {s(stmp2)}, {s(sw)}, 2\ns_add_u32 {s(stmp)}, {s(stmp)}, {s(stmp2)}\ns_lshl_b32 {s(stmp)}, {s(stmp)}, 7")
        for t in range(4):
            emit((f"buffer_load_dwordx2 {v(OUT+4*t,2)}, v8, {s(rST,4)}, {s(stmp)} offen offset:{t*128}", ('T',)))
            emit((f"buffer_load_dwordx2 {v(OUT+4*t+2,2)}, v9, {s(rST,4)}, {s(stmp)} offen offset:{t*128}", ('T',)))
    for o in LG(0): emit(o)
    for c in range(1, PDS):
        for o in LG(c): emit(o)
    statq = []
    if alg:
        for t in range(4):
            a0 = OUT + 4*t; m_, q_, tm = a0, a0+1, TMP + 2*t
            L = []
            L.append(f"v_add_f32 {v(m_)}, {v(a0)}, {v(a0+2)}"); L.append(f"v_add_f32 {v(q_)}, {v(a0+1)}, {v(a0+3)}")
            for r in (m_, q_):
                L += [f"v_mov_b32 {v(tm)}, {v(r)}", f"s_nop 1\nv_permlane32_swap_b32 {v(r)}, {v(tm)}", f"v_add_f32 {v(r)}, {v(r)}, {v(tm)}", f"v_mov_b32 {v(tm)}, {v(r)}",
                      f"s_nop 1\nv_permlane16_swap_b32 {v(r)}, {v(tm)}", f"v_add_f32 {v(r)}, {v(r)}, {v(tm)}"]
            L += [f"v_mul_f32 {v(m_)}, 0x3ae38e39, {v(m_)}", f"v_mul_f32 {v(q_)}, 0x3ae38e39, {v(q_)}",
                  f"v_fma_f32 {v(q_)}, -{v(m_)}, {v(m_)}, {v(q_)}", f"v_max_f32 {v(q_)}, 0, {v(q_)}", f"v_add_f32 {v(VS2+t)}, 0x3727c5ac, {v(q_)}",
                  f"v_rsq_f32 {v(tm)}, {v(VS2+t)}", f"v_sub_f32 {v(m_)}, 0, {v(m_)}", f"v_mul_f32 {v(VA+t)}, {s(snl2e)}, {v(tm)}", f"v_mul_f32 {v(q_)}, {v(VS2+t)}, {v(tm)}",
                  f"v_cndmask_b32 {v(m_)}, 0, {v(m_)}, s[52:53]", f"v_cndmask_b32 {v(q_)}, 0, {v(q_)}, s[52:53]"]
            b = B19 + 4*t
            L += [f"v_cvt_pk_bf16_f32 {v(tm)}, {v(m_)}, {v(m_)}", f"v_lshlrev_b32 {v(tm)}, 16, {v(tm)}", f"v_sub_f32 {v(tm)}, {v(m_)}, {v(tm)}", f"v_cvt_pk_bf16_f32 {v(b)}, {v(m_)}, {v(tm)}",
                  f"v_cvt_pk_bf16_f32 {v(b+1)}, {v(m_)}, {v(q_)}", f"v_cvt_pk_bf16_f32 {v(tm)}, {v(q_)}, {v(q_)}", f"v_lshlrev_b32 {v(tm)}, 16, {v(tm)}",
                  f"v_sub_f32 {v(tm)}, {v(q_)}, {v(tm)}", f"v_cvt_pk_bf16_f32 {v(b+2)}, {v(tm)}, {v(q_)}", f"v_mov_b32 {v(b+3)}, 0"]
            statq.append(L)
        merged = []
        for i in range(max(len(L) for L in statq)):
            for L in statq:
                if i < len(L): merged.append(L[i])
        statq = merged
        k("v_cmp_gt_u32 s[52:53], 16, v0")
    wait(('L', 0)); k("s_barrier")
    if stamps: k("s_memtime s[64:65]")
    for o in reads(0) + reads(1): k(o)
    vq = []
    busy9 = [0]
    for i in range(N):
        u, ks = steps[i]
        pre_bar = False
        if (i + 2) < 54 and (i + 2) % 6 == 0:
            c = (i + 2)//6
            while any(t == ('L', c) for _, t in vq): emit(vq.pop(0))
            wait(('L', c)); k("s_barrier")
        if alg and i == 52:
            while vq: emit(vq.pop(0))
            wait(('R',)); k("s_barrier")
        if i == PA - 2:
            while vq: emit(vq.pop(0))
            k("s_waitcnt lgkmcnt(0)"); wait(('R',)); k("s_barrier")
            vq += fixdma(UD(4)) + fixdma(UD(5))
        if i == PB - 2:
            while any(t == ('U', 4) for _, t in vq): emit(vq.pop(0))
            k("s_waitcnt lgkmcnt(0)"); wait(('U', 4)); k("s_barrier")
            vq += fixdma(UD(6)) + fixdma(UD(7))
        if i == PB + NK - 2:
            while any(t == ('U', 5) for _, t in vq): emit(vq.pop(0))
            k("s_waitcnt lgkmcnt(0)"); wait(('U', 5)); k("s_barrier")
            vq += fixdma(UD(8))
        for uu_, at in ((6, PB + 2*NK - 2), (7, PB + 3*NK - 2), (8, PB + 4*NK - 2)):
            if i == at:
                while any(t == ('U', uu_) for _, t in vq): emit(vq.pop(0))
                wait(('U', uu_)); k("s_barrier")
        if i == PB + 4*NK + 2 and prefetch:
            k(f"s_cmp_lt_u32 s2, 8\ns_cbranch_scc0 L_g1_nopf\ns_cmp_eq_u32 {s(sw)}, 0\ns_cbranch_scc0 L_g1_nopf")
            for nm, ns in prefetch: touch_code(k, nm, ns, vt=PFV if alg else 216)
            k("L_g1_nopf:")
            k("s_nop 0")
        if i < 54 and i % 6 == 0:
            c = i//6 + PDS
            if c < 9: vq += LG(c)
            if i//6 == 9 - PDS or (PDS > 8 and i == 0): vq += fixdma(W23rest()) + (LG9() if alg else [])
        if u >= 4 and i == first_step[u]:
            while any(o[1] == u - 4 for o in epiq): emit_epi(epiq.pop(0))
        rd = reads(i+2) if i + 2 < N else []
        synced = i in (PA - 2, PB - 2, PB + NK - 2)
        if not synced:
            nout = (2 if i + 1 < N else 0)
            k(f"s_waitcnt lgkmcnt({nout})")
        X = ACC + 32*(u % 4); slot = RING + 8*(i % 3)
        budget = cap
        nv = -(-len(vq) // max(1, 6 if i < PA else 9)) if vq else 0
        nv = min(nv, 3)
        for j in range(8):
            m, t = j // 4, j % 4
            acc = X + 16*m + 4*t
            c = "0" if ks == 0 else v(acc, 4)
            k(f"v_mfma_f32_16x16x32_bf16 {v(acc,4)}, {v(slot+4*m,4)}, {xr(t,ks)}, {c}")
            used = 0
            if rd and j in (0, 1): k(rd.pop(0)); used += 1
            if vq and nv > 0 and j in (2, 4, 6):
                emit(vq.pop(0)); nv -= 1; used += 2; budget -= 2
            if statq and i >= 6 and used < 2:
                k(statq.pop(0)); used += 1
                if statq and used < 2: k(statq.pop(0)); used += 1
            while epiq and epiq[0][0] <= i and used < 2 and budget > 0:
                o = epiq[0]
                if used + min(o[3], 2) > 2 and used > 0: break
                epiq.pop(0); emit_epi(o); used += o[3]; budget -= o[3]
        if i == 50: assert not statq
        if i == last_step[u]:
            epiq += [(i + 2, u, o, c, tg) for o, c, tg in epi(u)]
    if stamps: k("s_memtime s[66:67]")
    k("s_nop 7")
    while epiq: emit_epi(epiq.pop(0))
    if stamps:
        k("s_waitcnt vmcnt(0)\ns_memtime s[68:69]\ns_memrealtime s[70:71]\ns_waitcnt lgkmcnt(0)")
        srd(k, 24, sWS, WS["AUX"], WS["AUX_SZ"])
        k(f"s_lshl_b32 {s(stmp)}, s2, 3\ns_add_u32 {s(stmp)}, {s(stmp)}, {s(sw)}\ns_lshl_b32 {s(stmp)}, {s(stmp)}, 6\nv_mov_b32 v9, {s(stmp)}")
        for i, (x, y) in enumerate(((64,60),(66,60),(68,60),(70,62))):
            k(f"s_sub_u32 s72, s{x}, s{y}\nv_mov_b32 v8, s72\nbuffer_store_dword v8, v9, s[24:27], 0 offen offset:{4*i}")
        k(f"v_mov_b32 v8, s62\nbuffer_store_dword v8, v9, s[24:27], 0 offen offset:16")
    k("L_g1_end:\ns_endpgm")
    return k, (256, 256, 4*US)
```

```python
from asmgen import *
from layout import *
from k_g1 import srd, spread

def gen_g2a(stamps=False, NB=6, fused=True):
    GS = 36864
    k = Kern("g2a_kernel", vgprs=208, agprs=8*NB)
    sWS = 4
    rW2, rHH, rP = 12, 16, 20
    sw, srb, scs, skq, sa_, sb0, sb1, stmp, stmp2, sloop, slds, sp = range(32, 44)
    vl16, vA = 1, 2
    ACC = 8
    AF = 80
    acc = lambda t, dt: ACC + (t*9+dt)*4
    Bf = lambda sm, t: sm*8 + t*4
    k("s_cmp_ge_u32 s2, 256\ns_cbranch_scc1 L_g2a_end")
    k(f"s_load_dwordx2 {s(sWS,2)}, s[0:1], {KA['ws']}\ns_load_dwordx2 s[6:7], s[0:1], {KA['out']}")
    if stamps: k("s_memtime s[60:61]\ns_memrealtime s[62:63]")
    k(f"v_lshrrev_b32 v8, 6, v0\nv_and_b32 v0, 63, v0\nv_readfirstlane_b32 {s(sw)}, v8\nv_lshlrev_b32 {v(vl16)}, 4, v0")
    for i in range(3): k(f"v_add_u32 {v(vA+i)}, {i*GS}, {v(vl16)}")
    k(f"s_lshr_b32 {s(skq)}, s2, 1\ns_and_b32 {s(skq)}, {s(skq)}, 3\ns_and_b32 {s(stmp)}, s2, 1\ns_lshl_b32 {s(srb)}, {s(stmp)}, 3")
    k(f"s_lshr_b32 {s(stmp)}, s2, 3\ns_and_b32 {s(stmp2)}, {s(stmp)}, 7\ns_add_u32 {s(srb)}, {s(srb)}, {s(stmp2)}\ns_lshr_b32 {s(scs)}, {s(stmp)}, 3")
    k(f"s_lshl_b32 {s(stmp)}, {s(srb)}, 3\ns_lshl_b32 {s(stmp2)}, {s(sw)}, 1\ns_add_u32 {s(stmp)}, {s(stmp)}, {s(stmp2)}")
    k(f"s_mul_i32 {s(sb0)}, {s(stmp)}, {144*1024}\ns_mul_i32 {s(stmp2)}, {s(skq)}, {36*1024}\ns_add_u32 {s(sb0)}, {s(sb0)}, {s(stmp2)}\ns_add_u32 {s(sb1)}, {s(sb0)}, {144*1024}")
    k(f"s_lshl_b32 {s(stmp2)}, {s(skq)}, 7\ns_add_u32 {s(stmp2)}, {s(stmp2)}, {s(stmp)}\ns_mul_i32 {s(sp)}, {s(stmp2)}, {18*1024}")
    k(f"s_mul_i32 {s(sa_)}, {s(skq)}, 36\ns_add_u32 {s(sa_)}, {s(sa_)}, {s(sw)}\ns_mul_i32 {s(sa_)}, {s(sa_)}, {36*1024}\ns_mul_i32 {s(stmp2)}, {s(scs)}, {9*1024}\ns_add_u32 {s(sa_)}, {s(sa_)}, {s(stmp2)}")
    k(f"s_mul_i32 {s(slds)}, {s(sw)}, 9216")
    k("s_waitcnt lgkmcnt(0)")
    srd(k, rW2, sWS, WS["W2F"], WS["W2F_SZ"]); srd(k, rHH, sWS, WS["HHF"], WS["HHF_SZ"]); srd(k, rP, sWS, WS["PART"], WS["PART_SZ"])
    vm = []
    def wdma(g):
        ops = []
        for c in range(3):
            n = 4 if c < 2 else 1
            hd = f"s_add_u32 m0, {s(slds)}, {(g % 3)*GS + c*4096}\ns_add_u32 {s(stmp)}, {s(sa_)}, {c*4096}\n"
            for i in range(n):
                ops.append((hd if i == 0 else "") + f"buffer_load_dwordx4 {v(vl16)}, {s(rW2,4)}, {s(stmp)} offen offset:{i*1024} lds")
        ops[-1] += f"\ns_add_u32 {s(sa_)}, {s(sa_)}, {4*36*1024}"
        return [(o, ('W', g)) for o in ops]
    def bload(st):
        sm = st % NB
        return [(f"buffer_load_dwordx4 {a(Bf(sm,0),4)}, {v(vl16)}, {s(rHH,4)}, {s(sb0)} offen", ('B', st)),
                (f"buffer_load_dwordx4 {a(Bf(sm,1),4)}, {v(vl16)}, {s(rHH,4)}, {s(sb1)} offen\ns_add_u32 {s(sb0)}, {s(sb0)}, 1024\ns_add_u32 {s(sb1)}, {s(sb1)}, 1024", ('B', st))]
    def emit(op):
        if isinstance(op, tuple): k(op[0]); vm.append(op[1])
        else: k(op)
    def wait(*tags):
        idx = [i for i, t in enumerate(vm) if t in tags]
        n = len(vm) - 1 - max(idx)
        k(f"s_waitcnt vmcnt({min(n, 63)})")
    def areads(st):
        g = st // 4; par = st % 2
        return [f"ds_read_b128 {v(AF+par*36+dt*4,4)}, {v(vA + g % 3)} offset:{(st % 4)*9216 + dt*1024}" for dt in range(9)]
    PB = NB - 1
    for o in wdma(0): emit(o)
    for st in range(2):
        for o in bload(st): emit(o)
    early = wdma(1) + [o for st in range(2, PB) for o in bload(st)] + wdma(2)
    wait(('W', 0)); k("s_barrier")
    for o in areads(0): k(o)
    if stamps: k("s_memtime s[64:65]")
    q = early
    def flush(tag):
        while any(o[1] == tag for o in q): emit(q.pop(0))
    for st in range(36):
        g = st // 4; par = st % 2
        k("s_waitcnt lgkmcnt(0)")
        if st % 4 == 3 and g < 8:
            flush(('W', g+1)); wait(('W', g+1)); k("s_barrier")
            if g + 3 <= 8: q += wdma(g+3)
        flush(('B', st)); wait(('B', st))
        rd = areads(st+1) if st < 35 else []
        if st + PB < 36: q += bload(st + PB)
        take = q[:11]; del q[:11]
        fill = rd + take
        slots = spread(fill, 18)
        j = 0
        for dt in range(9):
            for t in range(2):
                c = "0" if st == 0 else v(acc(t,dt),4)
                k(f"v_mfma_f32_16x16x32_bf16 {v(acc(t,dt),4)}, {v(AF+par*36+dt*4,4)}, {a(Bf(st % NB,t),4)}, {c}")
                for o in slots[j]: emit(o)
                j += 1
    if stamps: k("s_memtime s[66:67]")
    if fused:
        fused_reduce(k, acc, ACC, AF, sWS, sw, srb, scs, skq, stmp, stmp2, vl16)
    else:
        k(f"v_lshlrev_b32 v5, 4, v0\nv_add_u32 v6, 8, v5")
        k(f"s_mul_i32 {s(stmp)}, {s(scs)}, 9\ns_lshr_b32 {s(stmp)}, {s(stmp)}, 1\ns_lshl_b32 {s(stmp)}, {s(stmp)}, 10\ns_add_u32 {s(sp)}, {s(sp)}, {s(stmp)}")
        k("s_nop 4")
        for t in range(2):
            for dt in range(9):
                r = acc(t,dt)
                k(f"v_cvt_pk_bf16_f32 {v(r)}, {v(r)}, {v(r+1)}\nv_cvt_pk_bf16_f32 {v(r+1)}, {v(r+2)}, {v(r+3)}")
        k(f"s_and_b32 {s(stmp)}, {s(scs)}, 1\ns_cmp_eq_u32 {s(stmp)}, 0\ns_cbranch_scc0 L_g2a_odd")
        def pairs(first, ksoff0):
            for t in range(2):
                k(f"s_add_u32 {s(stmp2)}, {s(sp)}, {t*18*1024}")
                for p in range(4):
                    d0 = first + 2*p; r0, r1 = acc(t,d0), acc(t,d0+1)
                    k(f"v_mov_b32 {v(r0+2)}, {v(r1)}\nv_mov_b32 {v(r0+3)}, {v(r1+1)}")
                    ko = ksoff0 + p
                    k(f"s_add_u32 {s(stmp)}, {s(stmp2)}, {ko*1024}\nbuffer_store_dwordx4 {v(r0,4)}, {v(vl16)}, {s(rP,4)}, {s(stmp)} offen")
                sd = 8 if first == 0 else 0; ko = 4 if first == 0 else 0
                k(f"s_add_u32 {s(stmp)}, {s(stmp2)}, {ko*1024}\nbuffer_store_dwordx2 {v(acc(t,sd),2)}, {'v5' if first == 0 else 'v6'}, {s(rP,4)}, {s(stmp)} offen")
        pairs(0, 0)
        k("s_branch L_g2a_done")
        k("L_g2a_odd:")
        pairs(1, 1)

    k("L_g2a_done:")
    if stamps:
        k("s_waitcnt vmcnt(0)\ns_memtime s[68:69]\ns_memrealtime s[70:71]\ns_waitcnt lgkmcnt(0)")
        srd(k, 24, sWS, WS["AUX"], WS["AUX_SZ"])
        k(f"s_lshl_b32 {s(stmp)}, s2, 3\ns_add_u32 {s(stmp)}, {s(stmp)}, {s(sw)}\ns_lshl_b32 {s(stmp)}, {s(stmp)}, 6\nv_mov_b32 v9, {s(stmp)}")
        for i, (x, y) in enumerate(((64,60),(66,60),(68,60),(70,62))):
            k(f"s_sub_u32 s72, s{x}, s{y}\nv_mov_b32 v8, s72\nbuffer_store_dword v8, v9, s[24:27], 0 offen offset:{4*i}")
        k(f"v_mov_b32 v8, s62\nbuffer_store_dword v8, v9, s[24:27], 0 offen offset:16")
    k("L_g2a_end:\ns_endpgm")
    return k, (256, 256, 3*GS)

def gen_g2r():
    k = Kern("g2r_kernel", vgprs=96)
    sWS, sOUT = 4, 6
    rP, rX1, rMOD, rOUT = 8, 12, 16, 20
    sw, sf, stile, sks, stmp, stmp2 = range(32, 38)
    k("s_cmp_ge_u32 s2, 288\ns_cbranch_scc1 L_g2r_end")
    k(f"s_load_dwordx2 {s(sWS,2)}, s[0:1], {KA['ws']}\ns_load_dwordx2 {s(sOUT,2)}, s[0:1], {KA['out']}")
    k(f"v_lshrrev_b32 v8, 6, v0\nv_and_b32 v0, 63, v0\nv_readfirstlane_b32 {s(sw)}, v8\nv_lshlrev_b32 v1, 4, v0")
    k(f"s_lshl_b32 {s(sf)}, s2, 2\ns_add_u32 {s(sf)}, {s(sf)}, {s(sw)}\ns_lshl_b32 {s(sf)}, {s(sf)}, 1")
    k(f"s_mul_i32 {s(stile)}, {s(sf)}, 3641\ns_lshr_b32 {s(stile)}, {s(stile)}, 16\ns_mul_i32 {s(stmp)}, {s(stile)}, 18\ns_sub_u32 {s(sks)}, {s(sf)}, {s(stmp)}")
    k("v_lshrrev_b32 v2, 4, v0\nv_lshlrev_b32 v3, 4, v2")
    k(f"v_lshrrev_b32 v4, 3, v0\ns_lshl_b32 {s(stmp)}, {s(stile)}, 4\nv_add_u32 v4, {s(stmp)}, v4\nv_mul_u32_u24 v4, 1152, v4\nv_and_b32 v5, 7, v0\nv_lshlrev_b32 v5, 4, v5\nv_add_u32 v4, v4, v5")
    k(f"s_lshl_b32 {s(stmp)}, {s(sks)}, 6\nv_add_u32 v4, {s(stmp)}, v4")
    k(f"s_mul_i32 {s(stmp)}, {s(sw)}, 2304\nv_and_b32 v5, 15, v0\nv_mul_u32_u24 v5, 144, v5\nv_lshlrev_b32 v6, 3, v2\nv_add_u32 v5, v5, v6\nv_add_u32 v5, {s(stmp)}, v5")
    k(f"v_lshrrev_b32 v6, 3, v0\nv_mul_u32_u24 v6, 144, v6\nv_and_b32 v7, 7, v0\nv_lshlrev_b32 v7, 4, v7\nv_add_u32 v6, v6, v7\nv_add_u32 v6, {s(stmp)}, v6")
    k("s_waitcnt lgkmcnt(0)")
    srd(k, rP, sWS, WS["PART"], WS["PART_SZ"]); srd(k, rX1, sWS, WS["X1F"], WS["X1F_SZ"]); srd(k, rMOD, sWS, WS["MOD"], WS["MOD_SZ"]); srd(k, rOUT, sOUT, 0, 2048*1152)
    P = 8; X = 40; G = 48; T = 64
    k(f"s_lshl_b32 {s(stmp)}, {s(sf)}, 10")
    for kq in range(4):
        k(f"s_add_u32 {s(stmp2)}, {s(stmp)}, {kq*128*18*1024}")
        for f in range(2): k(f"buffer_load_dwordx4 {v(P+(f*4+kq)*4,4)}, v1, {s(rP,4)}, {s(stmp2)} offen offset:{f*1024}")
    for f in range(2): k(f"buffer_load_dwordx4 {v(X+f*4,4)}, v1, {s(rX1,4)}, {s(stmp)} offen offset:{f*1024}")
    k(f"s_lshl_b32 {s(stmp2)}, {s(sks)}, 7\ns_add_u32 {s(stmp2)}, {s(stmp2)}, {5*576*4}")
    for f in range(2):
        for h in range(2): k(f"buffer_load_dwordx4 {v(G+(f*2+h)*4,4)}, v3, {s(rMOD,4)}, {s(stmp2)} offen offset:{f*128+h*64}")
    k("s_waitcnt vmcnt(0)")
    for f in range(2):
        for j in range(4):
            lo, hi = T+2*j, T+2*j+1
            p0 = P + (f*4)*4 + j
            k(f"v_lshlrev_b32 {v(lo)}, 16, {v(p0)}\nv_and_b32 {v(hi)}, 0xffff0000, {v(p0)}")
            for kq in range(1, 4):
                p = P + (f*4+kq)*4 + j
                k(f"v_lshlrev_b32 v76, 16, {v(p)}\nv_and_b32 v77, 0xffff0000, {v(p)}\nv_add_f32 {v(lo)}, {v(lo)}, v76\nv_add_f32 {v(hi)}, {v(hi)}, v77")
            x = X + f*4 + j; g = G + f*8 + 2*j
            k(f"v_lshlrev_b32 v76, 16, {v(x)}\nv_and_b32 v77, 0xffff0000, {v(x)}\nv_fma_f32 {v(lo)}, {v(g)}, {v(lo)}, v76\nv_fma_f32 {v(hi)}, {v(g+1)}, {v(hi)}, v77")
        for j in range(4): k(f"v_cvt_pk_bf16_f32 {v(T+8+j)}, {v(T+2*j)}, {v(T+2*j+1)}")
        k(f"ds_write_b64 v5, {v(T+8,2)} offset:{f*64}\nds_write_b64 v5, {v(T+10,2)} offset:{f*64+32}")
    k("s_waitcnt lgkmcnt(0)")
    k(f"ds_read_b128 {v(P,4)}, v6\nds_read_b128 {v(P+4,4)}, v6 offset:{8*144}")
    k("s_waitcnt lgkmcnt(0)")
    k(f"buffer_store_dwordx4 {v(P,4)}, v4, {s(rOUT,4)}, 0 offen\ns_mov_b32 {s(stmp)}, {8*1152}\nbuffer_store_dwordx4 {v(P+4,4)}, v4, {s(rOUT,4)}, {s(stmp)} offen")
    k("L_g2r_end:\ns_endpgm")
    return k, (288, 256, 4*2304)


def fused_reduce(k, acc, ACC, AF, sWS, sw, srb, scs, skq, stmp, stmp2, vl16):
    rP2, rCNT, rX1, rMOD, rOUT = 24, 28, 44, 48, 52
    sgrp, sbase, sspin, stile, sdt0 = 56, 57, 58, 59, 74
    D = [[0, 1], [2, 3], [4, 5], [6, 7, 8]]
    srd(k, rP2, sWS, WS["PART2"], WS["PART2_SZ"]); srd(k, rCNT, sWS, WS["CNT"], WS["CNT_SZ"]); srd(k, rX1, sWS, WS["X1F"], WS["X1F_SZ"])
    srd(k, rMOD, sWS, WS["MOD"], WS["MOD_SZ"]); srd(k, rOUT, 6, 0, 2048*1152)
    k(f"s_lshl_b32 {s(sgrp)}, {s(srb)}, 2\ns_add_u32 {s(sgrp)}, {s(sgrp)}, {s(scs)}")
    XR = AF + 48; GB = AF + 60
    k(f"s_lshl_b32 {s(stile)}, {s(srb)}, 3\ns_lshl_b32 {s(stmp)}, {s(sw)}, 1\ns_add_u32 {s(stile)}, {s(stile)}, {s(stmp)}")
    k(f"s_mul_i32 {s(sdt0)}, {s(scs)}, 9\ns_lshl_b32 {s(stmp)}, {s(skq)}, 1\ns_add_u32 {s(sdt0)}, {s(sdt0)}, {s(stmp)}")
    k("v_lshrrev_b32 v6, 4, v0\nv_lshlrev_b32 v6, 4, v6")
    for j in range(3):
        k(f"s_add_u32 {s(stmp)}, {s(sdt0)}, {j}\ns_and_b32 {s(stmp2)}, {s(stmp)}, 1\ns_lshl_b32 {s(stmp2)}, {s(stmp2)}, 3\ns_lshr_b32 {s(stmp)}, {s(stmp)}, 1\ns_lshl_b32 {s(stmp)}, {s(stmp)}, 10\ns_add_u32 {s(stmp)}, {s(stmp)}, {s(stmp2)}")
        k(f"s_mul_i32 {s(stmp2)}, {s(stile)}, {18*1024}\ns_add_u32 {s(stmp)}, {s(stmp)}, {s(stmp2)}")
        k(f"buffer_load_dwordx2 {v(XR+4*j,2)}, {v(vl16)}, {s(rX1,4)}, {s(stmp)} offen\ns_add_u32 {s(stmp)}, {s(stmp)}, {18*1024}\nbuffer_load_dwordx2 {v(XR+4*j+2,2)}, {v(vl16)}, {s(rX1,4)}, {s(stmp)} offen")
        k(f"s_add_u32 {s(stmp)}, {s(sdt0)}, {j}\ns_lshl_b32 {s(stmp)}, {s(stmp)}, 6\ns_add_u32 {s(stmp)}, {s(stmp)}, {5*576*4}\nbuffer_load_dwordx4 {v(GB+4*j,4)}, v6, {s(rMOD,4)}, {s(stmp)} offen")
    PK = AF
    pk = lambda t, dt: PK + (t*9+dt)*2
    k("s_nop 4")
    for t in range(2):
        for dt in range(9):
            r = acc(t,dt)
            k(f"v_cvt_pk_bf16_f32 {v(pk(t,dt))}, {v(r)}, {v(r+1)}\nv_cvt_pk_bf16_f32 {v(pk(t,dt)+1)}, {v(r+2)}, {v(r+3)}")
    ST = AF + 36
    for o in range(4):
        lab = k.lab("own")
        k(f"s_cmp_eq_u32 {s(skq)}, {o}\ns_cbranch_scc1 {lab}")
        k(f"s_lshl_b32 {s(sbase)}, {s(sgrp)}, 2\ns_add_u32 {s(sbase)}, {s(sbase)}, {o}\ns_lshl_b32 {s(sbase)}, {s(sbase)}, 2\ns_add_u32 {s(sbase)}, {s(sbase)}, {s(skq)}\ns_lshl_b32 {s(sbase)}, {s(sbase)}, 2\ns_add_u32 {s(sbase)}, {s(sbase)}, {s(sw)}\ns_mul_i32 {s(sbase)}, {s(sbase)}, 3072")
        d0 = D[o][0]
        for t in range(2):
            k(f"buffer_store_dwordx4 {v(pk(t,d0),4)}, {v(vl16)}, {s(rP2,4)}, {s(sbase)} offen offset:{t*1024} sc1")
        if len(D[o]) == 3:
            k(f"v_mov_b32 {v(ST)}, {v(pk(0,8))}\nv_mov_b32 {v(ST+1)}, {v(pk(0,8)+1)}\nv_mov_b32 {v(ST+2)}, {v(pk(1,8))}\nv_mov_b32 {v(ST+3)}, {v(pk(1,8)+1)}")
            k(f"buffer_store_dwordx4 {v(ST,4)}, {v(vl16)}, {s(rP2,4)}, {s(sbase)} offen offset:2048 sc1")
        k(f"{lab}:")
        k("s_nop 0")
    k("s_waitcnt vmcnt(0)\ns_barrier")
    k(f"s_cmp_eq_u32 {s(sw)}, 0\ns_cbranch_scc0 L_g2a_met")
    k(f"s_lshl_b32 {s(stmp)}, {s(sgrp)}, 7\nv_mov_b32 v6, {s(stmp)}\nv_mov_b32 v7, 1\ns_mov_b64 s[76:77], exec\ns_mov_b64 exec, 1")
    k(f"buffer_atomic_add v7, v6, {s(rCNT,4)}, 0 offen sc1")
    k(f"s_mov_b32 {s(sspin)}, 0")
    k("L_g2a_poll:")
    k(f"buffer_load_dword v7, v6, {s(rCNT,4)}, 0 offen sc1\ns_waitcnt vmcnt(0)\nv_readfirstlane_b32 {s(stmp)}, v7")
    k(f"s_cmp_ge_u32 {s(stmp)}, 4\ns_cbranch_scc1 L_g2a_met0")
    k(f"s_add_u32 {s(sspin)}, {s(sspin)}, 1\ns_cmp_lt_u32 {s(sspin)}, 0x100000\ns_cbranch_scc0 L_g2a_met0")
    k("s_sleep 1\ns_branch L_g2a_poll")
    k("L_g2a_met0:")
    k("s_mov_b64 exec, s[76:77]")
    k("L_g2a_met:")
    k("s_barrier")
    FG = PK
    TW = 72
    for o in range(4):
        nxt = k.lab("var")
        k(f"s_cmp_eq_u32 {s(skq)}, {o}\ns_cbranch_scc0 {nxt}")
        nd = len(D[o]); nch = 3 if nd == 3 else 2
        srcs = [x for x in range(4) if x != o]
        for j, src in enumerate(srcs):
            k(f"s_lshl_b32 {s(sbase)}, {s(sgrp)}, 2\ns_add_u32 {s(sbase)}, {s(sbase)}, {o}\ns_lshl_b32 {s(sbase)}, {s(sbase)}, 2\ns_add_u32 {s(sbase)}, {s(sbase)}, {src}\ns_lshl_b32 {s(sbase)}, {s(sbase)}, 2\ns_add_u32 {s(sbase)}, {s(sbase)}, {s(sw)}\ns_mul_i32 {s(sbase)}, {s(sbase)}, 3072")
            for c in range(nch): k(f"buffer_load_dwordx4 {v(FG+j*12+c*4,4)}, {v(vl16)}, {s(rP2,4)}, {s(sbase)} offen offset:{c*1024} sc1")
        k(f"s_mul_i32 {s(stmp)}, {s(sw)}, 3584\nv_and_b32 v2, 15, v0\nv_mul_u32_u24 v2, 112, v2\nv_lshrrev_b32 v3, 4, v0\nv_lshlrev_b32 v3, 3, v3\nv_add_u32 v2, v2, v3\nv_add_u32 v2, {s(stmp)}, v2")
        k("s_waitcnt vmcnt(0)")
        for t in range(2):
            for jj, dt in enumerate(D[o]):
                r = acc(t,dt)
                c, h = (t, jj) if jj < 2 else (2, t)
                for j in range(3):
                    f = FG + j*12 + c*4 + 2*h
                    k(f"v_lshlrev_b32 v4, 16, {v(f)}\nv_and_b32 v5, 0xffff0000, {v(f)}\nv_add_f32 {v(r)}, {v(r)}, v4\nv_add_f32 {v(r+1)}, {v(r+1)}, v5")
                    k(f"v_lshlrev_b32 v4, 16, {v(f+1)}\nv_and_b32 v5, 0xffff0000, {v(f+1)}\nv_add_f32 {v(r+2)}, {v(r+2)}, v4\nv_add_f32 {v(r+3)}, {v(r+3)}, v5")
                x = XR + 4*jj + 2*t; g = GB + 4*jj
                k(f"v_lshlrev_b32 v4, 16, {v(x)}\nv_and_b32 v5, 0xffff0000, {v(x)}\nv_fma_f32 {v(r)}, {v(g)}, {v(r)}, v4\nv_fma_f32 {v(r+1)}, {v(g+1)}, {v(r+1)}, v5")
                k(f"v_lshlrev_b32 v4, 16, {v(x+1)}\nv_and_b32 v5, 0xffff0000, {v(x+1)}\nv_fma_f32 {v(r+2)}, {v(g+2)}, {v(r+2)}, v4\nv_fma_f32 {v(r+3)}, {v(g+3)}, {v(r+3)}, v5")
                k(f"v_cvt_pk_bf16_f32 {v(r)}, {v(r)}, {v(r+1)}\nv_cvt_pk_bf16_f32 {v(r+1)}, {v(r+2)}, {v(r+3)}")
                k(f"ds_write_b64 v2, {v(r,2)} offset:{t*16*112 + jj*32}")
        upr = 2*nd; nins = (32*upr)//64
        k(f"s_lshl_b32 {s(stmp2)}, {s(stile)}, 4\ns_mul_i32 {s(stmp2)}, {s(stmp2)}, 1152\ns_lshl_b32 {s(sbase)}, {s(sdt0)}, 5\ns_add_u32 {s(stmp2)}, {s(stmp2)}, {s(sbase)}")
        k("s_waitcnt lgkmcnt(0)")
        for e in range(nins):
            magic, sh = (16384, 16) if upr == 4 else (10923, 16)
            k(f"v_add_u32 v3, {64*e}, v0\nv_mul_u32_u24 v4, {magic}, v3\nv_lshrrev_b32 v4, {sh}, v4\nv_mul_u32_u24 v5, {upr}, v4\nv_sub_u32 v3, v3, v5\nv_lshlrev_b32 v3, 4, v3")
            k(f"v_mul_u32_u24 v5, 112, v4\nv_add_u32 v5, v5, v3\nv_add_u32 v5, {s(stmp)}, v5\nds_read_b128 {v(FG+4*e,4)}, v5")
            k(f"v_mul_u32_u24 v4, 1152, v4\nv_add_u32 {v(8+e) if False else 'v' + str(AF+40+e)}, v4, v3")
        k("s_waitcnt lgkmcnt(0)")
        for e in range(nins): k(f"buffer_store_dwordx4 {v(FG+4*e,4)}, {v(AF+40+e)}, {s(rOUT,4)}, {s(stmp2)} offen")
        k("s_branch L_g2a_done")
        k(f"{nxt}:")
        k("s_nop 0")
```

```python
from asmgen import *
from layout import *
from k_g1 import srd

def gen_helper2(k, prefetch=None, pol=' sc1'):
    HL = 151552
    US = 19*2048
    sWS = 4; sW1, sW3, sW2 = 6, 8, 10
    rW2, rD13, rD2, rS, rMOD = 20, 24, 28, 44, 12
    sm, sr, sks, slg, ssrc, sdst, stmp, sq = range(48, 56)
    v13, v2s, vrd, vgs = 2, 3, 5, 9
    vl16 = 1
    R = 12; BG = 28; ACC = 32; GT = 48
    k("L_att_helper:")
    k(f"s_load_dwordx2 {s(sW1,2)}, s[0:1], {KA['w1']}\ns_load_dwordx2 {s(sW3,2)}, s[0:1], {KA['w3']}\ns_load_dwordx2 {s(sW2,2)}, s[0:1], {KA['w2']}")
    k("v_lshrrev_b32 v9, 3, v0\nv_and_b32 v10, 7, v0\nv_lshrrev_b32 v11, 1, v10\nv_bfe_u32 v12, v0, 4, 2\nv_xor_b32 v11, v11, v12\nv_lshlrev_b32 v11, 5, v11\nv_and_b32 v10, 1, v10\nv_lshlrev_b32 v10, 4, v10\nv_add_u32 v10, v10, v11")
    k(f"v_mul_u32_u24 {v(v13)}, 9216, v9\nv_add_u32 {v(v13)}, {v(v13)}, v10\nv_mul_u32_u24 {v(v2s)}, 1152, v9\nv_add_u32 {v(v2s)}, {v(v2s)}, v10")
    k("v_lshrrev_b32 v9, 2, v0\nv_lshlrev_b32 v9, 7, v9\nv_and_b32 v10, 3, v0\nv_lshlrev_b32 v10, 3, v10\nv_add_u32 v9, v9, v10\nv_bfe_u32 v10, v0, 3, 2")
    for ct in range(4): k(f"v_xor_b32 v11, {ct}, v10\nv_lshlrev_b32 v11, 5, v11\nv_add_u32 v11, v11, v9\nv_add_u32 {v(vrd+ct)}, {HL}, v11")
    k("v_and_b32 v10, 15, v0\nv_lshrrev_b32 v11, 4, v0\nv_lshlrev_b32 v11, 4, v11")
    k(f"v_mul_u32_u24 v12, 2304, v10\nv_sub_u32 v12, {4*576*4}, v12\nv_add_u32 v12, v12, v11\nv_mov_b32 v13, 0x7fffffff\nv_cmp_gt_u32 vcc, 2, v10\nv_cndmask_b32 {v(vgs)}, v13, v12, vcc")
    k("s_waitcnt lgkmcnt(0)")
    srd(k, rW2, sW2, 0, 4608*1152); srd(k, rMOD, sWS, WS["MOD"], WS["MOD_SZ"])
    srd(k, rD13, sWS, WS["W13F"], WS["W13F_SZ"]); srd(k, rD2, sWS, WS["W2F"], WS["W2F_SZ"])
    vm = []
    def wait(tag):
        idx = [i for i, t in enumerate(vm) if t == tag]
        k(f"s_waitcnt vmcnt({len(vm) - 1 - max(idx)})")
    def reads(n):
        o = (n % 3)*4096
        for ct in range(4):
            k(f"ds_read_b64_tr_b16 {v(R+4*ct,2)}, {v(vrd+ct)} offset:{o}\nds_read_b64_tr_b16 {v(R+4*ct+2,2)}, {v(vrd+ct)} offset:{o+2048}")
        k("s_waitcnt lgkmcnt(0)")
    k("s_cmp_ge_u32 s2, 144\ns_cbranch_scc1 L_att_hB")
    k(f"s_cmp_ge_u32 s2, 72\ns_cselect_b32 {s(sm)}, 1, 0\ns_cselect_b32 {s(rS)}, {s(sW3)}, {s(sW1)}\ns_cselect_b32 {s(rS+1)}, {s(sW3+1)}, {s(sW1+1)}")
    k(f"s_mov_b32 {s(rS+2)}, {576*9216}\ns_mov_b32 {s(rS+3)}, 0x20000")
    k(f"s_mul_i32 {s(stmp)}, {s(sm)}, 72\ns_sub_u32 {s(slg)}, s2, {s(stmp)}\ns_lshl_b32 {s(ssrc)}, {s(slg)}, 7")
    k(f"s_mul_i32 {s(sdst)}, {s(slg)}, {4*US}\ns_lshl_b32 {s(stmp)}, {s(sm)}, 10\ns_add_u32 {s(sdst)}, {s(sdst)}, {s(stmp)}")
    def dmaA(n):
        for i in range(4):
            k(f"s_mov_b32 m0, {HL + (n % 3)*4096 + i*1024}\ns_add_u32 {s(stmp)}, {s(ssrc)}, {(32*n + 8*i)*9216}\nbuffer_load_dwordx4 {v(v13)}, {s(rS,4)}, {s(stmp)} offen lds"); vm.append(('D', n))
    def gsload(n):
        t = GT + 8*(n % 3)
        k(f"s_mov_b32 {s(stmp)}, {n*128}\nbuffer_load_dwordx4 {v(t,4)}, {v(vgs)}, {s(rMOD,4)}, {s(stmp)} offen"); vm.append(('G', n))
        k(f"buffer_load_dwordx4 {v(t+4,4)}, {v(vgs)}, {s(rMOD,4)}, {s(stmp)} offen offset:64"); vm.append(('G', n))
    k("s_barrier")
    for n in range(3): dmaA(n)
    gsload(0); gsload(1)
    k("s_barrier")
    for n in range(18):
        wait(('D', n)); reads(n)
        if n + 3 < 18: dmaA(n+3)
        if n + 2 < 18: gsload(n+2)
        wait(('G', n))
        t = GT + 8*(n % 3)
        for j in range(4): k(f"v_cvt_pk_bf16_f32 {v(BG+j)}, {v(t+2*j)}, {v(t+2*j+1)}")
        for ct in range(4):
            k(f"s_add_u32 {s(stmp)}, {s(sdst)}, {ct*US + n*2048}\nbuffer_store_dwordx4 {v(R+4*ct,4)}, {v(vl16)}, {s(rD13,4)}, {s(stmp)} offen{pol}"); vm.append(('S', n))
        for ct in range(4):
            c = "0" if n == 0 else v(ACC+4*ct,4)
            k(f"v_mfma_f32_16x16x32_bf16 {v(ACC+4*ct,4)}, {v(R+4*ct,4)}, {v(BG,4)}, {c}")
        if n == 2 and prefetch:
            k("s_cmp_lt_u32 s2, 8\ns_cbranch_scc0 L_att_nopf")
            for nm, ns in prefetch: touch_code(k, nm, ns, vt=80)
            k("L_att_nopf:")
            k("s_nop 0")
    k(f"v_and_b32 v10, 15, v0\nv_lshrrev_b32 v11, 4, v0\nv_lshlrev_b32 v11, 5, v11\nv_lshlrev_b32 v12, 2, v10\nv_add_u32 v11, v11, v12\nv_add_u32 v11, {HL}, v11")
    k("v_mov_b32 v13, 0x30000\nv_cmp_gt_u32 vcc, 2, v10\nv_cndmask_b32 v11, v13, v11, vcc")
    for ct in range(4):
        for r in range(4): k(f"ds_write_b32 v11, {v(ACC+4*ct+r)} offset:{(16*ct + r)*8}")
    k(f"v_lshlrev_b32 v12, 3, v0\nv_add_u32 v12, {HL}, v12\nv_cmp_gt_u32 vcc, 16, v0\nv_cndmask_b32 v12, v13, v12, vcc")
    k("s_waitcnt lgkmcnt(0)")
    for ct in range(4): k(f"ds_read_b64 {v(GT+2*ct,2)}, v12 offset:{ct*128}")
    k("s_waitcnt lgkmcnt(0)")
    for ct in range(4):
        u_, v_ = GT+2*ct, GT+2*ct+1; o = R+4*ct; t = GT+8
        k(f"v_cvt_pk_bf16_f32 {v(o)}, {v(u_)}, {v(u_)}\nv_lshlrev_b32 {v(t)}, 16, {v(o)}\nv_sub_f32 {v(t)}, {v(u_)}, {v(t)}")
        k(f"v_cvt_pk_bf16_f32 {v(t+1)}, {v(v_)}, {v(v_)}\nv_lshlrev_b32 {v(t+1)}, 16, {v(t+1)}\nv_sub_f32 {v(t+1)}, {v(v_)}, {v(t+1)}")
        k(f"v_cvt_pk_bf16_f32 {v(o+1)}, {v(t)}, {v(v_)}\nv_cvt_pk_bf16_f32 {v(o+2)}, {v(v_)}, {v(t+1)}\nv_mov_b32 {v(o+3)}, 0")
        k(f"s_add_u32 {s(stmp)}, {s(sdst)}, {ct*US + 18*2048}\nbuffer_store_dwordx4 {v(o,4)}, {v(vl16)}, {s(rD13,4)}, {s(stmp)} offen")
    k("s_branch L_att_end")
    k("L_att_hB:")
    vm.clear()
    k(f"s_sub_u32 {s(sq)}, s2, 144")
    def dmaB(n):
        k(f"s_add_u32 {s(sr)}, {s(sq)}, {112*n}\ns_mul_i32 {s(sks)}, {s(sr)}, 7282\ns_lshr_b32 {s(sks)}, {s(sks)}, 16\ns_mul_i32 {s(stmp)}, {s(sks)}, 9\ns_sub_u32 {s(slg)}, {s(sr)}, {s(stmp)}")
        k(f"s_mul_i32 {s(ssrc)}, {s(sks)}, {32*1152}\ns_lshl_b32 {s(stmp)}, {s(slg)}, 7\ns_add_u32 {s(ssrc)}, {s(ssrc)}, {s(stmp)}")
        k(f"s_mul_i32 {s(sdst)}, {s(sks)}, {36*1024}\ns_lshl_b32 {s(stmp)}, {s(slg)}, 12\ns_add_u32 {s(56 + n % 4)}, {s(sdst)}, {s(stmp)}")
        for i in range(4):
            k(f"s_mov_b32 m0, {HL + (n % 3)*4096 + i*1024}\ns_add_u32 {s(stmp)}, {s(ssrc)}, {8*i*1152}\nbuffer_load_dwordx4 {v(v2s)}, {s(rW2,4)}, {s(stmp)} offen lds"); vm.append(('D', n))
    def storesB(n):
        for ct in range(4):
            k(f"s_add_u32 {s(stmp)}, {s(56 + n % 4)}, {ct*1024}\nbuffer_store_dwordx4 {v(R+4*ct,4)}, {v(vl16)}, {s(rD2,4)}, {s(stmp)} offen{pol}"); vm.append(('S', n))
    k("s_barrier")
    for n in range(3): dmaB(n)
    k("s_barrier")
    for n in range(11):
        wait(('D', n)); reads(n)
        if n + 3 < 11: dmaB(n+3)
        storesB(n)
    k(f"s_load_dwordx2 {s(sW1,2)}, s[0:1], {KA['wo']}\ns_waitcnt lgkmcnt(0)")
    srd(k, rS, sW1, 0, 576*1152)
    k(f"s_lshr_b32 {s(stmp)}, {s(sq)}, 3\ns_mul_i32 {s(stmp)}, {s(stmp)}, {371*128}\nv_lshlrev_b32 v10, 7, v0")
    for i in range(6):
        k(f"buffer_load_dword v40, v10, {s(rS,4)}, {s(stmp)} offen\ns_add_u32 {s(stmp)}, {s(stmp)}, 8192")
    k(f"s_cmp_lt_u32 {s(sq)}, 64\ns_cbranch_scc0 L_att_end")
    k("s_waitcnt vmcnt(0)")
    vm.clear()
    dmaB(11); wait(('D', 11)); reads(11); storesB(11)
```

```python
from asmgen import *
from layout import *
from k_g1 import srd, spread
from k_g2 import w_patterns

def gen_p3(stamps=False, alg=True, pol=''):
    k = Kern("p3_kernel", vgprs=224)
    sWS, sWO, sX = 4, 6, 8
    rWO, rOM, rOR, rMOD, rX, rX1, rY, rST = 12, 16, 20, 24, 28, 44, 48, 52
    sw, srb, scs, stmp, stmp2, ssrc, slds = range(32, 39)
    vl16, vP, vA0, vA1, vA2, vA3, vR0, vR1, vom, vor, vx = 1, 2, 5, 6, 7, 8, 9, 10, 11, 12, 13
    BF = 16
    ACC = 88
    AF = 112
    k("s_cmp_ge_u32 s2, 256\ns_cbranch_scc1 L_p3_end")
    k(f"s_load_dwordx2 {s(sWS,2)}, s[0:1], {KA['ws']}")
    if alg:
        k("s_cmp_ge_u32 s2, 192\ns_cbranch_scc0 L_p3_main")
        k(f"v_lshrrev_b32 v14, 6, v0\nv_and_b32 v0, 63, v0\nv_readfirstlane_b32 {s(sw)}, v14\nv_lshlrev_b32 v2, 7, v0")
        k(f"s_sub_u32 {s(stmp)}, s2, 192\ns_lshr_b32 {s(stmp)}, {s(stmp)}, 3\ns_bfe_u32 {s(stmp2)}, s2, 0x20001\ns_lshl_b32 {s(stmp2)}, {s(stmp2)}, 3\ns_add_u32 {s(stmp)}, {s(stmp)}, {s(stmp2)}")
        k(f"s_mul_i32 {s(stmp)}, {s(stmp)}, {8*19*2048}\ns_mul_i32 {s(stmp2)}, {s(sw)}, {5*8192}\ns_add_u32 {s(stmp)}, {s(stmp)}, {s(stmp2)}")
        k("s_waitcnt lgkmcnt(0)")
        srd(k, rWO, sWS, WS["W13F"], WS["W13F_SZ"])
        for i in range(5): k(f"buffer_load_dword v3, v2, {s(rWO,4)}, {s(stmp)} offen\ns_add_u32 {s(stmp)}, {s(stmp)}, 8192")
        k(f"s_cmp_eq_u32 s2, 192\ns_cbranch_scc0 L_p3_end\ns_cmp_eq_u32 {s(sw)}, 0\ns_cbranch_scc0 L_p3_end")
        srd(k, rOM, sWS, WS["CNT"], WS["CNT_SZ"])
        k(f"v_mov_b32 v4, 0\nbuffer_store_dword v4, v2, {s(rOM,4)}, 0 offen")
        k("s_branch L_p3_end")
        k("L_p3_main:")
    else:
        k("s_cmp_ge_u32 s2, 192\ns_cbranch_scc1 L_p3_end")
    k(f"s_load_dwordx2 {s(sWO,2)}, s[0:1], {KA['wo']}")
    k(f"s_load_dwordx2 {s(sX,2)}, s[0:1], {KA['x']}")
    if stamps: k("s_memtime s[60:61]\ns_memrealtime s[62:63]")
    k("v_lshrrev_b32 v14, 6, v0\nv_and_b32 v0, 63, v0")
    k(f"v_readfirstlane_b32 {s(sw)}, v14")
    k(f"v_lshlrev_b32 {v(vl16)}, 4, v0")
    w_patterns(k, vP, 1152, 112)
    k(f"s_and_b32 {s(stmp)}, s2, 7\ns_lshl_b32 {s(srb)}, {s(stmp)}, 2\ns_lshr_b32 {s(stmp)}, s2, 3\ns_and_b32 {s(stmp2)}, {s(stmp)}, 3\ns_add_u32 {s(srb)}, {s(srb)}, {s(stmp2)}\ns_lshr_b32 {s(scs)}, {s(stmp)}, 2")
    k("v_lshrrev_b32 v112, 4, v0\nv_bfe_u32 v113, v0, 2, 2\nv_and_b32 v114, 3, v0\nv_and_b32 v115, 15, v0")
    k("v_lshrrev_b32 v116, 1, v112\nv_mul_u32_u24 v116, 18, v116\nv_and_b32 v117, 1, v112\nv_lshlrev_b32 v117, 2, v117\nv_add_u32 v116, v116, v117\nv_add_u32 v116, v116, v113")
    def mkaddr(row, d0, d1):
        k(f"v_lshrrev_b32 v117, 2, {v(row)}\nv_and_b32 v117, 1, v117\nv_lshlrev_b32 v117, 5, v117")
        k(f"v_mul_u32_u24 v118, 192, {v(row)}\nv_lshlrev_b32 v119, 3, v114\nv_add_u32 v118, v118, v119")
        k(f"v_add_u32 {v(d0)}, v118, v117\nv_xor_b32 v117, 32, v117\nv_add_u32 {v(d1)}, v118, v117")
    mkaddr(116, vA0, vA1)
    k(f"v_add_u32 {v(vA2)}, {8*6912}, {v(vA0)}\nv_add_u32 {v(vA3)}, {8*6912}, {v(vA1)}")
    k("v_lshlrev_b32 v116, 2, v112\nv_lshrrev_b32 v117, 1, v113\nv_add_u32 v116, v116, v117\nv_mul_u32_u24 v116, 18, v116\nv_and_b32 v117, 1, v113\nv_add_u32 v116, v116, v117\nv_add_u32 v116, 16, v116")
    mkaddr(116, vR0, vR1)
    k(f"s_lshl_b32 {s(stmp)}, {s(srb)}, 2\ns_add_u32 {s(stmp)}, {s(stmp)}, {s(sw)}\ns_lshl_b32 {s(stmp2)}, {s(stmp)}, 4\nv_add_u32 v116, {s(stmp2)}, v115")
    k(f"v_lshlrev_b32 v117, 15, v112\nv_lshlrev_b32 v118, 4, v116\nv_add_u32 {v(vom)}, v117, v118")
    k(f"v_lshlrev_b32 v117, 13, v112\nv_add_u32 v117, v117, v116\nv_lshlrev_b32 {v(vor)}, 2, v117")
    XL = 110592
    for e in range(3):
        k(f"v_add_u32 v117, {64*e}, v0\nv_mul_u32_u24 v118, 21846, v117\nv_lshrrev_b32 v118, 18, v118\nv_mul_u32_u24 v119, 12, v118\nv_sub_u32 v117, v117, v119\nv_lshlrev_b32 v117, 4, v117\nv_mul_u32_u24 v118, 1152, v118\nv_add_u32 {v(164+8+e)}, v117, v118")
    k(f"v_mul_u32_u24 v117, 192, v115\nv_lshlrev_b32 v118, 3, v112\nv_add_u32 v117, v117, v118\ns_mul_i32 {s(stmp2)}, {s(sw)}, 3072\ns_add_u32 {s(stmp2)}, {s(stmp2)}, {XL}\nv_add_u32 {v(vx)}, {s(stmp2)}, v117")
    k("v_lshlrev_b32 v14, 4, v112")
    k("s_waitcnt lgkmcnt(0)")
    srd(k, rWO, sWO, 0, 576*1152); srd(k, rOM, sWS, WS["OM"], WS["OM_SZ"]); srd(k, rOR, sWS, WS["OR"], WS["OR_SZ"])
    srd(k, rMOD, sWS, WS["MOD"], WS["MOD_SZ"]); srd(k, rX, sX, 0, 2048*1152); srd(k, rX1, sWS, WS["X1F"], WS["X1F_SZ"])
    if alg: srd(k, rY, sWS, WS["H2F"], WS["H2F_SZ"]); srd(k, rST, sWS, WS["STAT"], WS["STAT_SZ"])
    k(f"s_lshl_b32 {s(stmp)}, {s(srb)}, 2\ns_add_u32 {s(stmp)}, {s(stmp)}, {s(sw)}\ns_mul_i32 {s(stmp)}, {s(stmp)}, {16*1152}\ns_mul_i32 {s(stmp2)}, {s(scs)}, 192\ns_add_u32 {s(stmp)}, {s(stmp)}, {s(stmp2)}\ns_mul_i32 {s(slds)}, {s(sw)}, 3072")
    for e in range(3):
        k(f"s_add_u32 m0, {s(slds)}, {110592 + e*1024}\ns_nop 0\nbuffer_load_dwordx4 {v(172+e)}, {s(rX,4)}, {s(stmp)} offen lds")
    k(f"s_mul_i32 {s(ssrc)}, {s(sw)}, {16*1152}\ns_mul_i32 {s(stmp2)}, {s(scs)}, 192\ns_add_u32 {s(ssrc)}, {s(ssrc)}, {s(stmp2)}\ns_mul_i32 {s(slds)}, {s(sw)}, 3072")
    for g in range(9):
        for i in range(3):
            k(f"s_add_u32 m0, {s(slds)}, {g*4*3072 + i*1024}")
            k(f"s_add_u32 {s(stmp2)}, {s(ssrc)}, {g*4*16*1152}")
            k(f"buffer_load_dwordx4 {v(vP+i)}, {s(rWO,4)}, {s(stmp2)} offen lds")
    for sx in range(16):
        k(f"s_mov_b32 {s(stmp2)}, {sx*131072}\nbuffer_load_dwordx4 {v(BF+4*sx,4)}, {v(vom)}, {s(rOM,4)}, {s(stmp2)} offen")
    for sp in range(2):
        for jj in range(4):
            k(f"s_mov_b32 {s(stmp2)}, {(16*sp+jj)*8192}\nbuffer_load_dword {v(BF+64+4*sp+jj)}, {v(vor)}, {s(rOR,4)}, {s(stmp2)} offen")
    if stamps: k("s_memtime s[70:71]")
    k("s_waitcnt vmcnt(24)\ns_barrier")
    if stamps: k("s_memtime s[64:65]")
    XR = 160; GA = 176; G2 = 200
    k(f"s_mul_i32 {s(stmp2)}, {s(scs)}, {96*4}\ns_add_u32 {s(stmp)}, {s(stmp2)}, {2*576*4}")
    for dt in range(6): k(f"buffer_load_dwordx4 {v(GA+4*dt,4)}, v14, {s(rMOD,4)}, {s(stmp)} offen offset:{dt*64}")
    NG = 6
    if alg:
        k(f"s_add_u32 {s(stmp)}, {s(stmp2)}, {4*576*4}")
        for dt in range(6): k(f"buffer_load_dwordx4 {v(G2+4*dt,4)}, v14, {s(rMOD,4)}, {s(stmp)} offen offset:{dt*64}")
        NG = 12
    def areads(sx, par):
        ops = []
        for dt in range(6):
            r = AF + par*24 + dt*4
            if sx < 16:
                regs = (vA0, vA1) if sx < 8 else (vA2, vA3)
                ad = regs[(dt & 1) ^ (sx & 1)]
                o = (sx % 8)*6912 + (dt & ~1)*32
                ops.append(f"ds_read_b64_tr_b16 {v(r,2)}, {v(ad)} offset:{o}")
                ops.append(f"ds_read_b64_tr_b16 {v(r+2,2)}, {v(ad)} offset:{o+1536}")
            else:
                sp = sx - 16
                o = sp*288*192 + (dt & ~1)*32
                ops.append(f"ds_read_b64_tr_b16 {v(r,2)}, {v((vR0, vR1)[dt & 1])} offset:{o}")
                ops.append(f"ds_read_b64_tr_b16 {v(r+2,2)}, {v((vR0, vR1)[(dt & 1) ^ 1])} offset:{o + 36*192}")
        return ops
    for o in areads(0, 0): k(o)
    for sx in range(18):
        par = sx % 2
        nb = {0: 23}.get(sx)
        need = ((16 - 1 - sx + 8) if sx < 16 else (4 if sx == 16 else 0)) + NG
        k(f"s_waitcnt vmcnt({need}) lgkmcnt(0)")
        fill = areads(sx+1, 1-par) if sx < 17 else []
        slots = spread(fill, 6)
        for dt in range(6):
            c = "0" if sx == 0 else v(ACC+4*dt,4)
            k(f"v_mfma_f32_16x16x32_bf16 {v(ACC+4*dt,4)}, {v(AF+par*24+dt*4,4)}, {v(BF+4*sx,4)}, {c}")
            for o in slots[dt]: k(o)
    if stamps: k("s_memtime s[66:67]")
    for dt in range(6): k(f"ds_read_b64 {v(XR+2*dt,2)}, {v(vx)} offset:{dt*32}")
    k("s_waitcnt vmcnt(0) lgkmcnt(0)")
    T = AF; OY = BF + 16; O1 = BF
    if alg: k("v_mov_b32 v14, 0\nv_mov_b32 v15, 0")
    for dt in range(6):
        xr = XR + 2*dt; t = T + 4*dt
        k(f"v_lshlrev_b32 {v(t)}, 16, {v(xr)}\nv_and_b32 {v(t+1)}, 0xffff0000, {v(xr)}")
        k(f"v_lshlrev_b32 {v(t+2)}, 16, {v(xr+1)}\nv_and_b32 {v(t+3)}, 0xffff0000, {v(xr+1)}")
        for r in range(4): k(f"v_fma_f32 {v(t+r)}, {v(GA+4*dt+r)}, {v(ACC+4*dt+r)}, {v(t+r)}")
        o = O1 + (dt >> 1)*4 + (dt & 1)*2
        k(f"v_cvt_pk_bf16_f32 {v(o)}, {v(t)}, {v(t+1)}\nv_cvt_pk_bf16_f32 {v(o+1)}, {v(t+2)}, {v(t+3)}")
        if alg:
            for r in range(4): k(f"v_add_f32 v14, v14, {v(t+r)}\nv_fmac_f32 v15, {v(t+r)}, {v(t+r)}")
            for r in range(4): k(f"v_mul_f32 {v(t+r)}, {v(G2+4*dt+r)}, {v(t+r)}")
            o = OY + (dt >> 1)*4 + (dt & 1)*2
            k(f"v_cvt_pk_bf16_f32 {v(o)}, {v(t)}, {v(t+1)}\nv_cvt_pk_bf16_f32 {v(o+1)}, {v(t+2)}, {v(t+3)}")
    k(f"s_lshl_b32 {s(stmp)}, {s(srb)}, 2\ns_add_u32 {s(stmp)}, {s(stmp)}, {s(sw)}\ns_mul_i32 {s(ssrc)}, {s(stmp)}, {18*1024}\ns_mul_i32 {s(stmp2)}, {s(scs)}, 3072\ns_add_u32 {s(ssrc)}, {s(ssrc)}, {s(stmp2)}")
    if alg:
        for j in range(3): k(f"buffer_store_dwordx4 {v(OY+4*j,4)}, {v(vl16)}, {s(rY,4)}, {s(ssrc)} offen offset:{j*1024}" + pol)
    for j in range(3): k(f"buffer_store_dwordx4 {v(O1+4*j,4)}, {v(vl16)}, {s(rX1,4)}, {s(ssrc)} offen offset:{j*1024}" + pol)
    if alg:
        for r in ("v14", "v15"):
            k(f"v_mov_b32 v13, {r}\nv_permlane32_swap_b32 {r}, v13\nv_add_f32 {r}, {r}, v13\nv_mov_b32 v13, {r}\nv_permlane16_swap_b32 {r}, v13\nv_add_f32 {r}, {r}, v13")
        k(f"v_lshlrev_b32 v12, 3, v0\nv_mov_b32 v13, 0x7fffffff\nv_cmp_gt_u32 vcc, 16, v0\nv_cndmask_b32 v12, v13, v12, vcc")
        k(f"s_lshl_b32 {s(stmp)}, {s(stmp)}, 7\ns_lshl_b32 {s(stmp2)}, {s(scs)}, 14\ns_add_u32 {s(stmp)}, {s(stmp)}, {s(stmp2)}")
        k(f"buffer_store_dwordx2 v[14:15], v12, {s(rST,4)}, {s(stmp)} offen")
    if stamps:
        k("s_waitcnt vmcnt(0)\ns_memtime s[68:69]\ns_memrealtime s[72:73]\ns_waitcnt lgkmcnt(0)")
        srd(k, 24, sWS, WS["AUX"], WS["AUX_SZ"])
        k(f"s_lshl_b32 {s(stmp)}, s2, 3\ns_add_u32 {s(stmp)}, {s(stmp)}, {s(sw)}\ns_lshl_b32 {s(stmp)}, {s(stmp)}, 6\nv_mov_b32 v9, {s(stmp)}")
        for i, (x, y) in enumerate(((70,60),(64,60),(66,60),(68,60),(72,62))):
            k(f"s_sub_u32 s74, s{x}, s{y}\nv_mov_b32 v10, s74\nbuffer_store_dword v10, v9, s[24:27], 0 offen offset:{4*i}")
    k("L_p3_end:\ns_endpgm")
    return k, (256 if alg else 192, 256, 110592 + 12288)

def gen_ln2():
    k = Kern("ln2_kernel", vgprs=128)
    sWS = 4; rX1, rH2, rMOD = 8, 12, 16
    stile, stmp = 32, 33
    X = 16; G = 88; SB = 96; T = 104
    k("s_cmp_ge_u32 s2, 128\ns_cbranch_scc1 L_ln2_end")
    k(f"s_load_dwordx2 {s(sWS,2)}, s[0:1], {KA['ws']}")
    k("v_lshlrev_b32 v1, 4, v0\nv_lshrrev_b32 v2, 4, v0\nv_lshlrev_b32 v2, 4, v2")
    k(f"s_mul_i32 {s(stile)}, s2, {18*1024}")
    k("s_waitcnt lgkmcnt(0)")
    srd(k, rX1, sWS, WS["X1F"], WS["X1F_SZ"]); srd(k, rH2, sWS, WS["H2F"], WS["H2F_SZ"]); srd(k, rMOD, sWS, WS["MOD"], WS["MOD_SZ"])
    for ks in range(18):
        k(f"s_add_u32 {s(stmp)}, {s(stile)}, {(ks>>2)*4096}\nbuffer_load_dwordx4 {v(X+4*ks,4)}, v1, {s(rX1,4)}, {s(stmp)} offen offset:{(ks&3)*1024}")
    k("v_mov_b32 v3, 0\nv_mov_b32 v4, 0\nv_mov_b32 v5, 0x3f803f80")
    for i in range(72):
        if i % 4 == 0: k(f"s_waitcnt vmcnt({17 - i//4})")
        k(f"v_dot2_f32_bf16 v3, {v(X+i)}, v5, v3\nv_dot2_f32_bf16 v4, {v(X+i)}, {v(X+i)}, v4")
    for r in ("v3", "v4"):
        k(f"v_mov_b32 v6, {r}\nv_permlane32_swap_b32 {r}, v6\nv_add_f32 {r}, {r}, v6\nv_mov_b32 v6, {r}\nv_permlane16_swap_b32 {r}, v6\nv_add_f32 {r}, {r}, v6")
    k("v_mul_f32 v3, 0x3ae38e39, v3\nv_mul_f32 v4, 0x3ae38e39, v4")
    k("v_fma_f32 v4, -v3, v3, v4\nv_max_f32 v4, 0, v4\nv_add_f32 v4, 0x3727c5ac, v4\nv_rsq_f32 v4, v4")
    k("s_nop 0\nv_mul_f32 v3, v3, v4\nv_sub_f32 v3, 0, v3")
    for ks in range(18):
        k(f"s_mov_b32 {s(stmp)}, {(4*576 + 32*ks)*4}")
        k(f"buffer_load_dwordx4 {v(G,4)}, v2, {s(rMOD,4)}, {s(stmp)} offen\nbuffer_load_dwordx4 {v(G+4,4)}, v2, {s(rMOD,4)}, {s(stmp)} offen offset:64")
        k(f"s_mov_b32 {s(stmp)}, {(3*576 + 32*ks)*4}")
        k(f"buffer_load_dwordx4 {v(SB,4)}, v2, {s(rMOD,4)}, {s(stmp)} offen\nbuffer_load_dwordx4 {v(SB+4,4)}, v2, {s(rMOD,4)}, {s(stmp)} offen offset:64")
        for j in range(4):
            x = X + 4*ks + j
            k(f"v_lshlrev_b32 {v(T+2*j)}, 16, {v(x)}\nv_and_b32 {v(T+2*j+1)}, 0xffff0000, {v(x)}")
        for e in range(8): k(f"v_fma_f32 {v(T+e)}, {v(T+e)}, v4, v3")
        k("s_waitcnt vmcnt(0)")
        for e in range(8): k(f"v_fma_f32 {v(T+e)}, {v(T+e)}, {v(G+e)}, {v(SB+e)}")
        for j in range(4): k(f"v_cvt_pk_bf16_f32 {v(X+4*ks+j)}, {v(T+2*j)}, {v(T+2*j+1)}")
        k(f"s_add_u32 {s(stmp)}, {s(stile)}, {ks*1024}\nbuffer_store_dwordx4 {v(X+4*ks,4)}, v1, {s(rH2,4)}, {s(stmp)} offen")
    k("L_ln2_end:\ns_endpgm")
    return k, (128, 64, 0)
```

```python
from asmgen import *
from layout import *
from k_g1 import srd

def gen_g1(stamps=False, PDS=3, cap=11, wt_upto=6, prefetch=None, alg=True, w2pf=True):
    NK = 19 if alg else 18
    US = NK*2048
    k = Kern("g1_kernel", vgprs=(248 if alg else 220), agprs=256)
    B19, VA, VS2, PFV = 216, 232, 236, 240
    sWS = 4
    rW, rH2, rHH = 12, 16, 20
    sw, srb, sg, stmp, stmp2, snl2e, sst, sw01s, sw01d, sw23s, sw23d, sfs, sfd, su8, sh0 = range(32, 47)
    sx = 48
    sso = 47
    vl16, vS, vst2 = 1, 2, 6
    XV, RING, ACC, OUT, TMP = 8, 40, 64, 192, 208
    def xr(t, ks):
        if ks == 18: return v(B19 + 4*t, 4)
        i = (ks*4 + t)*4
        return a(i, 4) if i < 256 else v(XV + i - 256, 4)
    k("s_cmp_ge_u32 s2, 256\ns_cbranch_scc1 L_g1_end")
    k(f"s_load_dwordx2 {s(sWS,2)}, s[0:1], {KA['ws']}")
    if stamps: k("s_memtime s[60:61]\ns_memrealtime s[62:63]")
    k(f"v_lshrrev_b32 v8, 6, v0\nv_and_b32 v0, 63, v0\nv_readfirstlane_b32 {s(sw)}, v8\nv_lshlrev_b32 {v(vl16)}, 4, v0")
    for i in range(4): k(f"v_add_u32 {v(vS+i)}, {i*US}, {v(vl16)}")
    k(f"s_and_b32 {s(stmp)}, s2, 1\ns_lshl_b32 {s(srb)}, {s(stmp)}, 2\ns_lshr_b32 {s(stmp)}, s2, 6\ns_add_u32 {s(srb)}, {s(srb)}, {s(stmp)}")
    k(f"s_lshr_b32 {s(sg)}, s2, 1\ns_and_b32 {s(sg)}, {s(sg)}, 3\ns_lshl_b32 {s(sg)}, {s(sg)}, 3\ns_lshr_b32 {s(stmp)}, s2, 3\ns_and_b32 {s(stmp)}, {s(stmp)}, 7\ns_add_u32 {s(sg)}, {s(sg)}, {s(stmp)}")
    k(f"s_lshl_b32 {s(stmp)}, {s(srb)}, 4\ns_lshl_b32 {s(stmp2)}, {s(sw)}, 2\ns_add_u32 {s(stmp)}, {s(stmp)}, {s(stmp2)}")
    k(f"s_mul_i32 {s(sx)}, {s(stmp)}, {18*1024}")
    for t in range(1, 4): k(f"s_add_u32 {s(sx+t)}, {s(sx)}, {t*18*1024}")
    k(f"s_mul_i32 {s(sh0)}, {s(stmp)}, {144*1024}")
    k(f"s_mul_i32 {s(sfs)}, {s(sg)}, {8*US}")
    k(f"s_add_u32 {s(su8)}, {s(sg)}, 256\ns_mul_i32 {s(su8)}, {s(su8)}, {US}")
    k(f"s_lshr_b32 {s(stmp)}, {s(sw)}, 1\ns_mul_i32 {s(stmp)}, {s(stmp)}, {US}\ns_and_b32 {s(stmp2)}, {s(sw)}, 1")
    k(f"s_lshl_b32 {s(sw01d)}, {s(stmp2)}, 11\ns_add_u32 {s(sw01d)}, {s(sw01d)}, {s(stmp)}\ns_add_u32 {s(sw01s)}, {s(sw01d)}, {s(sfs)}")
    k(f"s_lshl_b32 {s(sw23d)}, {s(stmp2)}, 10\ns_add_u32 {s(sw23d)}, {s(sw23d)}, {s(stmp)}\ns_add_u32 {s(sw23d)}, {s(sw23d)}, {2*US}\ns_add_u32 {s(sw23s)}, {s(sw23d)}, {s(sfs)}")
    if alg: k(f"s_mul_i32 {s(sfd)}, {s(sw)}, 10\ns_min_u32 {s(sfd)}, {s(sfd)}, 28\ns_lshl_b32 {s(sfd)}, {s(sfd)}, 10")
    else: k(f"s_mul_i32 {s(sfd)}, {s(sw)}, 9216")
    k(f"s_mov_b32 {s(snl2e)}, 0xbfb8aa3b")
    k(f"s_and_b32 {s(stmp)}, {s(sg)}, 1\ns_lshl_b32 {s(stmp)}, {s(stmp)}, 3\nv_add_u32 {v(vst2)}, {s(stmp)}, {v(vl16)}")
    k("s_waitcnt lgkmcnt(0)")
    srd(k, rW, sWS, WS["W13F"], WS["W13F_SZ"]); srd(k, rH2, sWS, WS["H2F"], WS["H2F_SZ"]); srd(k, rHH, sWS, WS["HHF"], WS["HHF_SZ"])
    rST = 24
    if alg: srd(k, rST, sWS, WS["STAT"], WS["STAT_SZ"])

    vm = []
    def emit(op):
        if isinstance(op, tuple): k(op[0]); vm.append(op[1])
        else: k(op)
    def wait(*tags):
        idx = [i for i, t in enumerate(vm) if t in tags]
        n = len(vm) - 1 - max(idx)
        k(f"s_waitcnt vmcnt({min(n, 63)})")
    def LG(c):
        ops = []
        for ks in (2*c, 2*c+1):
            for t in range(4):
                o = f"buffer_load_dwordx4 {xr(t,ks)}, {v(vl16)}, {s(rH2,4)}, {s(sx+t)} offen offset:{(ks & 3)*1024}"
                if ks & 3 == 3: o += f"\ns_add_u32 {s(sx+t)}, {s(sx+t)}, 4096"
                ops.append((o, ('L', c)))
        ops.append((f"s_mov_b32 m0, {s(sw01d)}\ns_nop 0\nbuffer_load_dwordx4 {v(vl16)}, {s(rW,4)}, {s(sw01s)} offen lds", ('L', c)))
        ops.append((f"buffer_load_dwordx4 {v(vl16)}, {s(rW,4)}, {s(sw01s)} offen offset:1024 lds\ns_add_u32 {s(sw01s)}, {s(sw01s)}, 4096\ns_add_u32 {s(sw01d)}, {s(sw01d)}, 4096", ('L', c)))
        ops.append((f"s_mov_b32 m0, {s(sw23d)}\ns_nop 0\nbuffer_load_dwordx4 {v(vl16)}, {s(rW,4)}, {s(sw23s)} offen lds\ns_add_u32 {s(sw23s)}, {s(sw23s)}, 2048\ns_add_u32 {s(sw23d)}, {s(sw23d)}, 2048", ('L', c)))
        return ops
    def dma9(srcbase_expr_setup, dst_setup, tag):
        NP = 10 if alg else 9
        ops = []
        for c in range(3):
            n = 4 if c < 2 else NP - 8
            for i in range(n):
                hd = ""
                if i == 0:
                    hd = (srcbase_expr_setup + "\n" + dst_setup + "\n" if c == 0 else f"s_add_u32 {s(sst)}, {s(sst)}, 4096\ns_add_u32 {s(stmp2)}, {s(stmp2)}, 4096\n") + f"s_mov_b32 m0, {s(stmp2)}\ns_nop 0\n"
                ops.append((hd + f"buffer_load_dwordx4 {v(vl16)}, {s(rW,4)}, {s(sst)} offen offset:{i*1024} lds", tag))
        return ops
    def W23rest():
        src = (f"s_lshr_b32 {s(stmp)}, {s(sw)}, 1\ns_add_u32 {s(stmp)}, {s(stmp)}, 2\ns_mul_i32 {s(stmp)}, {s(stmp)}, {US}\ns_and_b32 {s(stmp2)}, {s(sw)}, 1\ns_mul_i32 {s(stmp2)}, {s(stmp2)}, {10240 if alg else 9216}\n"
               f"s_add_u32 {s(stmp2)}, {s(stmp2)}, {s(stmp)}\ns_add_u32 {s(stmp2)}, {s(stmp2)}, 18432\ns_add_u32 {s(sst)}, {s(stmp2)}, {s(sfs)}")
        return dma9(src, "", ('R',))
    def LG9():
        return [(f"s_lshr_b32 {s(stmp)}, {s(sw)}, 1\ns_mul_i32 {s(stmp)}, {s(stmp)}, {US}\ns_and_b32 {s(stmp2)}, {s(sw)}, 1\ns_lshl_b32 {s(stmp2)}, {s(stmp2)}, 10\ns_add_u32 {s(stmp2)}, {s(stmp2)}, {s(stmp)}\n"
                 f"s_add_u32 {s(stmp2)}, {s(stmp2)}, {18*2048}\ns_add_u32 {s(sst)}, {s(stmp2)}, {s(sfs)}\ns_mov_b32 m0, {s(stmp2)}\ns_nop 0\nbuffer_load_dwordx4 {v(vl16)}, {s(rW,4)}, {s(sst)} offen lds", ('R',))]
    def UD(u):
        slot = u % 4
        if u < 8: src = f"s_add_u32 {s(sst)}, {s(sfs)}, {u*US}\ns_add_u32 {s(sst)}, {s(sst)}, {s(sfd)}"
        else: src = f"s_add_u32 {s(sst)}, {s(su8)}, {s(sfd)}"
        return dma9(src, f"s_add_u32 {s(stmp2)}, {s(sfd)}, {slot*US}", ('U', u))
    def fixdma(ops):
        return [(o.replace("\n\n", "\n"), t) for o, t in ops]

    steps = []
    for c in range(9): steps += [(0, 2*c), (1, 2*c), (2, c), (0, 2*c+1), (1, 2*c+1), (3, c)]
    if alg: steps += [(0, 18), (1, 18)]
    PA = len(steps)
    for kk in range(9, NK): steps += [(2, kk), (3, kk)]
    PB = len(steps)
    for u in range(4, 9): steps += [(u, ks) for ks in range(NK)]
    N = len(steps); assert N == 9*NK
    last_step = {u: max(i for i, (uu, _) in enumerate(steps) if uu == u) for u in range(9)}
    first_step = {u: min(i for i, (uu, _) in enumerate(steps) if uu == u) for u in range(9)}
    def reads(i):
        u, ks = steps[i]; slot = RING + 8*(i % 3); b = vS + (u % 4)
        return [f"ds_read_b128 {v(slot,4)}, {v(b)} offset:{ks*2048}", f"ds_read_b128 {v(slot+4,4)}, {v(b)} offset:{ks*2048+1024}"]
    def epi(u):
        X = ACC + 32*(u % 4); p = u % 2; ops = []
        g = lambda e: X + e; uu = lambda e: X + 16 + e
        for b in (0, 8):
            es = range(b, b+8); t = lambda e: TMP + e - b
            if alg: ops += [(f"v_mul_f32 {v(t(e))}, {v(VA + e//4)}, {v(g(e))}", 1) for e in es]
            else: ops += [(f"v_mul_f32 {v(t(e))}, {s(snl2e)}, {v(g(e))}", 1) for e in es]
            ops += [(f"v_exp_f32 {v(t(e))}, {v(t(e))}", 2) for e in es]
            ops += [(f"v_mul_f32 {v(uu(e))}, {v(g(e))}, {v(uu(e))}", 1) for e in es]
            if alg: ops += [(f"v_fma_f32 {v(t(e))}, {v(t(e))}, {v(VS2 + e//4)}, {v(VS2 + e//4)}", 1) for e in es]
            else: ops += [(f"v_add_f32 {v(t(e))}, 1.0, {v(t(e))}", 1) for e in es]
            ops += [(f"v_rcp_f32 {v(t(e))}, {v(t(e))}", 2) for e in es]
            ops += [(f"v_mul_f32 {v(uu(e))}, {v(uu(e))}, {v(t(e))}", 1) for e in es]
            for e in es:
                if e % 2 == 0:
                    tt = e // 4; h = (e % 4)//2
                    dst = OUT + 4*tt + (2*p if u < 8 else 0) + h
                    ops.append((f"v_cvt_pk_bf16_f32 {v(dst)}, {v(uu(e))}, {v(uu(e+1))}", 1))
        out = [(o, c, None) for o, c in ops]
        if u < 8 and p == 1:
            for tt in range(4):
                hd = (f"s_lshl_b32 {s(sso)}, {s(sg)}, 2\ns_add_u32 {s(sso)}, {s(sso)}, {u >> 1}\ns_lshl_b32 {s(sso)}, {s(sso)}, 10\ns_add_u32 {s(sso)}, {s(sso)}, {s(sh0)}\n" if tt == 0 else f"s_add_u32 {s(sso)}, {s(sso)}, {144*1024}\n")
                out.append((hd + f"buffer_store_dwordx4 {v(OUT+4*tt,4)}, {v(vl16)}, {s(rHH,4)}, {s(sso)} offen" + (" sc1" if u < wt_upto else ""), 2, ('S', u)))
        if u == 8:
            for tt in range(4):
                hd = (f"s_lshr_b32 {s(sso)}, {s(sg)}, 1\ns_add_u32 {s(sso)}, {s(sso)}, 128\ns_lshl_b32 {s(sso)}, {s(sso)}, 10\ns_add_u32 {s(sso)}, {s(sso)}, {s(sh0)}\n" if tt == 0 else f"s_add_u32 {s(sso)}, {s(sso)}, {144*1024}\n")
                out.append((hd + f"buffer_store_dwordx2 {v(OUT+4*tt,2)}, {v(vst2)}, {s(rHH,4)}, {s(sso)} offen", 2, ('S', u)))
        return out
    epiq = []
    done_units = set()
    def emit_epi(o):
        if o[4] is not None: k(o[2]); vm.append(o[4])
        else: k(o[2])
    if alg:
        k(f"v_lshrrev_b32 v8, 4, v0\nv_lshlrev_b32 v8, 14, v8\nv_and_b32 v9, 15, v0\nv_lshlrev_b32 v9, 3, v9\nv_add_u32 v8, v8, v9")
        k(f"v_add_u32 v9, {4*16384}, v8\nv_mov_b32 v10, 0x7fffffff\nv_cmp_gt_u32 vcc, 32, v0\nv_cndmask_b32 v9, v10, v9, vcc")
        k(f"s_lshl_b32 {s(stmp)}, {s(srb)}, 4\ns_lshl_b32 {s(stmp2)}, {s(sw)}, 2\ns_add_u32 {s(stmp)}, {s(stmp)}, {s(stmp2)}\ns_lshl_b32 {s(stmp)}, {s(stmp)}, 7")
        for t in range(4):
            emit((f"buffer_load_dwordx2 {v(OUT+4*t,2)}, v8, {s(rST,4)}, {s(stmp)} offen offset:{t*128}", ('T',)))
            emit((f"buffer_load_dwordx2 {v(OUT+4*t+2,2)}, v9, {s(rST,4)}, {s(stmp)} offen offset:{t*128}", ('T',)))
    for o in LG(0): emit(o)
    for c in range(1, PDS):
        for o in LG(c): emit(o)
    statq = []
    if alg:
        for t in range(4):
            a0 = OUT + 4*t; m_, q_, tm = a0, a0+1, TMP + 2*t
            L = []
            L.append(f"v_add_f32 {v(m_)}, {v(a0)}, {v(a0+2)}"); L.append(f"v_add_f32 {v(q_)}, {v(a0+1)}, {v(a0+3)}")
            for r in (m_, q_):
                L += [f"v_mov_b32 {v(tm)}, {v(r)}", f"s_nop 1\nv_permlane32_swap_b32 {v(r)}, {v(tm)}", f"v_add_f32 {v(r)}, {v(r)}, {v(tm)}", f"v_mov_b32 {v(tm)}, {v(r)}",
                      f"s_nop 1\nv_permlane16_swap_b32 {v(r)}, {v(tm)}", f"v_add_f32 {v(r)}, {v(r)}, {v(tm)}"]
            L += [f"v_mul_f32 {v(m_)}, 0x3ae38e39, {v(m_)}", f"v_mul_f32 {v(q_)}, 0x3ae38e39, {v(q_)}",
                  f"v_fma_f32 {v(q_)}, -{v(m_)}, {v(m_)}, {v(q_)}", f"v_max_f32 {v(q_)}, 0, {v(q_)}", f"v_add_f32 {v(VS2+t)}, 0x3727c5ac, {v(q_)}",
                  f"v_rsq_f32 {v(tm)}, {v(VS2+t)}", f"v_sub_f32 {v(m_)}, 0, {v(m_)}", f"v_mul_f32 {v(VA+t)}, {s(snl2e)}, {v(tm)}", f"v_mul_f32 {v(q_)}, {v(VS2+t)}, {v(tm)}",
                  f"v_cndmask_b32 {v(m_)}, 0, {v(m_)}, s[52:53]", f"v_cndmask_b32 {v(q_)}, 0, {v(q_)}, s[52:53]"]
            b = B19 + 4*t
            L += [f"v_cvt_pk_bf16_f32 {v(tm)}, {v(m_)}, {v(m_)}", f"v_lshlrev_b32 {v(tm)}, 16, {v(tm)}", f"v_sub_f32 {v(tm)}, {v(m_)}, {v(tm)}", f"v_cvt_pk_bf16_f32 {v(b)}, {v(m_)}, {v(tm)}",
                  f"v_cvt_pk_bf16_f32 {v(b+1)}, {v(m_)}, {v(q_)}", f"v_cvt_pk_bf16_f32 {v(tm)}, {v(q_)}, {v(q_)}", f"v_lshlrev_b32 {v(tm)}, 16, {v(tm)}",
                  f"v_sub_f32 {v(tm)}, {v(q_)}, {v(tm)}", f"v_cvt_pk_bf16_f32 {v(b+2)}, {v(tm)}, {v(q_)}", f"v_mov_b32 {v(b+3)}, 0"]
            statq.append(L)
        merged = []
        for i in range(max(len(L) for L in statq)):
            for L in statq:
                if i < len(L): merged.append(L[i])
        statq = merged
        k("v_cmp_gt_u32 s[52:53], 16, v0")
    wait(('L', 0)); k("s_barrier")
    if stamps: k("s_memtime s[64:65]")
    for o in reads(0) + reads(1): k(o)
    vq = []
    busy9 = [0]
    for i in range(N):
        u, ks = steps[i]
        pre_bar = False
        if (i + 2) < 54 and (i + 2) % 6 == 0:
            c = (i + 2)//6
            while any(t == ('L', c) for _, t in vq): emit(vq.pop(0))
            wait(('L', c)); k("s_barrier")
        if alg and i == 52:
            while vq: emit(vq.pop(0))
            wait(('R',)); k("s_barrier")
        if i == PA - 2:
            while vq: emit(vq.pop(0))
            k("s_waitcnt lgkmcnt(0)"); wait(('R',)); k("s_barrier")
            vq += fixdma(UD(4)) + fixdma(UD(5))
        if i == PB - 2:
            while any(t == ('U', 4) for _, t in vq): emit(vq.pop(0))
            k("s_waitcnt lgkmcnt(0)"); wait(('U', 4)); k("s_barrier")
            vq += fixdma(UD(6)) + fixdma(UD(7))
        if i == PB + NK - 2:
            while any(t == ('U', 5) for _, t in vq): emit(vq.pop(0))
            k("s_waitcnt lgkmcnt(0)"); wait(('U', 5)); k("s_barrier")
            vq += fixdma(UD(8))
        for uu_, at in ((6, PB + 2*NK - 2), (7, PB + 3*NK - 2), (8, PB + 4*NK - 2)):
            if i == at:
                while any(t == ('U', uu_) for _, t in vq): emit(vq.pop(0))
                wait(('U', uu_)); k("s_barrier")
        if i == PB + 3*NK + 4 and w2pf:
            k(f"s_bfe_u32 {s(stmp)}, s2, 0x20001\ns_mul_i32 {s(stmp)}, {s(stmp)}, {36*36*1024}\ns_lshr_b32 {s(stmp2)}, s2, 3\ns_lshl_b32 {s(stmp2)}, {s(stmp2)}, 2\ns_add_u32 {s(stmp2)}, {s(stmp2)}, {s(sw)}\ns_mul_i32 {s(stmp2)}, {s(stmp2)}, {81*128}\ns_add_u32 {s(stmp)}, {s(stmp)}, {s(stmp2)}")
            srd(k, 28, sWS, WS["W2F"], WS["W2F_SZ"])
            k(f"v_lshlrev_b32 {v(PFV+4)}, 7, v0")
            emit((f"buffer_load_dword {v(PFV+5)}, {v(PFV+4)}, s[28:31], {s(stmp)} offen\ns_add_u32 {s(stmp)}, {s(stmp)}, {17*128}", ('Z',)))
            emit((f"buffer_load_dword {v(PFV+5)}, {v(PFV+4)}, s[28:31], {s(stmp)} offen", ('Z',)))
        if i == PB + 4*NK + 2 and prefetch:
            k(f"s_cmp_lt_u32 s2, 8\ns_cbranch_scc0 L_g1_nopf\ns_cmp_eq_u32 {s(sw)}, 0\ns_cbranch_scc0 L_g1_nopf")
            for nm, ns in prefetch: touch_code(k, nm, ns, vt=PFV if alg else 216)
            k("L_g1_nopf:")
            k("s_nop 0")
        if i < 54 and i % 6 == 0:
            c = i//6 + PDS
            if c < 9: vq += LG(c)
            if i//6 == 9 - PDS or (PDS > 8 and i == 0): vq += fixdma(W23rest()) + (LG9() if alg else [])
        if u >= 4 and i == first_step[u]:
            while any(o[1] == u - 4 for o in epiq): emit_epi(epiq.pop(0))
        rd = reads(i+2) if i + 2 < N else []
        synced = i in (PA - 2, PB - 2, PB + NK - 2)
        if not synced:
            nout = (2 if i + 1 < N else 0)
            k(f"s_waitcnt lgkmcnt({nout})")
        X = ACC + 32*(u % 4); slot = RING + 8*(i % 3)
        budget = cap
        nv = -(-len(vq) // max(1, 6 if i < PA else 9)) if vq else 0
        nv = min(nv, 3)
        for j in range(8):
            m, t = j // 4, j % 4
            acc = X + 16*m + 4*t
            c = "0" if ks == 0 else v(acc, 4)
            k(f"v_mfma_f32_16x16x32_bf16 {v(acc,4)}, {v(slot+4*m,4)}, {xr(t,ks)}, {c}")
            used = 0
            if rd and j in (0, 1): k(rd.pop(0)); used += 1
            if vq and nv > 0 and j in (2, 4, 6):
                emit(vq.pop(0)); nv -= 1; used += 2; budget -= 2
            if statq and i >= 6 and used < 2:
                k(statq.pop(0)); used += 1
                if statq and used < 2: k(statq.pop(0)); used += 1
            while epiq and epiq[0][0] <= i and used < 2 and budget > 0:
                o = epiq[0]
                if used + min(o[3], 2) > 2 and used > 0: break
                epiq.pop(0); emit_epi(o); used += o[3]; budget -= o[3]
        if i == 50: assert not statq
        if i == last_step[u]:
            epiq += [(i + 2, u, o, c, tg) for o, c, tg in epi(u)]
    if stamps: k("s_memtime s[66:67]")
    k("s_nop 7")
    while epiq: emit_epi(epiq.pop(0))
    if stamps:
        k("s_waitcnt vmcnt(0)\ns_memtime s[68:69]\ns_memrealtime s[70:71]\ns_waitcnt lgkmcnt(0)")
        srd(k, 24, sWS, WS["AUX"], WS["AUX_SZ"])
        k(f"s_lshl_b32 {s(stmp)}, s2, 3\ns_add_u32 {s(stmp)}, {s(stmp)}, {s(sw)}\ns_lshl_b32 {s(stmp)}, {s(stmp)}, 6\nv_mov_b32 v9, {s(stmp)}")
        for i, (x, y) in enumerate(((64,60),(66,60),(68,60),(70,62))):
            k(f"s_sub_u32 s72, s{x}, s{y}\nv_mov_b32 v8, s72\nbuffer_store_dword v8, v9, s[24:27], 0 offen offset:{4*i}")
        k(f"v_mov_b32 v8, s62\nbuffer_store_dword v8, v9, s[24:27], 0 offen offset:16")
    k("L_g1_end:\ns_endpgm")
    return k, (256, 256, 4*US)
```

```python
from asmgen import *
from layout import *
from k_g1 import srd, spread

def gen_g2a(stamps=False, NB=6, fused=True):
    GS = 36864
    k = Kern("g2a_kernel", vgprs=208, agprs=8*NB)
    sWS = 4
    rW2, rHH, rP = 12, 16, 20
    sw, srb, scs, skq, sa_, sb0, sb1, stmp, stmp2, sloop, slds, sp = range(32, 44)
    vl16, vA = 1, 2
    ACC = 8
    AF = 80
    acc = lambda t, dt: ACC + (t*9+dt)*4
    Bf = lambda sm, t: sm*8 + t*4
    k("s_cmp_ge_u32 s2, 256\ns_cbranch_scc1 L_g2a_end")
    k(f"s_load_dwordx2 {s(sWS,2)}, s[0:1], {KA['ws']}\ns_load_dwordx2 s[6:7], s[0:1], {KA['out']}")
    if stamps: k("s_memtime s[60:61]\ns_memrealtime s[62:63]")
    k(f"v_lshrrev_b32 v8, 6, v0\nv_and_b32 v0, 63, v0\nv_readfirstlane_b32 {s(sw)}, v8\nv_lshlrev_b32 {v(vl16)}, 4, v0")
    for i in range(3): k(f"v_add_u32 {v(vA+i)}, {i*GS}, {v(vl16)}")
    k(f"s_lshr_b32 {s(skq)}, s2, 1\ns_and_b32 {s(skq)}, {s(skq)}, 3\ns_and_b32 {s(stmp)}, s2, 1\ns_lshl_b32 {s(srb)}, {s(stmp)}, 3")
    k(f"s_lshr_b32 {s(stmp)}, s2, 3\ns_and_b32 {s(stmp2)}, {s(stmp)}, 7\ns_add_u32 {s(srb)}, {s(srb)}, {s(stmp2)}\ns_lshr_b32 {s(scs)}, {s(stmp)}, 3")
    k(f"s_lshl_b32 {s(stmp)}, {s(srb)}, 3\ns_lshl_b32 {s(stmp2)}, {s(sw)}, 1\ns_add_u32 {s(stmp)}, {s(stmp)}, {s(stmp2)}")
    k(f"s_mul_i32 {s(sb0)}, {s(stmp)}, {144*1024}\ns_mul_i32 {s(stmp2)}, {s(skq)}, {36*1024}\ns_add_u32 {s(sb0)}, {s(sb0)}, {s(stmp2)}\ns_add_u32 {s(sb1)}, {s(sb0)}, {144*1024}")
    k(f"s_lshl_b32 {s(stmp2)}, {s(skq)}, 7\ns_add_u32 {s(stmp2)}, {s(stmp2)}, {s(stmp)}\ns_mul_i32 {s(sp)}, {s(stmp2)}, {18*1024}")
    k(f"s_mul_i32 {s(sa_)}, {s(skq)}, 36\ns_add_u32 {s(sa_)}, {s(sa_)}, {s(sw)}\ns_mul_i32 {s(sa_)}, {s(sa_)}, {36*1024}\ns_mul_i32 {s(stmp2)}, {s(scs)}, {9*1024}\ns_add_u32 {s(sa_)}, {s(sa_)}, {s(stmp2)}")
    k(f"s_mul_i32 {s(slds)}, {s(sw)}, 9216")
    k("s_waitcnt lgkmcnt(0)")
    srd(k, rW2, sWS, WS["W2F"], WS["W2F_SZ"]); srd(k, rHH, sWS, WS["HHF"], WS["HHF_SZ"]); srd(k, rP, sWS, WS["PART"], WS["PART_SZ"])
    vm = []
    def wdma(g):
        ops = []
        for c in range(3):
            n = 4 if c < 2 else 1
            hd = f"s_add_u32 m0, {s(slds)}, {(g % 3)*GS + c*4096}\ns_add_u32 {s(stmp)}, {s(sa_)}, {c*4096}\n"
            for i in range(n):
                ops.append((hd if i == 0 else "") + f"buffer_load_dwordx4 {v(vl16)}, {s(rW2,4)}, {s(stmp)} offen offset:{i*1024} lds")
        ops[-1] += f"\ns_add_u32 {s(sa_)}, {s(sa_)}, {4*36*1024}"
        return [(o, ('W', g)) for o in ops]
    def bload(st):
        sm = st % NB
        return [(f"buffer_load_dwordx4 {a(Bf(sm,0),4)}, {v(vl16)}, {s(rHH,4)}, {s(sb0)} offen", ('B', st)),
                (f"buffer_load_dwordx4 {a(Bf(sm,1),4)}, {v(vl16)}, {s(rHH,4)}, {s(sb1)} offen\ns_add_u32 {s(sb0)}, {s(sb0)}, 1024\ns_add_u32 {s(sb1)}, {s(sb1)}, 1024", ('B', st))]
    def emit(op):
        if isinstance(op, tuple): k(op[0]); vm.append(op[1])
        else: k(op)
    def wait(*tags):
        idx = [i for i, t in enumerate(vm) if t in tags]
        n = len(vm) - 1 - max(idx)
        k(f"s_waitcnt vmcnt({min(n, 63)})")
    def areads(st):
        g = st // 4; par = st % 2
        return [f"ds_read_b128 {v(AF+par*36+dt*4,4)}, {v(vA + g % 3)} offset:{(st % 4)*9216 + dt*1024}" for dt in range(9)]
    PB = NB - 1
    for o in wdma(0): emit(o)
    for st in range(2):
        for o in bload(st): emit(o)
    early = wdma(1) + [o for st in range(2, PB) for o in bload(st)] + wdma(2)
    wait(('W', 0)); k("s_barrier")
    for o in areads(0): k(o)
    if stamps: k("s_memtime s[64:65]")
    q = early
    def flush(tag):
        while any(o[1] == tag for o in q): emit(q.pop(0))
    for st in range(36):
        g = st // 4; par = st % 2
        k("s_waitcnt lgkmcnt(0)")
        if st % 4 == 3 and g < 8:
            flush(('W', g+1)); wait(('W', g+1)); k("s_barrier")
            if g + 3 <= 8: q += wdma(g+3)
        flush(('B', st)); wait(('B', st))
        rd = areads(st+1) if st < 35 else []
        if st + PB < 36: q += bload(st + PB)
        take = q[:11]; del q[:11]
        fill = rd + take
        slots = spread(fill, 18)
        j = 0
        for dt in range(9):
            for t in range(2):
                c = "0" if st == 0 else v(acc(t,dt),4)
                k(f"v_mfma_f32_16x16x32_bf16 {v(acc(t,dt),4)}, {v(AF+par*36+dt*4,4)}, {a(Bf(st % NB,t),4)}, {c}")
                for o in slots[j]: emit(o)
                j += 1
    if stamps: k("s_memtime s[66:67]")
    if fused:
        fused_reduce(k, acc, ACC, AF, sWS, sw, srb, scs, skq, stmp, stmp2, vl16, stamps)
    else:
        k(f"v_lshlrev_b32 v5, 4, v0\nv_add_u32 v6, 8, v5")
        k(f"s_mul_i32 {s(stmp)}, {s(scs)}, 9\ns_lshr_b32 {s(stmp)}, {s(stmp)}, 1\ns_lshl_b32 {s(stmp)}, {s(stmp)}, 10\ns_add_u32 {s(sp)}, {s(sp)}, {s(stmp)}")
        k("s_nop 4")
        for t in range(2):
            for dt in range(9):
                r = acc(t,dt)
                k(f"v_cvt_pk_bf16_f32 {v(r)}, {v(r)}, {v(r+1)}\nv_cvt_pk_bf16_f32 {v(r+1)}, {v(r+2)}, {v(r+3)}")
        k(f"s_and_b32 {s(stmp)}, {s(scs)}, 1\ns_cmp_eq_u32 {s(stmp)}, 0\ns_cbranch_scc0 L_g2a_odd")
        def pairs(first, ksoff0):
            for t in range(2):
                k(f"s_add_u32 {s(stmp2)}, {s(sp)}, {t*18*1024}")
                for p in range(4):
                    d0 = first + 2*p; r0, r1 = acc(t,d0), acc(t,d0+1)
                    k(f"v_mov_b32 {v(r0+2)}, {v(r1)}\nv_mov_b32 {v(r0+3)}, {v(r1+1)}")
                    ko = ksoff0 + p
                    k(f"s_add_u32 {s(stmp)}, {s(stmp2)}, {ko*1024}\nbuffer_store_dwordx4 {v(r0,4)}, {v(vl16)}, {s(rP,4)}, {s(stmp)} offen")
                sd = 8 if first == 0 else 0; ko = 4 if first == 0 else 0
                k(f"s_add_u32 {s(stmp)}, {s(stmp2)}, {ko*1024}\nbuffer_store_dwordx2 {v(acc(t,sd),2)}, {'v5' if first == 0 else 'v6'}, {s(rP,4)}, {s(stmp)} offen")
        pairs(0, 0)
        k("s_branch L_g2a_done")
        k("L_g2a_odd:")
        pairs(1, 1)

    k("L_g2a_done:")
    if stamps:
        k("s_waitcnt vmcnt(0)\ns_memtime s[68:69]\ns_memrealtime s[70:71]\ns_waitcnt lgkmcnt(0)")
        srd(k, 24, sWS, WS["AUX"], WS["AUX_SZ"])
        k(f"s_lshl_b32 {s(stmp)}, s2, 3\ns_add_u32 {s(stmp)}, {s(stmp)}, {s(sw)}\ns_lshl_b32 {s(stmp)}, {s(stmp)}, 6\nv_mov_b32 v9, {s(stmp)}")
        for i, (x, y) in enumerate(((64,60),(66,60),(68,60),(70,62))):
            k(f"s_sub_u32 s72, s{x}, s{y}\nv_mov_b32 v8, s72\nbuffer_store_dword v8, v9, s[24:27], 0 offen offset:{4*i}")
        k(f"v_mov_b32 v8, s62\nbuffer_store_dword v8, v9, s[24:27], 0 offen offset:16")
        if fused:
            for i, x in enumerate((78, 80, 82, 84)):
                k(f"s_sub_u32 s72, s{x}, s60\nv_mov_b32 v8, s72\nbuffer_store_dword v8, v9, s[24:27], 0 offen offset:{20+4*i}")
    k("L_g2a_end:\ns_endpgm")
    return k, (256, 256, 3*GS)

def gen_g2r():
    k = Kern("g2r_kernel", vgprs=96)
    sWS, sOUT = 4, 6
    rP, rX1, rMOD, rOUT = 8, 12, 16, 20
    sw, sf, stile, sks, stmp, stmp2 = range(32, 38)
    k("s_cmp_ge_u32 s2, 288\ns_cbranch_scc1 L_g2r_end")
    k(f"s_load_dwordx2 {s(sWS,2)}, s[0:1], {KA['ws']}\ns_load_dwordx2 {s(sOUT,2)}, s[0:1], {KA['out']}")
    k(f"v_lshrrev_b32 v8, 6, v0\nv_and_b32 v0, 63, v0\nv_readfirstlane_b32 {s(sw)}, v8\nv_lshlrev_b32 v1, 4, v0")
    k(f"s_lshl_b32 {s(sf)}, s2, 2\ns_add_u32 {s(sf)}, {s(sf)}, {s(sw)}\ns_lshl_b32 {s(sf)}, {s(sf)}, 1")
    k(f"s_mul_i32 {s(stile)}, {s(sf)}, 3641\ns_lshr_b32 {s(stile)}, {s(stile)}, 16\ns_mul_i32 {s(stmp)}, {s(stile)}, 18\ns_sub_u32 {s(sks)}, {s(sf)}, {s(stmp)}")
    k("v_lshrrev_b32 v2, 4, v0\nv_lshlrev_b32 v3, 4, v2")
    k(f"v_lshrrev_b32 v4, 3, v0\ns_lshl_b32 {s(stmp)}, {s(stile)}, 4\nv_add_u32 v4, {s(stmp)}, v4\nv_mul_u32_u24 v4, 1152, v4\nv_and_b32 v5, 7, v0\nv_lshlrev_b32 v5, 4, v5\nv_add_u32 v4, v4, v5")
    k(f"s_lshl_b32 {s(stmp)}, {s(sks)}, 6\nv_add_u32 v4, {s(stmp)}, v4")
    k(f"s_mul_i32 {s(stmp)}, {s(sw)}, 2304\nv_and_b32 v5, 15, v0\nv_mul_u32_u24 v5, 144, v5\nv_lshlrev_b32 v6, 3, v2\nv_add_u32 v5, v5, v6\nv_add_u32 v5, {s(stmp)}, v5")
    k(f"v_lshrrev_b32 v6, 3, v0\nv_mul_u32_u24 v6, 144, v6\nv_and_b32 v7, 7, v0\nv_lshlrev_b32 v7, 4, v7\nv_add_u32 v6, v6, v7\nv_add_u32 v6, {s(stmp)}, v6")
    k("s_waitcnt lgkmcnt(0)")
    srd(k, rP, sWS, WS["PART"], WS["PART_SZ"]); srd(k, rX1, sWS, WS["X1F"], WS["X1F_SZ"]); srd(k, rMOD, sWS, WS["MOD"], WS["MOD_SZ"]); srd(k, rOUT, sOUT, 0, 2048*1152)
    P = 8; X = 40; G = 48; T = 64
    k(f"s_lshl_b32 {s(stmp)}, {s(sf)}, 10")
    for kq in range(4):
        k(f"s_add_u32 {s(stmp2)}, {s(stmp)}, {kq*128*18*1024}")
        for f in range(2): k(f"buffer_load_dwordx4 {v(P+(f*4+kq)*4,4)}, v1, {s(rP,4)}, {s(stmp2)} offen offset:{f*1024}")
    for f in range(2): k(f"buffer_load_dwordx4 {v(X+f*4,4)}, v1, {s(rX1,4)}, {s(stmp)} offen offset:{f*1024}")
    k(f"s_lshl_b32 {s(stmp2)}, {s(sks)}, 7\ns_add_u32 {s(stmp2)}, {s(stmp2)}, {5*576*4}")
    for f in range(2):
        for h in range(2): k(f"buffer_load_dwordx4 {v(G+(f*2+h)*4,4)}, v3, {s(rMOD,4)}, {s(stmp2)} offen offset:{f*128+h*64}")
    k("s_waitcnt vmcnt(0)")
    for f in range(2):
        for j in range(4):
            lo, hi = T+2*j, T+2*j+1
            p0 = P + (f*4)*4 + j
            k(f"v_lshlrev_b32 {v(lo)}, 16, {v(p0)}\nv_and_b32 {v(hi)}, 0xffff0000, {v(p0)}")
            for kq in range(1, 4):
                p = P + (f*4+kq)*4 + j
                k(f"v_lshlrev_b32 v76, 16, {v(p)}\nv_and_b32 v77, 0xffff0000, {v(p)}\nv_add_f32 {v(lo)}, {v(lo)}, v76\nv_add_f32 {v(hi)}, {v(hi)}, v77")
            x = X + f*4 + j; g = G + f*8 + 2*j
            k(f"v_lshlrev_b32 v76, 16, {v(x)}\nv_and_b32 v77, 0xffff0000, {v(x)}\nv_fma_f32 {v(lo)}, {v(g)}, {v(lo)}, v76\nv_fma_f32 {v(hi)}, {v(g+1)}, {v(hi)}, v77")
        for j in range(4): k(f"v_cvt_pk_bf16_f32 {v(T+8+j)}, {v(T+2*j)}, {v(T+2*j+1)}")
        k(f"ds_write_b64 v5, {v(T+8,2)} offset:{f*64}\nds_write_b64 v5, {v(T+10,2)} offset:{f*64+32}")
    k("s_waitcnt lgkmcnt(0)")
    k(f"ds_read_b128 {v(P,4)}, v6\nds_read_b128 {v(P+4,4)}, v6 offset:{8*144}")
    k("s_waitcnt lgkmcnt(0)")
    k(f"buffer_store_dwordx4 {v(P,4)}, v4, {s(rOUT,4)}, 0 offen\ns_mov_b32 {s(stmp)}, {8*1152}\nbuffer_store_dwordx4 {v(P+4,4)}, v4, {s(rOUT,4)}, {s(stmp)} offen")
    k("L_g2r_end:\ns_endpgm")
    return k, (288, 256, 4*2304)


def fused_reduce(k, acc, ACC, AF, sWS, sw, srb, scs, skq, stmp, stmp2, vl16, stamps):
    rP2, rCNT, rX1, rMOD, rOUT = 24, 28, 44, 48, 52
    sgrp, sbase, sspin, stile, sdt0 = 56, 57, 58, 59, 74
    D = [[0, 1], [2, 3], [4, 5], [6, 7, 8]]
    srd(k, rP2, sWS, WS["PART2"], WS["PART2_SZ"]); srd(k, rCNT, sWS, WS["CNT"], WS["CNT_SZ"]); srd(k, rX1, sWS, WS["X1F"], WS["X1F_SZ"])
    srd(k, rMOD, sWS, WS["MOD"], WS["MOD_SZ"]); srd(k, rOUT, 6, 0, 2048*1152)
    k(f"s_lshl_b32 {s(sgrp)}, {s(srb)}, 2\ns_add_u32 {s(sgrp)}, {s(sgrp)}, {s(scs)}")
    XR = AF + 48; GB = AF + 60
    PK = AF
    pk = lambda t, dt: PK + (t*9+dt)*2
    k("s_nop 4")
    for t in range(2):
        for dt in range(9):
            r = acc(t,dt)
            k(f"v_cvt_pk_bf16_f32 {v(pk(t,dt))}, {v(r)}, {v(r+1)}\nv_cvt_pk_bf16_f32 {v(pk(t,dt)+1)}, {v(r+2)}, {v(r+3)}")
    ST = AF + 36
    for o in range(4):
        lab = k.lab("own")
        k(f"s_cmp_eq_u32 {s(skq)}, {o}\ns_cbranch_scc1 {lab}")
        k(f"s_lshl_b32 {s(sbase)}, {s(sgrp)}, 2\ns_add_u32 {s(sbase)}, {s(sbase)}, {o}\ns_lshl_b32 {s(sbase)}, {s(sbase)}, 2\ns_add_u32 {s(sbase)}, {s(sbase)}, {s(skq)}\ns_lshl_b32 {s(sbase)}, {s(sbase)}, 2\ns_add_u32 {s(sbase)}, {s(sbase)}, {s(sw)}\ns_mul_i32 {s(sbase)}, {s(sbase)}, 3072")
        d0 = D[o][0]
        for t in range(2):
            k(f"buffer_store_dwordx4 {v(pk(t,d0),4)}, {v(vl16)}, {s(rP2,4)}, {s(sbase)} offen offset:{t*1024} sc1")
        if len(D[o]) == 3:
            k(f"v_mov_b32 {v(ST)}, {v(pk(0,8))}\nv_mov_b32 {v(ST+1)}, {v(pk(0,8)+1)}\nv_mov_b32 {v(ST+2)}, {v(pk(1,8))}\nv_mov_b32 {v(ST+3)}, {v(pk(1,8)+1)}")
            k(f"buffer_store_dwordx4 {v(ST,4)}, {v(vl16)}, {s(rP2,4)}, {s(sbase)} offen offset:2048 sc1")
        k(f"{lab}:")
        k("s_nop 0")
    k(f"s_lshl_b32 {s(stile)}, {s(srb)}, 3\ns_lshl_b32 {s(stmp)}, {s(sw)}, 1\ns_add_u32 {s(stile)}, {s(stile)}, {s(stmp)}")
    k(f"s_mul_i32 {s(sdt0)}, {s(scs)}, 9\ns_lshl_b32 {s(stmp)}, {s(skq)}, 1\ns_add_u32 {s(sdt0)}, {s(sdt0)}, {s(stmp)}")
    k("v_lshrrev_b32 v6, 4, v0\nv_lshlrev_b32 v6, 4, v6")
    for j in range(3):
        k(f"s_add_u32 {s(stmp)}, {s(sdt0)}, {j}\ns_and_b32 {s(stmp2)}, {s(stmp)}, 1\ns_lshl_b32 {s(stmp2)}, {s(stmp2)}, 3\ns_lshr_b32 {s(stmp)}, {s(stmp)}, 1\ns_lshl_b32 {s(stmp)}, {s(stmp)}, 10\ns_add_u32 {s(stmp)}, {s(stmp)}, {s(stmp2)}")
        k(f"s_mul_i32 {s(stmp2)}, {s(stile)}, {18*1024}\ns_add_u32 {s(stmp)}, {s(stmp)}, {s(stmp2)}")
        k(f"buffer_load_dwordx2 {v(XR+4*j,2)}, {v(vl16)}, {s(rX1,4)}, {s(stmp)} offen\ns_add_u32 {s(stmp)}, {s(stmp)}, {18*1024}\nbuffer_load_dwordx2 {v(XR+4*j+2,2)}, {v(vl16)}, {s(rX1,4)}, {s(stmp)} offen")
        k(f"s_add_u32 {s(stmp)}, {s(sdt0)}, {j}\ns_lshl_b32 {s(stmp)}, {s(stmp)}, 6\ns_add_u32 {s(stmp)}, {s(stmp)}, {5*576*4}\nbuffer_load_dwordx4 {v(GB+4*j,4)}, v6, {s(rMOD,4)}, {s(stmp)} offen")
    if stamps: k("s_memtime s[78:79]")
    k("s_waitcnt vmcnt(0)")
    if stamps: k("s_memtime s[80:81]")
    k("s_barrier")
    k(f"s_cmp_eq_u32 {s(sw)}, 0\ns_cbranch_scc0 L_g2a_met")
    k(f"s_lshl_b32 {s(stmp)}, {s(sgrp)}, 7\nv_mov_b32 v6, {s(stmp)}\nv_mov_b32 v7, 1\ns_mov_b64 s[76:77], exec\ns_mov_b64 exec, 1")
    k(f"buffer_atomic_add v7, v6, {s(rCNT,4)}, 0 offen sc1")
    k(f"s_mov_b32 {s(sspin)}, 0")
    k("L_g2a_poll:")
    k(f"buffer_load_dword v7, v6, {s(rCNT,4)}, 0 offen sc1\ns_waitcnt vmcnt(0)\nv_readfirstlane_b32 {s(stmp)}, v7")
    k(f"s_cmp_ge_u32 {s(stmp)}, 4\ns_cbranch_scc1 L_g2a_met0")
    k(f"s_add_u32 {s(sspin)}, {s(sspin)}, 1\ns_cmp_lt_u32 {s(sspin)}, 0x100000\ns_cbranch_scc0 L_g2a_met0")
    k("s_sleep 1\ns_branch L_g2a_poll")
    k("L_g2a_met0:")
    k("s_mov_b64 exec, s[76:77]")
    k("L_g2a_met:")
    k("s_barrier")
    if stamps: k("s_memtime s[82:83]")
    FG = PK
    TW = 72
    for o in range(4):
        nxt = k.lab("var")
        k(f"s_cmp_eq_u32 {s(skq)}, {o}\ns_cbranch_scc0 {nxt}")
        nd = len(D[o]); nch = 3 if nd == 3 else 2
        srcs = [x for x in range(4) if x != o]
        for j, src in enumerate(srcs):
            k(f"s_lshl_b32 {s(sbase)}, {s(sgrp)}, 2\ns_add_u32 {s(sbase)}, {s(sbase)}, {o}\ns_lshl_b32 {s(sbase)}, {s(sbase)}, 2\ns_add_u32 {s(sbase)}, {s(sbase)}, {src}\ns_lshl_b32 {s(sbase)}, {s(sbase)}, 2\ns_add_u32 {s(sbase)}, {s(sbase)}, {s(sw)}\ns_mul_i32 {s(sbase)}, {s(sbase)}, 3072")
            for c in range(nch): k(f"buffer_load_dwordx4 {v(FG+j*12+c*4,4)}, {v(vl16)}, {s(rP2,4)}, {s(sbase)} offen offset:{c*1024} sc1")
        k(f"s_mul_i32 {s(stmp)}, {s(sw)}, 3584\nv_and_b32 v2, 15, v0\nv_mul_u32_u24 v2, 112, v2\nv_lshrrev_b32 v3, 4, v0\nv_lshlrev_b32 v3, 3, v3\nv_add_u32 v2, v2, v3\nv_add_u32 v2, {s(stmp)}, v2")
        k("s_waitcnt vmcnt(0)")
        if stamps: k("s_memtime s[84:85]")
        for t in range(2):
            for jj, dt in enumerate(D[o]):
                r = acc(t,dt)
                c, h = (t, jj) if jj < 2 else (2, t)
                for j in range(3):
                    f = FG + j*12 + c*4 + 2*h
                    k(f"v_lshlrev_b32 v4, 16, {v(f)}\nv_and_b32 v5, 0xffff0000, {v(f)}\nv_add_f32 {v(r)}, {v(r)}, v4\nv_add_f32 {v(r+1)}, {v(r+1)}, v5")
                    k(f"v_lshlrev_b32 v4, 16, {v(f+1)}\nv_and_b32 v5, 0xffff0000, {v(f+1)}\nv_add_f32 {v(r+2)}, {v(r+2)}, v4\nv_add_f32 {v(r+3)}, {v(r+3)}, v5")
                x = XR + 4*jj + 2*t; g = GB + 4*jj
                k(f"v_lshlrev_b32 v4, 16, {v(x)}\nv_and_b32 v5, 0xffff0000, {v(x)}\nv_fma_f32 {v(r)}, {v(g)}, {v(r)}, v4\nv_fma_f32 {v(r+1)}, {v(g+1)}, {v(r+1)}, v5")
                k(f"v_lshlrev_b32 v4, 16, {v(x+1)}\nv_and_b32 v5, 0xffff0000, {v(x+1)}\nv_fma_f32 {v(r+2)}, {v(g+2)}, {v(r+2)}, v4\nv_fma_f32 {v(r+3)}, {v(g+3)}, {v(r+3)}, v5")
                k(f"v_cvt_pk_bf16_f32 {v(r)}, {v(r)}, {v(r+1)}\nv_cvt_pk_bf16_f32 {v(r+1)}, {v(r+2)}, {v(r+3)}")
                k(f"ds_write_b64 v2, {v(r,2)} offset:{t*16*112 + jj*32}")
        upr = 2*nd; nins = (32*upr)//64
        k(f"s_lshl_b32 {s(stmp2)}, {s(stile)}, 4\ns_mul_i32 {s(stmp2)}, {s(stmp2)}, 1152\ns_lshl_b32 {s(sbase)}, {s(sdt0)}, 5\ns_add_u32 {s(stmp2)}, {s(stmp2)}, {s(sbase)}")
        k("s_waitcnt lgkmcnt(0)")
        for e in range(nins):
            magic, sh = (16384, 16) if upr == 4 else (10923, 16)
            k(f"v_add_u32 v3, {64*e}, v0\nv_mul_u32_u24 v4, {magic}, v3\nv_lshrrev_b32 v4, {sh}, v4\nv_mul_u32_u24 v5, {upr}, v4\nv_sub_u32 v3, v3, v5\nv_lshlrev_b32 v3, 4, v3")
            k(f"v_mul_u32_u24 v5, 112, v4\nv_add_u32 v5, v5, v3\nv_add_u32 v5, {s(stmp)}, v5\nds_read_b128 {v(FG+4*e,4)}, v5")
            k(f"v_mul_u32_u24 v4, 1152, v4\nv_add_u32 {v(8+e) if False else 'v' + str(AF+40+e)}, v4, v3")
        k("s_waitcnt lgkmcnt(0)")
        for e in range(nins): k(f"buffer_store_dwordx4 {v(FG+4*e,4)}, {v(AF+40+e)}, {s(rOUT,4)}, {s(stmp2)} offen")
        k("s_branch L_g2a_done")
        k(f"{nxt}:")
        k("s_nop 0")
```

```python
import re

def v(i, n=1): return "v%d" % i if n == 1 else "v[%d:%d]" % (i, i+n-1)
def a(i, n=1): return "a%d" % i if n == 1 else "a[%d:%d]" % (i, i+n-1)
def s(i, n=1): return "s%d" % i if n == 1 else "s[%d:%d]" % (i, i+n-1)

TRANS = ("v_exp_f32", "v_log_f32", "v_rcp_f32", "v_rsq_f32", "v_sqrt_f32", "v_sin_f32", "v_cos_f32", "v_rcp_iflag_f32")
_reg_re = re.compile(r"^(-|\|)?(abs\()?([vas])(?:(\d+)|\[(\d+):(\d+)\])\)?\|?$")

def regs_of(op):
    op = op.strip()
    if op in ("vcc",): return {("s", "vcc_lo"), ("s", "vcc_hi")}
    if op in ("vcc_lo", "vcc_hi", "m0", "exec_lo", "exec_hi"): return {("s", op)}
    if op == "exec": return {("s", "exec_lo"), ("s", "exec_hi")}
    m = _reg_re.match(op)
    if not m: return set()
    k = m.group(3)
    if m.group(4) is not None: return {(k, int(m.group(4)))}
    return {(k, i) for i in range(int(m.group(5)), int(m.group(6))+1)}

class Ins:
    __slots__ = ("text", "mn", "ops", "mods", "kind", "defs", "uses", "srcA", "srcB", "srcC", "passes", "trans", "label", "target", "ws", "storedata")
    def __init__(self, text):
        self.text = text
        t = text.split(";")[0].strip()
        self.label = None; self.target = None; self.kind = "none"; self.defs = set(); self.uses = set()
        self.srcA = self.srcB = self.srcC = set(); self.passes = 0; self.trans = False; self.ws = 0; self.mn = ""; self.ops = []; self.mods = ""
        self.storedata = set()
        if not t or t.startswith("."): return
        if t.endswith(":"):
            self.label = t[:-1]; self.kind = "label"; return
        parts = t.split(None, 1)
        mn = parts[0]; rest = parts[1] if len(parts) > 1 else ""
        for suf in ("_e32", "_e64"):
            if mn.endswith(suf): mn = mn[:-len(suf)]
        self.mn = mn
        ops = []; depth = 0; cur = ""
        for ch in rest:
            if ch == "[": depth += 1
            if ch == "]": depth -= 1
            if ch == "," and depth == 0: ops.append(cur.strip()); cur = ""
            else: cur += ch
        if cur.strip(): ops.append(cur.strip())
        mods = ""
        if ops:
            last = ops[-1].split(None, 1)
            if len(last) > 1: ops[-1] = last[0]; mods = last[1]
        self.ops = ops; self.mods = mods; self.ws = 1
        R = regs_of
        allu = lambda lst: set().union(*[R(o) for o in lst]) if lst else set()
        if mn.startswith("v_mfma"):
            self.kind = "mfma"; self.defs = R(ops[0]); self.srcA = R(ops[1]); self.srcB = R(ops[2]); self.srcC = R(ops[3])
            self.uses = self.srcA | self.srcB | self.srcC
            self.passes = 8 if "32x32x16" in mn else 4 if "16x16x32" in mn else None
            assert self.passes, text
        elif mn.startswith("v_"):
            self.kind = "valu"; base = mn.replace("_dpp", "").replace("_sdwa", "")
            self.trans = base in TRANS
            if base.startswith("v_cmp"):
                self.defs = R(ops[0]); self.uses = allu(ops[1:])
                if base.startswith("v_cmpx"): raise ValueError("no cmpx please")
            elif base in ("v_add_co_u32", "v_sub_co_u32", "v_subrev_co_u32"):
                self.defs = R(ops[0]) | R(ops[1]); self.uses = allu(ops[2:])
            elif base in ("v_addc_co_u32", "v_subb_co_u32"):
                self.defs = R(ops[0]) | R(ops[1]); self.uses = allu(ops[2:])
            elif base.startswith("v_permlane") or base == "v_swap_b32":
                self.defs = allu(ops[:2]); self.uses = allu(ops[:2])
            else:
                self.defs = R(ops[0]); self.uses = allu(ops[1:])
                if base.startswith(("v_fmac", "v_dot2c", "v_pk_fmac", "v_writelane")) or "dpp" in mn or "row_" in mods or "quad_perm" in mods or "PRESERVE" in mods:
                    self.uses |= R(ops[0])
        elif mn.startswith(("buffer_", "global_")):
            self.kind = "vmem"
            if mn in ("buffer_wbl2", "buffer_inv"): pass
            elif mn.startswith("buffer_load"):
                if re.search(r"\blds\b", mods): self.uses = allu(ops) | {("s", "m0")}
                else: self.defs = R(ops[0]); self.uses = allu(ops[1:])
            elif mn.startswith("buffer_store"):
                self.uses = allu(ops)
                if "x3" in mn or "x4" in mn: self.storedata = R(ops[0])
            elif mn.startswith("buffer_atomic"):
                self.uses = allu(ops)
                if "sc0" in mods: self.defs = R(ops[0])
            elif mn.startswith("global_load_lds"): self.uses = allu(ops) | {("s", "m0")}
            elif mn.startswith("global_load"): self.defs = R(ops[0]); self.uses = allu(ops[1:])
            elif mn.startswith("global_store"):
                self.uses = allu(ops)
                if "x3" in mn or "x4" in mn: self.storedata = R(ops[1])
            elif mn.startswith("global_atomic"):
                if "sc0" in mods: self.defs = R(ops[0]); self.uses = allu(ops[1:])
                else: self.uses = allu(ops)
            else: raise ValueError(text)
        elif mn.startswith("ds_"):
            self.kind = "ds"
            if mn.startswith(("ds_read", "ds_bpermute", "ds_permute", "ds_swizzle")): self.defs = R(ops[0]); self.uses = allu(ops[1:])
            else: self.uses = allu(ops)
        elif mn.startswith("s_"):
            self.kind = "salu"
            if mn == "s_nop": self.ws = int(ops[0], 0) + 1
            elif mn in ("s_branch",) or mn.startswith("s_cbranch"): self.target = ops[0]
            elif mn.startswith(("s_cmp", "s_waitcnt", "s_barrier", "s_setprio", "s_sleep", "s_endpgm", "s_bitcmp")): self.uses = allu(ops)
            else:
                self.defs = R(ops[0]); self.uses = allu(ops[1:])
                if "saveexec" in mn: self.defs |= R("exec"); self.uses |= R("exec")
        else:
            raise ValueError("unknown instruction: " + text)

def isv(r): return r[0] in ("v", "a")
def iss(r): return r[0] == "s"

def gap(p, c):
    need = 0
    pv = {r for r in p.defs if isv(r)}; ps = {r for r in p.defs if iss(r)}
    if p.kind == "valu":
        if c.kind == "mfma" and pv & c.uses: need = max(need, 2)
        if p.trans and c.kind in ("valu", "vmem", "ds") and pv & c.uses: need = max(need, 1)
        if c.kind == "valu":
            b = c.mn
            if b.startswith(("v_readlane", "v_readfirstlane")) and pv & c.uses: need = max(need, 1)
            if b.startswith("v_permlane") and pv & c.uses: need = max(need, 2)
            if ("dpp" in b or "row_" in c.mods or "quad_perm" in c.mods) and pv & c.uses: need = max(need, 2)
            if ps & c.uses:
                need = max(need, 4 if b.startswith(("v_readlane", "v_writelane")) else 2)
            if ("sdwa" in p.mn or p.mn.startswith(("v_fma_mixhi", "v_fma_mixlo"))) and pv & (c.uses | c.defs): need = max(need, 1)
        if p.mn.startswith("v_dot"):
            hit = pv & (c.uses | c.defs)
            if hit:
                same_c = c.mn == p.mn and c.kind == "valu" and not (pv & set().union(*[regs_of(o) for o in c.ops[1:3]]))
                if not same_c: need = max(need, 3)
        if c.kind == "vmem" and ps & c.uses: need = max(need, 5)
        if c.kind == "salu" and ps & c.uses: need = max(need, 1)
    if p.kind == "mfma":
        n = p.passes
        if c.kind == "mfma":
            if pv & (c.srcA | c.srcB): need = max(need, {4: 8, 8: 12}[n])
            if pv & c.srcC:
                if not (pv == c.srcC and c.passes == n): need = max(need, {4: 6, 8: 10}[n])
            elif pv & c.defs:
                need = max(need, {4: 6, 8: 10}[n])
        elif c.kind == "valu":
            if pv & (c.uses | c.defs): need = max(need, {4: 8, 8: 12}[n])
            if p.srcC & c.defs: need = max(need, {4: 3, 8: 7}[n])
        elif c.kind in ("vmem", "ds"):
            if pv & (c.uses | c.defs): need = max(need, {4: 8, 8: 12}[n])
            if p.srcC & c.defs: need = max(need, {4: 3, 8: 7}[n])
    if p.kind == "vmem" and p.storedata:
        if c.kind == "valu" and p.storedata & c.defs: need = max(need, 2)
        elif c.kind != "valu" and p.storedata & c.defs: need = max(need, 1)
    if p.kind == "salu" and ("s", "m0") in p.defs and c.kind in ("vmem", "ds") and ("s", "m0") in c.uses: need = max(need, 1)
    if p.kind == "salu" and any(r in p.defs for r in (("s", "exec_lo"), ("s", "exec_hi"))) and c.kind == "mfma": need = max(need, 4)
    return need

MAXD = 14
def fix_hazards(lines, verbose=False):
    ins = [Ins(l) for l in lines]
    total_nops = 0
    changed = True
    while changed:
        changed = False
        labels = {x.label: i for i, x in enumerate(ins) if x.label}
        br_to = {}
        for i, x in enumerate(ins):
            if x.target in labels: br_to.setdefault(labels[x.target], []).append(i)
        def deficiency(ci):
            c = ins[ci]; worst = 0
            stack = [(ci-1, 0)]; seen = set()
            while stack:
                i, d = stack.pop()
                while i >= 0 and d < MAXD:
                    if (i, d) in seen: break
                    seen.add((i, d))
                    x = ins[i]
                    if x.kind == "label":
                        for b in br_to.get(i, []): stack.append((b, d))
                        j = i-1
                        while j >= 0 and ins[j].kind in ("none", "label"): j -= 1
                        if j >= 0 and ins[j].mn in ("s_branch", "s_endpgm"): break
                        i -= 1; continue
                    if x.kind == "none": i -= 1; continue
                    g = gap(x, c)
                    if g > d: worst = max(worst, g-d)
                    d += x.ws; i -= 1
            return worst
        for ci, c in enumerate(ins):
            if c.kind in ("none", "label"): continue
            df = deficiency(ci)
            if df > 0:
                if verbose: print("hazard: +%d before: %s" % (df, c.text.strip()))
                ins.insert(ci, Ins("    s_nop %d" % (df-1)))
                total_nops += 1; changed = True
                break
        if changed: continue
    return [x.text for x in ins], total_nops

def fix_hazards_fast(lines, verbose=False):
    ins = [Ins(l) for l in lines]
    total = 0
    for it in range(50):
        labels = {x.label: i for i, x in enumerate(ins) if x.label}
        br_to = {}
        for i, x in enumerate(ins):
            if x.target in labels: br_to.setdefault(labels[x.target], []).append(i)
        out = []; inserted = 0
        def deficiency(ci):
            c = ins[ci]; worst = 0
            stack = [(ci-1, extra.get(ci, 0))]; seen = set()
            while stack:
                i, d = stack.pop()
                while i >= 0 and d < MAXD:
                    if (i, d) in seen: break
                    seen.add((i, d))
                    x = ins[i]
                    if x.kind == "label":
                        for b in br_to.get(i, []): stack.append((b, d))
                        j = i-1
                        while j >= 0 and ins[j].kind in ("none", "label"): j -= 1
                        if j >= 0 and ins[j].mn in ("s_branch", "s_endpgm"): break
                        i -= 1; continue
                    if x.kind == "none": i -= 1; continue
                    g = gap(x, c)
                    if g > d: worst = max(worst, g-d)
                    d += x.ws + extra.get(i, 0); i -= 1
            return worst
        extra = {}
        for ci, c in enumerate(ins):
            if c.kind in ("none", "label"): continue
            df = deficiency(ci)
            if df > 0:
                extra[ci] = extra.get(ci, 0) + df
                if verbose: print("hazard: +%d before: %s" % (df, c.text.strip()))
        if not extra: break
        new = []
        for i, x in enumerate(ins):
            if i in extra: new.append(Ins("    s_nop %d" % (extra[i]-1))); total += 1
            new.append(x)
        ins = new
    else:
        raise RuntimeError("hazard fixing did not converge")
    return [x.text for x in ins], total

WT_STORES = ()

class Kern:
    def __init__(self, name, vgprs, agprs=0, sgprs=102):
        self.name = name; self.L = []; self.vgprs = vgprs; self.agprs = agprs; self.sgprs = sgprs; self.nlab = 0
    def __call__(self, t):
        for l in t.split("\n"):
            l = l.strip()
            if not l: continue
            self.L.append(l if l.endswith(":") else "    " + l)
    def lab(self, base):
        self.nlab += 1; return "L_%s_%s%d" % (self.name.replace("_kernel", ""), base, self.nlab)
    def text(self, verbose=False):
        if WT_STORES:
            L = []
            for l in self.L:
                if any(l.strip().startswith(p) for p in WT_STORES) and " sc1" not in l: l = l + " sc1"
                L.append(l)
            self.L = L
        body, n = fix_hazards_fast(self.L, verbose)
        mv = ma = -1
        for l in body:
            x = Ins(l)
            for r in x.defs | x.uses:
                if r[0] == "v": mv = max(mv, r[1])
                if r[0] == "a": ma = max(ma, r[1])
                if r[0] == "s" and isinstance(r[1], int): assert r[1] < self.sgprs, l
        assert mv < self.vgprs, (self.name, mv, self.vgprs)
        assert ma < self.agprs or ma < 0, (self.name, ma, self.agprs)
        pr = lint_waits(body, self.name)
        if pr:
            print("LINT %s: %d register(s) touched while a load into them may be outstanding" % (self.name, len(pr)))
            for p in pr[:8]: print("    line %d: %s   <- pending %s (line %d: %s)" % p)
        hdr = ".globl %s\n.p2align 8\n.type %s,@function\n%s:\n" % (self.name, self.name, self.name)
        self.stats = dict(n_ins=sum(1 for l in body if not l.endswith(":")), nops=n, maxv=mv, maxa=ma)
        return hdr + "\n".join(l.strip() if l.strip().endswith(":") else " " + l.strip() for l in body) + "\n%s_codeend:\n" % self.name
    def desc(self):
        acc = (self.vgprs + 3)//4*4
        nfv = acc + self.agprs if self.agprs else self.vgprs
        return (".amdhsa_kernel %s\n  .amdhsa_next_free_vgpr %d\n  .amdhsa_next_free_sgpr %d\n  .amdhsa_accum_offset %d\n"
                "  .amdhsa_group_segment_fixed_size 0\n  .amdhsa_kernarg_size 96\n  .amdhsa_user_sgpr_count 2\n"
                "  .amdhsa_user_sgpr_kernarg_segment_ptr 1\n  .amdhsa_system_sgpr_workgroup_id_x 1\n"
                "  .amdhsa_float_denorm_mode_32 3\n.end_amdhsa_kernel\n") % (self.name, nfv, self.sgprs, acc)


def touch_code(k, name, nslices, lane="v0", vt=2, sp=84, dst=None, end=None):
    lab = k.lab("pc")
    dst = dst or v(vt+3)
    end = end or name + "_codeend"
    k(f"s_getpc_b64 {s(sp,2)}")
    k(f"{lab}:")
    k(f"s_add_u32 {s(sp)}, {s(sp)}, {name}-{lab}")
    k(f"s_addc_u32 {s(sp+1)}, {s(sp+1)}, 0")
    for i in range(nslices):
        k(f"v_lshlrev_b32 {v(vt)}, 7, {lane}")
        k(f"v_add_u32 {v(vt)}, {i*8192}, {v(vt)}")
        k(f"v_min_u32 {v(vt)}, {end}-{name}-4, {v(vt)}")
        k(f"v_mov_b32 {v(vt+1)}, {s(sp+1)}")
        k(f"v_add_co_u32 {v(vt)}, vcc, {s(sp)}, {v(vt)}")
        k(f"v_addc_co_u32 {v(vt+1)}, vcc, 0, {v(vt+1)}, vcc")
        k(f"global_load_dword {dst}, {v(vt,2)}, off")


def lint_waits(lines, name=""):
    vmq = []; lq = []; probs = []
    for ln, l in enumerate(lines):
        x = Ins(l)
        if x.kind in ("none", "label"): continue
        if x.mn == "s_waitcnt":
            t = l
            m = re.search(r"vmcnt\((\d+)\)", t)
            if m:
                n = int(m.group(1))
                while len(vmq) > n: vmq.pop(0)
            m = re.search(r"lgkmcnt\((\d+)\)", t)
            if m:
                n = int(m.group(1))
                if n == 0: lq.clear()
                else:
                    while len(lq) > n: lq.pop(0)
            continue
        if x.mn in ("s_endpgm",):
            vmq.clear(); lq.clear(); continue
        if x.mn == "s_branch":
            vmq.clear(); lq.clear(); continue
        touched = {r for r in (x.uses | x.defs) if isv(r)}
        for q, nm in ((vmq, "vmem"), (lq, "lds")):
            for (dl, dst) in q:
                hit = touched & dst
                if hit:
                    same_class_load = (nm == "vmem" and x.kind == "vmem" and hit <= x.defs and not (hit & x.uses)) or (nm == "lds" and x.kind == "ds" and hit <= x.defs and not (hit & x.uses))
                    if not same_class_load: probs.append((ln, l.strip(), nm, dl, lines[dl].strip()))
        if x.kind == "vmem" and x.mn not in ("buffer_wbl2", "buffer_inv"): vmq.append((ln, {r for r in x.defs if isv(r)}))
        if x.kind == "ds": lq.append((ln, {r for r in x.defs if isv(r)}))
        if x.mn.startswith(("s_load", "s_memtime", "s_memrealtime")): lq.append((ln, set()))
    return probs
```

```python
import sys, importlib
from asmgen import *
from layout import *
NAME = "adaLN_cond__mha_block__glu_gated_swiglu__prompt"
def header():
    return open("cdna_kernels/%s.s.ref" % NAME).read().split("; Override launch geometry")[0]
def add_timeline(k, idx):
    end = max(i for i, l in enumerate(k.L) if l.strip() == "s_endpgm")
    tail = f"""s_mov_b64 exec, -1
s_waitcnt vmcnt(0) lgkmcnt(0)
s_memrealtime s[98:99]
s_memtime s[88:89]
s_load_dwordx2 s[92:93], s[0:1], 88
s_waitcnt lgkmcnt(0)
s_sub_u32 s88, s88, s90
s_add_u32 s92, s92, {WS['AUX'] + 0x80000 + idx*4096}
s_addc_u32 s93, s93, 0
s_mov_b32 s94, 4096
s_mov_b32 s95, 0x20000
s_lshl_b32 s100, s2, 3
s_cmp_eq_u32 s32, 8
s_cselect_b32 s101, 32768, 0
s_add_u32 s100, s100, s101
s_mov_b32 s94, 65536
v_mov_b32 v0, s100
v_mov_b32 v1, s96
v_mov_b32 v2, s98
v_cmp_eq_u32 vcc, 0, v3
s_mov_b64 exec, 1
buffer_atomic_umin v1, v0, s[92:95], 0 offen
buffer_atomic_umax v2, v0, s[92:95], 0 offen offset:4
s_lshl_b32 s100, s2, 2
s_add_u32 s100, s100, {0x10000 - idx*4096 + idx*2048}
s_mov_b32 s94, 0x20000
v_mov_b32 v0, s100
v_mov_b32 v1, s88
s_nop 4
buffer_atomic_umax v1, v0, s[92:95], 0 offen
s_endpgm""".split("\n")
    tail = [t for t in tail if not t.startswith("v_cmp")]
    k.L[end:end+1] = ["    " + t for t in tail]
    k.L.insert(0, "    s_memrealtime s[96:97]")
    k.L.insert(0, "    s_memtime s[90:91]")

DESCR = """; Three launches (all code written by my own generator scripts):
"""
SCRAMBLE = False
def build(gens, path, timeline=False):
    ks = [g() for g in gens]
    if SCRAMBLE:
        new = []
        for k, (grid, block, lds) in ks:
            lab = "L_scr_" + k.name
            k.L[0:0] = ["    s_cmp_lt_u32 s2, 256", "    s_cbranch_scc0 " + lab, "    s_and_b32 s3, s2, 31", "    s_lshl_b32 s3, s3, 3", "    s_lshr_b32 s2, s2, 5", "    s_or_b32 s2, s2, s3", lab + ":"]
            new.append((k, (256, block, lds)))
        ks = new
    if timeline:
        for i, (k, _) in enumerate(ks): add_timeline(k, i)
    txt = header() + DESCR
    for k, (grid, block, lds) in ks:
        txt += "; @launch kernel=%s grid=(%d,1,1) block=(%d,1,1) lds=%d\n" % (k.name, grid, block, lds)
    txt += '.amdgcn_target "amdgcn-amd-amdhsa--gfx950"\n.text\n'
    seen = set()
    for k, _ in ks:
        if k.name in seen: continue
        seen.add(k.name); txt += k.text()
    txt += '.section .rodata,"a"\n'
    seen = set()
    for k, _ in ks:
        if k.name in seen: continue
        seen.add(k.name); txt += ".p2align 6\n" + k.desc()
    open(path, "w").write(txt)
    return [(k.name, g) for k, g in ks], {k.name: k.stats for k, _ in ks if hasattr(k, 'stats')}

def check(gens, path="_chk.s"):
    import subprocess, sys
    r = build(gens, path)
    sys.path.insert(0, "cdna_kernels")
    from cdna_launch import with_harness_metadata, launch_list_of, address_register_problem, launch_list_kernel_names
    asm = open(path).read()
    open(path + ".h.s", "w").write(with_harness_metadata(asm, "x", 12, launch_lists=True))
    p = subprocess.run(["clang", "-x", "assembler", "-target", "amdgcn-amd-amdhsa", "-mcpu=gfx950", path + ".h.s", "-o", path + ".co"], capture_output=True, text=True)
    if p.returncode: print(p.stderr[:1500]); raise SystemExit("ASSEMBLE FAILED")
    pr = address_register_problem(path + ".co", "x", launch_list_kernel_names(launch_list_of(asm, True)))
    print("OK" if pr is None else pr, r[1])
```

```python
from asmgen import *
from layout import *
from k_g1 import srd, spread

D = [[0, 1], [2, 3], [4, 5], [6, 7, 8]]

def gen_g2(stamps=False, PB=5, SIG=26, NPUB=8, TAKE=11, touch=False):
    SL = 36864; NSL = 4
    k = Kern("g2a_kernel", vgprs=232, agprs=256)
    sWS = 4
    rW2, rHH, rP2, rCNT, rX1, rMOD, rOUT = 12, 16, 24, 28, 44, 48, 52
    sw, srb, scs, skq, saF, sb0, sb1, stmp, stmp2, saS, sgrp, sbase = range(32, 44)
    sspin, stile, sdt0, sldw = 56, 57, 58, 59
    vl16, vS, vcn = 1, 2, 6
    XV = 8
    ACC = 40
    AF = 112
    PK = 168
    XR = 200; GB = 212
    T0 = 224
    acc = lambda t, dt: ACC + (t*9+dt)*4
    def xr(t, st):
        i = (st*2 + t)*4
        return a(i, 4) if i < 256 else v(XV + i - 256, 4)
    k("s_cmp_ge_u32 s2, 256\ns_cbranch_scc1 L_g2a_end")
    k(f"s_load_dwordx2 {s(sWS,2)}, s[0:1], {KA['ws']}\ns_load_dwordx2 s[6:7], s[0:1], {KA['out']}")
    if stamps: k("s_memtime s[60:61]\ns_memrealtime s[62:63]")
    k(f"v_lshrrev_b32 v8, 6, v0\nv_and_b32 v0, 63, v0\nv_readfirstlane_b32 {s(sw)}, v8\nv_lshlrev_b32 {v(vl16)}, 4, v0")
    for i in range(NSL): k(f"v_add_u32 {v(vS+i)}, {i*SL}, {v(vl16)}")
    k(f"s_lshr_b32 {s(skq)}, s2, 1\ns_and_b32 {s(skq)}, {s(skq)}, 3\ns_and_b32 {s(stmp)}, s2, 1\ns_lshl_b32 {s(srb)}, {s(stmp)}, 3")
    k(f"s_lshr_b32 {s(stmp)}, s2, 3\ns_and_b32 {s(stmp2)}, {s(stmp)}, 7\ns_add_u32 {s(srb)}, {s(srb)}, {s(stmp2)}\ns_lshr_b32 {s(scs)}, {s(stmp)}, 3")
    k(f"s_lshl_b32 {s(stile)}, {s(srb)}, 3\ns_lshl_b32 {s(stmp2)}, {s(sw)}, 1\ns_add_u32 {s(stile)}, {s(stile)}, {s(stmp2)}")
    k(f"s_mul_i32 {s(sb0)}, {s(stile)}, {144*1024}\ns_mul_i32 {s(stmp2)}, {s(skq)}, {36*1024}\ns_add_u32 {s(sb0)}, {s(sb0)}, {s(stmp2)}\ns_add_u32 {s(sb1)}, {s(sb0)}, {144*1024}")
    k(f"s_mul_i32 {s(saF)}, {s(skq)}, {36*36*1024}\ns_mul_i32 {s(stmp2)}, {s(scs)}, {9*1024}\ns_add_u32 {s(saF)}, {s(saF)}, {s(stmp2)}")
    k(f"s_mul_i32 {s(stmp)}, {s(sw)}, {36*1024}\ns_mul_i32 {s(stmp2)}, {s(stmp)}, 3\ns_add_u32 {s(saS)}, {s(saF)}, {s(stmp2)}\ns_add_u32 {s(saF)}, {s(saF)}, {s(stmp)}")
    k(f"s_lshl_b32 {s(sgrp)}, {s(srb)}, 2\ns_add_u32 {s(sgrp)}, {s(sgrp)}, {s(scs)}")
    k(f"s_mul_i32 {s(sdt0)}, {s(scs)}, 9\ns_lshl_b32 {s(stmp)}, {s(skq)}, 1\ns_add_u32 {s(sdt0)}, {s(sdt0)}, {s(stmp)}")
    k(f"s_lshl_b32 {s(stmp)}, {s(sgrp)}, 7\nv_mov_b32 {v(vcn)}, {s(stmp)}")
    k("s_waitcnt lgkmcnt(0)")
    srd(k, rW2, sWS, WS["W2F"], WS["W2F_SZ"]); srd(k, rHH, sWS, WS["HHF"], WS["HHF_SZ"])
    srd(k, rP2, sWS, WS["PART2"], WS["PART2_SZ"]); srd(k, rCNT, sWS, WS["CNT"], WS["CNT_SZ"]); srd(k, rX1, sWS, WS["X1F"], WS["X1F_SZ"])
    srd(k, rMOD, sWS, WS["MOD"], WS["MOD_SZ"]); srd(k, rOUT, 6, 0, 2048*1152)
    for o in range(3): k(f"s_cmp_eq_u32 {s(skq)}, {o}\ns_cbranch_scc1 L_g2_v{o}")
    k("s_branch L_g2_v3")

    def variant(o):
        dS = D[o]; dF = [d for d in range(9) if d not in dS]; nF, nS = len(dF), len(dS)
        owners = [x for x in range(4) if x != o]
        vm = []; q = []
        def emit(op):
            if isinstance(op, tuple): k(op[0]); vm.append(op[1])
            else: k(op)
        def wait(*tags):
            idx = [i for i, t in enumerate(vm) if t in tags]
            k(f"s_waitcnt vmcnt({min(63, len(vm) - 1 - max(idx))})")
        def flush(tag):
            while any(isinstance(x, tuple) and x[1] == tag for x in q): emit(q.pop(0))
        def runs(lst):
            out = []; cur = [lst[0]]
            for x in lst[1:]:
                if x == cur[-1] + 1 and len(cur) < 4: cur.append(x)
                else: out.append(cur); cur = [x]
            out.append(cur); return out
        def wdma(c):
            ops = []; slot = (c % NSL)*SL
            if c < 9:
                p = 0
                for run in runs(dF):
                    for i, dt in enumerate(run):
                        hd = ""
                        if i == 0: hd = f"s_mul_i32 {s(stmp)}, {s(sw)}, {nF*1024}\ns_add_u32 m0, {s(stmp)}, {slot + p*1024}\ns_add_u32 {s(stmp2)}, {s(saF)}, {(4*c*36 + dt)*1024}\n"
                        ops.append((hd + f"buffer_load_dwordx4 {v(vl16)}, {s(rW2,4)}, {s(stmp2)} offen offset:{i*1024} lds", ('W', c)))
                    p += len(run)
            else:
                for ls in range(3):
                    for i, dt in enumerate(dS):
                        hd = ""
                        if i == 0: hd = f"s_mul_i32 {s(stmp)}, {s(sw)}, {3*nS*1024}\ns_add_u32 m0, {s(stmp)}, {slot + ls*nS*1024}\ns_add_u32 {s(stmp2)}, {s(saS)}, {((12*(c-9) + ls)*36 + dt)*1024}\n"
                        ops.append((hd + f"buffer_load_dwordx4 {v(vl16)}, {s(rW2,4)}, {s(stmp2)} offen offset:{i*1024} lds", ('W', c)))
            return ops
        def bload(st):
            return [(f"buffer_load_dwordx4 {xr(0,st)}, {v(vl16)}, {s(rHH,4)}, {s(sb0)} offen", ('B', st)),
                    (f"buffer_load_dwordx4 {xr(1,st)}, {v(vl16)}, {s(rHH,4)}, {s(sb1)} offen\ns_add_u32 {s(sb0)}, {s(sb0)}, 1024\ns_add_u32 {s(sb1)}, {s(sb1)}, 1024", ('B', st))]
        steps = [('F', st) for st in range(36)] + [('S', st) for st in range(36)]
        def chunk_of(i):
            ph, st = steps[i]
            return (st // 4, st % 4) if ph == 'F' else (9 + st // 12, st % 12)
        def areads(i):
            ph, st = steps[i]; c, ls = chunk_of(i); n = nF if ph == 'F' else nS
            return [f"ds_read_b128 {v(AF + (i % 2)*28 + 4*j, 4)}, {v(vS + c % NSL)} offset:{(ls*n + j)*1024}" for j in range(n)]
        pkbase = {}; r = PK
        for x in owners:
            pkbase[x] = r; r += 4*(3 if len(D[x]) == 3 else 2)
        def pk(t, dt):
            x = [y for y in range(4) if dt in D[y]][0]; jj = D[x].index(dt)
            return pkbase[x] + (4*t + 2*jj if jj < 2 else 8 + 2*t)
        def publish_ops():
            ops = []
            for t in range(2):
                for dt in dF:
                    rr = acc(t, dt)
                    ops.append(f"v_cvt_pk_bf16_f32 {v(pk(t,dt))}, {v(rr)}, {v(rr+1)}"); ops.append(f"v_cvt_pk_bf16_f32 {v(pk(t,dt)+1)}, {v(rr+2)}, {v(rr+3)}")
            for x in owners:
                hd = (f"s_lshl_b32 {s(sbase)}, {s(sgrp)}, 2\ns_add_u32 {s(sbase)}, {s(sbase)}, {x}\ns_lshl_b32 {s(sbase)}, {s(sbase)}, 2\ns_add_u32 {s(sbase)}, {s(sbase)}, {o}\n"
                      f"s_lshl_b32 {s(sbase)}, {s(sbase)}, 2\ns_add_u32 {s(sbase)}, {s(sbase)}, {s(sw)}\ns_mul_i32 {s(sbase)}, {s(sbase)}, 3072\n")
                for c4 in range(3 if len(D[x]) == 3 else 2):
                    ops.append(((hd if c4 == 0 else "") + f"buffer_store_dwordx4 {v(pkbase[x] + 4*c4, 4)}, {v(vl16)}, {s(rP2,4)}, {s(sbase)} offen offset:{c4*1024} sc1", ('P',)))
            return ops
        def operand_ops():
            ops = [f"v_lshrrev_b32 {v(T0)}, 4, v0", f"v_lshlrev_b32 {v(T0)}, 4, {v(T0)}"]
            for j in range(nS):
                hd = (f"s_add_u32 {s(stmp)}, {s(sdt0)}, {j}\ns_and_b32 {s(stmp2)}, {s(stmp)}, 1\ns_lshl_b32 {s(stmp2)}, {s(stmp2)}, 3\ns_lshr_b32 {s(stmp)}, {s(stmp)}, 1\ns_lshl_b32 {s(stmp)}, {s(stmp)}, 10\n"
                      f"s_add_u32 {s(stmp)}, {s(stmp)}, {s(stmp2)}\ns_mul_i32 {s(stmp2)}, {s(stile)}, {18*1024}\ns_add_u32 {s(stmp)}, {s(stmp)}, {s(stmp2)}\n")
                ops.append((hd + f"buffer_load_dwordx2 {v(XR+4*j,2)}, {v(vl16)}, {s(rX1,4)}, {s(stmp)} offen\ns_add_u32 {s(stmp)}, {s(stmp)}, {18*1024}", ('X',)))
                ops.append((f"buffer_load_dwordx2 {v(XR+4*j+2,2)}, {v(vl16)}, {s(rX1,4)}, {s(stmp)} offen", ('X',)))
                ops.append((f"s_add_u32 {s(stmp)}, {s(sdt0)}, {j}\ns_lshl_b32 {s(stmp)}, {s(stmp)}, 6\ns_add_u32 {s(stmp)}, {s(stmp)}, {5*576*4}\nbuffer_load_dwordx4 {v(GB+4*j,4)}, {v(T0)}, {s(rMOD,4)}, {s(stmp)} offen", ('X',)))
            return ops
        k(f"L_g2_v{o}:")
        for x in wdma(0): emit(x)
        for st in range(2):
            for x in bload(st): emit(x)
        if touch:
            k(f"s_lshl_b32 {s(stmp)}, {s(srb)}, 3\ns_lshl_b32 {s(stmp2)}, {s(scs)}, 1\ns_add_u32 {s(stmp)}, {s(stmp)}, {s(stmp2)}\ns_lshr_b32 {s(stmp2)}, {s(sw)}, 1\ns_add_u32 {s(stmp)}, {s(stmp)}, {s(stmp2)}\ns_mul_i32 {s(stmp)}, {s(stmp)}, {144*1024}")
            k(f"s_mul_i32 {s(stmp2)}, {s(skq)}, {36*1024}\ns_add_u32 {s(stmp)}, {s(stmp)}, {s(stmp2)}\ns_and_b32 {s(stmp2)}, {s(sw)}, 1\ns_mul_i32 {s(stmp2)}, {s(stmp2)}, {144*128}\ns_add_u32 {s(stmp)}, {s(stmp)}, {s(stmp2)}")
            k(f"v_lshlrev_b32 {v(T0+5)}, 7, v0")
            for i in range(3):
                emit((f"buffer_load_dword {v(T0+6)}, {v(T0+5)}, {s(rHH,4)}, {s(stmp)} offen" + (f"\ns_add_u32 {s(stmp)}, {s(stmp)}, {40*128}" if i < 2 else ""), ('T',)))
        q += wdma(1) + [x for st in range(2, PB) for x in bload(st)] + wdma(2) + wdma(3)
        wait(('W', 0)); k("s_barrier")
        for x in areads(0): k(x)
        if stamps: k("s_memtime s[64:65]")
        pub = []; N = len(steps)
        for i in range(N):
            ph, st = steps[i]; c, ls = chunk_of(i); par = i % 2
            dts = dF if ph == 'F' else dS
            k("s_waitcnt lgkmcnt(0)")
            last_in_chunk = (i + 1 < N and chunk_of(i+1)[0] != c)
            if last_in_chunk:
                flush(('W', c+1)); wait(('W', c+1)); k("s_barrier")
                if c + NSL <= 11: q += wdma(c + NSL)
            if ph == 'F':
                flush(('B', st)); wait(('B', st))
                if st + PB < 36: q += bload(st + PB)
            if ph == 'S' and st == 0:
                if stamps: k("s_memtime s[66:67]")
                pub = publish_ops(); q += operand_ops()
            if ph == 'S' and st == SIG:
                while pub: emit(pub.pop(0))
                wait(('P',)); k("s_barrier")
                k(f"s_cmp_eq_u32 {s(sw)}, 0\ns_cbranch_scc0 L_g2_nosig{o}")
                k(f"v_mov_b32 {v(T0+1)}, 1\ns_mov_b64 s[76:77], exec\ns_mov_b64 exec, 1\nbuffer_atomic_add {v(T0+1)}, {v(vcn)}, {s(rCNT,4)}, 0 offen sc1\ns_mov_b64 exec, s[76:77]")
                k(f"L_g2_nosig{o}:")
                k("s_nop 0")
            rd = areads(i+1) if i + 1 < N else []
            nm = 2*len(dts)
            take = q[:(TAKE if ph == 'F' else 3)]; del q[:len(take)]
            fill = rd + take
            if ph == 'S' and st >= 1 and pub:
                n = NPUB; fill += pub[:n]; del pub[:n]
            slots = spread(fill, nm)
            j = 0
            for jd, dt in enumerate(dts):
                for t in range(2):
                    cc = "0" if st == 0 else v(acc(t,dt),4)
                    k(f"v_mfma_f32_16x16x32_bf16 {v(acc(t,dt),4)}, {v(AF + par*28 + 4*jd, 4)}, {xr(t,st)}, {cc}")
                    for x in slots[j]: emit(x)
                    j += 1
        while q: emit(q.pop(0))
        if stamps: k("s_memtime s[78:79]")
        k(f"s_cmp_eq_u32 {s(sw)}, 0\ns_cbranch_scc0 L_g2_met{o}")
        k(f"s_mov_b32 {s(sspin)}, 0\ns_mov_b64 s[76:77], exec\ns_mov_b64 exec, 1")
        k(f"L_g2_poll{o}:")
        k(f"buffer_load_dword {v(T0+1)}, {v(vcn)}, {s(rCNT,4)}, 0 offen sc1\ns_waitcnt vmcnt(0)\nv_readfirstlane_b32 {s(stmp)}, {v(T0+1)}")
        k(f"s_cmp_ge_u32 {s(stmp)}, 4\ns_cbranch_scc1 L_g2_met0_{o}")
        k(f"s_add_u32 {s(sspin)}, {s(sspin)}, 1\ns_cmp_lt_u32 {s(sspin)}, 0x100000\ns_cbranch_scc0 L_g2_met0_{o}")
        k(f"s_sleep 2\ns_branch L_g2_poll{o}")
        k(f"L_g2_met0_{o}:")
        k("s_mov_b64 exec, s[76:77]")
        k(f"L_g2_met{o}:")
        k("s_barrier")
        if stamps: k("s_memtime s[80:81]")
        FG = AF
        nch = 3 if nS == 3 else 2
        for j, src in enumerate(owners):
            k(f"s_lshl_b32 {s(sbase)}, {s(sgrp)}, 2\ns_add_u32 {s(sbase)}, {s(sbase)}, {o}\ns_lshl_b32 {s(sbase)}, {s(sbase)}, 2\ns_add_u32 {s(sbase)}, {s(sbase)}, {src}\ns_lshl_b32 {s(sbase)}, {s(sbase)}, 2\ns_add_u32 {s(sbase)}, {s(sbase)}, {s(sw)}\ns_mul_i32 {s(sbase)}, {s(sbase)}, 3072")
            for c4 in range(nch): k(f"buffer_load_dwordx4 {v(FG+j*12+c4*4,4)}, {v(vl16)}, {s(rP2,4)}, {s(sbase)} offen offset:{c4*1024} sc1")
        k(f"s_mul_i32 {s(stmp)}, {s(sw)}, 3584\nv_and_b32 v2, 15, v0\nv_mul_u32_u24 v2, 112, v2\nv_lshrrev_b32 v3, 4, v0\nv_lshlrev_b32 v3, 3, v3\nv_add_u32 v2, v2, v3\nv_add_u32 v2, {s(stmp)}, v2")
        k("s_waitcnt vmcnt(0)")
        if stamps: k("s_memtime s[82:83]")
        for t in range(2):
            for jj, dt in enumerate(dS):
                r_ = acc(t,dt)
                c4, h = (t, jj) if jj < 2 else (2, t)
                for j in range(3):
                    f = FG + j*12 + c4*4 + 2*h
                    k(f"v_lshlrev_b32 v4, 16, {v(f)}\nv_and_b32 v5, 0xffff0000, {v(f)}\nv_add_f32 {v(r_)}, {v(r_)}, v4\nv_add_f32 {v(r_+1)}, {v(r_+1)}, v5")
                    k(f"v_lshlrev_b32 v4, 16, {v(f+1)}\nv_and_b32 v5, 0xffff0000, {v(f+1)}\nv_add_f32 {v(r_+2)}, {v(r_+2)}, v4\nv_add_f32 {v(r_+3)}, {v(r_+3)}, v5")
                x = XR + 4*jj + 2*t; g = GB + 4*jj
                k(f"v_lshlrev_b32 v4, 16, {v(x)}\nv_and_b32 v5, 0xffff0000, {v(x)}\nv_fma_f32 {v(r_)}, {v(g)}, {v(r_)}, v4\nv_fma_f32 {v(r_+1)}, {v(g+1)}, {v(r_+1)}, v5")
                k(f"v_lshlrev_b32 v4, 16, {v(x+1)}\nv_and_b32 v5, 0xffff0000, {v(x+1)}\nv_fma_f32 {v(r_+2)}, {v(g+2)}, {v(r_+2)}, v4\nv_fma_f32 {v(r_+3)}, {v(g+3)}, {v(r_+3)}, v5")
                k(f"v_cvt_pk_bf16_f32 {v(r_)}, {v(r_)}, {v(r_+1)}\nv_cvt_pk_bf16_f32 {v(r_+1)}, {v(r_+2)}, {v(r_+3)}")
                k(f"ds_write_b64 v2, {v(r_,2)} offset:{t*16*112 + jj*32}")
        upr = 2*nS; nins = (32*upr)//64
        k(f"s_lshl_b32 {s(stmp2)}, {s(stile)}, 4\ns_mul_i32 {s(stmp2)}, {s(stmp2)}, 1152\ns_lshl_b32 {s(sbase)}, {s(sdt0)}, 5\ns_add_u32 {s(stmp2)}, {s(stmp2)}, {s(sbase)}")
        k("s_waitcnt lgkmcnt(0)")
        for e in range(nins):
            magic = 16384 if upr == 4 else 10923
            k(f"v_add_u32 v3, {64*e}, v0\nv_mul_u32_u24 v4, {magic}, v3\nv_lshrrev_b32 v4, 16, v4\nv_mul_u32_u24 v5, {upr}, v4\nv_sub_u32 v3, v3, v5\nv_lshlrev_b32 v3, 4, v3")
            k(f"v_mul_u32_u24 v5, 112, v4\nv_add_u32 v5, v5, v3\nv_add_u32 v5, {s(stmp)}, v5\nds_read_b128 {v(PK+4*e,4)}, v5")
            k(f"v_mul_u32_u24 v4, 1152, v4\nv_add_u32 {v(T0+2+e)}, v4, v3")
        k("s_waitcnt lgkmcnt(0)")
        for e in range(nins): k(f"buffer_store_dwordx4 {v(PK+4*e,4)}, {v(T0+2+e)}, {s(rOUT,4)}, {s(stmp2)} offen")
        k("s_branch L_g2a_done")
    for o in range(4): variant(o)
    k("L_g2a_done:")
    if stamps:
        k("s_waitcnt vmcnt(0)\ns_memtime s[68:69]\ns_memrealtime s[70:71]\ns_waitcnt lgkmcnt(0)")
        srd(k, 24, sWS, WS["AUX"], WS["AUX_SZ"])
        k(f"s_lshl_b32 {s(stmp)}, s2, 3\ns_add_u32 {s(stmp)}, {s(stmp)}, {s(sw)}\ns_lshl_b32 {s(stmp)}, {s(stmp)}, 6\nv_mov_b32 v9, {s(stmp)}")
        for i, (x, y) in enumerate(((64,60),(66,60),(68,60),(70,62))):
            k(f"s_sub_u32 s72, s{x}, s{y}\nv_mov_b32 v8, s72\nbuffer_store_dword v8, v9, s[24:27], 0 offen offset:{4*i}")
        k(f"v_mov_b32 v8, s62\nbuffer_store_dword v8, v9, s[24:27], 0 offen offset:16")
        for i, x in enumerate((78, 80, 82)):
            k(f"s_sub_u32 s72, s{x}, s60\nv_mov_b32 v8, s72\nbuffer_store_dword v8, v9, s[24:27], 0 offen offset:{20+4*i}")
    k("L_g2a_end:\ns_endpgm")
    return k, (256, 256, NSL*SL)
```

```python
from asmgen import *
from layout import *
from k_g1 import srd, spread

def gen_att(stamps=False, helper=False, dbg='', order=1, touch_on=False, prefetch=None, alg=True, pol=' sc1', onewait=True):
    k = Kern("att_kernel", vgprs=140)
    sWS = 4
    rKV, rQM, rQR, rOM, rOR = 8, 12, 16, 20, 24
    sw, sh, sqt, stmp, stmp2, spass, sloop, snmax, skv = range(32, 41)
    soff = 44
    sstr = 49
    vl16, vK, vKR, vV, vt0, vt1, vom, vor = 1, 2, 3, 4, 5, 6, 7, 8
    QM, NEG, S0, S1, P, O = 12, 20, 36, 52, 68, 76
    KM = [92, 96]; KR = [100, 104]; VF = [108, 116]; QRJ = [124, 128, 132, 136]; QR = 16
    S = [S0, S1]
    k("s_cmp_ge_u32 s2, 256\ns_cbranch_scc1 L_att_end")
    k(f"s_load_dwordx2 {s(sWS,2)}, s[0:1], {KA['ws']}")
    if stamps: k("s_memtime s[60:61]\ns_memrealtime s[62:63]")
    k("v_lshrrev_b32 v9, 6, v0\nv_and_b32 v0, 63, v0")
    k(f"v_readfirstlane_b32 {s(sw)}, v9")
    k(f"v_lshlrev_b32 {v(vl16)}, 4, v0")
    if helper: k(f"s_cmp_eq_u32 {s(sw)}, 8\ns_cbranch_scc1 L_att_helper")
    k(f"s_and_b32 {s(stmp)}, s2, 7\ns_lshl_b32 {s(sh)}, {s(stmp)}, 2\ns_lshr_b32 {s(stmp)}, s2, 3\ns_and_b32 {s(stmp)}, {s(stmp)}, 3\ns_add_u32 {s(sh)}, {s(sh)}, {s(stmp)}")
    k(f"s_lshr_b32 {s(sqt)}, s2, 5\ns_lshl_b32 {s(sqt)}, {s(sqt)}, 3\ns_add_u32 {s(sqt)}, {s(sqt)}, {s(sw)}")
    k(f"s_mul_i32 {s(skv)}, {s(sh)}, {KV_STRIDE}")
    k(f"s_lshl_b32 {s(stmp)}, {s(sw)}, 10")
    k(f"s_mov_b32 {s(soff)}, {s(stmp)}\ns_add_u32 {s(soff+1)}, {s(stmp)}, 8192\ns_add_u32 {s(soff+2)}, {s(stmp)}, 73728\ns_add_u32 {s(soff+3)}, {s(stmp)}, {73728+8192}")
    k(f"s_min_u32 {s(stmp2)}, {s(sw)}, 2\ns_cmp_lt_u32 {s(sw)}, 3\ns_cselect_b32 {s(stmp2)}, {s(stmp2)}, 2\ns_lshl_b32 {s(stmp2)}, {s(stmp2)}, 10\ns_add_u32 {s(soff+4)}, {s(stmp2)}, {73728+16384}\ns_mov_b32 {s(sstr+4)}, 19456")
    k(f"s_sub_u32 {s(stmp2)}, {s(sw)}, 3\ns_lshl_b32 s54, {s(stmp2)}, 10\ns_add_u32 s54, s54, 65536\ns_cmp_lt_u32 {s(stmp2)}, 2\ns_cselect_b32 {s(soff+4)}, s54, {s(soff+4)}\ns_cselect_b32 {s(sstr+4)}, 2048, {s(sstr+4)}")
    strides = [16384, 16384, 19456, 19456, None]
    k("s_waitcnt lgkmcnt(0)")
    srd(k, rKV, sWS, WS["KV"], WS["KV_SZ"])
    def seg_dma(seg):
        for e in range(5):
            k(f"s_mov_b32 m0, {s(soff+e)}\ns_add_u32 {s(stmp2)}, {s(skv)}, {s(soff+e)}")
            k(f"buffer_load_dwordx4 {v(vl16)}, {s(rKV,4)}, {s(stmp2)} offen lds")
            if seg < 3: k(f"s_add_u32 {s(soff+e)}, {s(soff+e)}, " + (str(strides[e]) if strides[e] else s(sstr+4)))
    seg_dma(0)
    srd(k, rQM, sWS, WS["QM"], WS["QM_SZ"]); srd(k, rQR, sWS, WS["QR"], WS["QR_SZ"])
    k(f"v_and_b32 v9, 31, v0\nv_lshlrev_b32 {v(vt0)}, 2, v9\nv_mov_b32 v10, 0x7fffffff\nv_cmp_gt_u32 vcc, 32, v0\nv_cndmask_b32 {v(vt1)}, v10, {v(vt0)}, vcc")
    k(f"s_lshl_b32 {s(stmp)}, {s(sh)}, 6\ns_add_u32 {s(stmp)}, {s(stmp)}, {s(sqt)}")
    k(f"s_lshl_b32 {s(stmp2)}, {s(stmp)}, 10")
    k(f"buffer_load_dwordx4 {v(QM,4)}, {v(vl16)}, {s(rQM,4)}, {s(stmp2)} offen")
    k(f"s_lshl_b32 {s(stmp2)}, {s(stmp)}, 7")
    k(f"buffer_load_dword {v(QR)}, {v(vt1)}, {s(rQR,4)}, {s(stmp2)} offen")
    for seg in range(1, 4): seg_dma(seg)
    k(f"v_mov_b32 {v(vK)}, {v(vl16)}")
    k(f"v_lshlrev_b32 {v(vKR)}, 4, v9\nv_add_u32 {v(vKR)}, 65536, {v(vKR)}")
    k(f"v_lshrrev_b32 v10, 5, v0\nv_mul_u32_u24 v10, 19, v10\nv_add_u32 v11, v9, v10\nv_lshlrev_b32 {v(vV)}, 4, v11\nv_add_u32 {v(vV)}, 73728, {v(vV)}")
    k(f"v_cmp_gt_u32 vcc, 19, v9\nv_mov_b32 v10, 0x30000\nv_cndmask_b32 {v(vV)}, v10, {v(vV)}, vcc")
    k(f"v_mov_b32 {v(vor)}, {v(vt1)}")
    k(f"v_lshlrev_b32 {v(vom)}, 4, v9\nv_lshrrev_b32 v10, 5, v0\nv_lshlrev_b32 v10, 15, v10\nv_add_u32 {v(vom)}, {v(vom)}, v10")
    srd(k, rOM, sWS, WS["OM"], WS["OM_SZ"]); srd(k, rOR, sWS, WS["OR"], WS["OR_SZ"])
    for j in range(4):
        for e in range(4):
            if e != j: k(f"v_mov_b32 {v(QRJ[j]+e)}, 0")
    k(f"s_mov_b32 {s(spass)}, 0\ns_mov_b32 {s(snmax)}, 1")
    k("s_waitcnt vmcnt(15)")
    for j in range(4): k(f"v_mov_b32 {v(QRJ[j]+j)}, {v(QR)}")
    k("s_barrier")
    if stamps: k("s_memtime s[64:65]")
    def mf(d, a_, b_, c_, tag=''):
        if tag and tag in dbg: return
        k(f"v_mfma_f32_32x32x16_bf16 {v(d,16)}, {v(a_,4)}, {v(b_,4)}, {c_}")
    k("L_att_max:")
    k(f"v_mov_b32 {v(vt0)}, 0xff800000\ns_mov_b32 {s(sloop)}, 0")
    k("L_att_maxloop:")
    k(f"ds_read_b128 {v(KR[0],4)}, {v(vKR)}")
    for j in range(4):
        k(f"ds_read_b128 {v(KM[0],4)}, {v(vK)} offset:{j*1024}")
        k("s_waitcnt lgkmcnt(0)")
        mf(S0, KM[0], QM, "0"); mf(S0, KR[0], QRJ[j], v(S0,16))
        for i in range(8): k(f"v_max3_f32 {v(vt0)}, {v(vt0)}, {v(S0+2*i)}, {v(S0+2*i+1)}")
        if j == 0: k(f"s_cmp_eq_u32 {s(spass)}, 0\ns_cbranch_scc1 L_att_maxdone")
    k(f"v_add_u32 {v(vK)}, 4096, {v(vK)}\nv_add_u32 {v(vKR)}, 512, {v(vKR)}")
    k(f"s_add_u32 {s(sloop)}, {s(sloop)}, 1\ns_cmp_lt_u32 {s(sloop)}, {s(snmax)}\ns_cbranch_scc1 L_att_maxloop")
    k("L_att_maxdone:")
    k(f"v_mov_b32 {v(vt1)}, {v(vt0)}")
    k(f"v_permlane32_swap_b32 {v(vt0)}, {v(vt1)}")
    k(f"v_max_f32 {v(vt0)}, {v(vt0)}, {v(vt1)}")
    for i in range(16): k(f"v_sub_f32 {v(NEG+i)}, 0, {v(vt0)}")
    k(f"v_mov_b32 {v(vK)}, {v(vl16)}\nv_and_b32 v9, 31, v0\nv_lshlrev_b32 {v(vKR)}, 4, v9\nv_add_u32 {v(vKR)}, 65536, {v(vKR)}")
    for i in range(16): k(f"v_mov_b32 {v(O+i)}, 0")
    k(f"ds_read_b128 {v(KR[0],4)}, {v(vKR)}\nds_read_b128 {v(KM[0],4)}, {v(vK)}")
    k(f"ds_read_b128 {v(KM[1],4)}, {v(vK)} offset:1024")
    k(f"ds_read_b128 {v(VF[0],4)}, {v(vV)}\nds_read_b128 {v(VF[0]+4,4)}, {v(vV)} offset:608")
    k("s_waitcnt lgkmcnt(3)")
    mf(S0, KM[0], QM, v(NEG,16)); mf(S0, KR[0], QRJ[0], v(S0,16))
    for i in range(8): k(f"v_mov_b32 {v(P+i)}, 0")
    for i in range(8): k(f"v_mov_b32 {v(VF[1]+i)}, 0")
    k(f"s_mov_b32 {s(sloop)}, 0")
    k("L_att_loop:")
    k(f"s_cmp_eq_u32 {s(sloop)}, 1\ns_cbranch_scc0 L_att_nobar")
    k(f"s_cmp_eq_u32 {s(spass)}, 0\ns_cbranch_scc0 L_att_nobar")
    k("s_waitcnt vmcnt(0)\ns_barrier")
    k("L_att_nobar:")
    ex = lambda r: None if 'E' in dbg else k(f"v_exp_f32 {v(r)}, {v(r)}")
    cv = lambda i, sa: k(f"v_cvt_pk_bf16_f32 {v(P+i)}, {v(sa+2*i)}, {v(sa+2*i+1)}")
    for t in range(8):
        sa = S[t % 2]; sb = S[1 - t % 2]; b = t % 2; nb = 1 - b
        g1 = ((t+1) >> 2) & 1; j1 = (t+1) & 3
        rdkr = (t % 4 == 1)
        if onewait:
            k("s_waitcnt lgkmcnt(0)")
            mf(sb, KM[nb], QM, v(NEG,16), 'Q')
            k(f"ds_read_b128 {v(KM[b],4)}, {v(vK)} offset:{(t+2)*1024}")
            ex(sa+0); ex(sa+1)
            k(f"ds_read_b128 {v(VF[nb],4)}, {v(vV)} offset:{(2*t+2)*608}")
            ex(sa+2); ex(sa+3); cv(0, sa); cv(1, sa)
            mf(O, VF[nb]+4, P+4, v(O,16), 'V')
            k(f"ds_read_b128 {v(VF[nb]+4,4)}, {v(vV)} offset:{(2*t+3)*608}")
            ex(sa+4); ex(sa+5)
            if rdkr: k(f"ds_read_b128 {v(KR[((t>>2)+1) & 1],4)}, {v(vKR)} offset:{((t>>2)+1)*512}")
            ex(sa+6); ex(sa+7); cv(2, sa); cv(3, sa)
            mf(sb, KR[g1], QRJ[j1], v(sb,16), 'Q')
            ex(sa+8); ex(sa+9); ex(sa+10); ex(sa+11); cv(4, sa); cv(5, sa)
            mf(O, VF[b], P, v(O,16), 'V')
            ex(sa+12); ex(sa+13); ex(sa+14); ex(sa+15); cv(6, sa); cv(7, sa)
            continue
        k("s_waitcnt lgkmcnt(2)")
        mf(sb, KM[nb], QM, v(NEG,16), 'Q')
        k(f"ds_read_b128 {v(KM[b],4)}, {v(vK)} offset:{(t+2)*1024}")
        ex(sa+0); ex(sa+1); ex(sa+2); ex(sa+3); cv(0, sa); cv(1, sa)
        mf(O, VF[nb]+4, P+4, v(O,16), 'V')
        if rdkr: k(f"ds_read_b128 {v(KR[((t>>2)+1) & 1],4)}, {v(vKR)} offset:{((t>>2)+1)*512}")
        ex(sa+4); ex(sa+5); ex(sa+6); ex(sa+7); cv(2, sa); cv(3, sa)
        mf(sb, KR[g1], QRJ[j1], v(sb,16), 'Q')
        k(f"ds_read_b128 {v(VF[nb],4)}, {v(vV)} offset:{(2*t+2)*608}")
        ex(sa+8); ex(sa+9); ex(sa+10); ex(sa+11); cv(4, sa); cv(5, sa)
        k(f"s_waitcnt lgkmcnt({4 if rdkr else 3})")
        mf(O, VF[b], P, v(O,16), 'V')
        k(f"ds_read_b128 {v(VF[nb]+4,4)}, {v(vV)} offset:{(2*t+3)*608}")
        ex(sa+12); ex(sa+13); ex(sa+14); ex(sa+15); cv(6, sa); cv(7, sa)
    k(f"v_add_u32 {v(vK)}, 8192, {v(vK)}\nv_add_u32 {v(vKR)}, 1024, {v(vKR)}\nv_add_u32 {v(vV)}, {16*608}, {v(vV)}")
    k(f"s_add_u32 {s(sloop)}, {s(sloop)}, 1\ns_cmp_lt_u32 {s(sloop)}, 8\ns_cbranch_scc1 L_att_loop")
    k("s_waitcnt lgkmcnt(0)")
    mf(O, VF[1]+4, P+4, v(O,16))
    k("s_waitcnt lgkmcnt(0)")
    if stamps: k("s_memtime s[66:67]")
    k(f"v_mov_b32 {v(vt0)}, {v(O+10)}\nv_mov_b32 {v(vt1)}, {v(O+10)}")
    k(f"v_permlane32_swap_b32 {v(vt0)}, {v(vt1)}")
    k(f"s_cmp_eq_u32 {s(spass)}, {1 if dbg else 0}\ns_cbranch_scc0 L_att_fin")
    k(f"v_mov_b32 {v(vt1)}, 0x5f800000")
    k(f"v_cmp_nlt_f32 vcc, {v(vt0)}, {v(vt1)}")
    k("s_nop 1\ns_cmp_eq_u64 vcc, 0\ns_cbranch_scc1 L_att_fin")
    k(f"s_mov_b32 {s(spass)}, 1\ns_mov_b32 {s(snmax)}, 16")
    k(f"v_mov_b32 {v(vK)}, {v(vl16)}\nv_and_b32 v9, 31, v0\nv_lshlrev_b32 {v(vKR)}, 4, v9\nv_add_u32 {v(vKR)}, 65536, {v(vKR)}")
    k(f"v_subrev_u32 {v(vV)}, {8*16*608}, {v(vV)}")
    k("s_branch L_att_max")
    k("L_att_fin:")
    k(f"v_rcp_f32 {v(vt0)}, {v(vt0)}")
    k("s_nop 0")
    for i in range(10): k(f"v_mul_f32 {v(O+i)}, {v(O+i)}, {v(vt0)}")
    for i in range(5): k(f"v_cvt_pk_bf16_f32 {v(P+i)}, {v(O+2*i)}, {v(O+2*i+1)}")
    k(f"s_lshl_b32 {s(stmp)}, {s(sh)}, 6\ns_add_u32 {s(stmp)}, {s(stmp)}, {s(sqt)}")
    k(f"s_lshl_b32 {s(stmp2)}, {s(sh)}, 16\ns_lshl_b32 s54, {s(sqt)}, 9\ns_add_u32 {s(stmp2)}, {s(stmp2)}, s54")
    k(f"buffer_store_dwordx4 {v(P,4)}, {v(vom)}, {s(rOM,4)}, {s(stmp2)} offen")
    k(f"s_lshl_b32 {s(stmp2)}, {s(stmp)}, 7")
    k(f"buffer_store_dword {v(P+4)}, {v(vor)}, {s(rOR,4)}, {s(stmp2)} offen")
    if stamps:
        k("s_waitcnt vmcnt(0)\ns_memtime s[68:69]\ns_memrealtime s[70:71]\ns_waitcnt lgkmcnt(0)")
        srd(k, 24, sWS, WS["AUX"], WS["AUX_SZ"])
        k(f"s_lshl_b32 {s(stmp)}, s2, 3\ns_add_u32 {s(stmp)}, {s(stmp)}, {s(sw)}\ns_lshl_b32 {s(stmp)}, {s(stmp)}, 6\nv_mov_b32 v9, {s(stmp)}")
        for i, (x, y) in enumerate(((64,60),(66,60),(68,60),(70,62))):
            k(f"s_sub_u32 s72, s{x}, s{y}\nv_mov_b32 v10, s72\nbuffer_store_dword v10, v9, s[24:27], 0 offen offset:{4*i}")
        k(f"v_mov_b32 v10, s62\nbuffer_store_dword v10, v9, s[24:27], 0 offen offset:16")
        k(f"v_mov_b32 v10, {s(spass)}\nbuffer_store_dword v10, v9, s[24:27], 0 offen offset:20")
    if helper:
        k("s_branch L_att_end")
        if alg:
            from k_help import gen_helper2
            gen_helper2(k, prefetch, pol)
        else:
            gen_helper(k, touch_on, prefetch)
    k("L_att_end:\ns_endpgm")
    return k, (256, 576 if helper else 512, 163840 if helper else 151552 + 4096)


def gen_helper(k, touch_on=True, prefetch=None):
    HL = 151552
    sWS = 4; sW1, sW3, sW2 = 6, 8, 10
    rW1, rW3, rW2, rD13, rD2, rS = 12, 16, 20, 24, 28, 44
    sb, sm, sr, sks, slg, ssrc, sdst, sstr, stmp, sdstep = range(48, 58)
    rD = 64
    v13, v2s, vsrc, vrd = 2, 3, 4, 5
    R = 12
    k("L_att_helper:")
    k(f"s_load_dwordx2 {s(sW1,2)}, s[0:1], {KA['w1']}\ns_load_dwordx2 {s(sW3,2)}, s[0:1], {KA['w3']}\ns_load_dwordx2 {s(sW2,2)}, s[0:1], {KA['w2']}")
    k("v_lshrrev_b32 v9, 3, v0\nv_and_b32 v10, 7, v0\nv_lshrrev_b32 v11, 1, v10\nv_bfe_u32 v12, v0, 4, 2\nv_xor_b32 v11, v11, v12\nv_lshlrev_b32 v11, 5, v11\nv_and_b32 v10, 1, v10\nv_lshlrev_b32 v10, 4, v10\nv_add_u32 v10, v10, v11")
    k(f"v_mul_u32_u24 {v(v13)}, 9216, v9\nv_add_u32 {v(v13)}, {v(v13)}, v10\nv_mul_u32_u24 {v(v2s)}, 1152, v9\nv_add_u32 {v(v2s)}, {v(v2s)}, v10")
    k("v_lshrrev_b32 v9, 2, v0\nv_lshlrev_b32 v9, 7, v9\nv_and_b32 v10, 3, v0\nv_lshlrev_b32 v10, 3, v10\nv_add_u32 v9, v9, v10\nv_bfe_u32 v10, v0, 3, 2")
    for ct in range(4): k(f"v_xor_b32 v11, {ct}, v10\nv_lshlrev_b32 v11, 5, v11\nv_add_u32 v11, v11, v9\nv_add_u32 {v(vrd+ct)}, {HL}, v11")
    k("s_waitcnt lgkmcnt(0)")
    srd(k, rW1, sW1, 0, 576*9216); srd(k, rW3, sW3, 0, 576*9216); srd(k, rW2, sW2, 0, 4608*1152)
    srd(k, rD13, sWS, WS["W13F"], WS["W13F_SZ"]); srd(k, rD2, sWS, WS["W2F"], WS["W2F_SZ"])
    vm = []
    NBLK = 16
    def decode(n):
        k(f"s_add_u32 {s(sb)}, s2, {256*n}")
        k(f"s_cmp_ge_u32 {s(sb)}, 2592\ns_cbranch_scc1 L_att_h2_{n}")
        k(f"s_cmp_ge_u32 {s(sb)}, 1296\ns_cselect_b32 {s(sm)}, 1, 0\ns_cselect_b32 {s(rS)}, {s(sW3)}, {s(sW1)}\ns_cselect_b32 {s(rS+1)}, {s(sW3+1)}, {s(sW1+1)}")
        k(f"s_mov_b32 {s(rS+2)}, {576*9216}\ns_mov_b32 {s(rS+3)}, 0x20000")
        k(f"s_mul_i32 {s(stmp)}, {s(sm)}, 1296\ns_sub_u32 {s(sr)}, {s(sb)}, {s(stmp)}")
        k(f"s_mul_i32 {s(sks)}, {s(sr)}, 3641\ns_lshr_b32 {s(sks)}, {s(sks)}, 18\ns_mul_i32 {s(stmp)}, {s(sks)}, 72\ns_sub_u32 {s(slg)}, {s(sr)}, {s(stmp)}")
        k(f"s_mul_i32 {s(ssrc)}, {s(sks)}, {32*9216}\ns_lshl_b32 {s(stmp)}, {s(slg)}, 7\ns_add_u32 {s(ssrc)}, {s(ssrc)}, {s(stmp)}\ns_mov_b32 {s(sstr)}, {8*9216}")
        k(f"s_mul_i32 {s(sdst)}, {s(slg)}, {4*36864}\ns_lshl_b32 {s(stmp)}, {s(sks)}, 11\ns_add_u32 {s(sdst)}, {s(sdst)}, {s(stmp)}\ns_lshl_b32 {s(stmp)}, {s(sm)}, 10\ns_add_u32 {s(sdst)}, {s(sdst)}, {s(stmp)}\ns_mov_b32 {s(sdstep)}, 36864")
        k(f"v_mov_b32 {v(vsrc)}, {v(v13)}")
        k(f"s_branch L_att_h3_{n}")
        k(f"L_att_h2_{n}:")
        k(f"s_mov_b32 {s(rS)}, {s(sW2)}\ns_mov_b32 {s(rS+1)}, {s(sW2+1)}\ns_mov_b32 {s(rS+2)}, {4608*1152}\ns_mov_b32 {s(rS+3)}, 0x20000")
        k(f"s_sub_u32 {s(sr)}, {s(sb)}, 2592\ns_mul_i32 {s(sks)}, {s(sr)}, 7282\ns_lshr_b32 {s(sks)}, {s(sks)}, 16\ns_mul_i32 {s(stmp)}, {s(sks)}, 9\ns_sub_u32 {s(slg)}, {s(sr)}, {s(stmp)}")
        k(f"s_mul_i32 {s(ssrc)}, {s(sks)}, {32*1152}\ns_lshl_b32 {s(stmp)}, {s(slg)}, 7\ns_add_u32 {s(ssrc)}, {s(ssrc)}, {s(stmp)}\ns_mov_b32 {s(sstr)}, {8*1152}")
        k(f"s_mul_i32 {s(sdst)}, {s(sks)}, {36*1024}\ns_lshl_b32 {s(stmp)}, {s(slg)}, 12\ns_add_u32 {s(sdst)}, {s(sdst)}, {s(stmp)}\ns_mov_b32 {s(sdstep)}, 1024")
        k(f"s_add_u32 {s(sdst)}, {s(sdst)}, 0x80000000")
        k(f"v_mov_b32 {v(vsrc)}, {v(v2s)}")
        k(f"L_att_h3_{n}:")
        k(f"s_mov_b32 {s(68 + 2*(n % 4))}, {s(sdst)}\ns_mov_b32 {s(69 + 2*(n % 4))}, {s(sdstep)}")
    def dma(n):
        decode(n)
        for i in range(4):
            k(f"s_mov_b32 m0, {HL + (n % 3)*4096 + i*1024}\ns_nop 0\nbuffer_load_dwordx4 {v(vsrc)}, {s(rS,4)}, {s(ssrc)} offen lds")
            vm.append(('D', n))
            if i < 3: k(f"s_add_u32 {s(ssrc)}, {s(ssrc)}, {s(sstr)}")
    def proc(n):
        idx = [i for i, t in enumerate(vm) if t == ('D', n)]
        k(f"s_waitcnt vmcnt({len(vm) - 1 - max(idx)})")
        o = (n % 3)*4096
        for ct in range(4):
            k(f"ds_read_b64_tr_b16 {v(R+4*ct,2)}, {v(vrd+ct)} offset:{o}\nds_read_b64_tr_b16 {v(R+4*ct+2,2)}, {v(vrd+ct)} offset:{o+2048}")
        k("s_waitcnt lgkmcnt(0)")
    def stores(n):
        d, st = 68 + 2*(n % 4), 69 + 2*(n % 4)
        k(f"s_bitcmp1_b32 {s(d)}, 31")
        k(f"s_cselect_b32 {s(rD)}, {s(rD2)}, {s(rD13)}\ns_cselect_b32 {s(rD+1)}, {s(rD2+1)}, {s(rD13+1)}\ns_cselect_b32 {s(rD+2)}, {s(rD2+2)}, {s(rD13+2)}\ns_mov_b32 {s(rD+3)}, 0x20000")
        k(f"s_and_b32 {s(stmp)}, {s(d)}, 0x7fffffff")
        for ct in range(4):
            k(f"buffer_store_dwordx4 {v(R+4*ct,4)}, {v(vl16)}, {s(rD,4)}, {s(stmp)} offen sc1")
            vm.append(('S', n))
            if ct < 3: k(f"s_add_u32 {s(stmp)}, {s(stmp)}, {s(st)}")
    vl16 = 1
    k("s_barrier")
    k("v_and_b32 v9, 31, v0\nv_mul_u32_u24 v10, 9216, v9\nv_mul_u32_u24 v11, 1152, v9")
    def touch(n):
        k(f"s_add_u32 {s(sb)}, s2, {256*n}")
        if n == 15: k(f"s_cmp_lt_u32 s2, 48\ns_cbranch_scc0 L_att_t_done")
        k(f"s_cmp_ge_u32 {s(sb)}, 2592\ns_cbranch_scc1 L_att_t2_{n}")
        k(f"s_cmp_ge_u32 {s(sb)}, 1296\ns_cselect_b32 {s(sm)}, 1, 0\ns_cselect_b32 {s(rS)}, {s(sW3)}, {s(sW1)}\ns_cselect_b32 {s(rS+1)}, {s(sW3+1)}, {s(sW1+1)}")
        k(f"s_mov_b32 {s(rS+2)}, {576*9216}\ns_mov_b32 {s(rS+3)}, 0x20000")
        k(f"s_mul_i32 {s(stmp)}, {s(sm)}, 1296\ns_sub_u32 {s(sr)}, {s(sb)}, {s(stmp)}")
        k(f"s_mul_i32 {s(sks)}, {s(sr)}, 3641\ns_lshr_b32 {s(sks)}, {s(sks)}, 18\ns_mul_i32 {s(stmp)}, {s(sks)}, 72\ns_sub_u32 {s(slg)}, {s(sr)}, {s(stmp)}")
        k(f"s_mul_i32 {s(ssrc)}, {s(sks)}, {32*9216}\ns_lshl_b32 {s(stmp)}, {s(slg)}, 7\ns_add_u32 {s(ssrc)}, {s(ssrc)}, {s(stmp)}")
        k(f"buffer_load_dword v40, v10, {s(rS,4)}, {s(ssrc)} offen")
        k(f"s_branch L_att_t3_{n}")
        k(f"L_att_t2_{n}:")
        k(f"s_sub_u32 {s(sr)}, {s(sb)}, 2592\ns_mul_i32 {s(sks)}, {s(sr)}, 7282\ns_lshr_b32 {s(sks)}, {s(sks)}, 16\ns_mul_i32 {s(stmp)}, {s(sks)}, 9\ns_sub_u32 {s(slg)}, {s(sr)}, {s(stmp)}")
        k(f"s_mul_i32 {s(ssrc)}, {s(sks)}, {32*1152}\ns_lshl_b32 {s(stmp)}, {s(slg)}, 7\ns_add_u32 {s(ssrc)}, {s(ssrc)}, {s(stmp)}")
        k(f"buffer_load_dword v40, v11, {s(rW2,4)}, {s(ssrc)} offen")
        k(f"L_att_t3_{n}:")
    if touch_on:
        for n in range(3, 16): touch(n)
        k("L_att_t_done:")
        k("s_nop 0")
    for n in range(3): dma(n)
    k("s_barrier")
    for n in range(15):
        proc(n)
        if n + 3 < 15: dma(n+3)
        stores(n)
        if n == 2 and prefetch:
            k("s_cmp_lt_u32 s2, 8\ns_cbranch_scc0 L_att_nopf")
            for nm, ns in prefetch: touch_code(k, nm, ns, vt=42)
            k("L_att_nopf:")
            k("s_nop 0")
    k(f"s_cmp_lt_u32 s2, 48\ns_cbranch_scc0 L_att_end")
    k("s_waitcnt vmcnt(0)")
    vm.clear()
    dma(15); proc(15); stores(15)
```

```python
from asmgen import *
from layout import *
from k_g1 import srd, spread

D = [[0, 1], [2, 3], [4, 5], [6, 7, 8]]

def gen_g2(stamps=False, PB=5, SIG=26, NPUB=8, TAKE=11, touch=False, dbg='', PAD=0, three=False, outpol=''):
    SL = 36864; NSL = 4
    RS2 = 36*1024 + (128*PAD if PAD else 0)
    k = Kern("g2a_kernel", vgprs=232, agprs=256)
    sWS = 4
    rW2, rHH, rP2, rCNT, rX1, rMOD, rOUT = 12, 16, 24, 28, 44, 48, 52
    sw, srb, scs, skq, saF, sb0, sb1, stmp, stmp2, saS, sgrp, sbase = range(32, 44)
    sspin, stile, sdt0, sldw = 56, 57, 58, 59
    vl16, vS, vcn = 1, 2, 6
    XV = 8
    ACC = 40
    AF = 112
    PK = 168
    XR = 200; GB = 212
    T0 = 224
    acc = lambda t, dt: ACC + (t*9+dt)*4
    def xr(t, st):
        i = (st*2 + t)*4
        return a(i, 4) if i < 256 else v(XV + i - 256, 4)
    k("s_cmp_ge_u32 s2, 256\ns_cbranch_scc1 L_g2a_end")
    k(f"s_load_dwordx2 {s(sWS,2)}, s[0:1], {KA['ws']}\ns_load_dwordx2 s[6:7], s[0:1], {KA['out']}")
    if stamps: k("s_memtime s[60:61]\ns_memrealtime s[62:63]")
    k(f"v_lshrrev_b32 v8, 6, v0\nv_and_b32 v0, 63, v0\nv_readfirstlane_b32 {s(sw)}, v8\nv_lshlrev_b32 {v(vl16)}, 4, v0")
    for i in range(NSL): k(f"v_add_u32 {v(vS+i)}, {i*SL}, {v(vl16)}")
    k(f"s_lshr_b32 {s(skq)}, s2, 1\ns_and_b32 {s(skq)}, {s(skq)}, 3\ns_and_b32 {s(stmp)}, s2, 1\ns_lshl_b32 {s(srb)}, {s(stmp)}, 3")
    k(f"s_lshr_b32 {s(stmp)}, s2, 3\ns_and_b32 {s(stmp2)}, {s(stmp)}, 7\ns_add_u32 {s(srb)}, {s(srb)}, {s(stmp2)}\ns_lshr_b32 {s(scs)}, {s(stmp)}, 3")
    k(f"s_lshl_b32 {s(stile)}, {s(srb)}, 3\ns_lshl_b32 {s(stmp2)}, {s(sw)}, 1\ns_add_u32 {s(stile)}, {s(stile)}, {s(stmp2)}")
    k(f"s_mul_i32 {s(sb0)}, {s(stile)}, {144*1024}\ns_mul_i32 {s(stmp2)}, {s(skq)}, {36*1024}\ns_add_u32 {s(sb0)}, {s(sb0)}, {s(stmp2)}\ns_add_u32 {s(sb1)}, {s(sb0)}, {144*1024}")
    k(f"s_mul_i32 {s(saF)}, {s(skq)}, {36*RS2}\ns_mul_i32 {s(stmp2)}, {s(scs)}, {9*1024}\ns_add_u32 {s(saF)}, {s(saF)}, {s(stmp2)}")
    k(f"s_mul_i32 {s(stmp)}, {s(sw)}, {RS2}\ns_mul_i32 {s(stmp2)}, {s(stmp)}, 3\ns_add_u32 {s(saS)}, {s(saF)}, {s(stmp2)}\ns_add_u32 {s(saF)}, {s(saF)}, {s(stmp)}")
    k(f"s_lshl_b32 {s(sgrp)}, {s(srb)}, 2\ns_add_u32 {s(sgrp)}, {s(sgrp)}, {s(scs)}")
    k(f"s_mul_i32 {s(sdt0)}, {s(scs)}, 9\ns_lshl_b32 {s(stmp)}, {s(skq)}, 1\ns_add_u32 {s(sdt0)}, {s(sdt0)}, {s(stmp)}")
    k(f"s_lshl_b32 {s(stmp)}, {s(sgrp)}, 7\nv_mov_b32 {v(vcn)}, {s(stmp)}")
    k("s_waitcnt lgkmcnt(0)")
    srd(k, rW2, sWS, WS["W2F"], WS["W2F_SZ"]); srd(k, rHH, sWS, WS["HHF"], WS["HHF_SZ"])
    srd(k, rP2, sWS, WS["PART2"], WS["PART2_SZ"]); srd(k, rCNT, sWS, WS["CNT"], WS["CNT_SZ"]); srd(k, rX1, sWS, WS["X1F"], WS["X1F_SZ"])
    srd(k, rMOD, sWS, WS["MOD"], WS["MOD_SZ"]); srd(k, rOUT, 6, 0, 2048*1152)
    for o in range(3): k(f"s_cmp_eq_u32 {s(skq)}, {o}\ns_cbranch_scc1 L_g2_v{o}")
    k("s_branch L_g2_v3")

    def variant(o):
        dS = D[o]; nS = len(dS)
        owners = [x for x in range(4) if x != o]
        o1, o2, o3 = (o+1) & 3, (o+2) & 3, (o+3) & 3
        phases = [('F', D[o1] + D[o2], 4), ('G', D[o3], 12), ('S', dS, 12)] if three else [('F', D[o1] + D[o2] + D[o3], 4), ('S', dS, 12)]
        chunks = []
        steps = []
        for pi, (nm, dts, cs_) in enumerate(phases):
            for st in range(36):
                if st % cs_ == 0: chunks.append((pi, st))
                steps.append((pi, st, len(chunks)-1, st % cs_))
        NC = len(chunks); N = len(steps)
        vm = []; q = []
        def emit(op):
            if isinstance(op, tuple): k(op[0]); vm.append(op[1])
            else: k(op)
        def wait(*tags):
            idx = [i for i, t in enumerate(vm) if t in tags]
            k(f"s_waitcnt vmcnt({min(63, len(vm) - 1 - max(idx))})")
        def flush(tag):
            while any(isinstance(x, tuple) and x[1] == tag for x in q): emit(q.pop(0))
        def runs(lst):
            out = []; cur = [lst[0]]
            for x in lst[1:]:
                if x == cur[-1] + 1 and len(cur) < 4: cur.append(x)
                else: out.append(cur); cur = [x]
            out.append(cur); return out
        def wdma(c):
            ops = []; slot = (c % NSL)*SL
            pi, st0 = chunks[c]; nm, dts, cs_ = phases[pi]; n = len(dts)
            if cs_ == 4:
                p = 0
                for run in runs(dts):
                    for i, dt in enumerate(run):
                        hd = ""
                        if i == 0: hd = f"s_mul_i32 {s(stmp)}, {s(sw)}, {n*1024}\ns_add_u32 m0, {s(stmp)}, {slot + p*1024}\ns_add_u32 {s(stmp2)}, {s(saF)}, {st0*RS2 + dt*1024}\n"
                        ops.append((hd + f"buffer_load_dwordx4 {v(vl16)}, {s(rW2,4)}, {s(stmp2)} offen offset:{i*1024} lds", ('W', c)))
                    p += len(run)
            else:
                for ls in range(3):
                    for i, dt in enumerate(dts):
                        hd = ""
                        if i == 0: hd = f"s_mul_i32 {s(stmp)}, {s(sw)}, {3*n*1024}\ns_add_u32 m0, {s(stmp)}, {slot + ls*n*1024}\ns_add_u32 {s(stmp2)}, {s(saS)}, {(st0 + ls)*RS2 + dt*1024}\n"
                        ops.append((hd + f"buffer_load_dwordx4 {v(vl16)}, {s(rW2,4)}, {s(stmp2)} offen offset:{i*1024} lds", ('W', c)))
            return ops
        def bload(st):
            return [(f"buffer_load_dwordx4 {xr(0,st)}, {v(vl16)}, {s(rHH,4)}, {s(sb0)} offen", ('B', st)),
                    (f"buffer_load_dwordx4 {xr(1,st)}, {v(vl16)}, {s(rHH,4)}, {s(sb1)} offen\ns_add_u32 {s(sb0)}, {s(sb0)}, 1024\ns_add_u32 {s(sb1)}, {s(sb1)}, 1024", ('B', st))]
        def abuf(i):
            return AF + ((i % 2)*28 if steps[i][0] == 0 else (i % 4)*12)
        def areads(i):
            pi, st, c, ls = steps[i]; dts = phases[pi][1]; n = len(dts)
            return [f"ds_read_b128 {v(abuf(i) + 4*j, 4)}, {v(vS + c % NSL)} offset:{(ls*n + j)*1024}" for j in range(n)]
        pkbase = {}; r = PK
        for x in owners:
            pkbase[x] = r; r += 4*(3 if len(D[x]) == 3 else 2)
        def pk(t, dt):
            x = [y for y in range(4) if dt in D[y]][0]; jj = D[x].index(dt)
            return pkbase[x] + (4*t + 2*jj if jj < 2 else 8 + 2*t)
        def publish_ops(xs):
            ops = []
            for x in xs:
                for t in range(2):
                    for dt in D[x]:
                        rr = acc(t, dt)
                        ops.append(f"v_cvt_pk_bf16_f32 {v(pk(t,dt))}, {v(rr)}, {v(rr+1)}"); ops.append(f"v_cvt_pk_bf16_f32 {v(pk(t,dt)+1)}, {v(rr+2)}, {v(rr+3)}")
                hd = (f"s_lshl_b32 {s(sbase)}, {s(sgrp)}, 2\ns_add_u32 {s(sbase)}, {s(sbase)}, {x}\ns_lshl_b32 {s(sbase)}, {s(sbase)}, 2\ns_add_u32 {s(sbase)}, {s(sbase)}, {o}\n"
                      f"s_lshl_b32 {s(sbase)}, {s(sbase)}, 2\ns_add_u32 {s(sbase)}, {s(sbase)}, {s(sw)}\ns_mul_i32 {s(sbase)}, {s(sbase)}, 3072\n")
                for c4 in range(3 if len(D[x]) == 3 else 2):
                    ops.append(((hd if c4 == 0 else "") + f"buffer_store_dwordx4 {v(pkbase[x] + 4*c4, 4)}, {v(vl16)}, {s(rP2,4)}, {s(sbase)} offen offset:{c4*1024} sc1", ('P',)))
            return ops
        def operand_ops():
            ops = [f"v_lshrrev_b32 {v(T0)}, 4, v0", f"v_lshlrev_b32 {v(T0)}, 4, {v(T0)}"]
            for j in range(nS):
                hd = (f"s_add_u32 {s(stmp)}, {s(sdt0)}, {j}\ns_and_b32 {s(stmp2)}, {s(stmp)}, 1\ns_lshl_b32 {s(stmp2)}, {s(stmp2)}, 3\ns_lshr_b32 {s(stmp)}, {s(stmp)}, 1\ns_lshl_b32 {s(stmp)}, {s(stmp)}, 10\n"
                      f"s_add_u32 {s(stmp)}, {s(stmp)}, {s(stmp2)}\ns_mul_i32 {s(stmp2)}, {s(stile)}, {18*1024}\ns_add_u32 {s(stmp)}, {s(stmp)}, {s(stmp2)}\n")
                ops.append((hd + f"buffer_load_dwordx2 {v(XR+4*j,2)}, {v(vl16)}, {s(rX1,4)}, {s(stmp)} offen\ns_add_u32 {s(stmp)}, {s(stmp)}, {18*1024}", ('X',)))
                ops.append((f"buffer_load_dwordx2 {v(XR+4*j+2,2)}, {v(vl16)}, {s(rX1,4)}, {s(stmp)} offen", ('X',)))
                ops.append((f"s_add_u32 {s(stmp)}, {s(sdt0)}, {j}\ns_lshl_b32 {s(stmp)}, {s(stmp)}, 6\ns_add_u32 {s(stmp)}, {s(stmp)}, {5*576*4}\nbuffer_load_dwordx4 {v(GB+4*j,4)}, {v(T0)}, {s(rMOD,4)}, {s(stmp)} offen", ('X',)))
            return ops
        k(f"L_g2_v{o}:")
        for x in wdma(0): emit(x)
        for st in range(2):
            for x in bload(st): emit(x)
        q += wdma(1) + [x for st in range(2, PB) for x in bload(st)] + wdma(2) + wdma(3)
        nxt_dma = 4
        wait(('W', 0)); k("s_barrier")
        for x in areads(0): k(x)
        if stamps: k("s_memtime s[64:65]")
        pub = []
        lastp = len(phases) - 1
        issued = 1
        synced_chunk = 0
        lq = [len(phases[0][1])]
        for i in range(N):
            pi, st, c, ls = steps[i]; nm, dts, cs_ = phases[pi]
            dist = 1 if pi == 0 else 3
            target = min(N - 1, i + dist)
            newc = steps[target][2]
            need_sync = newc > synced_chunk
            if need_sync:
                lim = max(j for j in range(N) if steps[j][2] == synced_chunk)
                while issued <= lim:
                    for x in areads(issued): k(x)
                    lq.append(len(phases[steps[issued][0]][1])); issued += 1
                k("s_waitcnt lgkmcnt(0)"); lq = [0]*len(lq)
                cb = synced_chunk
                flush(('W', cb+1)); wait(('W', cb+1)); k("s_barrier")
                synced_chunk = cb + 1
                while nxt_dma < NC and nxt_dma <= cb + NSL and (chunks[nxt_dma][0] == 0 or nxt_dma <= cb + 2):
                    q += wdma(nxt_dma); nxt_dma += 1
            else:
                rest = sum(lq[1:])
                k(f"s_waitcnt lgkmcnt({min(rest, 15)})")
            lq.pop(0)
            if pi == 0:
                flush(('B', st)); wait(('B', st))
                if st + PB < 36: q += bload(st + PB)
            if pi >= 1 and st == 0:
                if stamps and pi == 1: k("s_memtime s[66:67]")
                if three: pub += publish_ops([o1, o2] if pi == 1 else [o3])
                else: pub += publish_ops([o1, o2, o3])
                if pi == lastp: q += operand_ops()
            if pi == lastp and st == SIG:
                while pub: emit(pub.pop(0))
                wait(('P',)); k("s_barrier")
                k(f"s_cmp_eq_u32 {s(sw)}, 0\ns_cbranch_scc0 L_g2_nosig{o}")
                k(f"v_mov_b32 {v(T0+1)}, 1\ns_mov_b64 s[76:77], exec\ns_mov_b64 exec, 1\nbuffer_atomic_add {v(T0+1)}, {v(vcn)}, {s(rCNT,4)}, 0 offen sc1\ns_mov_b64 exec, s[76:77]")
                k(f"L_g2_nosig{o}:")
                k("s_nop 0")
            rd = []
            while issued <= target and steps[issued][2] <= synced_chunk:
                rd += areads(issued); lq.append(len(phases[steps[issued][0]][1])); issued += 1
            nm_ = 2*len(dts)
            take = q[:(TAKE if pi == 0 else 3)]; del q[:len(take)]
            fill = rd + take
            if pi >= 1 and st >= 1 and pub:
                fill = pub[:NPUB] + fill; del pub[:NPUB]
            slots = spread(fill, nm_)
            j = 0
            for jd, dt in enumerate(dts):
                for t in range(2):
                    cc = "0" if st == 0 else v(acc(t,dt),4)
                    k(f"v_mfma_f32_16x16x32_bf16 {v(abuf(i)*0 + acc(t,dt),4)}, {v(abuf(i) + 4*jd, 4)}, {xr(t,st)}, {cc}")
                    for x in slots[j]: emit(x)
                    j += 1
        assert nxt_dma == NC
        while q: emit(q.pop(0))
        for j, src in enumerate(owners):
            k(f"s_lshl_b32 s{84+j}, {s(sgrp)}, 2\ns_add_u32 s{84+j}, s{84+j}, {o}\ns_lshl_b32 s{84+j}, s{84+j}, 2\ns_add_u32 s{84+j}, s{84+j}, {src}\ns_lshl_b32 s{84+j}, s{84+j}, 2\ns_add_u32 s{84+j}, s{84+j}, {s(sw)}\ns_mul_i32 s{84+j}, s{84+j}, 3072")
        k(f"s_mul_i32 {s(stmp2)}, {s(sw)}, 3584\nv_and_b32 v2, 15, v0\nv_mul_u32_u24 v2, 112, v2\nv_lshrrev_b32 v3, 4, v0\nv_lshlrev_b32 v3, 3, v3\nv_add_u32 v2, v2, v3\nv_add_u32 v2, {s(stmp2)}, v2")
        if stamps: k("s_memtime s[78:79]")
        k(f"s_cmp_eq_u32 {s(sw)}, 0\ns_cbranch_scc0 L_g2_met{o}")
        k(f"s_mov_b32 {s(sspin)}, 0\ns_mov_b64 s[76:77], exec\ns_mov_b64 exec, 1")
        k(f"L_g2_poll{o}:")
        k(f"buffer_load_dword {v(T0+1)}, {v(vcn)}, {s(rCNT,4)}, 0 offen sc1\ns_waitcnt vmcnt(0)\nv_readfirstlane_b32 {s(stmp)}, {v(T0+1)}")
        k(f"s_cmp_ge_u32 {s(stmp)}, 4\ns_cbranch_scc1 L_g2_met0_{o}")
        k(f"s_add_u32 {s(sspin)}, {s(sspin)}, 1\ns_cmp_lt_u32 {s(sspin)}, 0x100000\ns_cbranch_scc0 L_g2_met0_{o}")
        k(f"s_sleep 2\ns_branch L_g2_poll{o}")
        k(f"L_g2_met0_{o}:")
        k("s_mov_b64 exec, s[76:77]")
        k(f"L_g2_met{o}:")
        k("s_barrier")
        if stamps: k("s_memtime s[80:81]")
        FG = AF
        nch = 3 if nS == 3 else 2
        for j, src in enumerate(owners):
            for c4 in range(nch): k(f"buffer_load_dwordx4 {v(FG+j*12+c4*4,4)}, {v(vl16)}, {s(rP2,4)}, s{84+j} offen offset:{c4*1024} sc1")
        k(f"s_mul_i32 {s(stmp)}, {s(sw)}, 3584")
        k("s_waitcnt vmcnt(0)")
        if stamps: k("s_memtime s[82:83]")
        for t in range(2):
            for jj, dt in enumerate(dS):
                r_ = acc(t,dt)
                c4, h = (t, jj) if jj < 2 else (2, t)
                for j in range(3):
                    f = FG + j*12 + c4*4 + 2*h
                    k(f"v_lshlrev_b32 v4, 16, {v(f)}\nv_and_b32 v5, 0xffff0000, {v(f)}\nv_add_f32 {v(r_)}, {v(r_)}, v4\nv_add_f32 {v(r_+1)}, {v(r_+1)}, v5")
                    k(f"v_lshlrev_b32 v4, 16, {v(f+1)}\nv_and_b32 v5, 0xffff0000, {v(f+1)}\nv_add_f32 {v(r_+2)}, {v(r_+2)}, v4\nv_add_f32 {v(r_+3)}, {v(r_+3)}, v5")
                x = XR + 4*jj + 2*t; g = GB + 4*jj
                k(f"v_lshlrev_b32 v4, 16, {v(x)}\nv_and_b32 v5, 0xffff0000, {v(x)}\nv_fma_f32 {v(r_)}, {v(g)}, {v(r_)}, v4\nv_fma_f32 {v(r_+1)}, {v(g+1)}, {v(r_+1)}, v5")
                k(f"v_lshlrev_b32 v4, 16, {v(x+1)}\nv_and_b32 v5, 0xffff0000, {v(x+1)}\nv_fma_f32 {v(r_+2)}, {v(g+2)}, {v(r_+2)}, v4\nv_fma_f32 {v(r_+3)}, {v(g+3)}, {v(r_+3)}, v5")
                k(f"v_cvt_pk_bf16_f32 {v(r_)}, {v(r_)}, {v(r_+1)}\nv_cvt_pk_bf16_f32 {v(r_+1)}, {v(r_+2)}, {v(r_+3)}")
                k(f"ds_write_b64 v2, {v(r_,2)} offset:{t*16*112 + jj*32}")
        upr = 2*nS; nins = (32*upr)//64
        k(f"s_lshl_b32 {s(stmp2)}, {s(stile)}, 4\ns_mul_i32 {s(stmp2)}, {s(stmp2)}, 1152\ns_lshl_b32 {s(sbase)}, {s(sdt0)}, 5\ns_add_u32 {s(stmp2)}, {s(stmp2)}, {s(sbase)}")
        k("s_waitcnt lgkmcnt(0)")
        for e in range(nins):
            magic = 16384 if upr == 4 else 10923
            k(f"v_add_u32 v3, {64*e}, v0\nv_mul_u32_u24 v4, {magic}, v3\nv_lshrrev_b32 v4, 16, v4\nv_mul_u32_u24 v5, {upr}, v4\nv_sub_u32 v3, v3, v5\nv_lshlrev_b32 v3, 4, v3")
            k(f"v_mul_u32_u24 v5, 112, v4\nv_add_u32 v5, v5, v3\nv_add_u32 v5, {s(stmp)}, v5\nds_read_b128 {v(PK+4*e,4)}, v5")
            k(f"v_mul_u32_u24 v4, 1152, v4\nv_add_u32 {v(T0+2+e)}, v4, v3")
        k("s_waitcnt lgkmcnt(0)")
        for e in range(nins): k(f"buffer_store_dwordx4 {v(PK+4*e,4)}, {v(T0+2+e)}, {s(rOUT,4)}, {s(stmp2)} offen" + outpol)
        k("s_branch L_g2a_done")
    for o in range(4): variant(o)
    k("L_g2a_done:")
    if stamps:
        k("s_waitcnt vmcnt(0)\ns_memtime s[68:69]\ns_memrealtime s[70:71]\ns_waitcnt lgkmcnt(0)")
        srd(k, 24, sWS, WS["AUX"], WS["AUX_SZ"])
        k(f"s_lshl_b32 {s(stmp)}, s2, 3\ns_add_u32 {s(stmp)}, {s(stmp)}, {s(sw)}\ns_lshl_b32 {s(stmp)}, {s(stmp)}, 6\nv_mov_b32 v9, {s(stmp)}")
        for i, (x, y) in enumerate(((64,60),(66,60),(68,60),(70,62))):
            k(f"s_sub_u32 s72, s{x}, s{y}\nv_mov_b32 v8, s72\nbuffer_store_dword v8, v9, s[24:27], 0 offen offset:{4*i}")
        k(f"v_mov_b32 v8, s62\nbuffer_store_dword v8, v9, s[24:27], 0 offen offset:16")
        for i, x in enumerate((78, 80, 82)):
            k(f"s_sub_u32 s72, s{x}, s60\nv_mov_b32 v8, s72\nbuffer_store_dword v8, v9, s[24:27], 0 offen offset:{20+4*i}")
    k("L_g2a_end:\ns_endpgm")
    return k, (256, 256, NSL*SL)
```

```python
import build, k_k01b, k_att, k_p3, k_g1b, k_g2d
def lst(outpol='', p3pol='', wt=4, ow=False):
    return [k_k01b.gen_k01,
        lambda: k_att.gen_att(helper=True, prefetch=[("p3_kernel", 1), ("g1_kernel", 4)], onewait=ow),
        lambda: k_p3.gen_p3(pol=p3pol),
        lambda: k_g1b.gen_g1(wt_upto=wt, prefetch=[("g2a_kernel", 7)]),
        lambda: k_g2d.gen_g2(outpol=outpol)]
build.check(lst(), "vA.s")
build.check(lst(outpol=' sc1'), "vB.s")
build.check(lst(outpol=' sc1', p3pol=' sc1'), "vC.s")
```

```python
from asmgen import *
from layout import *
from k_g1 import srd

def gen_g1(stamps=False, PDS=3, cap=11, wt_upto=6, prefetch=None, alg=True, w2pf=True, k=None, signal=False):
    NK = 19 if alg else 18
    US = NK*2048
    fused = k is not None
    if not fused: k = Kern("g1_kernel", vgprs=(248 if alg else 220), agprs=256)
    ldpol = " sc1" if fused else ""
    B19, VA, VS2, PFV = 216, 232, 236, 240
    sWS = 4
    rW, rH2, rHH = 12, 16, 20
    sw, srb, sg, stmp, stmp2, snl2e, sst, sw01s, sw01d, sw23s, sw23d, sfs, sfd, su8, sh0 = range(32, 47)
    sx = 48
    sso = 47
    vl16, vS, vst2 = 1, 2, 6
    XV, RING, ACC, OUT, TMP = 8, 40, 64, 192, 208
    def xr(t, ks):
        if ks == 18: return v(B19 + 4*t, 4)
        i = (ks*4 + t)*4
        return a(i, 4) if i < 256 else v(XV + i - 256, 4)
    if not fused:
        k("s_cmp_ge_u32 s2, 256\ns_cbranch_scc1 L_g1_end")
        k(f"s_load_dwordx2 {s(sWS,2)}, s[0:1], {KA['ws']}")
        if stamps: k("s_memtime s[60:61]\ns_memrealtime s[62:63]")
        k(f"v_lshrrev_b32 v8, 6, v0\nv_and_b32 v0, 63, v0\nv_readfirstlane_b32 {s(sw)}, v8")
    k(f"v_lshlrev_b32 {v(vl16)}, 4, v0")
    for i in range(4): k(f"v_add_u32 {v(vS+i)}, {i*US}, {v(vl16)}")
    k(f"s_and_b32 {s(stmp)}, s2, 1\ns_lshl_b32 {s(srb)}, {s(stmp)}, 2\ns_lshr_b32 {s(stmp)}, s2, 6\ns_add_u32 {s(srb)}, {s(srb)}, {s(stmp)}")
    k(f"s_lshr_b32 {s(sg)}, s2, 1\ns_and_b32 {s(sg)}, {s(sg)}, 3\ns_lshl_b32 {s(sg)}, {s(sg)}, 3\ns_lshr_b32 {s(stmp)}, s2, 3\ns_and_b32 {s(stmp)}, {s(stmp)}, 7\ns_add_u32 {s(sg)}, {s(sg)}, {s(stmp)}")
    k(f"s_lshl_b32 {s(stmp)}, {s(srb)}, 4\ns_lshl_b32 {s(stmp2)}, {s(sw)}, 2\ns_add_u32 {s(stmp)}, {s(stmp)}, {s(stmp2)}")
    k(f"s_mul_i32 {s(sx)}, {s(stmp)}, {18*1024}")
    for t in range(1, 4): k(f"s_add_u32 {s(sx+t)}, {s(sx)}, {t*18*1024}")
    k(f"s_mul_i32 {s(sh0)}, {s(stmp)}, {144*1024}")
    k(f"s_mul_i32 {s(sfs)}, {s(sg)}, {8*US}")
    k(f"s_add_u32 {s(su8)}, {s(sg)}, 256\ns_mul_i32 {s(su8)}, {s(su8)}, {US}")
    k(f"s_lshr_b32 {s(stmp)}, {s(sw)}, 1\ns_mul_i32 {s(stmp)}, {s(stmp)}, {US}\ns_and_b32 {s(stmp2)}, {s(sw)}, 1")
    k(f"s_lshl_b32 {s(sw01d)}, {s(stmp2)}, 11\ns_add_u32 {s(sw01d)}, {s(sw01d)}, {s(stmp)}\ns_add_u32 {s(sw01s)}, {s(sw01d)}, {s(sfs)}")
    k(f"s_lshl_b32 {s(sw23d)}, {s(stmp2)}, 10\ns_add_u32 {s(sw23d)}, {s(sw23d)}, {s(stmp)}\ns_add_u32 {s(sw23d)}, {s(sw23d)}, {2*US}\ns_add_u32 {s(sw23s)}, {s(sw23d)}, {s(sfs)}")
    if alg: k(f"s_mul_i32 {s(sfd)}, {s(sw)}, 10\ns_min_u32 {s(sfd)}, {s(sfd)}, 28\ns_lshl_b32 {s(sfd)}, {s(sfd)}, 10")
    else: k(f"s_mul_i32 {s(sfd)}, {s(sw)}, 9216")
    k(f"s_mov_b32 {s(snl2e)}, 0xbfb8aa3b")
    k(f"s_and_b32 {s(stmp)}, {s(sg)}, 1\ns_lshl_b32 {s(stmp)}, {s(stmp)}, 3\nv_add_u32 {v(vst2)}, {s(stmp)}, {v(vl16)}")
    k("s_waitcnt lgkmcnt(0)")
    srd(k, rW, sWS, WS["W13F"], WS["W13F_SZ"]); srd(k, rH2, sWS, WS["H2F"], WS["H2F_SZ"]); srd(k, rHH, sWS, WS["HHF"], WS["HHF_SZ"])
    rST = 24
    if alg: srd(k, rST, sWS, WS["STAT"], WS["STAT_SZ"])

    vm = []
    def emit(op):
        if isinstance(op, tuple): k(op[0]); vm.append(op[1])
        else: k(op)
    def wait(*tags):
        idx = [i for i, t in enumerate(vm) if t in tags]
        n = len(vm) - 1 - max(idx)
        k(f"s_waitcnt vmcnt({min(n, 63)})")
    def LGx(c):
        ops = []
        for ks in (2*c, 2*c+1):
            for t in range(4):
                o = f"buffer_load_dwordx4 {xr(t,ks)}, {v(vl16)}, {s(rH2,4)}, {s(sx+t)} offen offset:{(ks & 3)*1024}{ldpol}"
                if ks & 3 == 3: o += f"\ns_add_u32 {s(sx+t)}, {s(sx+t)}, 4096"
                ops.append((o, ('L', c)))
        return ops
    def LGw(c):
        ops = []
        ops.append((f"s_mov_b32 m0, {s(sw01d)}\ns_nop 0\nbuffer_load_dwordx4 {v(vl16)}, {s(rW,4)}, {s(sw01s)} offen lds", ('L', c)))
        ops.append((f"buffer_load_dwordx4 {v(vl16)}, {s(rW,4)}, {s(sw01s)} offen offset:1024 lds\ns_add_u32 {s(sw01s)}, {s(sw01s)}, 4096\ns_add_u32 {s(sw01d)}, {s(sw01d)}, 4096", ('L', c)))
        ops.append((f"s_mov_b32 m0, {s(sw23d)}\ns_nop 0\nbuffer_load_dwordx4 {v(vl16)}, {s(rW,4)}, {s(sw23s)} offen lds\ns_add_u32 {s(sw23s)}, {s(sw23s)}, 2048\ns_add_u32 {s(sw23d)}, {s(sw23d)}, 2048", ('L', c)))
        return ops
    def LG(c): return LGx(c) + LGw(c)
    def dma9(srcbase_expr_setup, dst_setup, tag):
        NP = 10 if alg else 9
        ops = []
        for c in range(3):
            n = 4 if c < 2 else NP - 8
            for i in range(n):
                hd = ""
                if i == 0:
                    hd = (srcbase_expr_setup + "\n" + dst_setup + "\n" if c == 0 else f"s_add_u32 {s(sst)}, {s(sst)}, 4096\ns_add_u32 {s(stmp2)}, {s(stmp2)}, 4096\n") + f"s_mov_b32 m0, {s(stmp2)}\ns_nop 0\n"
                ops.append((hd + f"buffer_load_dwordx4 {v(vl16)}, {s(rW,4)}, {s(sst)} offen offset:{i*1024} lds", tag))
        return ops
    def W23rest():
        src = (f"s_lshr_b32 {s(stmp)}, {s(sw)}, 1\ns_add_u32 {s(stmp)}, {s(stmp)}, 2\ns_mul_i32 {s(stmp)}, {s(stmp)}, {US}\ns_and_b32 {s(stmp2)}, {s(sw)}, 1\ns_mul_i32 {s(stmp2)}, {s(stmp2)}, {10240 if alg else 9216}\n"
               f"s_add_u32 {s(stmp2)}, {s(stmp2)}, {s(stmp)}\ns_add_u32 {s(stmp2)}, {s(stmp2)}, 18432\ns_add_u32 {s(sst)}, {s(stmp2)}, {s(sfs)}")
        return dma9(src, "", ('R',))
    def LG9():
        return [(f"s_lshr_b32 {s(stmp)}, {s(sw)}, 1\ns_mul_i32 {s(stmp)}, {s(stmp)}, {US}\ns_and_b32 {s(stmp2)}, {s(sw)}, 1\ns_lshl_b32 {s(stmp2)}, {s(stmp2)}, 10\ns_add_u32 {s(stmp2)}, {s(stmp2)}, {s(stmp)}\n"
                 f"s_add_u32 {s(stmp2)}, {s(stmp2)}, {18*2048}\ns_add_u32 {s(sst)}, {s(stmp2)}, {s(sfs)}\ns_mov_b32 m0, {s(stmp2)}\ns_nop 0\nbuffer_load_dwordx4 {v(vl16)}, {s(rW,4)}, {s(sst)} offen lds", ('R',))]
    def UD(u):
        slot = u % 4
        if u < 8: src = f"s_add_u32 {s(sst)}, {s(sfs)}, {u*US}\ns_add_u32 {s(sst)}, {s(sst)}, {s(sfd)}"
        else: src = f"s_add_u32 {s(sst)}, {s(su8)}, {s(sfd)}"
        return dma9(src, f"s_add_u32 {s(stmp2)}, {s(sfd)}, {slot*US}", ('U', u))
    def fixdma(ops):
        return [(o.replace("\n\n", "\n"), t) for o, t in ops]

    steps = []
    for c in range(9): steps += [(0, 2*c), (1, 2*c), (2, c), (0, 2*c+1), (1, 2*c+1), (3, c)]
    if alg: steps += [(0, 18), (1, 18)]
    PA = len(steps)
    for kk in range(9, NK): steps += [(2, kk), (3, kk)]
    PB = len(steps)
    for u in range(4, 9): steps += [(u, ks) for ks in range(NK)]
    N = len(steps); assert N == 9*NK
    last_step = {u: max(i for i, (uu, _) in enumerate(steps) if uu == u) for u in range(9)}
    first_step = {u: min(i for i, (uu, _) in enumerate(steps) if uu == u) for u in range(9)}
    def reads(i):
        u, ks = steps[i]; slot = RING + 8*(i % 3); b = vS + (u % 4)
        return [f"ds_read_b128 {v(slot,4)}, {v(b)} offset:{ks*2048}", f"ds_read_b128 {v(slot+4,4)}, {v(b)} offset:{ks*2048+1024}"]
    def epi(u):
        X = ACC + 32*(u % 4); p = u % 2; ops = []
        g = lambda e: X + e; uu = lambda e: X + 16 + e
        for b in (0, 8):
            es = range(b, b+8); t = lambda e: TMP + e - b
            if alg: ops += [(f"v_mul_f32 {v(t(e))}, {v(VA + e//4)}, {v(g(e))}", 1) for e in es]
            else: ops += [(f"v_mul_f32 {v(t(e))}, {s(snl2e)}, {v(g(e))}", 1) for e in es]
            ops += [(f"v_exp_f32 {v(t(e))}, {v(t(e))}", 2) for e in es]
            ops += [(f"v_mul_f32 {v(uu(e))}, {v(g(e))}, {v(uu(e))}", 1) for e in es]
            if alg: ops += [(f"v_fma_f32 {v(t(e))}, {v(t(e))}, {v(VS2 + e//4)}, {v(VS2 + e//4)}", 1) for e in es]
            else: ops += [(f"v_add_f32 {v(t(e))}, 1.0, {v(t(e))}", 1) for e in es]
            ops += [(f"v_rcp_f32 {v(t(e))}, {v(t(e))}", 2) for e in es]
            ops += [(f"v_mul_f32 {v(uu(e))}, {v(uu(e))}, {v(t(e))}", 1) for e in es]
            for e in es:
                if e % 2 == 0:
                    tt = e // 4; h = (e % 4)//2
                    dst = OUT + 4*tt + (2*p if u < 8 else 0) + h
                    ops.append((f"v_cvt_pk_bf16_f32 {v(dst)}, {v(uu(e))}, {v(uu(e+1))}", 1))
        out = [(o, c, None) for o, c in ops]
        if u < 8 and p == 1:
            for tt in range(4):
                hd = (f"s_lshl_b32 {s(sso)}, {s(sg)}, 2\ns_add_u32 {s(sso)}, {s(sso)}, {u >> 1}\ns_lshl_b32 {s(sso)}, {s(sso)}, 10\ns_add_u32 {s(sso)}, {s(sso)}, {s(sh0)}\n" if tt == 0 else f"s_add_u32 {s(sso)}, {s(sso)}, {144*1024}\n")
                out.append((hd + f"buffer_store_dwordx4 {v(OUT+4*tt,4)}, {v(vl16)}, {s(rHH,4)}, {s(sso)} offen" + (" sc1" if u < wt_upto else ""), 2, ('S', u)))
        if u == 8:
            for tt in range(4):
                hd = (f"s_lshr_b32 {s(sso)}, {s(sg)}, 1\ns_add_u32 {s(sso)}, {s(sso)}, 128\ns_lshl_b32 {s(sso)}, {s(sso)}, 10\ns_add_u32 {s(sso)}, {s(sso)}, {s(sh0)}\n" if tt == 0 else f"s_add_u32 {s(sso)}, {s(sso)}, {144*1024}\n")
                out.append((hd + f"buffer_store_dwordx2 {v(OUT+4*tt,2)}, {v(vst2)}, {s(rHH,4)}, {s(sso)} offen" + (" sc1" if signal else ""), 2, ('S', u)))
        return out
    epiq = []
    done_units = set()
    def emit_epi(o):
        if o[4] is not None: k(o[2]); vm.append(o[4])
        else: k(o[2])
    if fused:
        for c in range(PDS):
            for o in LGw(c): emit(o)
        srd(k, 28, sWS, WS["CNT"], WS["CNT_SZ"])
        k(f"s_cmp_eq_u32 {s(sw)}, 0\ns_cbranch_scc0 L_pg_met")
        k(f"s_add_u32 {s(stmp)}, {s(srb)}, 64\ns_lshl_b32 {s(stmp)}, {s(stmp)}, 7\nv_mov_b32 v8, {s(stmp)}\ns_mov_b32 {s(stmp2)}, 0\ns_mov_b64 s[56:57], exec\ns_mov_b64 exec, 1")
        k("L_pg_poll:")
        k(f"buffer_load_dword v9, v8, s[28:31], 0 offen sc1\ns_waitcnt vmcnt(0)\nv_readfirstlane_b32 {s(stmp)}, v9")
        k(f"s_cmp_ge_u32 {s(stmp)}, 24\ns_cbranch_scc1 L_pg_met0")
        k(f"s_add_u32 {s(stmp2)}, {s(stmp2)}, 1\ns_cmp_lt_u32 {s(stmp2)}, 0x100000\ns_cbranch_scc0 L_pg_met0")
        k("s_sleep 2\ns_branch L_pg_poll")
        k("L_pg_met0:")
        k("s_mov_b64 exec, s[56:57]")
        k("L_pg_met:")
        k("s_barrier")
    if alg:
        k(f"v_lshrrev_b32 v8, 4, v0\nv_lshlrev_b32 v8, 14, v8\nv_and_b32 v9, 15, v0\nv_lshlrev_b32 v9, 3, v9\nv_add_u32 v8, v8, v9")
        k(f"v_add_u32 v9, {4*16384}, v8")
        for t in range(4): k(f"v_mov_b32 {v(OUT+4*t+2)}, 0\nv_mov_b32 {v(OUT+4*t+3)}, 0")
        k(f"s_lshl_b32 {s(stmp)}, {s(srb)}, 4\ns_lshl_b32 {s(stmp2)}, {s(sw)}, 2\ns_add_u32 {s(stmp)}, {s(stmp)}, {s(stmp2)}\ns_lshl_b32 {s(stmp)}, {s(stmp)}, 7")
        for t in range(4):
            emit((f"buffer_load_dwordx2 {v(OUT+4*t,2)}, v8, {s(rST,4)}, {s(stmp)} offen offset:{t*128}{ldpol}", ('T',)))
        k("s_mov_b64 s[56:57], exec\ns_mov_b64 exec, 0xffffffff")
        for t in range(4):
            emit((f"buffer_load_dwordx2 {v(OUT+4*t+2,2)}, v9, {s(rST,4)}, {s(stmp)} offen offset:{t*128}{ldpol}", ('T',)))
        k("s_mov_b64 exec, s[56:57]")
    if fused:
        for c in range(PDS):
            for o in LGx(c): emit(o)
    else:
        for o in LG(0): emit(o)
        for c in range(1, PDS):
            for o in LG(c): emit(o)
    statq = []
    if alg:
        for t in range(4):
            a0 = OUT + 4*t; m_, q_, tm = a0, a0+1, TMP + 2*t
            L = []
            L.append(f"v_add_f32 {v(m_)}, {v(a0)}, {v(a0+2)}"); L.append(f"v_add_f32 {v(q_)}, {v(a0+1)}, {v(a0+3)}")
            for r in (m_, q_):
                L += [f"v_mov_b32 {v(tm)}, {v(r)}", f"s_nop 1\nv_permlane32_swap_b32 {v(r)}, {v(tm)}", f"v_add_f32 {v(r)}, {v(r)}, {v(tm)}", f"v_mov_b32 {v(tm)}, {v(r)}",
                      f"s_nop 1\nv_permlane16_swap_b32 {v(r)}, {v(tm)}", f"v_add_f32 {v(r)}, {v(r)}, {v(tm)}"]
            L += [f"v_mul_f32 {v(m_)}, 0x3ae38e39, {v(m_)}", f"v_mul_f32 {v(q_)}, 0x3ae38e39, {v(q_)}",
                  f"v_fma_f32 {v(q_)}, -{v(m_)}, {v(m_)}, {v(q_)}", f"v_max_f32 {v(q_)}, 0, {v(q_)}", f"v_add_f32 {v(VS2+t)}, 0x3727c5ac, {v(q_)}",
                  f"v_rsq_f32 {v(tm)}, {v(VS2+t)}", f"v_sub_f32 {v(m_)}, 0, {v(m_)}", f"v_mul_f32 {v(VA+t)}, {s(snl2e)}, {v(tm)}", f"v_mul_f32 {v(q_)}, {v(VS2+t)}, {v(tm)}",
                  f"v_cndmask_b32 {v(m_)}, 0, {v(m_)}, s[52:53]", f"v_cndmask_b32 {v(q_)}, 0, {v(q_)}, s[52:53]"]
            b = B19 + 4*t
            L += [f"v_cvt_pk_bf16_f32 {v(tm)}, {v(m_)}, {v(m_)}", f"v_lshlrev_b32 {v(tm)}, 16, {v(tm)}", f"v_sub_f32 {v(tm)}, {v(m_)}, {v(tm)}", f"v_cvt_pk_bf16_f32 {v(b)}, {v(m_)}, {v(tm)}",
                  f"v_cvt_pk_bf16_f32 {v(b+1)}, {v(m_)}, {v(q_)}", f"v_cvt_pk_bf16_f32 {v(tm)}, {v(q_)}, {v(q_)}", f"v_lshlrev_b32 {v(tm)}, 16, {v(tm)}",
                  f"v_sub_f32 {v(tm)}, {v(q_)}, {v(tm)}", f"v_cvt_pk_bf16_f32 {v(b+2)}, {v(tm)}, {v(q_)}", f"v_mov_b32 {v(b+3)}, 0"]
            statq.append(L)
        merged = []
        for i in range(max(len(L) for L in statq)):
            for L in statq:
                if i < len(L): merged.append(L[i])
        statq = merged
        k("v_cmp_gt_u32 s[52:53], 16, v0")
    wait(('L', 0)); k("s_barrier")
    if stamps: k("s_memtime s[64:65]")
    for o in reads(0) + reads(1): k(o)
    vq = []
    busy9 = [0]
    for i in range(N):
        u, ks = steps[i]
        pre_bar = False
        if (i + 2) < 54 and (i + 2) % 6 == 0:
            c = (i + 2)//6
            while any(t == ('L', c) for _, t in vq): emit(vq.pop(0))
            wait(('L', c)); k("s_barrier")
        if alg and i == 52:
            while vq: emit(vq.pop(0))
            wait(('R',)); k("s_barrier")
        if i == PA - 2:
            while vq: emit(vq.pop(0))
            k("s_waitcnt lgkmcnt(0)"); wait(('R',)); k("s_barrier")
            vq += fixdma(UD(4)) + fixdma(UD(5))
        if i == PB - 2:
            while any(t == ('U', 4) for _, t in vq): emit(vq.pop(0))
            k("s_waitcnt lgkmcnt(0)"); wait(('U', 4)); k("s_barrier")
            vq += fixdma(UD(6)) + fixdma(UD(7))
        if i == PB + NK - 2:
            while any(t == ('U', 5) for _, t in vq): emit(vq.pop(0))
            k("s_waitcnt lgkmcnt(0)"); wait(('U', 5)); k("s_barrier")
            vq += fixdma(UD(8))
        for uu_, at in ((6, PB + 2*NK - 2), (7, PB + 3*NK - 2), (8, PB + 4*NK - 2)):
            if i == at:
                while any(t == ('U', uu_) for _, t in vq): emit(vq.pop(0))
                wait(('U', uu_)); k("s_barrier")
        if i == PB + 3*NK + 4 and w2pf:
            k(f"s_bfe_u32 {s(stmp)}, s2, 0x20001\ns_mul_i32 {s(stmp)}, {s(stmp)}, {36*36*1024}\ns_lshr_b32 {s(stmp2)}, s2, 3\ns_lshl_b32 {s(stmp2)}, {s(stmp2)}, 2\ns_add_u32 {s(stmp2)}, {s(stmp2)}, {s(sw)}\ns_mul_i32 {s(stmp2)}, {s(stmp2)}, {81*128}\ns_add_u32 {s(stmp)}, {s(stmp)}, {s(stmp2)}")
            srd(k, 28, sWS, WS["W2F"], WS["W2F_SZ"])
            k(f"v_lshlrev_b32 {v(PFV+4)}, 7, v0")
            emit((f"buffer_load_dword {v(PFV+5)}, {v(PFV+4)}, s[28:31], {s(stmp)} offen\ns_add_u32 {s(stmp)}, {s(stmp)}, {17*128}", ('Z',)))
            emit((f"buffer_load_dword {v(PFV+5)}, {v(PFV+4)}, s[28:31], {s(stmp)} offen", ('Z',)))
        if i == PB + 4*NK + 2 and prefetch:
            k(f"s_cmp_lt_u32 s2, 8\ns_cbranch_scc0 L_g1_nopf\ns_cmp_eq_u32 {s(sw)}, 0\ns_cbranch_scc0 L_g1_nopf")
            for pf in prefetch: touch_code(k, pf[0], pf[1], vt=PFV if alg else 216, end=(pf[2] if len(pf) > 2 else None))
            k("L_g1_nopf:")
            k("s_nop 0")
        if i < 54 and i % 6 == 0:
            c = i//6 + PDS
            if c < 9: vq += LG(c)
            if i//6 == 9 - PDS or (PDS > 8 and i == 0): vq += fixdma(W23rest()) + (LG9() if alg else [])
        if u >= 4 and i == first_step[u]:
            while any(o[1] == u - 4 for o in epiq): emit_epi(epiq.pop(0))
        rd = reads(i+2) if i + 2 < N else []
        synced = i in (PA - 2, PB - 2, PB + NK - 2)
        if not synced:
            nout = (2 if i + 1 < N else 0)
            k(f"s_waitcnt lgkmcnt({nout})")
        X = ACC + 32*(u % 4); slot = RING + 8*(i % 3)
        budget = cap
        nv = -(-len(vq) // max(1, 6 if i < PA else 9)) if vq else 0
        nv = min(nv, 3)
        for j in range(8):
            m, t = j // 4, j % 4
            acc = X + 16*m + 4*t
            c = "0" if ks == 0 else v(acc, 4)
            k(f"v_mfma_f32_16x16x32_bf16 {v(acc,4)}, {v(slot+4*m,4)}, {xr(t,ks)}, {c}")
            used = 0
            if rd and j in (0, 1): k(rd.pop(0)); used += 1
            if vq and nv > 0 and j in (2, 4, 6):
                emit(vq.pop(0)); nv -= 1; used += 2; budget -= 2
            if statq and i >= 6 and used < 2:
                k(statq.pop(0)); used += 1
                if statq and used < 2: k(statq.pop(0)); used += 1
            while epiq and epiq[0][0] <= i and used < 2 and budget > 0:
                o = epiq[0]
                if used + min(o[3], 2) > 2 and used > 0: break
                epiq.pop(0); emit_epi(o); used += o[3]; budget -= o[3]
        if i == 50: assert not statq
        if i == last_step[u]:
            epiq += [(i + 2, u, o, c, tg) for o, c, tg in epi(u)]
    if stamps: k("s_memtime s[66:67]")
    k("s_nop 7")
    while epiq: emit_epi(epiq.pop(0))
    if stamps:
        k("s_waitcnt vmcnt(0)\ns_memtime s[68:69]\ns_memrealtime s[70:71]\ns_waitcnt lgkmcnt(0)")
        srd(k, 24, sWS, WS["AUX"], WS["AUX_SZ"])
        k(f"s_lshl_b32 {s(stmp)}, s2, 3\ns_add_u32 {s(stmp)}, {s(stmp)}, {s(sw)}\ns_lshl_b32 {s(stmp)}, {s(stmp)}, 6\nv_mov_b32 v9, {s(stmp)}")
        for i, (x, y) in enumerate(((64,60),(66,60),(68,60),(70,62))):
            k(f"s_sub_u32 s72, s{x}, s{y}\nv_mov_b32 v8, s72\nbuffer_store_dword v8, v9, s[24:27], 0 offen offset:{4*i}")
        k(f"v_mov_b32 v8, s62\nbuffer_store_dword v8, v9, s[24:27], 0 offen offset:16")
    if signal:
        k("s_waitcnt vmcnt(0)\ns_barrier")
        k(f"s_cmp_eq_u32 {s(sw)}, 0\ns_cbranch_scc0 L_pg_g2")
        srd(k, 28, sWS, WS["CNT"], WS["CNT_SZ"])
        k(f"s_mul_i32 {s(stmp)}, {s(sg)}, 29\ns_lshr_b32 {s(stmp)}, {s(stmp)}, 8\ns_min_u32 {s(stmp)}, {s(stmp)}, 3\ns_lshl_b32 {s(stmp2)}, {s(srb)}, 2\ns_add_u32 {s(stmp)}, {s(stmp)}, {s(stmp2)}\ns_add_u32 {s(stmp)}, {s(stmp)}, 72\ns_lshl_b32 {s(stmp)}, {s(stmp)}, 7")
        k(f"s_add_u32 {s(stmp2)}, {s(stmp2)}, 75\ns_lshl_b32 {s(stmp2)}, {s(stmp2)}, 7\nv_mov_b32 v8, {s(stmp)}\nv_mov_b32 v9, {s(stmp2)}\nv_mov_b32 v10, 1")
        k("s_mov_b64 s[56:57], exec\ns_mov_b64 exec, 1\nbuffer_atomic_add v10, v8, s[28:31], 0 offen sc1\nbuffer_atomic_add v10, v9, s[28:31], 0 offen sc1\ns_mov_b64 exec, s[56:57]")
        k("L_pg_g2:")
    if fused: return
    k("L_g1_end:\ns_endpgm")
    return k, (256, 256, 4*US)


def gen_pg(**kw):
    import k_p3
    k = Kern("pg_kernel", vgprs=248, agprs=256)
    k("s_cmp_ge_u32 s2, 256\ns_cbranch_scc1 L_pg_end")
    k(f"s_load_dwordx2 s[4:5], s[0:1], {KA['ws']}")
    k("v_lshrrev_b32 v14, 6, v0\nv_and_b32 v0, 63, v0\nv_readfirstlane_b32 s32, v14")
    k_p3.gen_p3(k=k)
    gen_g1(k=k, **kw)
    k("L_pg_end:\ns_endpgm")
    return k, (256, 256, 4*19*2048)


def gen_pgg(wt_upto=8, **kw):
    import k_p3, k_g2d
    k = Kern("pg_kernel", vgprs=248, agprs=256)
    k("s_cmp_ge_u32 s2, 256\ns_cbranch_scc1 L_pg_end")
    k(f"s_load_dwordx2 s[4:5], s[0:1], {KA['ws']}")
    k("v_lshrrev_b32 v14, 6, v0\nv_and_b32 v0, 63, v0\nv_readfirstlane_b32 s32, v14")
    k_p3.gen_p3(k=k)
    gen_g1(k=k, wt_upto=8, signal=True, w2pf=False, prefetch=[("L_pg_g2", 7, "pg_kernel_codeend")], **kw)
    k_g2d.gen_g2(k=k)
    k("L_pg_end:\ns_endpgm")
    return k, (256, 256, 4*19*2048)
```

```python
from asmgen import *
from layout import *
from k_g1 import srd, spread

D = [[0, 1], [2, 3], [4, 5], [6, 7, 8]]

def gen_g2(stamps=False, PB=5, SIG=26, NPUB=8, TAKE=11, touch=False, dbg='', PAD=0, three=False, outpol='', k=None):
    SL = 36864; NSL = 4
    RS2 = 36*1024 + (128*PAD if PAD else 0)
    fused = k is not None
    if not fused: k = Kern("g2a_kernel", vgprs=232, agprs=256)
    ldpol = " sc1" if fused else ""
    sWS = 4
    rW2, rHH, rP2, rCNT, rX1, rMOD, rOUT = 12, 16, 24, 28, 44, 48, 52
    sw, srb, scs, skq, saF, sb0, sb1, stmp, stmp2, saS, sgrp, sbase = range(32, 44)
    sspin, stile, sdt0, sldw = 56, 57, 58, 59
    vl16, vS, vcn = 1, 2, 6
    XV = 8
    ACC = 40
    AF = 112
    PK = 168
    XR = 200; GB = 212
    T0 = 224
    acc = lambda t, dt: ACC + (t*9+dt)*4
    def xr(t, st):
        i = (st*2 + t)*4
        return a(i, 4) if i < 256 else v(XV + i - 256, 4)
    if not fused:
        k("s_cmp_ge_u32 s2, 256\ns_cbranch_scc1 L_g2a_end")
        k(f"s_load_dwordx2 {s(sWS,2)}, s[0:1], {KA['ws']}\ns_load_dwordx2 s[6:7], s[0:1], {KA['out']}")
        if stamps: k("s_memtime s[60:61]\ns_memrealtime s[62:63]")
        k(f"v_lshrrev_b32 v8, 6, v0\nv_and_b32 v0, 63, v0\nv_readfirstlane_b32 {s(sw)}, v8")
    else:
        k(f"s_load_dwordx2 s[6:7], s[0:1], {KA['out']}")
    k(f"v_lshlrev_b32 {v(vl16)}, 4, v0")
    for i in range(NSL): k(f"v_add_u32 {v(vS+i)}, {i*SL}, {v(vl16)}")
    k(f"s_lshr_b32 {s(skq)}, s2, 1\ns_and_b32 {s(skq)}, {s(skq)}, 3\ns_and_b32 {s(stmp)}, s2, 1\ns_lshl_b32 {s(srb)}, {s(stmp)}, 3")
    k(f"s_lshr_b32 {s(stmp)}, s2, 3\ns_and_b32 {s(stmp2)}, {s(stmp)}, 7\ns_add_u32 {s(srb)}, {s(srb)}, {s(stmp2)}\ns_lshr_b32 {s(scs)}, {s(stmp)}, 3")
    k(f"s_lshl_b32 {s(stile)}, {s(srb)}, 3\ns_lshl_b32 {s(stmp2)}, {s(sw)}, 1\ns_add_u32 {s(stile)}, {s(stile)}, {s(stmp2)}")
    k(f"s_mul_i32 {s(sb0)}, {s(stile)}, {144*1024}\ns_mul_i32 {s(stmp2)}, {s(skq)}, {36*1024}\ns_add_u32 {s(sb0)}, {s(sb0)}, {s(stmp2)}\ns_add_u32 {s(sb1)}, {s(sb0)}, {144*1024}")
    k(f"s_mul_i32 {s(saF)}, {s(skq)}, {36*RS2}\ns_mul_i32 {s(stmp2)}, {s(scs)}, {9*1024}\ns_add_u32 {s(saF)}, {s(saF)}, {s(stmp2)}")
    k(f"s_mul_i32 {s(stmp)}, {s(sw)}, {RS2}\ns_mul_i32 {s(stmp2)}, {s(stmp)}, 3\ns_add_u32 {s(saS)}, {s(saF)}, {s(stmp2)}\ns_add_u32 {s(saF)}, {s(saF)}, {s(stmp)}")
    k(f"s_lshl_b32 {s(sgrp)}, {s(srb)}, 2\ns_add_u32 {s(sgrp)}, {s(sgrp)}, {s(scs)}")
    k(f"s_mul_i32 {s(sdt0)}, {s(scs)}, 9\ns_lshl_b32 {s(stmp)}, {s(skq)}, 1\ns_add_u32 {s(sdt0)}, {s(sdt0)}, {s(stmp)}")
    k(f"s_lshl_b32 {s(stmp)}, {s(sgrp)}, 7\nv_mov_b32 {v(vcn)}, {s(stmp)}")
    k("s_waitcnt lgkmcnt(0)")
    srd(k, rW2, sWS, WS["W2F"], WS["W2F_SZ"]); srd(k, rHH, sWS, WS["HHF"], WS["HHF_SZ"])
    srd(k, rP2, sWS, WS["PART2"], WS["PART2_SZ"]); srd(k, rCNT, sWS, WS["CNT"], WS["CNT_SZ"]); srd(k, rX1, sWS, WS["X1F"], WS["X1F_SZ"])
    srd(k, rMOD, sWS, WS["MOD"], WS["MOD_SZ"]); srd(k, rOUT, 6, 0, 2048*1152)
    for o in range(3): k(f"s_cmp_eq_u32 {s(skq)}, {o}\ns_cbranch_scc1 L_g2_v{o}")
    k("s_branch L_g2_v3")

    def variant(o):
        dS = D[o]; nS = len(dS)
        owners = [x for x in range(4) if x != o]
        o1, o2, o3 = (o+1) & 3, (o+2) & 3, (o+3) & 3
        phases = [('F', D[o1] + D[o2], 4), ('G', D[o3], 12), ('S', dS, 12)] if three else [('F', D[o1] + D[o2] + D[o3], 4), ('S', dS, 12)]
        chunks = []
        steps = []
        for pi, (nm, dts, cs_) in enumerate(phases):
            for st in range(36):
                if st % cs_ == 0: chunks.append((pi, st))
                steps.append((pi, st, len(chunks)-1, st % cs_))
        NC = len(chunks); N = len(steps)
        vm = []; q = []
        def emit(op):
            if isinstance(op, tuple): k(op[0]); vm.append(op[1])
            else: k(op)
        def wait(*tags):
            idx = [i for i, t in enumerate(vm) if t in tags]
            k(f"s_waitcnt vmcnt({min(63, len(vm) - 1 - max(idx))})")
        def flush(tag):
            while any(isinstance(x, tuple) and x[1] == tag for x in q): emit(q.pop(0))
        def runs(lst):
            out = []; cur = [lst[0]]
            for x in lst[1:]:
                if x == cur[-1] + 1 and len(cur) < 4: cur.append(x)
                else: out.append(cur); cur = [x]
            out.append(cur); return out
        def wdma(c):
            ops = []; slot = (c % NSL)*SL
            pi, st0 = chunks[c]; nm, dts, cs_ = phases[pi]; n = len(dts)
            if cs_ == 4:
                p = 0
                for run in runs(dts):
                    for i, dt in enumerate(run):
                        hd = ""
                        if i == 0: hd = f"s_mul_i32 {s(stmp)}, {s(sw)}, {n*1024}\ns_add_u32 m0, {s(stmp)}, {slot + p*1024}\ns_add_u32 {s(stmp2)}, {s(saF)}, {st0*RS2 + dt*1024}\n"
                        ops.append((hd + f"buffer_load_dwordx4 {v(vl16)}, {s(rW2,4)}, {s(stmp2)} offen offset:{i*1024} lds", ('W', c)))
                    p += len(run)
            else:
                for ls in range(3):
                    for i, dt in enumerate(dts):
                        hd = ""
                        if i == 0: hd = f"s_mul_i32 {s(stmp)}, {s(sw)}, {3*n*1024}\ns_add_u32 m0, {s(stmp)}, {slot + ls*n*1024}\ns_add_u32 {s(stmp2)}, {s(saS)}, {(st0 + ls)*RS2 + dt*1024}\n"
                        ops.append((hd + f"buffer_load_dwordx4 {v(vl16)}, {s(rW2,4)}, {s(stmp2)} offen offset:{i*1024} lds", ('W', c)))
            return ops
        def bload(st):
            return [(f"buffer_load_dwordx4 {xr(0,st)}, {v(vl16)}, {s(rHH,4)}, {s(sb0)} offen{ldpol}", ('B', st)),
                    (f"buffer_load_dwordx4 {xr(1,st)}, {v(vl16)}, {s(rHH,4)}, {s(sb1)} offen{ldpol}\ns_add_u32 {s(sb0)}, {s(sb0)}, 1024\ns_add_u32 {s(sb1)}, {s(sb1)}, 1024", ('B', st))]
        def abuf(i):
            return AF + ((i % 2)*28 if steps[i][0] == 0 else (i % 4)*12)
        def areads(i):
            pi, st, c, ls = steps[i]; dts = phases[pi][1]; n = len(dts)
            return [f"ds_read_b128 {v(abuf(i) + 4*j, 4)}, {v(vS + c % NSL)} offset:{(ls*n + j)*1024}" for j in range(n)]
        pkbase = {}; r = PK
        for x in owners:
            pkbase[x] = r; r += 4*(3 if len(D[x]) == 3 else 2)
        def pk(t, dt):
            x = [y for y in range(4) if dt in D[y]][0]; jj = D[x].index(dt)
            return pkbase[x] + (4*t + 2*jj if jj < 2 else 8 + 2*t)
        def publish_ops(xs):
            ops = []
            for x in xs:
                for t in range(2):
                    for dt in D[x]:
                        rr = acc(t, dt)
                        ops.append(f"v_cvt_pk_bf16_f32 {v(pk(t,dt))}, {v(rr)}, {v(rr+1)}"); ops.append(f"v_cvt_pk_bf16_f32 {v(pk(t,dt)+1)}, {v(rr+2)}, {v(rr+3)}")
                hd = (f"s_lshl_b32 {s(sbase)}, {s(sgrp)}, 2\ns_add_u32 {s(sbase)}, {s(sbase)}, {x}\ns_lshl_b32 {s(sbase)}, {s(sbase)}, 2\ns_add_u32 {s(sbase)}, {s(sbase)}, {o}\n"
                      f"s_lshl_b32 {s(sbase)}, {s(sbase)}, 2\ns_add_u32 {s(sbase)}, {s(sbase)}, {s(sw)}\ns_mul_i32 {s(sbase)}, {s(sbase)}, 3072\n")
                for c4 in range(3 if len(D[x]) == 3 else 2):
                    ops.append(((hd if c4 == 0 else "") + f"buffer_store_dwordx4 {v(pkbase[x] + 4*c4, 4)}, {v(vl16)}, {s(rP2,4)}, {s(sbase)} offen offset:{c4*1024} sc1", ('P',)))
            return ops
        def operand_ops():
            ops = [f"v_lshrrev_b32 {v(T0)}, 4, v0", f"v_lshlrev_b32 {v(T0)}, 4, {v(T0)}"]
            for j in range(nS):
                hd = (f"s_add_u32 {s(stmp)}, {s(sdt0)}, {j}\ns_and_b32 {s(stmp2)}, {s(stmp)}, 1\ns_lshl_b32 {s(stmp2)}, {s(stmp2)}, 3\ns_lshr_b32 {s(stmp)}, {s(stmp)}, 1\ns_lshl_b32 {s(stmp)}, {s(stmp)}, 10\n"
                      f"s_add_u32 {s(stmp)}, {s(stmp)}, {s(stmp2)}\ns_mul_i32 {s(stmp2)}, {s(stile)}, {18*1024}\ns_add_u32 {s(stmp)}, {s(stmp)}, {s(stmp2)}\n")
                ops.append((hd + f"buffer_load_dwordx2 {v(XR+4*j,2)}, {v(vl16)}, {s(rX1,4)}, {s(stmp)} offen{ldpol}\ns_add_u32 {s(stmp)}, {s(stmp)}, {18*1024}", ('X',)))
                ops.append((f"buffer_load_dwordx2 {v(XR+4*j+2,2)}, {v(vl16)}, {s(rX1,4)}, {s(stmp)} offen{ldpol}", ('X',)))
                ops.append((f"s_add_u32 {s(stmp)}, {s(sdt0)}, {j}\ns_lshl_b32 {s(stmp)}, {s(stmp)}, 6\ns_add_u32 {s(stmp)}, {s(stmp)}, {5*576*4}\nbuffer_load_dwordx4 {v(GB+4*j,4)}, {v(T0)}, {s(rMOD,4)}, {s(stmp)} offen", ('X',)))
            return ops
        k(f"L_g2_v{o}:")
        if fused:
            for c_ in range(3):
                for x in wdma(c_): emit(x)
            k(f"s_cmp_eq_u32 {s(sw)}, 0\ns_cbranch_scc0 L_g2_hh{o}")
            k(f"s_lshr_b32 {s(stmp)}, {s(srb)}, 1\ns_lshl_b32 {s(stmp)}, {s(stmp)}, 2\ns_add_u32 {s(stmp)}, {s(stmp)}, {72 + o}\ns_lshl_b32 {s(stmp)}, {s(stmp)}, 7\nv_mov_b32 {v(T0+2)}, {s(stmp)}")
            k(f"s_mov_b32 {s(sspin)}, 0\ns_mov_b64 s[76:77], exec\ns_mov_b64 exec, 1")
            k(f"L_g2_hhpoll{o}:")
            k(f"buffer_load_dword {v(T0+1)}, {v(T0+2)}, {s(rCNT,4)}, 0 offen sc1\ns_waitcnt vmcnt(0)\nv_readfirstlane_b32 {s(stmp)}, {v(T0+1)}")
            k(f"s_cmp_ge_u32 {s(stmp)}, {9 if o < 3 else 37}\ns_cbranch_scc1 L_g2_hh0_{o}")
            k(f"s_add_u32 {s(sspin)}, {s(sspin)}, 1\ns_cmp_lt_u32 {s(sspin)}, 0x100000\ns_cbranch_scc0 L_g2_hh0_{o}")
            k(f"s_sleep 2\ns_branch L_g2_hhpoll{o}")
            k(f"L_g2_hh0_{o}:")
            k("s_mov_b64 exec, s[76:77]")
            k(f"L_g2_hh{o}:")
            k("s_barrier")
            for st in range(2):
                for x in bload(st): emit(x)
            q += [x for st in range(2, PB) for x in bload(st)] + wdma(3)
        else:
            for x in wdma(0): emit(x)
            for st in range(2):
                for x in bload(st): emit(x)
            q += wdma(1) + [x for st in range(2, PB) for x in bload(st)] + wdma(2) + wdma(3)
        nxt_dma = 4
        wait(('W', 0)); k("s_barrier")
        for x in areads(0): k(x)
        if stamps: k("s_memtime s[64:65]")
        pub = []
        lastp = len(phases) - 1
        issued = 1
        synced_chunk = 0
        lq = [len(phases[0][1])]
        for i in range(N):
            pi, st, c, ls = steps[i]; nm, dts, cs_ = phases[pi]
            dist = 1 if pi == 0 else 3
            target = min(N - 1, i + dist)
            newc = steps[target][2]
            need_sync = newc > synced_chunk
            if need_sync:
                lim = max(j for j in range(N) if steps[j][2] == synced_chunk)
                while issued <= lim:
                    for x in areads(issued): k(x)
                    lq.append(len(phases[steps[issued][0]][1])); issued += 1
                k("s_waitcnt lgkmcnt(0)"); lq = [0]*len(lq)
                cb = synced_chunk
                flush(('W', cb+1)); wait(('W', cb+1)); k("s_barrier")
                synced_chunk = cb + 1
                while nxt_dma < NC and nxt_dma <= cb + NSL and (chunks[nxt_dma][0] == 0 or nxt_dma <= cb + 2):
                    q += wdma(nxt_dma); nxt_dma += 1
            else:
                rest = sum(lq[1:])
                k(f"s_waitcnt lgkmcnt({min(rest, 15)})")
            lq.pop(0)
            if pi == 0:
                flush(('B', st)); wait(('B', st))
                if st + PB < 36: q += bload(st + PB)
            if pi >= 1 and st == 0:
                if stamps and pi == 1: k("s_memtime s[66:67]")
                if three: pub += publish_ops([o1, o2] if pi == 1 else [o3])
                else: pub += publish_ops([o1, o2, o3])
                if pi == lastp: q += operand_ops()
            if pi == lastp and st == SIG:
                while pub: emit(pub.pop(0))
                wait(('P',)); k("s_barrier")
                k(f"s_cmp_eq_u32 {s(sw)}, 0\ns_cbranch_scc0 L_g2_nosig{o}")
                k(f"v_mov_b32 {v(T0+1)}, 1\ns_mov_b64 s[76:77], exec\ns_mov_b64 exec, 1\nbuffer_atomic_add {v(T0+1)}, {v(vcn)}, {s(rCNT,4)}, 0 offen sc1\ns_mov_b64 exec, s[76:77]")
                k(f"L_g2_nosig{o}:")
                k("s_nop 0")
            rd = []
            while issued <= target and steps[issued][2] <= synced_chunk:
                rd += areads(issued); lq.append(len(phases[steps[issued][0]][1])); issued += 1
            nm_ = 2*len(dts)
            take = q[:(TAKE if pi == 0 else 3)]; del q[:len(take)]
            fill = rd + take
            if pi >= 1 and st >= 1 and pub:
                fill = pub[:NPUB] + fill; del pub[:NPUB]
            slots = spread(fill, nm_)
            j = 0
            for jd, dt in enumerate(dts):
                for t in range(2):
                    cc = "0" if st == 0 else v(acc(t,dt),4)
                    k(f"v_mfma_f32_16x16x32_bf16 {v(abuf(i)*0 + acc(t,dt),4)}, {v(abuf(i) + 4*jd, 4)}, {xr(t,st)}, {cc}")
                    for x in slots[j]: emit(x)
                    j += 1
        assert nxt_dma == NC
        while q: emit(q.pop(0))
        for j, src in enumerate(owners):
            k(f"s_lshl_b32 s{84+j}, {s(sgrp)}, 2\ns_add_u32 s{84+j}, s{84+j}, {o}\ns_lshl_b32 s{84+j}, s{84+j}, 2\ns_add_u32 s{84+j}, s{84+j}, {src}\ns_lshl_b32 s{84+j}, s{84+j}, 2\ns_add_u32 s{84+j}, s{84+j}, {s(sw)}\ns_mul_i32 s{84+j}, s{84+j}, 3072")
        k(f"s_mul_i32 {s(stmp2)}, {s(sw)}, 3584\nv_and_b32 v2, 15, v0\nv_mul_u32_u24 v2, 112, v2\nv_lshrrev_b32 v3, 4, v0\nv_lshlrev_b32 v3, 3, v3\nv_add_u32 v2, v2, v3\nv_add_u32 v2, {s(stmp2)}, v2")
        if stamps: k("s_memtime s[78:79]")
        k(f"s_cmp_eq_u32 {s(sw)}, 0\ns_cbranch_scc0 L_g2_met{o}")
        k(f"s_mov_b32 {s(sspin)}, 0\ns_mov_b64 s[76:77], exec\ns_mov_b64 exec, 1")
        k(f"L_g2_poll{o}:")
        k(f"buffer_load_dword {v(T0+1)}, {v(vcn)}, {s(rCNT,4)}, 0 offen sc1\ns_waitcnt vmcnt(0)\nv_readfirstlane_b32 {s(stmp)}, {v(T0+1)}")
        k(f"s_cmp_ge_u32 {s(stmp)}, 4\ns_cbranch_scc1 L_g2_met0_{o}")
        k(f"s_add_u32 {s(sspin)}, {s(sspin)}, 1\ns_cmp_lt_u32 {s(sspin)}, 0x100000\ns_cbranch_scc0 L_g2_met0_{o}")
        k(f"s_sleep 2\ns_branch L_g2_poll{o}")
        k(f"L_g2_met0_{o}:")
        k("s_mov_b64 exec, s[76:77]")
        k(f"L_g2_met{o}:")
        k("s_barrier")
        if stamps: k("s_memtime s[80:81]")
        FG = AF
        nch = 3 if nS == 3 else 2
        for j, src in enumerate(owners):
            for c4 in range(nch): k(f"buffer_load_dwordx4 {v(FG+j*12+c4*4,4)}, {v(vl16)}, {s(rP2,4)}, s{84+j} offen offset:{c4*1024} sc1")
        k(f"s_mul_i32 {s(stmp)}, {s(sw)}, 3584")
        k("s_waitcnt vmcnt(0)")
        if stamps: k("s_memtime s[82:83]")
        for t in range(2):
            for jj, dt in enumerate(dS):
                r_ = acc(t,dt)
                c4, h = (t, jj) if jj < 2 else (2, t)
                for j in range(3):
                    f = FG + j*12 + c4*4 + 2*h
                    k(f"v_lshlrev_b32 v4, 16, {v(f)}\nv_and_b32 v5, 0xffff0000, {v(f)}\nv_add_f32 {v(r_)}, {v(r_)}, v4\nv_add_f32 {v(r_+1)}, {v(r_+1)}, v5")
                    k(f"v_lshlrev_b32 v4, 16, {v(f+1)}\nv_and_b32 v5, 0xffff0000, {v(f+1)}\nv_add_f32 {v(r_+2)}, {v(r_+2)}, v4\nv_add_f32 {v(r_+3)}, {v(r_+3)}, v5")
                x = XR + 4*jj + 2*t; g = GB + 4*jj
                k(f"v_lshlrev_b32 v4, 16, {v(x)}\nv_and_b32 v5, 0xffff0000, {v(x)}\nv_fma_f32 {v(r_)}, {v(g)}, {v(r_)}, v4\nv_fma_f32 {v(r_+1)}, {v(g+1)}, {v(r_+1)}, v5")
                k(f"v_lshlrev_b32 v4, 16, {v(x+1)}\nv_and_b32 v5, 0xffff0000, {v(x+1)}\nv_fma_f32 {v(r_+2)}, {v(g+2)}, {v(r_+2)}, v4\nv_fma_f32 {v(r_+3)}, {v(g+3)}, {v(r_+3)}, v5")
                k(f"v_cvt_pk_bf16_f32 {v(r_)}, {v(r_)}, {v(r_+1)}\nv_cvt_pk_bf16_f32 {v(r_+1)}, {v(r_+2)}, {v(r_+3)}")
                k(f"ds_write_b64 v2, {v(r_,2)} offset:{t*16*112 + jj*32}")
        upr = 2*nS; nins = (32*upr)//64
        k(f"s_lshl_b32 {s(stmp2)}, {s(stile)}, 4\ns_mul_i32 {s(stmp2)}, {s(stmp2)}, 1152\ns_lshl_b32 {s(sbase)}, {s(sdt0)}, 5\ns_add_u32 {s(stmp2)}, {s(stmp2)}, {s(sbase)}")
        k("s_waitcnt lgkmcnt(0)")
        for e in range(nins):
            magic = 16384 if upr == 4 else 10923
            k(f"v_add_u32 v3, {64*e}, v0\nv_mul_u32_u24 v4, {magic}, v3\nv_lshrrev_b32 v4, 16, v4\nv_mul_u32_u24 v5, {upr}, v4\nv_sub_u32 v3, v3, v5\nv_lshlrev_b32 v3, 4, v3")
            k(f"v_mul_u32_u24 v5, 112, v4\nv_add_u32 v5, v5, v3\nv_add_u32 v5, {s(stmp)}, v5\nds_read_b128 {v(PK+4*e,4)}, v5")
            k(f"v_mul_u32_u24 v4, 1152, v4\nv_add_u32 {v(T0+2+e)}, v4, v3")
        k("s_waitcnt lgkmcnt(0)")
        for e in range(nins): k(f"buffer_store_dwordx4 {v(PK+4*e,4)}, {v(T0+2+e)}, {s(rOUT,4)}, {s(stmp2)} offen" + outpol)
        k("s_branch L_g2a_done")
    for o in range(4): variant(o)
    k("L_g2a_done:")
    if fused: return
    if stamps:
        k("s_waitcnt vmcnt(0)\ns_memtime s[68:69]\ns_memrealtime s[70:71]\ns_waitcnt lgkmcnt(0)")
        srd(k, 24, sWS, WS["AUX"], WS["AUX_SZ"])
        k(f"s_lshl_b32 {s(stmp)}, s2, 3\ns_add_u32 {s(stmp)}, {s(stmp)}, {s(sw)}\ns_lshl_b32 {s(stmp)}, {s(stmp)}, 6\nv_mov_b32 v9, {s(stmp)}")
        for i, (x, y) in enumerate(((64,60),(66,60),(68,60),(70,62))):
            k(f"s_sub_u32 s72, s{x}, s{y}\nv_mov_b32 v8, s72\nbuffer_store_dword v8, v9, s[24:27], 0 offen offset:{4*i}")
        k(f"v_mov_b32 v8, s62\nbuffer_store_dword v8, v9, s[24:27], 0 offen offset:16")
        for i, x in enumerate((78, 80, 82)):
            k(f"s_sub_u32 s72, s{x}, s60\nv_mov_b32 v8, s72\nbuffer_store_dword v8, v9, s[24:27], 0 offen offset:{20+4*i}")
    k("L_g2a_end:\ns_endpgm")
    return k, (256, 256, NSL*SL)
```

```python
from asmgen import *
from layout import *
from k_g1 import srd, spread

NCRIT = 18

def mod_role(k, sWS):
    sC, sW, sD = 6, 8, 10
    rW, rC, rMOD, rDBG = 12, 16, 20, 24
    stmp, spart, sj = 32, 33, 34
    k("L_k01_mod:")
    k(f"s_sub_u32 {s(sj)}, s2, 192")
    k(f"s_load_dwordx2 {s(sC,2)}, s[0:1], {KA['c']}\ns_load_dwordx2 {s(sW,2)}, s[0:1], {KA['wmod']}\ns_load_dwordx2 {s(sD,2)}, s[0:1], {KA['dbg']}")
    k("v_and_b32 v1, 7, v0\nv_lshrrev_b32 v2, 3, v0")
    k("v_mul_u32_u24 v3, 6912, v2\nv_lshlrev_b32 v4, 4, v1\nv_add_u32 v3, v3, v4")
    k(f"s_lshl_b32 {s(stmp)}, {s(sj)}, 7\nv_add_u32 v3, {s(stmp)}, v3")
    k("v_lshlrev_b32 v4, 1, v2")
    k("s_waitcnt lgkmcnt(0)")
    srd(k, rW, sW, 0, 576*6912); srd(k, rC, sC, 0, 1152); srd(k, rMOD, sWS, WS["MOD"], WS["MOD_SZ"]); srd(k, rDBG, sD, 0, 256)
    C = 8; W = 28
    for i in range(18): k(f"buffer_load_ushort {v(C+i)}, v4, {s(rC,4)}, 0 offen offset:{64*i}")
    for i in range(18): k(f"s_mov_b32 {s(stmp)}, {i*32*6912}\nbuffer_load_dwordx4 {v(W+4*i,4)}, v3, {s(rW,4)}, {s(stmp)} offen")
    k("s_waitcnt vmcnt(18)")
    T = 100
    for i in range(18): k(f"v_lshlrev_b32 {v(C+i)}, 16, {v(C+i)}")
    for b in range(0, 18, 6):
        es = range(b, b+6)
        for i in es: k(f"v_mul_f32 {v(T+i-b)}, 0xbfb8aa3b, {v(C+i)}")
        for i in es: k(f"v_exp_f32 {v(T+i-b)}, {v(T+i-b)}")
        for i in es: k(f"v_add_f32 {v(T+i-b)}, 1.0, {v(T+i-b)}")
        for i in es: k(f"v_rcp_f32 {v(T+i-b)}, {v(T+i-b)}")
        for i in es: k(f"v_mul_f32 {v(C+i)}, {v(C+i)}, {v(T+i-b)}")
        for i in es: k(f"v_cvt_pk_bf16_f32 {v(C+i)}, {v(C+i)}, {v(C+i)}")
        for i in es: k(f"v_lshlrev_b32 {v(C+i)}, 16, {v(C+i)}")
    A = 108
    for e in range(8): k(f"v_mov_b32 {v(A+e)}, 0")
    for i in range(18):
        k(f"s_waitcnt vmcnt({17-i})")
        for j in range(4):
            k(f"v_lshlrev_b32 {v(T+2*(j%2))}, 16, {v(W+4*i+j)}\nv_and_b32 {v(T+2*(j%2)+1)}, 0xffff0000, {v(W+4*i+j)}")
            k(f"v_fmac_f32 {v(A+2*j)}, {v(T+2*(j%2))}, {v(C+i)}\nv_fmac_f32 {v(A+2*j+1)}, {v(T+2*(j%2)+1)}, {v(C+i)}")
    k("v_lshlrev_b32 v5, 8, v2\nv_lshlrev_b32 v6, 5, v1\nv_add_u32 v5, v5, v6")
    k(f"ds_write_b128 v5, {v(A,4)}\nds_write_b128 v5, {v(A+4,4)} offset:16")
    k("s_waitcnt lgkmcnt(0)\ns_barrier")
    k("v_cmp_gt_u32 vcc, 64, v0\ns_and_saveexec_b64 s[40:41], vcc\ns_cbranch_execz L_k01_end")
    k("v_lshlrev_b32 v5, 2, v0")
    for r in range(32): k(f"ds_read_b32 {v(W+r)}, v5 offset:{r*256}")
    k("s_waitcnt lgkmcnt(0)")
    for st in (16, 8, 4, 2, 1):
        for r in range(st): k(f"v_add_f32 {v(W+r)}, {v(W+r)}, {v(W+r+st)}")
    k(f"v_cvt_pk_bf16_f32 {v(W)}, {v(W)}, {v(W)}\nv_lshlrev_b32 {v(W)}, 16, {v(W)}")
    k(f"s_mul_i32 {s(spart)}, {s(sj)}, 7282\ns_lshr_b32 {s(spart)}, {s(spart)}, 16")
    k(f"s_cmp_eq_u32 {s(spart)}, 1\ns_cbranch_scc1 L_k01_madd\ns_cmp_eq_u32 {s(spart)}, 4\ns_cbranch_scc0 L_k01_mst")
    k("L_k01_madd:")
    k(f"v_add_f32 {v(W)}, 1.0, {v(W)}\nv_cvt_pk_bf16_f32 {v(W)}, {v(W)}, {v(W)}\nv_lshlrev_b32 {v(W)}, 16, {v(W)}")
    k("L_k01_mst:")
    k(f"s_lshl_b32 {s(stmp)}, {s(sj)}, 8\nbuffer_store_dword {v(W)}, v5, {s(rMOD,4)}, {s(stmp)} offen sc1")
    k(f"s_cmp_lt_u32 {s(sj)}, {NCRIT}\ns_cbranch_scc0 L_k01_end")
    k("s_waitcnt vmcnt(0)")
    k("v_mov_b32 v6, 0\nv_mov_b32 v7, 1\ns_mov_b64 exec, 1")
    k(f"buffer_atomic_add v7, v6, {s(rDBG,4)}, 0 offen sc1")
    k("s_branch L_k01_end")

def gen_k01(stamps=False, touch=True, prefetch=True):
    k = Kern("k01_kernel", vgprs=256, agprs=84)
    SLOT = 9216; NSL = 16; MODL = NSL*SLOT
    sWS, sX, sW, sD = 4, 6, 8, 10
    rW, rX, rMOD, rQM, rQR, rKV, rDBG = 12, 16, 20, 24, 28, 44, 48
    sw, srb, scs, stmp, stmp2, ssrc, sqt, sh0, skind, sspin = range(32, 42)
    vl16 = 1
    vAb = [2, 3, 4]; vA2b = [5, 6, 7]; vM = 8
    vPk = [1, 9, 10]
    X = 16; ACC = 160; GS = 232; T = 248
    PAT = ACC
    xr = lambda t, ks: X + (t*18+ks)*4
    acc = lambda u, t: ACC + (u*2+t)*4
    k("s_cmp_ge_u32 s2, 254\ns_cbranch_scc1 L_k01_end")
    if prefetch:
        k("s_cmp_ge_u32 s2, 246\ns_cbranch_scc0 L_k01_main")
        k("v_cmp_gt_u32 vcc, 64, v0\ns_and_saveexec_b64 s[40:41], vcc\ns_cbranch_execz L_k01_end")
        touch_code(k, "L_k01_main", 5, end="k01_kernel_codeend")
        touch_code(k, "att_kernel", 3, vt=6)
        k("s_cmp_eq_u32 s2, 246\ns_cbranch_scc0 L_k01_end")
        k(f"s_load_dwordx2 s[4:5], s[0:1], {KA['ws']}\ns_waitcnt lgkmcnt(0)")
        srd(k, 12, 4, WS["CNT"], WS["CNT_SZ"])
        k("v_lshlrev_b32 v20, 7, v0\nv_mov_b32 v21, 0\nbuffer_store_dword v21, v20, s[12:15], 0 offen\ns_mov_b32 s16, 8192\nbuffer_store_dword v21, v20, s[12:15], s16 offen")
        k("s_branch L_k01_end")
        k("L_k01_main:")
    else:
        k("s_cmp_ge_u32 s2, 246\ns_cbranch_scc1 L_k01_end")
    k(f"s_load_dwordx2 {s(sWS,2)}, s[0:1], {KA['ws']}")
    k("s_cmp_ge_u32 s2, 192\ns_cbranch_scc1 L_k01_mod")
    k(f"s_load_dwordx2 {s(sX,2)}, s[0:1], {KA['x']}\ns_load_dwordx2 {s(sW,2)}, s[0:1], {KA['wqkv']}\ns_load_dwordx2 {s(sD,2)}, s[0:1], {KA['dbg']}")
    if stamps: k("s_memtime s[60:61]\ns_memrealtime s[62:63]")
    k(f"v_lshrrev_b32 v14, 6, v0\nv_and_b32 v0, 63, v0\nv_readfirstlane_b32 {s(sw)}, v14")
    k(f"v_lshlrev_b32 {v(vl16)}, 4, v0")
    k(f"s_and_b32 {s(stmp)}, s2, 3\ns_lshl_b32 {s(srb)}, {s(stmp)}, 2\ns_lshr_b32 {s(stmp)}, s2, 3\ns_and_b32 {s(stmp2)}, {s(stmp)}, 3\ns_add_u32 {s(srb)}, {s(srb)}, {s(stmp2)}")
    k(f"s_lshr_b32 {s(scs)}, {s(stmp)}, 2\ns_bfe_u32 {s(stmp)}, s2, 0x10002\ns_mul_i32 {s(stmp)}, {s(stmp)}, 6\ns_add_u32 {s(scs)}, {s(scs)}, {s(stmp)}")
    k(f"s_lshl_b32 {s(sqt)}, {s(srb)}, 2\ns_add_u32 {s(sqt)}, {s(sqt)}, {s(sw)}")
    SXW = 36864
    k("s_waitcnt lgkmcnt(0)")
    srd(k, rX, sX, 0, 2048*1152); srd(k, rW, sW, 0, 576*3456)
    if stamps: k("s_memtime s[76:77]")
    vm = []
    def wait(*tags):
        idx = [i for i, t in enumerate(vm) if t in tags]
        k(f"s_waitcnt vmcnt({min(63, len(vm) - 1 - max(idx))})")
    if touch:
        k(f"s_mul_i32 {s(stmp)}, {s(scs)}, 43691\ns_lshr_b32 {s(stmp)}, {s(stmp)}, 18\ns_mul_i32 {s(stmp)}, {s(stmp)}, 6\ns_sub_u32 {s(stmp)}, {s(scs)}, {s(stmp)}")
        k(f"s_lshl_b32 {s(stmp)}, {s(stmp)}, 2\ns_add_u32 {s(stmp)}, {s(stmp)}, {s(sw)}\ns_mul_i32 {s(stmp)}, {s(stmp)}, {48*128}\ns_mul_i32 {s(stmp2)}, {s(srb)}, {128*1152}\ns_add_u32 {s(stmp)}, {s(stmp)}, {s(stmp2)}")
        k(f"v_lshlrev_b32 v12, 7, v0\nbuffer_load_dword a82, v12, {s(rX,4)}, {s(stmp)} offen"); vm.append(('t',))
    if touch: k(f"s_and_b32 {s(stmp)}, {s(srb)}, 3\ns_lshl_b32 {s(stmp)}, {s(stmp)}, 2\ns_add_u32 {s(stmp)}, {s(stmp)}, {s(sw)}\ns_mul_i32 {s(stmp)}, {s(stmp)}, 36")
    if touch: k(f"v_mul_u32_u24 v12, 21846, v0\nv_lshrrev_b32 v12, 16, v12\nv_mul_u32_u24 v13, 3, v12\nv_sub_u32 v13, v0, v13\nv_lshlrev_b32 v13, 7, v13")
    if touch: k(f"v_add_u32 v12, {s(stmp)}, v12\nv_mul_u32_u24 v12, 3456, v12\nv_add_u32 v12, v12, v13\ns_mul_i32 {s(stmp)}, {s(scs)}, 288\ns_and_b32 {s(stmp)}, {s(stmp)}, 0xffffff80")
    if touch: k(f"buffer_load_dword a83, v12, {s(rW,4)}, {s(stmp)} offen"); vm.append(('t',))
    if touch: k(f"v_add_u32 v12, {21*3456}, v12\nbuffer_load_dword a83, v12, {s(rW,4)}, {s(stmp)} offen"); vm.append(('t',))
    k(f"s_mul_i32 {s(sh0)}, {s(sw)}, {SXW}\ns_lshl_b32 {s(ssrc)}, {s(sqt)}, 5\ns_mul_i32 {s(ssrc)}, {s(ssrc)}, 1152")
    for r in range(32):
        i = r & 15; fp = ((i >> 1) & 7) | ((i & 1) << 3)
        k(f"v_xor_b32 {v(10 + (r & 1))}, {fp << 4}, {v(vl16)}\ns_add_u32 m0, {s(sh0)}, {r*1024}\ns_add_u32 {s(stmp)}, {s(ssrc)}, {r*1152}")
        k(f"buffer_load_dwordx4 {v(10 + (r & 1))}, {s(rX,4)}, {s(stmp)} offen lds"); vm.append(('x',))
    k("v_lshrrev_b32 v13, 3, v0\nv_mul_u32_u24 v13, 1152, v13\nv_add_u32 v13, 1024, v13\nv_and_b32 v14, 7, v0\nv_lshrrev_b32 v15, 4, v0")
    for m in range(4):
        k(f"v_add_u32 v11, {4*(m & 1)}, v15\nv_xor_b32 v11, v11, v14\nv_lshlrev_b32 v11, 4, v11\nv_add_u32 v11, v11, v13")
        k(f"s_add_u32 m0, {s(sh0)}, {32768 + m*1024}\ns_add_u32 {s(stmp)}, {s(ssrc)}, {m*8*1152}")
        k(f"buffer_load_dwordx4 v11, {s(rX,4)}, {s(stmp)} offen lds"); vm.append(('x',))
    if stamps: k("s_memtime s[78:79]")
    srd(k, rMOD, sWS, WS["MOD"], WS["MOD_SZ"]); srd(k, rDBG, sD, 0, 256)
    srd(k, rQM, sWS, WS["QM"], WS["QM_SZ"]); srd(k, rQR, sWS, WS["QR"], WS["QR_SZ"]); srd(k, rKV, sWS, WS["KV"], WS["KV_SZ"])
    for i in range(9):
        k(f"v_add_u32 v13, {64*i}, v0\nv_mul_u32_u24 v14, 3641, v13\nv_lshrrev_b32 v14, 16, v14\nv_mul_u32_u24 v15, 18, v14\nv_sub_u32 v13, v13, v15")
        k(f"v_lshrrev_b32 v15, 1, v14\nv_and_b32 v15, 4, v15\nv_xor_b32 v14, v14, v15\nv_mul_u32_u24 v14, 3456, v14\nv_lshlrev_b32 v13, 4, v13\nv_add_u32 {v(PAT+i)}, v13, v14")
    k(f"s_mul_i32 {s(ssrc)}, {s(scs)}, 288\ns_mul_i32 {s(stmp)}, {s(sw)}, {32*3456}\ns_add_u32 {s(ssrc)}, {s(ssrc)}, {s(stmp)}")
    def wdma_ops(g, slotbase, from_acc=False):
        ops = []
        for i in range(9):
            pr = PAT+i; pre = ""
            if from_acc:
                pr = T + (i % 4); pre = f"v_accvgpr_read_b32 {v(pr)}, {a(72+i)}\n"
            ops.append((pre + f"s_add_u32 m0, {s(sh0)}, {slotbase + i*1024}\ns_add_u32 {s(stmp)}, {s(ssrc)}, {g*4*32*3456}\nbuffer_load_dwordx4 {v(pr)}, {s(rW,4)}, {s(stmp)} offen lds", ('w', g)))
        return ops
    def wdma(g, slotbase, from_acc=False):
        for o, tg in wdma_ops(g, slotbase, from_acc): k(o); vm.append(tg)
    def wpop():
        if wq: o, tg = wq.pop(0); k(o); vm.append(tg)
    k("v_and_b32 v13, 15, v0\nv_lshrrev_b32 v14, 1, v13\nv_and_b32 v15, 1, v13\nv_lshlrev_b32 v15, 3, v15\nv_or_b32 v15, v15, v14")
    k(f"v_lshrrev_b32 v12, 4, v0\nv_lshlrev_b32 v11, 10, v13\nv_add_u32 v11, {s(sh0)}, v11")
    RB = GS
    for l0 in range(2):
        for b in range(2):
            k(f"v_add_u32 v9, {8*l0 + 4*b}, v12\nv_xor_b32 v9, v9, v15\nv_lshlrev_b32 v9, 4, v9\nv_add_u32 {v(RB + 2*l0 + b)}, v9, v11")
    k(f"v_lshlrev_b32 v11, 7, v13\nv_add_u32 v11, {s(sh0)}, v11\nv_add_u32 v11, 32768, v11")
    for b in range(2): k(f"v_add_u32 v9, {4*b}, v12\nv_xor_b32 v9, v9, v14\nv_lshlrev_b32 v9, 4, v9\nv_add_u32 {v(RB + 4 + b)}, v9, v11")
    wait(('x',))
    if stamps: k("s_memtime s[80:81]")
    for ks in range(18):
        for t in range(2):
            if ks < 16:
                L2, l0, b = ks >> 2, (ks >> 1) & 1, ks & 1
                k(f"ds_read_b128 {v(xr(t,ks),4)}, {v(RB + 2*l0 + b)} offset:{t*16384 + 256*L2}")
            else:
                k(f"ds_read_b128 {v(xr(t,ks),4)}, {v(RB + 4 + (ks & 1))} offset:{t*2048}")
    k("s_waitcnt lgkmcnt(0)\ns_barrier")
    if stamps: k("s_memtime s[82:83]")
    k(f"s_mul_i32 {s(ssrc)}, {s(scs)}, 288\ns_mul_i32 {s(stmp)}, {s(sw)}, {32*3456}\ns_add_u32 {s(ssrc)}, {s(ssrc)}, {s(stmp)}\ns_mul_i32 {s(sh0)}, {s(sw)}, {SLOT}")
    wq = []
    for g in range(4): wq += wdma_ops(g, g*4*SLOT)
    k("v_lshrrev_b32 v13, 4, v0\nv_lshlrev_b32 v13, 3, v13\nv_bfe_u32 v14, v0, 2, 2\nv_add_u32 v13, v13, v14")
    k("v_lshrrev_b32 v14, 1, v13\nv_and_b32 v14, 4, v14\nv_xor_b32 v15, v13, v14")
    k(f"v_mul_u32_u24 v15, 288, v15\nv_and_b32 v14, 3, v0\nv_lshlrev_b32 v14, 3, v14\nv_add_u32 {v(vAb[0])}, v15, v14")
    k("v_add_u32 v13, 4, v13\nv_lshrrev_b32 v15, 1, v13\nv_and_b32 v15, 4, v15\nv_xor_b32 v15, v13, v15")
    k(f"v_mul_u32_u24 v15, 288, v15\nv_add_u32 {v(vA2b[0])}, v15, v14")
    for i in (1, 2): k(f"v_add_u32 {v(vAb[i])}, {7*i*SLOT}, {v(vAb[0])}\nv_add_u32 {v(vA2b[i])}, {7*i*SLOT}, {v(vA2b[0])}")
    k(f"v_lshrrev_b32 v13, 4, v0\nv_lshlrev_b32 v13, 5, v13\nv_add_u32 {v(vM)}, {MODL}, v13")
    M = GS
    for t in range(2): k(f"v_mov_b32 {v(M+2*t)}, 0\nv_mov_b32 {v(M+2*t+1)}, 0")
    k(f"v_mov_b32 {v(M+4)}, 0x3f803f80")
    for ks in range(18):
        for t in range(2):
            for j in range(4):
                r = xr(t,ks)+j
                k(f"v_dot2_f32_bf16 {v(M+2*t)}, {v(r)}, {v(M+4)}, {v(M+2*t)}\nv_dot2_f32_bf16 {v(M+2*t+1)}, {v(r)}, {v(r)}, {v(M+2*t+1)}")
            wpop()
    if stamps: k("s_memtime s[84:85]")
    while wq: wpop()
    for i in range(9): k(f"v_accvgpr_write_b32 {a(72+i)}, {v(PAT+i)}")
    for i in range(4):
        r = v(M+i)
        k(f"v_mov_b32 v13, {r}\nv_permlane32_swap_b32 {r}, v13\nv_add_f32 {r}, {r}, v13\nv_mov_b32 v13, {r}\nv_permlane16_swap_b32 {r}, v13\nv_add_f32 {r}, {r}, v13")
    for t in range(2):
        m, q = M+2*t, M+2*t+1
        k(f"v_mul_f32 {v(m)}, 0x3ae38e39, {v(m)}\nv_mul_f32 {v(q)}, 0x3ae38e39, {v(q)}")
        k(f"v_fma_f32 {v(q)}, -{v(m)}, {v(m)}, {v(q)}\nv_max_f32 {v(q)}, 0, {v(q)}\nv_add_f32 {v(q)}, 0x3727c5ac, {v(q)}\nv_rsq_f32 {v(q)}, {v(q)}")
        k(f"s_nop 0\nv_mul_f32 {v(m)}, {v(m)}, {v(q)}\nv_sub_f32 {v(m)}, 0, {v(m)}")
    PR = M+6
    for t in range(2):
        k(f"v_mov_b32 {v(PR+4*t)}, {v(M+2*t+1)}\nv_mov_b32 {v(PR+4*t+1)}, {v(M+2*t+1)}\nv_mov_b32 {v(PR+4*t+2)}, {v(M+2*t)}\nv_mov_b32 {v(PR+4*t+3)}, {v(M+2*t)}")
    for t in range(2):
        for ks in range(18):
            for j in range(4):
                r = xr(t,ks)+j; tt = T + 2*j
                k(f"v_lshlrev_b32 {v(tt)}, 16, {v(r)}\nv_and_b32 {v(tt+1)}, 0xffff0000, {v(r)}")
            for j in range(4):
                tt = T + 2*j
                k(f"v_pk_fma_f32 {v(tt,2)}, {v(tt,2)}, {v(PR+4*t,2)}, {v(PR+4*t+2,2)}")
            for j in range(4):
                r = xr(t,ks)+j; tt = T + 2*j
                k(f"v_cvt_pk_f16_f32 {v(r)}, {v(tt)}, {v(tt+1)}")
    k(f"v_add_u32 v11, {s(sh0)}, {v(vAb[0])}\nv_add_u32 v12, {s(sh0)}, {v(vA2b[0])}\nv_add_u32 v9, {s(sh0)}, {v(vl16)}")
    for g in range(4):
        wait(('w', g))
        o = (g % 2)*4*SLOT
        if g == 2: k(f"v_add_u32 v11, {8*SLOT}, v11\nv_add_u32 v12, {8*SLOT}, v12\nv_add_u32 v9, {8*SLOT}, v9")
        for u in range(9):
            k(f"ds_read_b64_tr_b16 {v(ACC+16+4*u,2)}, v11 offset:{o + u*32}\nds_read_b64_tr_b16 {v(ACC+16+4*u+2,2)}, v12 offset:{o + u*32}")
        k("s_waitcnt lgkmcnt(0)")
        for u in range(9): k(f"ds_write_b128 v9, {v(ACC+16+4*u,4)} offset:{o + u*1024}")
        k("s_waitcnt lgkmcnt(0)")
    if stamps: k("s_memtime s[64:65]")
    k(f"s_cmp_eq_u32 {s(sw)}, 0\ns_cbranch_scc0 L_k01_polled")
    k(f"v_mov_b32 v13, 0\ns_mov_b32 {s(sspin)}, 0")
    k("L_k01_poll:")
    k(f"buffer_load_dword v14, v13, {s(rDBG,4)}, 0 offen sc1")
    k("s_waitcnt vmcnt(0)")
    k(f"v_readfirstlane_b32 {s(stmp)}, v14")
    k(f"s_cmp_ge_u32 {s(stmp)}, {NCRIT}\ns_cbranch_scc1 L_k01_polled")
    k(f"s_add_u32 {s(sspin)}, {s(sspin)}, 1\ns_cmp_lt_u32 {s(sspin)}, 0x100000\ns_cbranch_scc0 L_k01_polled")
    k("s_sleep 1\ns_branch L_k01_poll")
    k("L_k01_polled:")
    k("s_barrier")
    if stamps: k("s_memtime s[66:67]")
    k(f"s_lshl_b32 {s(stmp)}, {s(sw)}, 10\nv_add_u32 v13, {s(stmp)}, {v(vl16)}")
    k(f"buffer_load_dwordx4 {v(GS,4)}, v13, {s(rMOD,4)}, 0 offen sc1")
    k(f"s_mov_b32 {s(stmp)}, 4096\nbuffer_load_dwordx4 {v(GS+4,4)}, {v(vl16)}, {s(rMOD,4)}, {s(stmp)} offen sc1")
    k(f"v_add_u32 v13, {MODL}, v13\nv_add_u32 v14, {MODL+4096}, {v(vl16)}")
    k("s_waitcnt vmcnt(0)")
    k(f"ds_write_b128 v13, {v(GS,4)}\nds_write_b128 v14, {v(GS+4,4)}")
    k("s_waitcnt lgkmcnt(0)\ns_barrier")
    vm.clear()
    k(f"v_add_u32 v9, {7*SLOT}, {v(vl16)}\nv_add_u32 v10, {14*SLOT}, {v(vl16)}")
    def areads(ks, par):
        ops = []
        slot = ks % NSL; bi = slot // 7; o = (slot % 7)*SLOT
        for u in range(9):
            r = par*36 + u*4
            if ks < 16:
                ops.append(f"ds_read_b128 {a(r,4)}, {v(vPk[bi])} offset:{o + u*1024}")
            else:
                ops.append(f"ds_read_b64_tr_b16 {a(r,2)}, {v(vAb[bi])} offset:{o + u*32}")
                ops.append(f"ds_read_b64_tr_b16 {a(r+2,2)}, {v(vA2b[bi])} offset:{o + u*32}")
        return ops
    def gsreads(ks):
        o = ks*128
        return [f"ds_read_b128 {v(GS,4)}, {v(vM)} offset:{o}", f"ds_read_b128 {v(GS+4,4)}, {v(vM)} offset:{o+16}",
                f"ds_read_b128 {v(GS+8,4)}, {v(vM)} offset:{2304+o}", f"ds_read_b128 {v(GS+12,4)}, {v(vM)} offset:{2304+o+16}"]
    def modulate(ks):
        ops = []
        for t in range(2):
            for j in range(4):
                r = xr(t,ks)+j; tt = T + 2*(j % 4)
                ops.append(f"v_fma_mix_f32 {v(tt)}, {v(r)}, {v(GS+8+2*j)}, {v(GS+2*j)} op_sel_hi:[1,0,0]")
                ops.append(f"v_fma_mix_f32 {v(tt+1)}, {v(r)}, {v(GS+8+2*j+1)}, {v(GS+2*j+1)} op_sel:[1,0,0] op_sel_hi:[1,0,0]")
            for j in range(4):
                r = xr(t,ks)+j; tt = T + 2*(j % 4)
                ops.append(f"v_cvt_pk_bf16_f32 {v(r)}, {v(tt)}, {v(tt+1)}")
        return ops
    def gemm(swapped, tag):
        for o in gsreads(0) + areads(0, 0): k(o)
        k("s_waitcnt lgkmcnt(15)\ns_waitcnt lgkmcnt(14)" if False else "s_waitcnt lgkmcnt(0)")
        for o in modulate(0): k(o)
        for ks in range(18):
            par = ks % 2
            k("s_waitcnt lgkmcnt(0)")
            if ks == 2:
                k("s_barrier")
                k(f"s_cmp_lt_u32 {s(sw)}, 2\ns_cbranch_scc0 L_k01_nodma_{tag}")
                wdma(4, 0, from_acc=True)
                k(f"L_k01_nodma_{tag}:")
            if ks == 14:
                k("s_waitcnt vmcnt(0)\ns_barrier")
            gs = gsreads(ks+1) if ks < 17 else []
            rd = areads(ks+1, 1-par) if ks < 17 else []
            md = modulate(ks+1) if ks < 17 else []
            nrd = len(rd); early = 3 if nrd <= 9 else 6
            per = 1 if nrd <= 9 else 2
            j = 0
            for u in range(9):
                for t in range(2):
                    c = "0" if ks == 0 else v(acc(u,t),4)
                    A_, B_ = a(par*36+u*4,4), v(xr(t,ks),4)
                    if swapped: A_, B_ = B_, A_
                    k(f"v_mfma_f32_16x16x32_bf16 {v(acc(u,t),4)}, {A_}, {B_}, {c}")
                    if j == 0:
                        for o in gs: k(o)
                    elif j <= 3:
                        for _ in range(per):
                            if rd: k(rd.pop(0))
                    elif j == 4 and md:
                        k(f"s_waitcnt lgkmcnt({early})")
                    if j >= 4:
                        if rd and j >= 5: k(rd.pop(0))
                        n = 2 if j < 16 else len(md)
                        for _ in range(n):
                            if md: k(md.pop(0))
                    j += 1
            assert not rd and not md
    k(f"s_cmp_ge_u32 {s(scs)}, 8\ns_cbranch_scc1 L_k01_v")
    gemm(False, "qk")
    if stamps: k("s_memtime s[68:69]")
    RS = 296
    k("s_barrier")
    k(f"s_cmp_lt_u32 {s(scs)}, 4\ns_cselect_b32 {s(skind)}, 0x3eae1a93, 1.0")
    k(f"s_mul_i32 {s(stmp)}, {s(sw)}, {32*RS}")
    k(f"v_and_b32 v13, 15, v0\nv_mul_u32_u24 v13, {RS}, v13\nv_lshrrev_b32 v15, 4, v0\nv_lshlrev_b32 v15, 3, v15\nv_add_u32 v13, v13, v15\nv_add_u32 v13, {s(stmp)}, v13")
    for u in range(9):
        for t in range(2):
            r = acc(u,t)
            for e in range(4): k(f"v_mul_f32 {v(r+e)}, {s(skind)}, {v(r+e)}")
            k(f"v_cvt_pk_bf16_f32 {v(r)}, {v(r)}, {v(r+1)}\nv_cvt_pk_bf16_f32 {v(r+1)}, {v(r+2)}, {v(r+3)}")
            k(f"ds_write_b64 v13, {v(r,2)} offset:{t*16*RS + u*32}")
    k("s_waitcnt lgkmcnt(0)")
    k(f"v_and_b32 v13, 31, v0\nv_mul_u32_u24 v15, {RS}, v13\nv_lshrrev_b32 v14, 5, v0\nv_lshlrev_b32 v14, 4, v14\nv_add_u32 v15, v15, v14\nv_add_u32 v15, {s(stmp)}, v15")
    k(f"v_mul_u32_u24 v14, {RS}, v13\nv_add_u32 v14, {s(stmp)}, v14")
    R = X
    for h in range(8):
        k(f"ds_read2_b32 {v(R+8*h,2)}, v15 offset0:{9*h} offset1:{9*h+1}\nds_read2_b32 {v(R+8*h+2,2)}, v15 offset0:{9*h+2} offset1:{9*h+3}")
        k(f"ds_read_b32 {v(R+8*h+4)}, v14 offset:{36*h+32}")
    k(f"v_mov_b32 v11, 0x7fffffff\nv_cmp_gt_u32 vcc, 32, v0")
    k(f"s_and_b32 {s(sh0)}, {s(scs)}, 3\ns_lshl_b32 {s(sh0)}, {s(sh0)}, 3")
    k(f"s_cmp_lt_u32 {s(scs)}, 4\ns_cbranch_scc0 L_k01_kout")
    k("v_lshlrev_b32 v10, 2, v13\nv_cndmask_b32 v10, v11, v10, vcc")
    k(f"s_lshl_b32 {s(stmp)}, {s(sh0)}, 6\ns_add_u32 {s(stmp)}, {s(stmp)}, {s(sqt)}")
    k("s_waitcnt lgkmcnt(0)")
    for h in range(8):
        k(f"s_add_u32 {s(stmp2)}, {s(stmp)}, {64*h}\ns_lshl_b32 {s(ssrc)}, {s(stmp2)}, 10\nbuffer_store_dwordx4 {v(R+8*h,4)}, {v(vl16)}, {s(rQM,4)}, {s(ssrc)} offen")
        k(f"s_lshl_b32 {s(ssrc)}, {s(stmp2)}, 7\nbuffer_store_dword {v(R+8*h+4)}, v10, {s(rQR,4)}, {s(ssrc)} offen")
    k("s_branch L_k01_fin")
    k("L_k01_kout:")
    k("v_lshlrev_b32 v10, 4, v13\nv_cndmask_b32 v10, v11, v10, vcc")
    k(f"s_mul_i32 {s(stmp)}, {s(sh0)}, {KV_STRIDE}\ns_lshl_b32 {s(stmp2)}, {s(sqt)}, 10\ns_add_u32 {s(stmp2)}, {s(stmp2)}, {s(stmp)}")
    k(f"s_lshl_b32 {s(ssrc)}, {s(srb)}, 9\ns_add_u32 {s(stmp)}, {s(stmp)}, {s(ssrc)}\ns_lshl_b32 {s(ssrc)}, {s(sw)}, 2\ns_add_u32 {s(stmp)}, {s(stmp)}, {s(ssrc)}\ns_add_u32 {s(stmp)}, {s(stmp)}, {KR_OFF}")
    k("s_waitcnt lgkmcnt(0)")
    for h in range(8):
        k(f"buffer_store_dwordx4 {v(R+8*h,4)}, {v(vl16)}, {s(rKV,4)}, {s(stmp2)} offen")
        k(f"buffer_store_dword {v(R+8*h+4)}, v10, {s(rKV,4)}, {s(stmp)} offen")
        if h < 7: k(f"s_add_u32 {s(stmp2)}, {s(stmp2)}, {KV_STRIDE}\ns_add_u32 {s(stmp)}, {s(stmp)}, {KV_STRIDE}")
    k("s_branch L_k01_fin")
    k("L_k01_v:")
    gemm(True, "v")
    if stamps: k("s_memtime s[68:69]")
    k(f"s_sub_u32 {s(sh0)}, {s(scs)}, 8\ns_lshl_b32 {s(sh0)}, {s(sh0)}, 3\ns_mul_i32 {s(stmp)}, {s(sh0)}, {KV_STRIDE}")
    k(f"s_mul_i32 {s(stmp2)}, {s(sqt)}, {2*608}\ns_add_u32 {s(stmp)}, {s(stmp)}, {s(stmp2)}\ns_add_u32 {s(stmp)}, {s(stmp)}, {VT_OFF}")
    k("v_lshrrev_b32 v13, 4, v0\nv_and_b32 v14, 1, v13\nv_mul_u32_u24 v14, 304, v14\nv_lshrrev_b32 v13, 1, v13\nv_lshlrev_b32 v13, 3, v13\nv_add_u32 v14, v14, v13")
    k(f"v_and_b32 v15, 15, v0\ns_mov_b32 {s(stmp2)}, {KV_STRIDE}")
    for u in range(9):
        k(f"v_add_u32 v10, {16*u}, v15\nv_mul_u32_u24 v11, 3641, v10\nv_lshrrev_b32 v11, 16, v11\nv_mul_u32_u24 v13, 18, v11\nv_sub_u32 v10, v10, v13")
        k(f"v_mul_lo_u32 v11, v11, {s(stmp2)}\nv_lshlrev_b32 v10, 4, v10\nv_add_u32 v10, v10, v11\nv_add_u32 v10, v10, v14")
        for t in range(2):
            r = acc(u,t)
            k(f"v_cvt_pk_bf16_f32 {v(r)}, {v(r)}, {v(r+1)}\nv_cvt_pk_bf16_f32 {v(r+1)}, {v(r+2)}, {v(r+3)}")
            k(f"buffer_store_dwordx2 {v(r,2)}, v10, {s(rKV,4)}, {s(stmp)} offen offset:{t*608}")
    k(f"v_lshrrev_b32 v10, 2, v0\nv_mul_lo_u32 v10, v10, {s(stmp2)}\nv_bfe_u32 v11, v0, 1, 1\nv_mul_u32_u24 v11, 608, v11\nv_add_u32 v10, v10, v11")
    k(f"v_and_b32 v11, 1, v0\nv_mul_u32_u24 v11, 304, v11\nv_add_u32 v10, v10, v11\nv_add_u32 v10, {18*16}, v10")
    k("v_mov_b32 v11, 0x7fffffff\nv_cmp_gt_u32 vcc, 32, v0\nv_cndmask_b32 v10, v11, v10, vcc")
    for e in range(4): k(f"v_mov_b32 {v(X+e)}, 0x3f803f80")
    k(f"buffer_store_dwordx4 {v(X,4)}, v10, {s(rKV,4)}, {s(stmp)} offen")
    k("L_k01_fin:")
    if stamps:
        k("s_waitcnt vmcnt(0)\ns_memtime s[70:71]\ns_memrealtime s[72:73]\ns_waitcnt lgkmcnt(0)")
        srd(k, 24, sWS, WS["AUX"], WS["AUX_SZ"])
        k(f"s_lshl_b32 {s(stmp)}, s2, 3\ns_add_u32 {s(stmp)}, {s(stmp)}, {s(sw)}\ns_lshl_b32 {s(stmp)}, {s(stmp)}, 6\nv_mov_b32 v9, {s(stmp)}")
        for i, (x, y) in enumerate(((64,60),(66,60),(68,60),(70,60),(72,62))):
            k(f"s_sub_u32 s74, s{x}, s{y}\nv_mov_b32 v10, s74\nbuffer_store_dword v10, v9, s[24:27], 0 offen offset:{4*i}")
        k(f"v_mov_b32 v10, s62\nbuffer_store_dword v10, v9, s[24:27], 0 offen offset:20")
        for i, x in enumerate((76, 78, 80, 82, 84)):
            k(f"s_sub_u32 s74, s{x}, s60\nv_mov_b32 v10, s74\nbuffer_store_dword v10, v9, s[24:27], 0 offen offset:{24+4*i}")
    k("s_branch L_k01_end")
    mod_role(k, sWS)
    k("L_k01_end:\ns_endpgm")
    return k, (254, 256, MODL + 5120)
```

```python
from asmgen import *
from layout import *
from k_g1 import srd, spread
from k_g2 import w_patterns

def gen_p3(stamps=False, alg=True, pol='', k=None):
    fused = k is not None
    if not fused: k = Kern("p3_kernel", vgprs=224)
    if fused: pol = ' sc1'
    sWS, sWO, sX = 4, 6, 8
    rWO, rOM, rOR, rMOD, rX, rX1, rY, rST = 12, 16, 20, 24, 28, 44, 48, 52
    sw, srb, scs, stmp, stmp2, ssrc, slds = range(32, 39)
    vl16, vP, vA0, vA1, vA2, vA3, vR0, vR1, vom, vor, vx = 1, 2, 5, 6, 7, 8, 9, 10, 11, 12, 13
    BF = 16
    ACC = 88
    AF = 112
    if fused:
        k("s_cmp_ge_u32 s2, 192\ns_cbranch_scc1 L_pg_g1")
    if not fused:
        k("s_cmp_ge_u32 s2, 256\ns_cbranch_scc1 L_p3_end")
        k(f"s_load_dwordx2 {s(sWS,2)}, s[0:1], {KA['ws']}")
        if alg:
            k("s_cmp_ge_u32 s2, 192\ns_cbranch_scc0 L_p3_main")
            k(f"v_lshrrev_b32 v14, 6, v0\nv_and_b32 v0, 63, v0\nv_readfirstlane_b32 {s(sw)}, v14\nv_lshlrev_b32 v2, 7, v0")
            k(f"s_sub_u32 {s(stmp)}, s2, 192\ns_lshr_b32 {s(stmp)}, {s(stmp)}, 3\ns_bfe_u32 {s(stmp2)}, s2, 0x20001\ns_lshl_b32 {s(stmp2)}, {s(stmp2)}, 3\ns_add_u32 {s(stmp)}, {s(stmp)}, {s(stmp2)}")
            k(f"s_mul_i32 {s(stmp)}, {s(stmp)}, {8*19*2048}\ns_mul_i32 {s(stmp2)}, {s(sw)}, {5*8192}\ns_add_u32 {s(stmp)}, {s(stmp)}, {s(stmp2)}")
            k("s_waitcnt lgkmcnt(0)")
            srd(k, rWO, sWS, WS["W13F"], WS["W13F_SZ"])
            for i in range(5): k(f"buffer_load_dword v3, v2, {s(rWO,4)}, {s(stmp)} offen\ns_add_u32 {s(stmp)}, {s(stmp)}, 8192")
            k("s_branch L_p3_end")
            k("L_p3_main:")
        else:
            k("s_cmp_ge_u32 s2, 192\ns_cbranch_scc1 L_p3_end")
    k(f"s_load_dwordx2 {s(sWO,2)}, s[0:1], {KA['wo']}")
    k(f"s_load_dwordx2 {s(sX,2)}, s[0:1], {KA['x']}")
    if stamps: k("s_memtime s[60:61]\ns_memrealtime s[62:63]")
    if not fused:
        k("v_lshrrev_b32 v14, 6, v0\nv_and_b32 v0, 63, v0")
        k(f"v_readfirstlane_b32 {s(sw)}, v14")
    k(f"v_lshlrev_b32 {v(vl16)}, 4, v0")
    w_patterns(k, vP, 1152, 112)
    k(f"s_and_b32 {s(stmp)}, s2, 7\ns_lshl_b32 {s(srb)}, {s(stmp)}, 2\ns_lshr_b32 {s(stmp)}, s2, 3\ns_and_b32 {s(stmp2)}, {s(stmp)}, 3\ns_add_u32 {s(srb)}, {s(srb)}, {s(stmp2)}\ns_lshr_b32 {s(scs)}, {s(stmp)}, 2")
    k("v_lshrrev_b32 v112, 4, v0\nv_bfe_u32 v113, v0, 2, 2\nv_and_b32 v114, 3, v0\nv_and_b32 v115, 15, v0")
    k("v_lshrrev_b32 v116, 1, v112\nv_mul_u32_u24 v116, 18, v116\nv_and_b32 v117, 1, v112\nv_lshlrev_b32 v117, 2, v117\nv_add_u32 v116, v116, v117\nv_add_u32 v116, v116, v113")
    def mkaddr(row, d0, d1):
        k(f"v_lshrrev_b32 v117, 2, {v(row)}\nv_and_b32 v117, 1, v117\nv_lshlrev_b32 v117, 5, v117")
        k(f"v_mul_u32_u24 v118, 192, {v(row)}\nv_lshlrev_b32 v119, 3, v114\nv_add_u32 v118, v118, v119")
        k(f"v_add_u32 {v(d0)}, v118, v117\nv_xor_b32 v117, 32, v117\nv_add_u32 {v(d1)}, v118, v117")
    mkaddr(116, vA0, vA1)
    k(f"v_add_u32 {v(vA2)}, {8*6912}, {v(vA0)}\nv_add_u32 {v(vA3)}, {8*6912}, {v(vA1)}")
    k("v_lshlrev_b32 v116, 2, v112\nv_lshrrev_b32 v117, 1, v113\nv_add_u32 v116, v116, v117\nv_mul_u32_u24 v116, 18, v116\nv_and_b32 v117, 1, v113\nv_add_u32 v116, v116, v117\nv_add_u32 v116, 16, v116")
    mkaddr(116, vR0, vR1)
    k(f"s_lshl_b32 {s(stmp)}, {s(srb)}, 2\ns_add_u32 {s(stmp)}, {s(stmp)}, {s(sw)}\ns_lshl_b32 {s(stmp2)}, {s(stmp)}, 4\nv_add_u32 v116, {s(stmp2)}, v115")
    k(f"v_lshlrev_b32 v117, 15, v112\nv_lshlrev_b32 v118, 4, v116\nv_add_u32 {v(vom)}, v117, v118")
    k(f"v_lshlrev_b32 v117, 13, v112\nv_add_u32 v117, v117, v116\nv_lshlrev_b32 {v(vor)}, 2, v117")
    XL = 110592
    for e in range(3):
        k(f"v_add_u32 v117, {64*e}, v0\nv_mul_u32_u24 v118, 21846, v117\nv_lshrrev_b32 v118, 18, v118\nv_mul_u32_u24 v119, 12, v118\nv_sub_u32 v117, v117, v119\nv_lshlrev_b32 v117, 4, v117\nv_mul_u32_u24 v118, 1152, v118\nv_add_u32 {v(164+8+e)}, v117, v118")
    k(f"v_mul_u32_u24 v117, 192, v115\nv_lshlrev_b32 v118, 3, v112\nv_add_u32 v117, v117, v118\ns_mul_i32 {s(stmp2)}, {s(sw)}, 3072\ns_add_u32 {s(stmp2)}, {s(stmp2)}, {XL}\nv_add_u32 {v(vx)}, {s(stmp2)}, v117")
    k("v_lshlrev_b32 v14, 4, v112")
    k("s_waitcnt lgkmcnt(0)")
    srd(k, rWO, sWO, 0, 576*1152); srd(k, rOM, sWS, WS["OM"], WS["OM_SZ"]); srd(k, rOR, sWS, WS["OR"], WS["OR_SZ"])
    srd(k, rMOD, sWS, WS["MOD"], WS["MOD_SZ"]); srd(k, rX, sX, 0, 2048*1152); srd(k, rX1, sWS, WS["X1F"], WS["X1F_SZ"])
    if alg: srd(k, rY, sWS, WS["H2F"], WS["H2F_SZ"]); srd(k, rST, sWS, WS["STAT"], WS["STAT_SZ"])
    k(f"s_lshl_b32 {s(stmp)}, {s(srb)}, 2\ns_add_u32 {s(stmp)}, {s(stmp)}, {s(sw)}\ns_mul_i32 {s(stmp)}, {s(stmp)}, {16*1152}\ns_mul_i32 {s(stmp2)}, {s(scs)}, 192\ns_add_u32 {s(stmp)}, {s(stmp)}, {s(stmp2)}\ns_mul_i32 {s(slds)}, {s(sw)}, 3072")
    for e in range(3):
        k(f"s_add_u32 m0, {s(slds)}, {110592 + e*1024}\ns_nop 0\nbuffer_load_dwordx4 {v(172+e)}, {s(rX,4)}, {s(stmp)} offen lds")
    k(f"s_mul_i32 {s(ssrc)}, {s(sw)}, {16*1152}\ns_mul_i32 {s(stmp2)}, {s(scs)}, 192\ns_add_u32 {s(ssrc)}, {s(ssrc)}, {s(stmp2)}\ns_mul_i32 {s(slds)}, {s(sw)}, 3072")
    for g in range(9):
        for i in range(3):
            k(f"s_add_u32 m0, {s(slds)}, {g*4*3072 + i*1024}")
            k(f"s_add_u32 {s(stmp2)}, {s(ssrc)}, {g*4*16*1152}")
            k(f"buffer_load_dwordx4 {v(vP+i)}, {s(rWO,4)}, {s(stmp2)} offen lds")
    for sx in range(16):
        k(f"s_mov_b32 {s(stmp2)}, {sx*131072}\nbuffer_load_dwordx4 {v(BF+4*sx,4)}, {v(vom)}, {s(rOM,4)}, {s(stmp2)} offen")
    for sp in range(2):
        for jj in range(4):
            k(f"s_mov_b32 {s(stmp2)}, {(16*sp+jj)*8192}\nbuffer_load_dword {v(BF+64+4*sp+jj)}, {v(vor)}, {s(rOR,4)}, {s(stmp2)} offen")
    if stamps: k("s_memtime s[70:71]")
    k("s_waitcnt vmcnt(24)\ns_barrier")
    if stamps: k("s_memtime s[64:65]")
    XR = 160; GA = 176; G2 = 200
    k(f"s_mul_i32 {s(stmp2)}, {s(scs)}, {96*4}\ns_add_u32 {s(stmp)}, {s(stmp2)}, {2*576*4}")
    for dt in range(6): k(f"buffer_load_dwordx4 {v(GA+4*dt,4)}, v14, {s(rMOD,4)}, {s(stmp)} offen offset:{dt*64}")
    NG = 6
    if alg:
        k(f"s_add_u32 {s(stmp)}, {s(stmp2)}, {4*576*4}")
        for dt in range(6): k(f"buffer_load_dwordx4 {v(G2+4*dt,4)}, v14, {s(rMOD,4)}, {s(stmp)} offen offset:{dt*64}")
        NG = 12
    def areads(sx, par):
        ops = []
        for dt in range(6):
            r = AF + par*24 + dt*4
            if sx < 16:
                regs = (vA0, vA1) if sx < 8 else (vA2, vA3)
                ad = regs[(dt & 1) ^ (sx & 1)]
                o = (sx % 8)*6912 + (dt & ~1)*32
                ops.append(f"ds_read_b64_tr_b16 {v(r,2)}, {v(ad)} offset:{o}")
                ops.append(f"ds_read_b64_tr_b16 {v(r+2,2)}, {v(ad)} offset:{o+1536}")
            else:
                sp = sx - 16
                o = sp*288*192 + (dt & ~1)*32
                ops.append(f"ds_read_b64_tr_b16 {v(r,2)}, {v((vR0, vR1)[dt & 1])} offset:{o}")
                ops.append(f"ds_read_b64_tr_b16 {v(r+2,2)}, {v((vR0, vR1)[(dt & 1) ^ 1])} offset:{o + 36*192}")
        return ops
    for o in areads(0, 0): k(o)
    for sx in range(18):
        par = sx % 2
        nb = {0: 23}.get(sx)
        need = ((16 - 1 - sx + 8) if sx < 16 else (4 if sx == 16 else 0)) + NG
        k(f"s_waitcnt vmcnt({need}) lgkmcnt(0)")
        fill = areads(sx+1, 1-par) if sx < 17 else []
        slots = spread(fill, 6)
        for dt in range(6):
            c = "0" if sx == 0 else v(ACC+4*dt,4)
            k(f"v_mfma_f32_16x16x32_bf16 {v(ACC+4*dt,4)}, {v(AF+par*24+dt*4,4)}, {v(BF+4*sx,4)}, {c}")
            for o in slots[dt]: k(o)
    if stamps: k("s_memtime s[66:67]")
    for dt in range(6): k(f"ds_read_b64 {v(XR+2*dt,2)}, {v(vx)} offset:{dt*32}")
    k("s_waitcnt vmcnt(0) lgkmcnt(0)")
    T = AF; OY = BF + 16; O1 = BF
    if alg: k("v_mov_b32 v14, 0\nv_mov_b32 v15, 0")
    for dt in range(6):
        xr = XR + 2*dt; t = T + 4*dt
        k(f"v_lshlrev_b32 {v(t)}, 16, {v(xr)}\nv_and_b32 {v(t+1)}, 0xffff0000, {v(xr)}")
        k(f"v_lshlrev_b32 {v(t+2)}, 16, {v(xr+1)}\nv_and_b32 {v(t+3)}, 0xffff0000, {v(xr+1)}")
        for r in range(4): k(f"v_fma_f32 {v(t+r)}, {v(GA+4*dt+r)}, {v(ACC+4*dt+r)}, {v(t+r)}")
        o = O1 + (dt >> 1)*4 + (dt & 1)*2
        k(f"v_cvt_pk_bf16_f32 {v(o)}, {v(t)}, {v(t+1)}\nv_cvt_pk_bf16_f32 {v(o+1)}, {v(t+2)}, {v(t+3)}")
        if alg:
            for r in range(4): k(f"v_add_f32 v14, v14, {v(t+r)}\nv_fmac_f32 v15, {v(t+r)}, {v(t+r)}")
            for r in range(4): k(f"v_mul_f32 {v(t+r)}, {v(G2+4*dt+r)}, {v(t+r)}")
            o = OY + (dt >> 1)*4 + (dt & 1)*2
            k(f"v_cvt_pk_bf16_f32 {v(o)}, {v(t)}, {v(t+1)}\nv_cvt_pk_bf16_f32 {v(o+1)}, {v(t+2)}, {v(t+3)}")
    k(f"s_lshl_b32 {s(stmp)}, {s(srb)}, 2\ns_add_u32 {s(stmp)}, {s(stmp)}, {s(sw)}\ns_mul_i32 {s(ssrc)}, {s(stmp)}, {18*1024}\ns_mul_i32 {s(stmp2)}, {s(scs)}, 3072\ns_add_u32 {s(ssrc)}, {s(ssrc)}, {s(stmp2)}")
    if alg:
        for j in range(3): k(f"buffer_store_dwordx4 {v(OY+4*j,4)}, {v(vl16)}, {s(rY,4)}, {s(ssrc)} offen offset:{j*1024}" + pol)
    for j in range(3): k(f"buffer_store_dwordx4 {v(O1+4*j,4)}, {v(vl16)}, {s(rX1,4)}, {s(ssrc)} offen offset:{j*1024}" + pol)
    if alg:
        for r in ("v14", "v15"):
            k(f"v_mov_b32 v13, {r}\nv_permlane32_swap_b32 {r}, v13\nv_add_f32 {r}, {r}, v13\nv_mov_b32 v13, {r}\nv_permlane16_swap_b32 {r}, v13\nv_add_f32 {r}, {r}, v13")
        k(f"v_lshlrev_b32 v12, 3, v0")
        k(f"s_lshl_b32 {s(stmp)}, {s(stmp)}, 7\ns_lshl_b32 {s(stmp2)}, {s(scs)}, 14\ns_add_u32 {s(stmp)}, {s(stmp)}, {s(stmp2)}")
        k(f"s_mov_b64 s[56:57], exec\ns_mov_b64 exec, 0xffff\nbuffer_store_dwordx2 v[14:15], v12, {s(rST,4)}, {s(stmp)} offen{pol}\ns_mov_b64 exec, s[56:57]")
    if fused:
        k("s_waitcnt vmcnt(0)\ns_barrier")
        k(f"s_cmp_eq_u32 {s(sw)}, 0\ns_cbranch_scc0 L_pg_g1")
        srd(k, rOM, sWS, WS["CNT"], WS["CNT_SZ"])
        k(f"s_lshr_b32 {s(stmp)}, {s(srb)}, 2\ns_add_u32 {s(stmp)}, {s(stmp)}, 64\ns_lshl_b32 {s(stmp)}, {s(stmp)}, 7\nv_mov_b32 v12, {s(stmp)}\nv_mov_b32 v13, 1")
        k(f"s_mov_b64 s[56:57], exec\ns_mov_b64 exec, 1\nbuffer_atomic_add v13, v12, {s(rOM,4)}, 0 offen sc1\ns_mov_b64 exec, s[56:57]")
        k("L_pg_g1:")
        return
    if stamps:
        k("s_waitcnt vmcnt(0)\ns_memtime s[68:69]\ns_memrealtime s[72:73]\ns_waitcnt lgkmcnt(0)")
        srd(k, 24, sWS, WS["AUX"], WS["AUX_SZ"])
        k(f"s_lshl_b32 {s(stmp)}, s2, 3\ns_add_u32 {s(stmp)}, {s(stmp)}, {s(sw)}\ns_lshl_b32 {s(stmp)}, {s(stmp)}, 6\nv_mov_b32 v9, {s(stmp)}")
        for i, (x, y) in enumerate(((70,60),(64,60),(66,60),(68,60),(72,62))):
            k(f"s_sub_u32 s74, s{x}, s{y}\nv_mov_b32 v10, s74\nbuffer_store_dword v10, v9, s[24:27], 0 offen offset:{4*i}")
    k("L_p3_end:\ns_endpgm")
    return k, (256 if alg else 192, 256, 110592 + 12288)

def gen_ln2():
    k = Kern("ln2_kernel", vgprs=128)
    sWS = 4; rX1, rH2, rMOD = 8, 12, 16
    stile, stmp = 32, 33
    X = 16; G = 88; SB = 96; T = 104
    k("s_cmp_ge_u32 s2, 128\ns_cbranch_scc1 L_ln2_end")
    k(f"s_load_dwordx2 {s(sWS,2)}, s[0:1], {KA['ws']}")
    k("v_lshlrev_b32 v1, 4, v0\nv_lshrrev_b32 v2, 4, v0\nv_lshlrev_b32 v2, 4, v2")
    k(f"s_mul_i32 {s(stile)}, s2, {18*1024}")
    k("s_waitcnt lgkmcnt(0)")
    srd(k, rX1, sWS, WS["X1F"], WS["X1F_SZ"]); srd(k, rH2, sWS, WS["H2F"], WS["H2F_SZ"]); srd(k, rMOD, sWS, WS["MOD"], WS["MOD_SZ"])
    for ks in range(18):
        k(f"s_add_u32 {s(stmp)}, {s(stile)}, {(ks>>2)*4096}\nbuffer_load_dwordx4 {v(X+4*ks,4)}, v1, {s(rX1,4)}, {s(stmp)} offen offset:{(ks&3)*1024}")
    k("v_mov_b32 v3, 0\nv_mov_b32 v4, 0\nv_mov_b32 v5, 0x3f803f80")
    for i in range(72):
        if i % 4 == 0: k(f"s_waitcnt vmcnt({17 - i//4})")
        k(f"v_dot2_f32_bf16 v3, {v(X+i)}, v5, v3\nv_dot2_f32_bf16 v4, {v(X+i)}, {v(X+i)}, v4")
    for r in ("v3", "v4"):
        k(f"v_mov_b32 v6, {r}\nv_permlane32_swap_b32 {r}, v6\nv_add_f32 {r}, {r}, v6\nv_mov_b32 v6, {r}\nv_permlane16_swap_b32 {r}, v6\nv_add_f32 {r}, {r}, v6")
    k("v_mul_f32 v3, 0x3ae38e39, v3\nv_mul_f32 v4, 0x3ae38e39, v4")
    k("v_fma_f32 v4, -v3, v3, v4\nv_max_f32 v4, 0, v4\nv_add_f32 v4, 0x3727c5ac, v4\nv_rsq_f32 v4, v4")
    k("s_nop 0\nv_mul_f32 v3, v3, v4\nv_sub_f32 v3, 0, v3")
    for ks in range(18):
        k(f"s_mov_b32 {s(stmp)}, {(4*576 + 32*ks)*4}")
        k(f"buffer_load_dwordx4 {v(G,4)}, v2, {s(rMOD,4)}, {s(stmp)} offen\nbuffer_load_dwordx4 {v(G+4,4)}, v2, {s(rMOD,4)}, {s(stmp)} offen offset:64")
        k(f"s_mov_b32 {s(stmp)}, {(3*576 + 32*ks)*4}")
        k(f"buffer_load_dwordx4 {v(SB,4)}, v2, {s(rMOD,4)}, {s(stmp)} offen\nbuffer_load_dwordx4 {v(SB+4,4)}, v2, {s(rMOD,4)}, {s(stmp)} offen offset:64")
        for j in range(4):
            x = X + 4*ks + j
            k(f"v_lshlrev_b32 {v(T+2*j)}, 16, {v(x)}\nv_and_b32 {v(T+2*j+1)}, 0xffff0000, {v(x)}")
        for e in range(8): k(f"v_fma_f32 {v(T+e)}, {v(T+e)}, v4, v3")
        k("s_waitcnt vmcnt(0)")
        for e in range(8): k(f"v_fma_f32 {v(T+e)}, {v(T+e)}, {v(G+e)}, {v(SB+e)}")
        for j in range(4): k(f"v_cvt_pk_bf16_f32 {v(X+4*ks+j)}, {v(T+2*j)}, {v(T+2*j+1)}")
        k(f"s_add_u32 {s(stmp)}, {s(stile)}, {ks*1024}\nbuffer_store_dwordx4 {v(X+4*ks,4)}, v1, {s(rH2,4)}, {s(stmp)} offen")
    k("L_ln2_end:\ns_endpgm")
    return k, (128, 64, 0)
```

```python
import sys, build
import k_k01b, k_att, k_p3, k_g1b, k_g2d
GENS = [lambda: k_k01b.gen_k01(repack=False),
        lambda: k_att.gen_att(helper=True, prefetch=[("pg_kernel", 4)], onewait=False),
        k_g1b.gen_pgg]
GENS4 = [k_k01b.gen_k01,
        lambda: k_att.gen_att(helper=True, prefetch=[("pg_kernel", 4)], onewait=False),
        lambda: k_g1b.gen_pg(wt_upto=8, prefetch=[("g2a_kernel", 7)], w2pf=False),
        k_g2d.gen_g2]
if __name__ == "__main__":
    path = sys.argv[1] if len(sys.argv) > 1 else "cdna_kernels/%s.s" % build.NAME
    build.check(GENS, path)
```

```python
from asmgen import *
from layout import *
from k_g1 import srd

def gen_g1(stamps=False, PDS=3, cap=11, wt_upto=6, prefetch=None, alg=True, w2pf=True, k=None, signal=False):
    NK = 19 if alg else 18
    US = NK*2048
    fused = k is not None
    if not fused: k = Kern("g1_kernel", vgprs=(248 if alg else 220), agprs=256)
    ldpol = " sc1" if fused else ""
    B19, VA, VS2, PFV = 216, 232, 236, 240
    sWS = 4
    rW, rH2, rHH = 12, 16, 20
    sw, srb, sg, stmp, stmp2, snl2e, sst, sw01s, sw01d, sw23s, sw23d, sfs, sfd, su8, sh0 = range(32, 47)
    sx = 48
    sso = 47
    vl16, vS, vst2 = 1, 2, 6
    XV, RING, ACC, OUT, TMP = 8, 40, 64, 192, 208
    def xr(t, ks):
        if ks == 18: return v(B19 + 4*t, 4)
        i = (ks*4 + t)*4
        return a(i, 4) if i < 256 else v(XV + i - 256, 4)
    if not fused:
        k("s_cmp_ge_u32 s2, 256\ns_cbranch_scc1 L_g1_end")
        k(f"s_load_dwordx2 {s(sWS,2)}, s[0:1], {KA['ws']}")
        if stamps: k("s_memtime s[60:61]\ns_memrealtime s[62:63]")
        k(f"v_lshrrev_b32 v8, 6, v0\nv_and_b32 v0, 63, v0\nv_readfirstlane_b32 {s(sw)}, v8")
    k(f"v_lshlrev_b32 {v(vl16)}, 4, v0")
    for i in range(4): k(f"v_add_u32 {v(vS+i)}, {i*US}, {v(vl16)}")
    k(f"s_and_b32 {s(stmp)}, s2, 1\ns_lshl_b32 {s(srb)}, {s(stmp)}, 2\ns_lshr_b32 {s(stmp)}, s2, 6\ns_add_u32 {s(srb)}, {s(srb)}, {s(stmp)}")
    k(f"s_lshr_b32 {s(sg)}, s2, 1\ns_and_b32 {s(sg)}, {s(sg)}, 3\ns_lshl_b32 {s(sg)}, {s(sg)}, 3\ns_lshr_b32 {s(stmp)}, s2, 3\ns_and_b32 {s(stmp)}, {s(stmp)}, 7\ns_add_u32 {s(sg)}, {s(sg)}, {s(stmp)}")
    k(f"s_lshl_b32 {s(stmp)}, {s(srb)}, 4\ns_lshl_b32 {s(stmp2)}, {s(sw)}, 2\ns_add_u32 {s(stmp)}, {s(stmp)}, {s(stmp2)}")
    k(f"s_mul_i32 {s(sx)}, {s(stmp)}, {18*1024}")
    for t in range(1, 4): k(f"s_add_u32 {s(sx+t)}, {s(sx)}, {t*18*1024}")
    k(f"s_mul_i32 {s(sh0)}, {s(stmp)}, {144*1024}")
    k(f"s_mul_i32 {s(sfs)}, {s(sg)}, {8*US}")
    k(f"s_add_u32 {s(su8)}, {s(sg)}, 256\ns_mul_i32 {s(su8)}, {s(su8)}, {US}")
    k(f"s_lshr_b32 {s(stmp)}, {s(sw)}, 1\ns_mul_i32 {s(stmp)}, {s(stmp)}, {US}\ns_and_b32 {s(stmp2)}, {s(sw)}, 1")
    k(f"s_lshl_b32 {s(sw01d)}, {s(stmp2)}, 11\ns_add_u32 {s(sw01d)}, {s(sw01d)}, {s(stmp)}\ns_add_u32 {s(sw01s)}, {s(sw01d)}, {s(sfs)}")
    k(f"s_lshl_b32 {s(sw23d)}, {s(stmp2)}, 10\ns_add_u32 {s(sw23d)}, {s(sw23d)}, {s(stmp)}\ns_add_u32 {s(sw23d)}, {s(sw23d)}, {2*US}\ns_add_u32 {s(sw23s)}, {s(sw23d)}, {s(sfs)}")
    if alg: k(f"s_mul_i32 {s(sfd)}, {s(sw)}, 10\ns_min_u32 {s(sfd)}, {s(sfd)}, 28\ns_lshl_b32 {s(sfd)}, {s(sfd)}, 10")
    else: k(f"s_mul_i32 {s(sfd)}, {s(sw)}, 9216")
    k(f"s_mov_b32 {s(snl2e)}, 0xbfb8aa3b")
    k(f"s_and_b32 {s(stmp)}, {s(sg)}, 1\ns_lshl_b32 {s(stmp)}, {s(stmp)}, 3\nv_add_u32 {v(vst2)}, {s(stmp)}, {v(vl16)}")
    k("s_waitcnt lgkmcnt(0)")
    srd(k, rW, sWS, WS["W13F"], WS["W13F_SZ"]); srd(k, rH2, sWS, WS["H2F"], WS["H2F_SZ"]); srd(k, rHH, sWS, WS["HHF"], WS["HHF_SZ"])
    rST = 24
    if alg: srd(k, rST, sWS, WS["STAT"], WS["STAT_SZ"])

    vm = []
    def emit(op):
        if isinstance(op, tuple): k(op[0]); vm.append(op[1])
        else: k(op)
    def wait(*tags):
        idx = [i for i, t in enumerate(vm) if t in tags]
        n = len(vm) - 1 - max(idx)
        k(f"s_waitcnt vmcnt({min(n, 63)})")
    def LGx(c):
        ops = []
        for ks in (2*c, 2*c+1):
            for t in range(4):
                o = f"buffer_load_dwordx4 {xr(t,ks)}, {v(vl16)}, {s(rH2,4)}, {s(sx+t)} offen offset:{(ks & 3)*1024}{ldpol}"
                if ks & 3 == 3: o += f"\ns_add_u32 {s(sx+t)}, {s(sx+t)}, 4096"
                ops.append((o, ('L', c)))
        return ops
    def LGw(c):
        ops = []
        ops.append((f"s_mov_b32 m0, {s(sw01d)}\ns_nop 0\nbuffer_load_dwordx4 {v(vl16)}, {s(rW,4)}, {s(sw01s)} offen lds", ('L', c)))
        ops.append((f"buffer_load_dwordx4 {v(vl16)}, {s(rW,4)}, {s(sw01s)} offen offset:1024 lds\ns_add_u32 {s(sw01s)}, {s(sw01s)}, 4096\ns_add_u32 {s(sw01d)}, {s(sw01d)}, 4096", ('L', c)))
        ops.append((f"s_mov_b32 m0, {s(sw23d)}\ns_nop 0\nbuffer_load_dwordx4 {v(vl16)}, {s(rW,4)}, {s(sw23s)} offen lds\ns_add_u32 {s(sw23s)}, {s(sw23s)}, 2048\ns_add_u32 {s(sw23d)}, {s(sw23d)}, 2048", ('L', c)))
        return ops
    def LG(c): return LGx(c) + LGw(c)
    def dma9(srcbase_expr_setup, dst_setup, tag):
        NP = 10 if alg else 9
        ops = []
        for c in range(3):
            n = 4 if c < 2 else NP - 8
            for i in range(n):
                hd = ""
                if i == 0:
                    hd = (srcbase_expr_setup + "\n" + dst_setup + "\n" if c == 0 else f"s_add_u32 {s(sst)}, {s(sst)}, 4096\ns_add_u32 {s(stmp2)}, {s(stmp2)}, 4096\n") + f"s_mov_b32 m0, {s(stmp2)}\ns_nop 0\n"
                ops.append((hd + f"buffer_load_dwordx4 {v(vl16)}, {s(rW,4)}, {s(sst)} offen offset:{i*1024} lds", tag))
        return ops
    def W23rest():
        src = (f"s_lshr_b32 {s(stmp)}, {s(sw)}, 1\ns_add_u32 {s(stmp)}, {s(stmp)}, 2\ns_mul_i32 {s(stmp)}, {s(stmp)}, {US}\ns_and_b32 {s(stmp2)}, {s(sw)}, 1\ns_mul_i32 {s(stmp2)}, {s(stmp2)}, {10240 if alg else 9216}\n"
               f"s_add_u32 {s(stmp2)}, {s(stmp2)}, {s(stmp)}\ns_add_u32 {s(stmp2)}, {s(stmp2)}, 18432\ns_add_u32 {s(sst)}, {s(stmp2)}, {s(sfs)}")
        return dma9(src, "", ('R',))
    def LG9():
        return [(f"s_lshr_b32 {s(stmp)}, {s(sw)}, 1\ns_mul_i32 {s(stmp)}, {s(stmp)}, {US}\ns_and_b32 {s(stmp2)}, {s(sw)}, 1\ns_lshl_b32 {s(stmp2)}, {s(stmp2)}, 10\ns_add_u32 {s(stmp2)}, {s(stmp2)}, {s(stmp)}\n"
                 f"s_add_u32 {s(stmp2)}, {s(stmp2)}, {18*2048}\ns_add_u32 {s(sst)}, {s(stmp2)}, {s(sfs)}\ns_mov_b32 m0, {s(stmp2)}\ns_nop 0\nbuffer_load_dwordx4 {v(vl16)}, {s(rW,4)}, {s(sst)} offen lds", ('R',))]
    def UD(u):
        slot = u % 4
        if u < 8: src = f"s_add_u32 {s(sst)}, {s(sfs)}, {u*US}\ns_add_u32 {s(sst)}, {s(sst)}, {s(sfd)}"
        else: src = f"s_add_u32 {s(sst)}, {s(su8)}, {s(sfd)}"
        return dma9(src, f"s_add_u32 {s(stmp2)}, {s(sfd)}, {slot*US}", ('U', u))
    def fixdma(ops):
        return [(o.replace("\n\n", "\n"), t) for o, t in ops]

    steps = []
    for c in range(9): steps += [(0, 2*c), (1, 2*c), (2, c), (0, 2*c+1), (1, 2*c+1), (3, c)]
    if alg: steps += [(0, 18), (1, 18)]
    PA = len(steps)
    for kk in range(9, NK): steps += [(2, kk), (3, kk)]
    PB = len(steps)
    for u in range(4, 9): steps += [(u, ks) for ks in range(NK)]
    N = len(steps); assert N == 9*NK
    last_step = {u: max(i for i, (uu, _) in enumerate(steps) if uu == u) for u in range(9)}
    first_step = {u: min(i for i, (uu, _) in enumerate(steps) if uu == u) for u in range(9)}
    def reads(i):
        u, ks = steps[i]; slot = RING + 8*(i % 3); b = vS + (u % 4)
        return [f"ds_read_b128 {v(slot,4)}, {v(b)} offset:{ks*2048}", f"ds_read_b128 {v(slot+4,4)}, {v(b)} offset:{ks*2048+1024}"]
    def epi(u):
        X = ACC + 32*(u % 4); p = u % 2; ops = []
        g = lambda e: X + e; uu = lambda e: X + 16 + e
        for b in (0, 8):
            es = range(b, b+8); t = lambda e: TMP + e - b
            if alg: ops += [(f"v_mul_f32 {v(t(e))}, {v(VA + e//4)}, {v(g(e))}", 1) for e in es]
            else: ops += [(f"v_mul_f32 {v(t(e))}, {s(snl2e)}, {v(g(e))}", 1) for e in es]
            ops += [(f"v_exp_f32 {v(t(e))}, {v(t(e))}", 2) for e in es]
            ops += [(f"v_mul_f32 {v(uu(e))}, {v(g(e))}, {v(uu(e))}", 1) for e in es]
            if alg: ops += [(f"v_fma_f32 {v(t(e))}, {v(t(e))}, {v(VS2 + e//4)}, {v(VS2 + e//4)}", 1) for e in es]
            else: ops += [(f"v_add_f32 {v(t(e))}, 1.0, {v(t(e))}", 1) for e in es]
            ops += [(f"v_rcp_f32 {v(t(e))}, {v(t(e))}", 2) for e in es]
            ops += [(f"v_mul_f32 {v(uu(e))}, {v(uu(e))}, {v(t(e))}", 1) for e in es]
            for e in es:
                if e % 2 == 0:
                    tt = e // 4; h = (e % 4)//2
                    dst = OUT + 4*tt + (2*p if u < 8 else 0) + h
                    ops.append((f"v_cvt_pk_bf16_f32 {v(dst)}, {v(uu(e))}, {v(uu(e+1))}", 1))
        out = [(o, c, None) for o, c in ops]
        if u < 8 and p == 1:
            for tt in range(4):
                hd = (f"s_lshl_b32 {s(sso)}, {s(sg)}, 2\ns_add_u32 {s(sso)}, {s(sso)}, {u >> 1}\ns_lshl_b32 {s(sso)}, {s(sso)}, 10\ns_add_u32 {s(sso)}, {s(sso)}, {s(sh0)}\n" if tt == 0 else f"s_add_u32 {s(sso)}, {s(sso)}, {144*1024}\n")
                out.append((hd + f"buffer_store_dwordx4 {v(OUT+4*tt,4)}, {v(vl16)}, {s(rHH,4)}, {s(sso)} offen" + (" sc1" if u < wt_upto else ""), 2, ('S', u)))
        if u == 8:
            for tt in range(4):
                hd = (f"s_lshr_b32 {s(sso)}, {s(sg)}, 1\ns_add_u32 {s(sso)}, {s(sso)}, 128\ns_lshl_b32 {s(sso)}, {s(sso)}, 10\ns_add_u32 {s(sso)}, {s(sso)}, {s(sh0)}\n" if tt == 0 else f"s_add_u32 {s(sso)}, {s(sso)}, {144*1024}\n")
                out.append((hd + f"buffer_store_dwordx2 {v(OUT+4*tt,2)}, {v(vst2)}, {s(rHH,4)}, {s(sso)} offen" + (" sc1" if signal else ""), 2, ('S', u)))
        return out
    epiq = []
    done_units = set()
    def emit_epi(o):
        if o[4] is not None: k(o[2]); vm.append(o[4])
        else: k(o[2])
    if fused:
        for c in range(PDS):
            for o in LGw(c): emit(o)
        srd(k, 28, sWS, WS["CNT"], WS["CNT_SZ"])
        k(f"s_cmp_eq_u32 {s(sw)}, 0\ns_cbranch_scc0 L_pg_met")
        k(f"s_add_u32 {s(stmp)}, {s(srb)}, 64\ns_lshl_b32 {s(stmp)}, {s(stmp)}, 7\nv_mov_b32 v8, {s(stmp)}\ns_mov_b32 {s(stmp2)}, 0\ns_mov_b64 s[56:57], exec\ns_mov_b64 exec, 1")
        k("L_pg_poll:")
        k(f"buffer_load_dword v9, v8, s[28:31], 0 offen sc1\ns_waitcnt vmcnt(0)\nv_readfirstlane_b32 {s(stmp)}, v9")
        k(f"s_cmp_ge_u32 {s(stmp)}, 24\ns_cbranch_scc1 L_pg_met0")
        k(f"s_add_u32 {s(stmp2)}, {s(stmp2)}, 1\ns_cmp_lt_u32 {s(stmp2)}, 0x100000\ns_cbranch_scc0 L_pg_met0")
        k("s_sleep 2\ns_branch L_pg_poll")
        k("L_pg_met0:")
        k("s_mov_b64 exec, s[56:57]")
        k("L_pg_met:")
        k("s_barrier")
    if alg:
        k(f"v_lshrrev_b32 v8, 4, v0\nv_lshlrev_b32 v8, 14, v8\nv_and_b32 v9, 15, v0\nv_lshlrev_b32 v9, 3, v9\nv_add_u32 v8, v8, v9")
        k(f"v_add_u32 v9, {4*16384}, v8")
        for t in range(4): k(f"v_mov_b32 {v(OUT+4*t+2)}, 0\nv_mov_b32 {v(OUT+4*t+3)}, 0")
        k(f"s_lshl_b32 {s(stmp)}, {s(srb)}, 4\ns_lshl_b32 {s(stmp2)}, {s(sw)}, 2\ns_add_u32 {s(stmp)}, {s(stmp)}, {s(stmp2)}\ns_lshl_b32 {s(stmp)}, {s(stmp)}, 7")
        for t in range(4):
            emit((f"buffer_load_dwordx2 {v(OUT+4*t,2)}, v8, {s(rST,4)}, {s(stmp)} offen offset:{t*128}{ldpol}", ('T',)))
        k("s_mov_b64 s[56:57], exec\ns_mov_b64 exec, 0xffffffff")
        for t in range(4):
            emit((f"buffer_load_dwordx2 {v(OUT+4*t+2,2)}, v9, {s(rST,4)}, {s(stmp)} offen offset:{t*128}{ldpol}", ('T',)))
        k("s_mov_b64 exec, s[56:57]")
    if fused:
        for c in range(PDS):
            for o in LGx(c): emit(o)
    else:
        for o in LG(0): emit(o)
        for c in range(1, PDS):
            for o in LG(c): emit(o)
    statq = []
    if alg:
        for t in range(4):
            a0 = OUT + 4*t; m_, q_, tm = a0, a0+1, TMP + 2*t
            L = []
            L.append(f"v_add_f32 {v(m_)}, {v(a0)}, {v(a0+2)}"); L.append(f"v_add_f32 {v(q_)}, {v(a0+1)}, {v(a0+3)}")
            for r in (m_, q_):
                L += [f"v_mov_b32 {v(tm)}, {v(r)}", f"s_nop 1\nv_permlane32_swap_b32 {v(r)}, {v(tm)}", f"v_add_f32 {v(r)}, {v(r)}, {v(tm)}", f"v_mov_b32 {v(tm)}, {v(r)}",
                      f"s_nop 1\nv_permlane16_swap_b32 {v(r)}, {v(tm)}", f"v_add_f32 {v(r)}, {v(r)}, {v(tm)}"]
            L += [f"v_mul_f32 {v(m_)}, 0x3ae38e39, {v(m_)}", f"v_mul_f32 {v(q_)}, 0x3ae38e39, {v(q_)}",
                  f"v_fma_f32 {v(q_)}, -{v(m_)}, {v(m_)}, {v(q_)}", f"v_max_f32 {v(q_)}, 0, {v(q_)}", f"v_add_f32 {v(VS2+t)}, 0x3727c5ac, {v(q_)}",
                  f"v_rsq_f32 {v(tm)}, {v(VS2+t)}", f"v_sub_f32 {v(m_)}, 0, {v(m_)}", f"v_mul_f32 {v(VA+t)}, {s(snl2e)}, {v(tm)}", f"v_mul_f32 {v(q_)}, {v(VS2+t)}, {v(tm)}",
                  f"v_cndmask_b32 {v(m_)}, 0, {v(m_)}, s[52:53]", f"v_cndmask_b32 {v(q_)}, 0, {v(q_)}, s[52:53]"]
            b = B19 + 4*t
            L += [f"v_cvt_pk_bf16_f32 {v(tm)}, {v(m_)}, {v(m_)}", f"v_lshlrev_b32 {v(tm)}, 16, {v(tm)}", f"v_sub_f32 {v(tm)}, {v(m_)}, {v(tm)}", f"v_cvt_pk_bf16_f32 {v(b)}, {v(m_)}, {v(tm)}",
                  f"v_cvt_pk_bf16_f32 {v(b+1)}, {v(m_)}, {v(q_)}", f"v_cvt_pk_bf16_f32 {v(tm)}, {v(q_)}, {v(q_)}", f"v_lshlrev_b32 {v(tm)}, 16, {v(tm)}",
                  f"v_sub_f32 {v(tm)}, {v(q_)}, {v(tm)}", f"v_cvt_pk_bf16_f32 {v(b+2)}, {v(tm)}, {v(q_)}", f"v_mov_b32 {v(b+3)}, 0"]
            statq.append(L)
        merged = []
        for i in range(max(len(L) for L in statq)):
            for L in statq:
                if i < len(L): merged.append(L[i])
        statq = merged
        k("v_cmp_gt_u32 s[52:53], 16, v0")
    wait(('L', 0)); k("s_barrier")
    if stamps: k("s_memtime s[64:65]")
    for o in reads(0) + reads(1): k(o)
    vq = []
    busy9 = [0]
    for i in range(N):
        u, ks = steps[i]
        pre_bar = False
        if (i + 2) < 54 and (i + 2) % 6 == 0:
            c = (i + 2)//6
            while any(t == ('L', c) for _, t in vq): emit(vq.pop(0))
            wait(('L', c)); k("s_barrier")
        if alg and i == 52:
            while vq: emit(vq.pop(0))
            wait(('R',)); k("s_barrier")
        if i == PA - 2:
            while vq: emit(vq.pop(0))
            k("s_waitcnt lgkmcnt(0)"); wait(('R',)); k("s_barrier")
            vq += fixdma(UD(4)) + fixdma(UD(5))
        if i == PB - 2:
            while any(t == ('U', 4) for _, t in vq): emit(vq.pop(0))
            k("s_waitcnt lgkmcnt(0)"); wait(('U', 4)); k("s_barrier")
            vq += fixdma(UD(6)) + fixdma(UD(7))
        if i == PB + NK - 2:
            while any(t == ('U', 5) for _, t in vq): emit(vq.pop(0))
            k("s_waitcnt lgkmcnt(0)"); wait(('U', 5)); k("s_barrier")
            vq += fixdma(UD(8))
        for uu_, at in ((6, PB + 2*NK - 2), (7, PB + 3*NK - 2), (8, PB + 4*NK - 2)):
            if i == at:
                while any(t == ('U', uu_) for _, t in vq): emit(vq.pop(0))
                wait(('U', uu_))
                if signal == 'late' and uu_ == 8: wait(('S', 3))
                k("s_barrier")
                if signal == 'late' and uu_ == 8:
                    srd(k, 28, sWS, WS["CNT"], WS["CNT_SZ"])
                    k(f"s_cmp_eq_u32 {s(sw)}, 0\ns_cbranch_scc0 L_g1_nosig")
                    k(f"s_lshr_b32 {s(stmp)}, {s(sg)}, 3\ns_lshl_b32 {s(stmp2)}, {s(srb)}, 2\ns_add_u32 {s(stmp)}, {s(stmp)}, {s(stmp2)}\ns_add_u32 {s(stmp)}, {s(stmp)}, 72\ns_lshl_b32 {s(stmp)}, {s(stmp)}, 7")
                    k(f"v_mov_b32 {v(PFV+4)}, {s(stmp)}\nv_mov_b32 {v(PFV+5)}, 1\ns_mov_b64 s[56:57], exec\ns_mov_b64 exec, 1\nbuffer_atomic_add {v(PFV+5)}, {v(PFV+4)}, s[28:31], 0 offen sc1\ns_mov_b64 exec, s[56:57]")
                    k("L_g1_nosig:")
                    k("s_nop 0")
        if i == PB + 3*NK + 4 and w2pf:
            k(f"s_bfe_u32 {s(stmp)}, s2, 0x20001\ns_mul_i32 {s(stmp)}, {s(stmp)}, {36*36*1024}\ns_lshr_b32 {s(stmp2)}, s2, 3\ns_lshl_b32 {s(stmp2)}, {s(stmp2)}, 2\ns_add_u32 {s(stmp2)}, {s(stmp2)}, {s(sw)}\ns_mul_i32 {s(stmp2)}, {s(stmp2)}, {81*128}\ns_add_u32 {s(stmp)}, {s(stmp)}, {s(stmp2)}")
            srd(k, 28, sWS, WS["W2F"], WS["W2F_SZ"])
            k(f"v_lshlrev_b32 {v(PFV+4)}, 7, v0")
            emit((f"buffer_load_dword {v(PFV+5)}, {v(PFV+4)}, s[28:31], {s(stmp)} offen\ns_add_u32 {s(stmp)}, {s(stmp)}, {17*128}", ('Z',)))
            emit((f"buffer_load_dword {v(PFV+5)}, {v(PFV+4)}, s[28:31], {s(stmp)} offen", ('Z',)))
        if i == PB + 4*NK + 2 and prefetch:
            k(f"s_cmp_lt_u32 s2, 8\ns_cbranch_scc0 L_g1_nopf\ns_cmp_eq_u32 {s(sw)}, 0\ns_cbranch_scc0 L_g1_nopf")
            for pf in prefetch: touch_code(k, pf[0], pf[1], vt=PFV if alg else 216, end=(pf[2] if len(pf) > 2 else None))
            k("L_g1_nopf:")
            k("s_nop 0")
        if signal == 'late' and i == N - 12:
            k(f"s_and_b32 {s(stmp)}, s2, 1\ns_lshl_b32 {s(stmp)}, {s(stmp)}, 2\ns_bfe_u32 {s(stmp2)}, s2, 0x20004\ns_add_u32 {s(stmp)}, {s(stmp)}, {s(stmp2)}\ns_lshl_b32 {s(stmp)}, {s(stmp)}, 2\ns_bfe_u32 {s(stmp2)}, s2, 0x20001\ns_add_u32 {s(stmp)}, {s(stmp)}, {s(stmp2)}\ns_add_u32 {s(stmp)}, {s(stmp)}, 72\ns_lshl_b32 {s(stmp)}, {s(stmp)}, 7")
            k(f"v_mov_b32 {v(PFV+6)}, {s(stmp)}\ns_mov_b64 s[56:57], exec\ns_mov_b64 exec, 1")
            emit((f"buffer_load_dword {v(PFV+7)}, {v(PFV+6)}, s[28:31], 0 offen sc1", ('E',)))
            k("s_mov_b64 exec, s[56:57]")
        if signal == 'late' and i == N - 3:
            wait(('E',))
            k(f"v_readfirstlane_b32 {s(stmp)}, {v(PFV+7)}\ns_cmp_ge_u32 {s(stmp)}, 8\ns_cbranch_scc1 L_g1_early")
            k(f"s_mov_b32 {s(stmp2)}, 0\ns_mov_b64 s[56:57], exec\ns_mov_b64 exec, 1")
            k("L_g1_espin:")
            k(f"buffer_load_dword {v(PFV+7)}, {v(PFV+6)}, s[28:31], 0 offen sc1\ns_waitcnt vmcnt(0)\nv_readfirstlane_b32 {s(stmp)}, {v(PFV+7)}")
            k(f"s_cmp_ge_u32 {s(stmp)}, 8\ns_cbranch_scc1 L_g1_edone\ns_add_u32 {s(stmp2)}, {s(stmp2)}, 1\ns_cmp_lt_u32 {s(stmp2)}, 0x100000\ns_cbranch_scc0 L_g1_edone\ns_sleep 2\ns_branch L_g1_espin")
            k("L_g1_edone:")
            k("s_mov_b64 exec, s[56:57]")
            k("L_g1_early:")
            k("s_nop 0")
        if i < 54 and i % 6 == 0:
            c = i//6 + PDS
            if c < 9: vq += LG(c)
            if i//6 == 9 - PDS or (PDS > 8 and i == 0): vq += fixdma(W23rest()) + (LG9() if alg else [])
        if u >= 4 and i == first_step[u]:
            while any(o[1] == u - 4 for o in epiq): emit_epi(epiq.pop(0))
        rd = reads(i+2) if i + 2 < N else []
        synced = i in (PA - 2, PB - 2, PB + NK - 2)
        if not synced:
            nout = (2 if i + 1 < N else 0)
            k(f"s_waitcnt lgkmcnt({nout})")
        X = ACC + 32*(u % 4); slot = RING + 8*(i % 3)
        budget = cap
        nv = -(-len(vq) // max(1, 6 if i < PA else 9)) if vq else 0
        nv = min(nv, 3)
        for j in range(8):
            m, t = j // 4, j % 4
            acc = X + 16*m + 4*t
            c = "0" if ks == 0 else v(acc, 4)
            k(f"v_mfma_f32_16x16x32_bf16 {v(acc,4)}, {v(slot+4*m,4)}, {xr(t,ks)}, {c}")
            used = 0
            if rd and j in (0, 1): k(rd.pop(0)); used += 1
            if vq and nv > 0 and j in (2, 4, 6):
                emit(vq.pop(0)); nv -= 1; used += 2; budget -= 2
            if statq and i >= 6 and used < 2:
                k(statq.pop(0)); used += 1
                if statq and used < 2: k(statq.pop(0)); used += 1
            while epiq and epiq[0][0] <= i and used < 2 and budget > 0:
                o = epiq[0]
                if used + min(o[3], 2) > 2 and used > 0: break
                epiq.pop(0); emit_epi(o); used += o[3]; budget -= o[3]
        if i == 50: assert not statq
        if i == last_step[u]:
            epiq += [(i + 2, u, o, c, tg) for o, c, tg in epi(u)]
    if stamps: k("s_memtime s[66:67]")
    if signal == 'late': k("s_barrier")
    k("s_nop 7")
    while epiq: emit_epi(epiq.pop(0))
    if stamps:
        k("s_waitcnt vmcnt(0)\ns_memtime s[68:69]\ns_memrealtime s[70:71]\ns_waitcnt lgkmcnt(0)")
        srd(k, 24, sWS, WS["AUX"], WS["AUX_SZ"])
        k(f"s_lshl_b32 {s(stmp)}, s2, 3\ns_add_u32 {s(stmp)}, {s(stmp)}, {s(sw)}\ns_lshl_b32 {s(stmp)}, {s(stmp)}, 6\nv_mov_b32 v9, {s(stmp)}")
        for i, (x, y) in enumerate(((64,60),(66,60),(68,60),(70,62))):
            k(f"s_sub_u32 s72, s{x}, s{y}\nv_mov_b32 v8, s72\nbuffer_store_dword v8, v9, s[24:27], 0 offen offset:{4*i}")
        k(f"v_mov_b32 v8, s62\nbuffer_store_dword v8, v9, s[24:27], 0 offen offset:16")
    if signal == 'late':
        k("s_mov_b32 s78, s33\ns_mov_b32 s79, s34")
        k("L_pg_g2:")
    elif signal:
            k("s_waitcnt vmcnt(0)\ns_barrier")
            k(f"s_cmp_eq_u32 {s(sw)}, 0\ns_cbranch_scc0 L_pg_g2")
            srd(k, 28, sWS, WS["CNT"], WS["CNT_SZ"])
            k(f"s_mul_i32 {s(stmp)}, {s(sg)}, 29\ns_lshr_b32 {s(stmp)}, {s(stmp)}, 8\ns_min_u32 {s(stmp)}, {s(stmp)}, 3\ns_lshl_b32 {s(stmp2)}, {s(srb)}, 2\ns_add_u32 {s(stmp)}, {s(stmp)}, {s(stmp2)}\ns_add_u32 {s(stmp)}, {s(stmp)}, 72\ns_lshl_b32 {s(stmp)}, {s(stmp)}, 7")
            k(f"s_add_u32 {s(stmp2)}, {s(stmp2)}, 75\ns_lshl_b32 {s(stmp2)}, {s(stmp2)}, 7\nv_mov_b32 v8, {s(stmp)}\nv_mov_b32 v9, {s(stmp2)}\nv_mov_b32 v10, 1")
            k("s_mov_b64 s[56:57], exec\ns_mov_b64 exec, 1\nbuffer_atomic_add v10, v8, s[28:31], 0 offen sc1\nbuffer_atomic_add v10, v9, s[28:31], 0 offen sc1\ns_mov_b64 exec, s[56:57]")
            k("L_pg_g2:")
    if fused: return
    k("L_g1_end:\ns_endpgm")
    return k, (256, 256, 4*US)


def gen_pg(**kw):
    import k_p3
    k = Kern("pg_kernel", vgprs=248, agprs=256)
    k("s_cmp_ge_u32 s2, 256\ns_cbranch_scc1 L_pg_end")
    k(f"s_load_dwordx2 s[4:5], s[0:1], {KA['ws']}")
    k("v_lshrrev_b32 v14, 6, v0\nv_and_b32 v0, 63, v0\nv_readfirstlane_b32 s32, v14")
    k_p3.gen_p3(k=k)
    gen_g1(k=k, **kw)
    k("L_pg_end:\ns_endpgm")
    return k, (256, 256, 4*19*2048)


def gen_pgg(wt_upto=8, marks=False, late=True, prog=True, g2kw={}, **kw):
    import k_p3, k_g2d
    k = Kern("pg_kernel", vgprs=248, agprs=256)
    k("s_cmp_ge_u32 s2, 256\ns_cbranch_scc1 L_pg_end")
    k(f"s_load_dwordx2 s[4:5], s[0:1], {KA['ws']}")
    k("v_lshrrev_b32 v14, 6, v0\nv_and_b32 v0, 63, v0\nv_readfirstlane_b32 s32, v14")
    k_p3.gen_p3(k=k, prog=prog)
    gen_g1(k=k, wt_upto=8, signal=('late' if late else True), w2pf=False, prefetch=[("L_pg_g2", 7, "pg_kernel_codeend")], **kw)
    k_g2d.gen_g2(k=k, late=late, **g2kw)
    if marks:
        from k_g1 import srd as _srd
        pts = {"L_pg_g1:": 1, "L_pg_met:": 2, "L_pg_g2:": 3}
        for o in range(4): pts[f"L_g2_hh{o}:"] = 4; pts[f"L_g2_nolate{o}:"] = 4; pts[f"L_g2_met{o}:"] = 5
        L = ["    s_memrealtime s[60:61]"]
        for l in k.L:
            L.append(l)
            if l.strip() in pts: L.append(f"    s_memrealtime s[{60+2*pts[l.strip()]}:{61+2*pts[l.strip()]}]")
        k.L = L
        k("s_waitcnt vmcnt(0)\ns_memrealtime s[72:73]\ns_waitcnt lgkmcnt(0)")
        _srd(k, 24, 4, WS["AUX"], WS["AUX_SZ"])
        k("s_lshl_b32 s39, s2, 3\ns_add_u32 s39, s39, s32\ns_lshl_b32 s39, s39, 6\nv_mov_b32 v9, s39")
        for i in range(7): k(f"v_mov_b32 v8, s{60+2*i}\nbuffer_store_dword v8, v9, s[24:27], 0 offen offset:{4*i}")
    k("L_pg_end:\ns_endpgm")
    return k, (256, 256, 4*19*2048)
```

```python
from asmgen import *
from layout import *
from k_g1 import srd, spread

D = [[0, 1], [2, 3], [4, 5], [6, 7, 8]]

def gen_g2(stamps=False, PB=5, SIG=26, NPUB=8, TAKE=11, touch=False, dbg='', PAD=0, three=False, outpol='', k=None, late=False):
    SL = 36864; NSL = 4
    RS2 = 36*1024 + (128*PAD if PAD else 0)
    fused = k is not None
    if not fused: k = Kern("g2a_kernel", vgprs=232, agprs=256)
    ldpol = " sc1" if fused else ""
    sWS = 4
    rW2, rHH, rP2, rCNT, rX1, rMOD, rOUT = 12, 16, 24, 28, 44, 48, 52
    sw, srb, scs, skq, saF, sb0, sb1, stmp, stmp2, saS, sgrp, sbase = range(32, 44)
    sspin, stile, sdt0, sldw = 56, 57, 58, 59
    vl16, vS, vcn = 1, 2, 6
    XV = 8
    ACC = 40
    AF = 112
    PK = 168
    XR = 200; GB = 212
    T0 = 224
    acc = lambda t, dt: ACC + (t*9+dt)*4
    def xr(t, st):
        i = (st*2 + t)*4
        return a(i, 4) if i < 256 else v(XV + i - 256, 4)
    if not fused:
        k("s_cmp_ge_u32 s2, 256\ns_cbranch_scc1 L_g2a_end")
        k(f"s_load_dwordx2 {s(sWS,2)}, s[0:1], {KA['ws']}\ns_load_dwordx2 s[6:7], s[0:1], {KA['out']}")
        if stamps: k("s_memtime s[60:61]\ns_memrealtime s[62:63]")
        k(f"v_lshrrev_b32 v8, 6, v0\nv_and_b32 v0, 63, v0\nv_readfirstlane_b32 {s(sw)}, v8")
    else:
        k(f"s_load_dwordx2 s[6:7], s[0:1], {KA['out']}")
    k(f"v_lshlrev_b32 {v(vl16)}, 4, v0")
    for i in range(NSL): k(f"v_add_u32 {v(vS+i)}, {i*SL}, {v(vl16)}")
    k(f"s_lshr_b32 {s(skq)}, s2, 1\ns_and_b32 {s(skq)}, {s(skq)}, 3\ns_and_b32 {s(stmp)}, s2, 1\ns_lshl_b32 {s(srb)}, {s(stmp)}, 3")
    k(f"s_lshr_b32 {s(stmp)}, s2, 3\ns_and_b32 {s(stmp2)}, {s(stmp)}, 7\ns_add_u32 {s(srb)}, {s(srb)}, {s(stmp2)}\ns_lshr_b32 {s(scs)}, {s(stmp)}, 3")
    k(f"s_lshl_b32 {s(stile)}, {s(srb)}, 3\ns_lshl_b32 {s(stmp2)}, {s(sw)}, 1\ns_add_u32 {s(stile)}, {s(stile)}, {s(stmp2)}")
    if late:
        k(f"s_mul_i32 {s(sb0)}, {s(stile)}, {144*1024}")
        k(f"s_mul_i32 {s(saS)}, {s(scs)}, {9*1024}")
        k(f"s_lshr_b32 {s(stmp)}, {s(sw)}, 1\ns_lshl_b32 {s(stmp)}, {s(stmp)}, 2\ns_and_b32 {s(stmp2)}, {s(sw)}, 1\ns_add_u32 {s(stmp)}, {s(stmp)}, {s(stmp2)}\ns_mul_i32 {s(stmp)}, {s(stmp)}, {RS2}\ns_add_u32 {s(saF)}, {s(saS)}, {s(stmp)}")
        k(f"s_mul_i32 {s(stmp)}, {s(sw)}, {RS2}\ns_add_u32 {s(sb1)}, {s(saS)}, {s(stmp)}")
        k(f"s_mul_i32 s80, {s(sw)}, 3")
    else:
        k(f"s_mul_i32 {s(sb0)}, {s(stile)}, {144*1024}\ns_mul_i32 {s(stmp2)}, {s(skq)}, {36*1024}\ns_add_u32 {s(sb0)}, {s(sb0)}, {s(stmp2)}\ns_add_u32 {s(sb1)}, {s(sb0)}, {144*1024}")
        k(f"s_mul_i32 {s(saF)}, {s(skq)}, {36*RS2}\ns_mul_i32 {s(stmp2)}, {s(scs)}, {9*1024}\ns_add_u32 {s(saF)}, {s(saF)}, {s(stmp2)}")
        k(f"s_mul_i32 {s(stmp)}, {s(sw)}, {RS2}\ns_mul_i32 {s(stmp2)}, {s(stmp)}, 3\ns_add_u32 {s(saS)}, {s(saF)}, {s(stmp2)}\ns_add_u32 {s(saF)}, {s(saF)}, {s(stmp)}")
    k(f"s_lshl_b32 {s(sgrp)}, {s(srb)}, 2\ns_add_u32 {s(sgrp)}, {s(sgrp)}, {s(scs)}")
    k(f"s_mul_i32 {s(sdt0)}, {s(scs)}, 9\ns_lshl_b32 {s(stmp)}, {s(skq)}, 1\ns_add_u32 {s(sdt0)}, {s(sdt0)}, {s(stmp)}")
    k(f"s_lshl_b32 {s(stmp)}, {s(sgrp)}, 7\nv_mov_b32 {v(vcn)}, {s(stmp)}")
    k("s_waitcnt lgkmcnt(0)")
    srd(k, rW2, sWS, WS["W2F"], WS["W2F_SZ"]); srd(k, rHH, sWS, WS["HHF"], WS["HHF_SZ"])
    srd(k, rP2, sWS, WS["PART2"], WS["PART2_SZ"]); srd(k, rCNT, sWS, WS["CNT"], WS["CNT_SZ"]); srd(k, rX1, sWS, WS["X1F"], WS["X1F_SZ"])
    srd(k, rMOD, sWS, WS["MOD"], WS["MOD_SZ"]); srd(k, rOUT, 6, 0, 2048*1152)
    for o in range(3): k(f"s_cmp_eq_u32 {s(skq)}, {o}\ns_cbranch_scc1 L_g2_v{o}")
    k("s_branch L_g2_v3")

    def variant(o):
        dS = D[o]; nS = len(dS)
        def ik(st):
            if st < 16: return 32*o + 4*(st >> 1) + (st & 1)
            if st < 32: return 32*o + 4*((st - 16) >> 1) + 2 + (st & 1)
            return 128 + 4*o + (st - 32)
        owners = [x for x in range(4) if x != o]
        o1, o2, o3 = (o+1) & 3, (o+2) & 3, (o+3) & 3
        phases = [('F', D[o1] + D[o2], 4), ('G', D[o3], 12), ('S', dS, 12)] if three else [('F', D[o1] + D[o2] + D[o3], 4), ('S', dS, 12)]
        chunks = []
        steps = []
        for pi, (nm, dts, cs_) in enumerate(phases):
            for st in range(36):
                if st % cs_ == 0: chunks.append((pi, st))
                steps.append((pi, st, len(chunks)-1, st % cs_))
        NC = len(chunks); N = len(steps)
        vm = []; q = []
        def emit(op):
            if isinstance(op, tuple): k(op[0]); vm.append(op[1])
            else: k(op)
        def wait(*tags):
            idx = [i for i, t in enumerate(vm) if t in tags]
            k(f"s_waitcnt vmcnt({min(63, len(vm) - 1 - max(idx))})")
        def flush(tag):
            while any(isinstance(x, tuple) and x[1] == tag for x in q): emit(q.pop(0))
        def runs(lst):
            out = []; cur = [lst[0]]
            for x in lst[1:]:
                if x == cur[-1] + 1 and len(cur) < 4: cur.append(x)
                else: out.append(cur); cur = [x]
            out.append(cur); return out
        def wdma(c):
            ops = []; slot = (c % NSL)*SL
            pi, st0 = chunks[c]; nm, dts, cs_ = phases[pi]; n = len(dts)
            if cs_ == 4:
                p = 0
                for run in runs(dts):
                    for i, dt in enumerate(run):
                        hd = ""
                        if i == 0 and late:
                            if st0 < 32: src = f"s_add_u32 {s(stmp2)}, {s(saF)}, {ik(st0)*RS2 + dt*1024}"
                            else: src = f"s_add_u32 {s(stmp2)}, {s(sb1)}, {ik(st0)*RS2 + dt*1024}"
                            hd = f"s_mul_i32 {s(stmp)}, {s(sw)}, {n*1024}\ns_add_u32 m0, {s(stmp)}, {slot + p*1024}\n{src}\n"
                        elif i == 0: hd = f"s_mul_i32 {s(stmp)}, {s(sw)}, {n*1024}\ns_add_u32 m0, {s(stmp)}, {slot + p*1024}\ns_add_u32 {s(stmp2)}, {s(saF)}, {st0*RS2 + dt*1024}\n"
                        ops.append((hd + f"buffer_load_dwordx4 {v(vl16)}, {s(rW2,4)}, {s(stmp2)} offen offset:{i*1024} lds", ('W', c)))
                    p += len(run)
            else:
                for ls in range(3):
                    for i, dt in enumerate(dts):
                        hd = ""
                        if i == 0 and late:
                            hd = (f"s_add_u32 s81, s80, {st0 + ls}\ns_and_b32 s82, s81, 15\ns_lshr_b32 s83, s82, 1\ns_lshl_b32 s83, s83, 2\ns_and_b32 s82, s82, 1\ns_add_u32 s83, s83, s82\n"
                                  f"s_lshr_b32 s82, s81, 4\ns_lshl_b32 s82, s82, 1\ns_add_u32 s83, s83, s82\ns_add_u32 s83, s83, {32*o}\ns_add_u32 s82, s81, {96 + 4*o}\ns_cmp_ge_u32 s81, 32\ns_cselect_b32 s83, s82, s83\n"
                                  f"s_mul_i32 s83, s83, {RS2}\ns_add_u32 s83, s83, {s(saS)}\ns_add_u32 {s(stmp2)}, s83, {dt*1024}\n"
                                  f"s_mul_i32 {s(stmp)}, {s(sw)}, {3*n*1024}\ns_add_u32 m0, {s(stmp)}, {slot + ls*n*1024}\ns_nop 0\n")
                        elif i == 0: hd = f"s_mul_i32 {s(stmp)}, {s(sw)}, {3*n*1024}\ns_add_u32 m0, {s(stmp)}, {slot + ls*n*1024}\ns_add_u32 {s(stmp2)}, {s(saS)}, {(st0 + ls)*RS2 + dt*1024}\n"
                        ops.append((hd + f"buffer_load_dwordx4 {v(vl16)}, {s(rW2,4)}, {s(stmp2)} offen offset:{i*1024} lds", ('W', c)))
            return ops
        def bload(st):
            if late:
                return [(f"s_add_u32 s87, {s(sb0)}, {ik(st)*1024}\nbuffer_load_dwordx4 {xr(0,st)}, {v(vl16)}, {s(rHH,4)}, s87 offen{ldpol}", ('B', st)),
                        (f"s_add_u32 s87, {s(sb0)}, {ik(st)*1024 + 144*1024}\nbuffer_load_dwordx4 {xr(1,st)}, {v(vl16)}, {s(rHH,4)}, s87 offen{ldpol}", ('B', st))]
            return [(f"buffer_load_dwordx4 {xr(0,st)}, {v(vl16)}, {s(rHH,4)}, {s(sb0)} offen{ldpol}", ('B', st)),
                    (f"buffer_load_dwordx4 {xr(1,st)}, {v(vl16)}, {s(rHH,4)}, {s(sb1)} offen{ldpol}\ns_add_u32 {s(sb0)}, {s(sb0)}, 1024\ns_add_u32 {s(sb1)}, {s(sb1)}, 1024", ('B', st))]
        def abuf(i):
            return AF + ((i % 2)*28 if steps[i][0] == 0 else (i % 4)*12)
        def areads(i):
            pi, st, c, ls = steps[i]; dts = phases[pi][1]; n = len(dts)
            return [f"ds_read_b128 {v(abuf(i) + 4*j, 4)}, {v(vS + c % NSL)} offset:{(ls*n + j)*1024}" for j in range(n)]
        pkbase = {}; r = PK
        for x in owners:
            pkbase[x] = r; r += 4*(3 if len(D[x]) == 3 else 2)
        def pk(t, dt):
            x = [y for y in range(4) if dt in D[y]][0]; jj = D[x].index(dt)
            return pkbase[x] + (4*t + 2*jj if jj < 2 else 8 + 2*t)
        def publish_ops(xs):
            ops = []
            for x in xs:
                for t in range(2):
                    for dt in D[x]:
                        rr = acc(t, dt)
                        ops.append(f"v_cvt_pk_bf16_f32 {v(pk(t,dt))}, {v(rr)}, {v(rr+1)}"); ops.append(f"v_cvt_pk_bf16_f32 {v(pk(t,dt)+1)}, {v(rr+2)}, {v(rr+3)}")
                hd = (f"s_lshl_b32 {s(sbase)}, {s(sgrp)}, 2\ns_add_u32 {s(sbase)}, {s(sbase)}, {x}\ns_lshl_b32 {s(sbase)}, {s(sbase)}, 2\ns_add_u32 {s(sbase)}, {s(sbase)}, {o}\n"
                      f"s_lshl_b32 {s(sbase)}, {s(sbase)}, 2\ns_add_u32 {s(sbase)}, {s(sbase)}, {s(sw)}\ns_mul_i32 {s(sbase)}, {s(sbase)}, 3072\n")
                for c4 in range(3 if len(D[x]) == 3 else 2):
                    ops.append(((hd if c4 == 0 else "") + f"buffer_store_dwordx4 {v(pkbase[x] + 4*c4, 4)}, {v(vl16)}, {s(rP2,4)}, {s(sbase)} offen offset:{c4*1024} sc1", ('P',)))
            return ops
        def operand_ops():
            ops = [f"v_lshrrev_b32 {v(T0)}, 4, v0", f"v_lshlrev_b32 {v(T0)}, 4, {v(T0)}"]
            for j in range(nS):
                hd = (f"s_add_u32 {s(stmp)}, {s(sdt0)}, {j}\ns_and_b32 {s(stmp2)}, {s(stmp)}, 1\ns_lshl_b32 {s(stmp2)}, {s(stmp2)}, 3\ns_lshr_b32 {s(stmp)}, {s(stmp)}, 1\ns_lshl_b32 {s(stmp)}, {s(stmp)}, 10\n"
                      f"s_add_u32 {s(stmp)}, {s(stmp)}, {s(stmp2)}\ns_mul_i32 {s(stmp2)}, {s(stile)}, {18*1024}\ns_add_u32 {s(stmp)}, {s(stmp)}, {s(stmp2)}\n")
                ops.append((hd + f"buffer_load_dwordx2 {v(XR+4*j,2)}, {v(vl16)}, {s(rX1,4)}, {s(stmp)} offen{ldpol}\ns_add_u32 {s(stmp)}, {s(stmp)}, {18*1024}", ('X',)))
                ops.append((f"buffer_load_dwordx2 {v(XR+4*j+2,2)}, {v(vl16)}, {s(rX1,4)}, {s(stmp)} offen{ldpol}", ('X',)))
                ops.append((f"s_add_u32 {s(stmp)}, {s(sdt0)}, {j}\ns_lshl_b32 {s(stmp)}, {s(stmp)}, 6\ns_add_u32 {s(stmp)}, {s(stmp)}, {5*576*4}\nbuffer_load_dwordx4 {v(GB+4*j,4)}, {v(T0)}, {s(rMOD,4)}, {s(stmp)} offen", ('X',)))
            return ops
        k(f"L_g2_v{o}:")
        if fused and late:
            for x in wdma(0): emit(x)
            for st in range(2):
                for x in bload(st): emit(x)
            q += wdma(1) + [x for st in range(2, PB) for x in bload(st)] + wdma(2) + wdma(3)
        elif fused:
            for c_ in range(3):
                for x in wdma(c_): emit(x)
            k(f"s_cmp_eq_u32 {s(sw)}, 0\ns_cbranch_scc0 L_g2_hh{o}")
            k(f"s_lshr_b32 {s(stmp)}, {s(srb)}, 1\ns_lshl_b32 {s(stmp)}, {s(stmp)}, 2\ns_add_u32 {s(stmp)}, {s(stmp)}, {72 + o}\ns_lshl_b32 {s(stmp)}, {s(stmp)}, 7\nv_mov_b32 {v(T0+2)}, {s(stmp)}")
            k(f"s_mov_b32 {s(sspin)}, 0\ns_mov_b64 s[76:77], exec\ns_mov_b64 exec, 1")
            k(f"L_g2_hhpoll{o}:")
            k(f"buffer_load_dword {v(T0+1)}, {v(T0+2)}, {s(rCNT,4)}, 0 offen sc1\ns_waitcnt vmcnt(0)\nv_readfirstlane_b32 {s(stmp)}, {v(T0+1)}")
            k(f"s_cmp_ge_u32 {s(stmp)}, {9 if o < 3 else 37}\ns_cbranch_scc1 L_g2_hh0_{o}")
            k(f"s_add_u32 {s(sspin)}, {s(sspin)}, 1\ns_cmp_lt_u32 {s(sspin)}, 0x100000\ns_cbranch_scc0 L_g2_hh0_{o}")
            k(f"s_sleep 2\ns_branch L_g2_hhpoll{o}")
            k(f"L_g2_hh0_{o}:")
            k("s_mov_b64 exec, s[76:77]")
            k(f"L_g2_hh{o}:")
            k("s_barrier")
            for st in range(2):
                for x in bload(st): emit(x)
            q += [x for st in range(2, PB) for x in bload(st)] + wdma(3)
        else:
            for x in wdma(0): emit(x)
            for st in range(2):
                for x in bload(st): emit(x)
            q += wdma(1) + [x for st in range(2, PB) for x in bload(st)] + wdma(2) + wdma(3)
        nxt_dma = 4
        wait(('W', 0)); k("s_barrier")
        if late:
            k(f"s_cmp_eq_u32 {s(sw)}, 0\ns_cbranch_scc0 L_g2_nolate{o}")
            k(f"s_lshr_b32 {s(stmp)}, s79, 3\ns_lshl_b32 {s(stmp2)}, s78, 2\ns_add_u32 {s(stmp)}, {s(stmp)}, {s(stmp2)}\ns_add_u32 {s(stmp)}, {s(stmp)}, 128\ns_lshl_b32 {s(stmp)}, {s(stmp)}, 7")
            k(f"v_mov_b32 {v(T0+2)}, {s(stmp)}\nv_mov_b32 {v(T0+1)}, 1\ns_mov_b64 s[76:77], exec\ns_mov_b64 exec, 1\nbuffer_atomic_add {v(T0+1)}, {v(T0+2)}, {s(rCNT,4)}, 0 offen sc1\ns_mov_b64 exec, s[76:77]")
            k(f"L_g2_nolate{o}:")
            k(f"s_lshr_b32 {s(stmp)}, {s(srb)}, 1\ns_lshl_b32 {s(stmp)}, {s(stmp)}, 2\ns_add_u32 {s(stmp)}, {s(stmp)}, {128 + o}\ns_lshl_b32 {s(stmp)}, {s(stmp)}, 7\nv_mov_b32 {v(T0+5)}, {s(stmp)}")
        for x in areads(0): k(x)
        if stamps: k("s_memtime s[64:65]")
        pub = []
        lastp = len(phases) - 1
        issued = 1
        synced_chunk = 0
        lq = [len(phases[0][1])]
        for i in range(N):
            pi, st, c, ls = steps[i]; nm, dts, cs_ = phases[pi]
            dist = 1 if pi == 0 else 3
            target = min(N - 1, i + dist)
            newc = steps[target][2]
            need_sync = newc > synced_chunk
            if need_sync:
                lim = max(j for j in range(N) if steps[j][2] == synced_chunk)
                while issued <= lim:
                    for x in areads(issued): k(x)
                    lq.append(len(phases[steps[issued][0]][1])); issued += 1
                k("s_waitcnt lgkmcnt(0)"); lq = [0]*len(lq)
                cb = synced_chunk
                flush(('W', cb+1)); wait(('W', cb+1)); k("s_barrier")
                synced_chunk = cb + 1
                while nxt_dma < NC and nxt_dma <= cb + NSL and (chunks[nxt_dma][0] == 0 or nxt_dma <= cb + 2):
                    q += wdma(nxt_dma); nxt_dma += 1
            else:
                rest = sum(lq[1:])
                k(f"s_waitcnt lgkmcnt({min(rest, 15)})")
            lq.pop(0)
            if pi == 0:
                flush(('B', st)); wait(('B', st))
                if late and st == 16 - PB - 4:
                    k("s_mov_b64 s[76:77], exec\ns_mov_b64 exec, 1")
                    emit((f"buffer_load_dword {v(T0+6)}, {v(T0+5)}, {s(rCNT,4)}, 0 offen sc1", ('FL',)))
                    k("s_mov_b64 exec, s[76:77]")
                if late and st == 16 - PB:
                    wait(('FL',))
                    k(f"v_readfirstlane_b32 {s(stmp)}, {v(T0+6)}\ns_cmp_ge_u32 {s(stmp)}, 8\ns_cbranch_scc1 L_g2_lateok{o}")
                    k(f"s_mov_b32 {s(sspin)}, 0\ns_mov_b64 s[76:77], exec\ns_mov_b64 exec, 1")
                    k(f"L_g2_lspin{o}:")
                    k(f"buffer_load_dword {v(T0+6)}, {v(T0+5)}, {s(rCNT,4)}, 0 offen sc1\ns_waitcnt vmcnt(0)\nv_readfirstlane_b32 {s(stmp)}, {v(T0+6)}")
                    k(f"s_cmp_ge_u32 {s(stmp)}, 8\ns_cbranch_scc1 L_g2_ldone{o}\ns_add_u32 {s(sspin)}, {s(sspin)}, 1\ns_cmp_lt_u32 {s(sspin)}, 0x100000\ns_cbranch_scc0 L_g2_ldone{o}\ns_sleep 2\ns_branch L_g2_lspin{o}")
                    k(f"L_g2_ldone{o}:")
                    k("s_mov_b64 exec, s[76:77]")
                    k(f"L_g2_lateok{o}:")
                    k("s_nop 0")
                if st + PB < 36: q += bload(st + PB)
            if pi >= 1 and st == 0:
                if stamps and pi == 1: k("s_memtime s[66:67]")
                if three: pub += publish_ops([o1, o2] if pi == 1 else [o3])
                else: pub += publish_ops([o1, o2, o3])
                if pi == lastp: q += operand_ops()
            if pi == lastp and st == SIG:
                while pub: emit(pub.pop(0))
                wait(('P',)); k("s_barrier")
                k(f"s_cmp_eq_u32 {s(sw)}, 0\ns_cbranch_scc0 L_g2_nosig{o}")
                k(f"v_mov_b32 {v(T0+1)}, 1\ns_mov_b64 s[76:77], exec\ns_mov_b64 exec, 1\nbuffer_atomic_add {v(T0+1)}, {v(vcn)}, {s(rCNT,4)}, 0 offen sc1\ns_mov_b64 exec, s[76:77]")
                k(f"L_g2_nosig{o}:")
                k("s_nop 0")
            rd = []
            while issued <= target and steps[issued][2] <= synced_chunk:
                rd += areads(issued); lq.append(len(phases[steps[issued][0]][1])); issued += 1
            nm_ = 2*len(dts)
            take = q[:(TAKE if pi == 0 else 3)]; del q[:len(take)]
            fill = rd + take
            if pi >= 1 and st >= 1 and pub:
                fill = pub[:NPUB] + fill; del pub[:NPUB]
            slots = spread(fill, nm_)
            j = 0
            for jd, dt in enumerate(dts):
                for t in range(2):
                    cc = "0" if st == 0 else v(acc(t,dt),4)
                    k(f"v_mfma_f32_16x16x32_bf16 {v(abuf(i)*0 + acc(t,dt),4)}, {v(abuf(i) + 4*jd, 4)}, {xr(t,st)}, {cc}")
                    for x in slots[j]: emit(x)
                    j += 1
        assert nxt_dma == NC
        while q: emit(q.pop(0))
        for j, src in enumerate(owners):
            k(f"s_lshl_b32 s{84+j}, {s(sgrp)}, 2\ns_add_u32 s{84+j}, s{84+j}, {o}\ns_lshl_b32 s{84+j}, s{84+j}, 2\ns_add_u32 s{84+j}, s{84+j}, {src}\ns_lshl_b32 s{84+j}, s{84+j}, 2\ns_add_u32 s{84+j}, s{84+j}, {s(sw)}\ns_mul_i32 s{84+j}, s{84+j}, 3072")
        k(f"s_mul_i32 {s(stmp2)}, {s(sw)}, 3584\nv_and_b32 v2, 15, v0\nv_mul_u32_u24 v2, 112, v2\nv_lshrrev_b32 v3, 4, v0\nv_lshlrev_b32 v3, 3, v3\nv_add_u32 v2, v2, v3\nv_add_u32 v2, {s(stmp2)}, v2")
        if stamps: k("s_memtime s[78:79]")
        k(f"s_cmp_eq_u32 {s(sw)}, 0\ns_cbranch_scc0 L_g2_met{o}")
        k(f"s_mov_b32 {s(sspin)}, 0\ns_mov_b64 s[76:77], exec\ns_mov_b64 exec, 1")
        k(f"L_g2_poll{o}:")
        k(f"buffer_load_dword {v(T0+1)}, {v(vcn)}, {s(rCNT,4)}, 0 offen sc1\ns_waitcnt vmcnt(0)\nv_readfirstlane_b32 {s(stmp)}, {v(T0+1)}")
        k(f"s_cmp_ge_u32 {s(stmp)}, 4\ns_cbranch_scc1 L_g2_met0_{o}")
        k(f"s_add_u32 {s(sspin)}, {s(sspin)}, 1\ns_cmp_lt_u32 {s(sspin)}, 0x100000\ns_cbranch_scc0 L_g2_met0_{o}")
        k(f"s_sleep 2\ns_branch L_g2_poll{o}")
        k(f"L_g2_met0_{o}:")
        k("s_mov_b64 exec, s[76:77]")
        k(f"L_g2_met{o}:")
        k("s_barrier")
        if stamps: k("s_memtime s[80:81]")
        FG = AF
        nch = 3 if nS == 3 else 2
        for j, src in enumerate(owners):
            for c4 in range(nch): k(f"buffer_load_dwordx4 {v(FG+j*12+c4*4,4)}, {v(vl16)}, {s(rP2,4)}, s{84+j} offen offset:{c4*1024} sc1")
        k(f"s_mul_i32 {s(stmp)}, {s(sw)}, 3584")
        k("s_waitcnt vmcnt(0)")
        if stamps: k("s_memtime s[82:83]")
        for t in range(2):
            for jj, dt in enumerate(dS):
                r_ = acc(t,dt)
                c4, h = (t, jj) if jj < 2 else (2, t)
                for j in range(3):
                    f = FG + j*12 + c4*4 + 2*h
                    k(f"v_lshlrev_b32 v4, 16, {v(f)}\nv_and_b32 v5, 0xffff0000, {v(f)}\nv_add_f32 {v(r_)}, {v(r_)}, v4\nv_add_f32 {v(r_+1)}, {v(r_+1)}, v5")
                    k(f"v_lshlrev_b32 v4, 16, {v(f+1)}\nv_and_b32 v5, 0xffff0000, {v(f+1)}\nv_add_f32 {v(r_+2)}, {v(r_+2)}, v4\nv_add_f32 {v(r_+3)}, {v(r_+3)}, v5")
                x = XR + 4*jj + 2*t; g = GB + 4*jj
                k(f"v_lshlrev_b32 v4, 16, {v(x)}\nv_and_b32 v5, 0xffff0000, {v(x)}\nv_fma_f32 {v(r_)}, {v(g)}, {v(r_)}, v4\nv_fma_f32 {v(r_+1)}, {v(g+1)}, {v(r_+1)}, v5")
                k(f"v_lshlrev_b32 v4, 16, {v(x+1)}\nv_and_b32 v5, 0xffff0000, {v(x+1)}\nv_fma_f32 {v(r_+2)}, {v(g+2)}, {v(r_+2)}, v4\nv_fma_f32 {v(r_+3)}, {v(g+3)}, {v(r_+3)}, v5")
                k(f"v_cvt_pk_bf16_f32 {v(r_)}, {v(r_)}, {v(r_+1)}\nv_cvt_pk_bf16_f32 {v(r_+1)}, {v(r_+2)}, {v(r_+3)}")
                k(f"ds_write_b64 v2, {v(r_,2)} offset:{t*16*112 + jj*32}")
        upr = 2*nS; nins = (32*upr)//64
        k(f"s_lshl_b32 {s(stmp2)}, {s(stile)}, 4\ns_mul_i32 {s(stmp2)}, {s(stmp2)}, 1152\ns_lshl_b32 {s(sbase)}, {s(sdt0)}, 5\ns_add_u32 {s(stmp2)}, {s(stmp2)}, {s(sbase)}")
        k("s_waitcnt lgkmcnt(0)")
        for e in range(nins):
            magic = 16384 if upr == 4 else 10923
            k(f"v_add_u32 v3, {64*e}, v0\nv_mul_u32_u24 v4, {magic}, v3\nv_lshrrev_b32 v4, 16, v4\nv_mul_u32_u24 v5, {upr}, v4\nv_sub_u32 v3, v3, v5\nv_lshlrev_b32 v3, 4, v3")
            k(f"v_mul_u32_u24 v5, 112, v4\nv_add_u32 v5, v5, v3\nv_add_u32 v5, {s(stmp)}, v5\nds_read_b128 {v(PK+4*e,4)}, v5")
            k(f"v_mul_u32_u24 v4, 1152, v4\nv_add_u32 {v(T0+2+e)}, v4, v3")
        k("s_waitcnt lgkmcnt(0)")
        for e in range(nins): k(f"buffer_store_dwordx4 {v(PK+4*e,4)}, {v(T0+2+e)}, {s(rOUT,4)}, {s(stmp2)} offen" + outpol)
        k("s_branch L_g2a_done")
    for o in range(4): variant(o)
    k("L_g2a_done:")
    if fused: return
    if stamps:
        k("s_waitcnt vmcnt(0)\ns_memtime s[68:69]\ns_memrealtime s[70:71]\ns_waitcnt lgkmcnt(0)")
        srd(k, 24, sWS, WS["AUX"], WS["AUX_SZ"])
        k(f"s_lshl_b32 {s(stmp)}, s2, 3\ns_add_u32 {s(stmp)}, {s(stmp)}, {s(sw)}\ns_lshl_b32 {s(stmp)}, {s(stmp)}, 6\nv_mov_b32 v9, {s(stmp)}")
        for i, (x, y) in enumerate(((64,60),(66,60),(68,60),(70,62))):
            k(f"s_sub_u32 s72, s{x}, s{y}\nv_mov_b32 v8, s72\nbuffer_store_dword v8, v9, s[24:27], 0 offen offset:{4*i}")
        k(f"v_mov_b32 v8, s62\nbuffer_store_dword v8, v9, s[24:27], 0 offen offset:16")
        for i, x in enumerate((78, 80, 82)):
            k(f"s_sub_u32 s72, s{x}, s60\nv_mov_b32 v8, s72\nbuffer_store_dword v8, v9, s[24:27], 0 offen offset:{20+4*i}")
    k("L_g2a_end:\ns_endpgm")
    return k, (256, 256, NSL*SL)
```

```python
from asmgen import *
from layout import *
from k_g1 import srd, spread

NCRIT = 18

def mod_role(k, sWS):
    sC, sW, sD = 6, 8, 10
    rW, rC, rMOD, rDBG = 12, 16, 20, 24
    stmp, spart, sj = 32, 33, 34
    k("L_k01_mod:")
    k(f"s_sub_u32 {s(sj)}, s2, 192")
    k(f"s_load_dwordx2 {s(sC,2)}, s[0:1], {KA['c']}\ns_load_dwordx2 {s(sW,2)}, s[0:1], {KA['wmod']}\ns_load_dwordx2 {s(sD,2)}, s[0:1], {KA['dbg']}")
    k("v_and_b32 v1, 7, v0\nv_lshrrev_b32 v2, 3, v0")
    k("v_mul_u32_u24 v3, 6912, v2\nv_lshlrev_b32 v4, 4, v1\nv_add_u32 v3, v3, v4")
    k(f"s_lshl_b32 {s(stmp)}, {s(sj)}, 7\nv_add_u32 v3, {s(stmp)}, v3")
    k("v_lshlrev_b32 v4, 1, v2")
    k("s_waitcnt lgkmcnt(0)")
    srd(k, rW, sW, 0, 576*6912); srd(k, rC, sC, 0, 1152); srd(k, rMOD, sWS, WS["MOD"], WS["MOD_SZ"]); srd(k, rDBG, sD, 0, 256)
    C = 8; W = 28
    for i in range(18): k(f"buffer_load_ushort {v(C+i)}, v4, {s(rC,4)}, 0 offen offset:{64*i}")
    for i in range(18): k(f"s_mov_b32 {s(stmp)}, {i*32*6912}\nbuffer_load_dwordx4 {v(W+4*i,4)}, v3, {s(rW,4)}, {s(stmp)} offen")
    k("s_waitcnt vmcnt(18)")
    T = 100
    for i in range(18): k(f"v_lshlrev_b32 {v(C+i)}, 16, {v(C+i)}")
    for b in range(0, 18, 6):
        es = range(b, b+6)
        for i in es: k(f"v_mul_f32 {v(T+i-b)}, 0xbfb8aa3b, {v(C+i)}")
        for i in es: k(f"v_exp_f32 {v(T+i-b)}, {v(T+i-b)}")
        for i in es: k(f"v_add_f32 {v(T+i-b)}, 1.0, {v(T+i-b)}")
        for i in es: k(f"v_rcp_f32 {v(T+i-b)}, {v(T+i-b)}")
        for i in es: k(f"v_mul_f32 {v(C+i)}, {v(C+i)}, {v(T+i-b)}")
        for i in es: k(f"v_cvt_pk_bf16_f32 {v(C+i)}, {v(C+i)}, {v(C+i)}")
        for i in es: k(f"v_lshlrev_b32 {v(C+i)}, 16, {v(C+i)}")
    A = 108
    for e in range(8): k(f"v_mov_b32 {v(A+e)}, 0")
    for i in range(18):
        k(f"s_waitcnt vmcnt({17-i})")
        for j in range(4):
            k(f"v_lshlrev_b32 {v(T+2*(j%2))}, 16, {v(W+4*i+j)}\nv_and_b32 {v(T+2*(j%2)+1)}, 0xffff0000, {v(W+4*i+j)}")
            k(f"v_fmac_f32 {v(A+2*j)}, {v(T+2*(j%2))}, {v(C+i)}\nv_fmac_f32 {v(A+2*j+1)}, {v(T+2*(j%2)+1)}, {v(C+i)}")
    k("v_lshlrev_b32 v5, 8, v2\nv_lshlrev_b32 v6, 5, v1\nv_add_u32 v5, v5, v6")
    k(f"ds_write_b128 v5, {v(A,4)}\nds_write_b128 v5, {v(A+4,4)} offset:16")
    k("s_waitcnt lgkmcnt(0)\ns_barrier")
    k("v_cmp_gt_u32 vcc, 64, v0\ns_and_saveexec_b64 s[40:41], vcc\ns_cbranch_execz L_k01_end")
    k("v_lshlrev_b32 v5, 2, v0")
    for r in range(32): k(f"ds_read_b32 {v(W+r)}, v5 offset:{r*256}")
    k("s_waitcnt lgkmcnt(0)")
    for st in (16, 8, 4, 2, 1):
        for r in range(st): k(f"v_add_f32 {v(W+r)}, {v(W+r)}, {v(W+r+st)}")
    k(f"v_cvt_pk_bf16_f32 {v(W)}, {v(W)}, {v(W)}\nv_lshlrev_b32 {v(W)}, 16, {v(W)}")
    k(f"s_mul_i32 {s(spart)}, {s(sj)}, 7282\ns_lshr_b32 {s(spart)}, {s(spart)}, 16")
    k(f"s_cmp_eq_u32 {s(spart)}, 1\ns_cbranch_scc1 L_k01_madd\ns_cmp_eq_u32 {s(spart)}, 4\ns_cbranch_scc0 L_k01_mst")
    k("L_k01_madd:")
    k(f"v_add_f32 {v(W)}, 1.0, {v(W)}\nv_cvt_pk_bf16_f32 {v(W)}, {v(W)}, {v(W)}\nv_lshlrev_b32 {v(W)}, 16, {v(W)}")
    k("L_k01_mst:")
    k(f"s_lshl_b32 {s(stmp)}, {s(sj)}, 8\nbuffer_store_dword {v(W)}, v5, {s(rMOD,4)}, {s(stmp)} offen sc1")
    k(f"s_cmp_lt_u32 {s(sj)}, {NCRIT}\ns_cbranch_scc0 L_k01_end")
    k("s_waitcnt vmcnt(0)")
    k("v_mov_b32 v6, 0\nv_mov_b32 v7, 1\ns_mov_b64 exec, 1")
    k(f"buffer_atomic_add v7, v6, {s(rDBG,4)}, 0 offen sc1")
    k("s_branch L_k01_end")

def gen_k01(stamps=False, touch=True, prefetch=True, repack=True):
    k = Kern("k01_kernel", vgprs=256, agprs=84)
    SLOT = 9216; NSL = 16; MODL = NSL*SLOT
    sWS, sX, sW, sD = 4, 6, 8, 10
    rW, rX, rMOD, rQM, rQR, rKV, rDBG = 12, 16, 20, 24, 28, 44, 48
    sw, srb, scs, stmp, stmp2, ssrc, sqt, sh0, skind, sspin = range(32, 42)
    vl16 = 1
    vAb = [2, 3, 4]; vA2b = [5, 6, 7]; vM = 8
    vPk = [1, 9, 10]
    X = 16; ACC = 160; GS = 232; T = 248
    PAT = ACC
    xr = lambda t, ks: X + (t*18+ks)*4
    acc = lambda u, t: ACC + (u*2+t)*4
    k("s_cmp_ge_u32 s2, 254\ns_cbranch_scc1 L_k01_end")
    if prefetch:
        k("s_cmp_ge_u32 s2, 246\ns_cbranch_scc0 L_k01_main")
        k("v_cmp_gt_u32 vcc, 64, v0\ns_and_saveexec_b64 s[40:41], vcc\ns_cbranch_execz L_k01_end")
        touch_code(k, "L_k01_main", 5, end="k01_kernel_codeend")
        touch_code(k, "att_kernel", 3, vt=6)
        k("s_cmp_eq_u32 s2, 246\ns_cbranch_scc0 L_k01_end")
        k(f"s_load_dwordx2 s[4:5], s[0:1], {KA['ws']}\ns_waitcnt lgkmcnt(0)")
        srd(k, 12, 4, WS["CNT"], WS["CNT_SZ"])
        k("v_lshlrev_b32 v20, 7, v0\nv_mov_b32 v21, 0\nbuffer_store_dword v21, v20, s[12:15], 0 offen\ns_mov_b32 s16, 8192\nbuffer_store_dword v21, v20, s[12:15], s16 offen\ns_mov_b32 s16, 16384\nbuffer_store_dword v21, v20, s[12:15], s16 offen")
        k("s_branch L_k01_end")
        k("L_k01_main:")
    else:
        k("s_cmp_ge_u32 s2, 246\ns_cbranch_scc1 L_k01_end")
    k(f"s_load_dwordx2 {s(sWS,2)}, s[0:1], {KA['ws']}")
    k("s_cmp_ge_u32 s2, 192\ns_cbranch_scc1 L_k01_mod")
    k(f"s_load_dwordx2 {s(sX,2)}, s[0:1], {KA['x']}\ns_load_dwordx2 {s(sW,2)}, s[0:1], {KA['wqkv']}\ns_load_dwordx2 {s(sD,2)}, s[0:1], {KA['dbg']}")
    if stamps: k("s_memtime s[60:61]\ns_memrealtime s[62:63]")
    k(f"v_lshrrev_b32 v14, 6, v0\nv_and_b32 v0, 63, v0\nv_readfirstlane_b32 {s(sw)}, v14")
    k(f"v_lshlrev_b32 {v(vl16)}, 4, v0")
    k(f"s_and_b32 {s(stmp)}, s2, 3\ns_lshl_b32 {s(srb)}, {s(stmp)}, 2\ns_lshr_b32 {s(stmp)}, s2, 3\ns_and_b32 {s(stmp2)}, {s(stmp)}, 3\ns_add_u32 {s(srb)}, {s(srb)}, {s(stmp2)}")
    k(f"s_lshr_b32 {s(scs)}, {s(stmp)}, 2\ns_bfe_u32 {s(stmp)}, s2, 0x10002\ns_mul_i32 {s(stmp)}, {s(stmp)}, 6\ns_add_u32 {s(scs)}, {s(scs)}, {s(stmp)}")
    k(f"s_lshl_b32 {s(sqt)}, {s(srb)}, 2\ns_add_u32 {s(sqt)}, {s(sqt)}, {s(sw)}")
    SXW = 36864
    k("s_waitcnt lgkmcnt(0)")
    srd(k, rX, sX, 0, 2048*1152); srd(k, rW, sW, 0, 576*3456)
    if stamps: k("s_memtime s[76:77]")
    vm = []
    def wait(*tags):
        idx = [i for i, t in enumerate(vm) if t in tags]
        k(f"s_waitcnt vmcnt({min(63, len(vm) - 1 - max(idx))})")
    if touch:
        k(f"s_mul_i32 {s(stmp)}, {s(scs)}, 43691\ns_lshr_b32 {s(stmp)}, {s(stmp)}, 18\ns_mul_i32 {s(stmp)}, {s(stmp)}, 6\ns_sub_u32 {s(stmp)}, {s(scs)}, {s(stmp)}")
        k(f"s_lshl_b32 {s(stmp)}, {s(stmp)}, 2\ns_add_u32 {s(stmp)}, {s(stmp)}, {s(sw)}\ns_mul_i32 {s(stmp)}, {s(stmp)}, {48*128}\ns_mul_i32 {s(stmp2)}, {s(srb)}, {128*1152}\ns_add_u32 {s(stmp)}, {s(stmp)}, {s(stmp2)}")
        k(f"v_lshlrev_b32 v12, 7, v0\nbuffer_load_dword a82, v12, {s(rX,4)}, {s(stmp)} offen"); vm.append(('t',))
    if touch: k(f"s_and_b32 {s(stmp)}, {s(srb)}, 3\ns_lshl_b32 {s(stmp)}, {s(stmp)}, 2\ns_add_u32 {s(stmp)}, {s(stmp)}, {s(sw)}\ns_mul_i32 {s(stmp)}, {s(stmp)}, 36")
    if touch: k(f"v_mul_u32_u24 v12, 21846, v0\nv_lshrrev_b32 v12, 16, v12\nv_mul_u32_u24 v13, 3, v12\nv_sub_u32 v13, v0, v13\nv_lshlrev_b32 v13, 7, v13")
    if touch: k(f"v_add_u32 v12, {s(stmp)}, v12\nv_mul_u32_u24 v12, 3456, v12\nv_add_u32 v12, v12, v13\ns_mul_i32 {s(stmp)}, {s(scs)}, 288\ns_and_b32 {s(stmp)}, {s(stmp)}, 0xffffff80")
    if touch: k(f"buffer_load_dword a83, v12, {s(rW,4)}, {s(stmp)} offen"); vm.append(('t',))
    if touch: k(f"v_add_u32 v12, {21*3456}, v12\nbuffer_load_dword a83, v12, {s(rW,4)}, {s(stmp)} offen"); vm.append(('t',))
    k(f"s_mul_i32 {s(sh0)}, {s(sw)}, {SXW}\ns_lshl_b32 {s(ssrc)}, {s(sqt)}, 5\ns_mul_i32 {s(ssrc)}, {s(ssrc)}, 1152")
    for r in range(32):
        i = r & 15; fp = ((i >> 1) & 7) | ((i & 1) << 3)
        k(f"v_xor_b32 {v(10 + (r & 1))}, {fp << 4}, {v(vl16)}\ns_add_u32 m0, {s(sh0)}, {r*1024}\ns_add_u32 {s(stmp)}, {s(ssrc)}, {r*1152}")
        k(f"buffer_load_dwordx4 {v(10 + (r & 1))}, {s(rX,4)}, {s(stmp)} offen lds"); vm.append(('x',))
    k("v_lshrrev_b32 v13, 3, v0\nv_mul_u32_u24 v13, 1152, v13\nv_add_u32 v13, 1024, v13\nv_and_b32 v14, 7, v0\nv_lshrrev_b32 v15, 4, v0")
    for m in range(4):
        k(f"v_add_u32 v11, {4*(m & 1)}, v15\nv_xor_b32 v11, v11, v14\nv_lshlrev_b32 v11, 4, v11\nv_add_u32 v11, v11, v13")
        k(f"s_add_u32 m0, {s(sh0)}, {32768 + m*1024}\ns_add_u32 {s(stmp)}, {s(ssrc)}, {m*8*1152}")
        k(f"buffer_load_dwordx4 v11, {s(rX,4)}, {s(stmp)} offen lds"); vm.append(('x',))
    if stamps: k("s_memtime s[78:79]")
    srd(k, rMOD, sWS, WS["MOD"], WS["MOD_SZ"]); srd(k, rDBG, sD, 0, 256)
    srd(k, rQM, sWS, WS["QM"], WS["QM_SZ"]); srd(k, rQR, sWS, WS["QR"], WS["QR_SZ"]); srd(k, rKV, sWS, WS["KV"], WS["KV_SZ"])
    for i in range(9):
        k(f"v_add_u32 v13, {64*i}, v0\nv_mul_u32_u24 v14, 3641, v13\nv_lshrrev_b32 v14, 16, v14\nv_mul_u32_u24 v15, 18, v14\nv_sub_u32 v13, v13, v15")
        k(f"v_lshrrev_b32 v15, 1, v14\nv_and_b32 v15, 4, v15\nv_xor_b32 v14, v14, v15\nv_mul_u32_u24 v14, 3456, v14\nv_lshlrev_b32 v13, 4, v13\nv_add_u32 {v(PAT+i)}, v13, v14")
    k(f"s_mul_i32 {s(ssrc)}, {s(scs)}, 288\ns_mul_i32 {s(stmp)}, {s(sw)}, {32*3456}\ns_add_u32 {s(ssrc)}, {s(ssrc)}, {s(stmp)}")
    def wdma_ops(g, slotbase, from_acc=False):
        ops = []
        for i in range(9):
            pr = PAT+i; pre = ""
            if from_acc:
                pr = T + (i % 4); pre = f"v_accvgpr_read_b32 {v(pr)}, {a(72+i)}\n"
            ops.append((pre + f"s_add_u32 m0, {s(sh0)}, {slotbase + i*1024}\ns_add_u32 {s(stmp)}, {s(ssrc)}, {g*4*32*3456}\nbuffer_load_dwordx4 {v(pr)}, {s(rW,4)}, {s(stmp)} offen lds", ('w', g)))
        return ops
    def wdma(g, slotbase, from_acc=False):
        for o, tg in wdma_ops(g, slotbase, from_acc): k(o); vm.append(tg)
    def wpop():
        if wq: o, tg = wq.pop(0); k(o); vm.append(tg)
    k("v_and_b32 v13, 15, v0\nv_lshrrev_b32 v14, 1, v13\nv_and_b32 v15, 1, v13\nv_lshlrev_b32 v15, 3, v15\nv_or_b32 v15, v15, v14")
    k(f"v_lshrrev_b32 v12, 4, v0\nv_lshlrev_b32 v11, 10, v13\nv_add_u32 v11, {s(sh0)}, v11")
    RB = GS
    for l0 in range(2):
        for b in range(2):
            k(f"v_add_u32 v9, {8*l0 + 4*b}, v12\nv_xor_b32 v9, v9, v15\nv_lshlrev_b32 v9, 4, v9\nv_add_u32 {v(RB + 2*l0 + b)}, v9, v11")
    k(f"v_lshlrev_b32 v11, 7, v13\nv_add_u32 v11, {s(sh0)}, v11\nv_add_u32 v11, 32768, v11")
    for b in range(2): k(f"v_add_u32 v9, {4*b}, v12\nv_xor_b32 v9, v9, v14\nv_lshlrev_b32 v9, 4, v9\nv_add_u32 {v(RB + 4 + b)}, v9, v11")
    wait(('x',))
    if stamps: k("s_memtime s[80:81]")
    for ks in range(18):
        for t in range(2):
            if ks < 16:
                L2, l0, b = ks >> 2, (ks >> 1) & 1, ks & 1
                k(f"ds_read_b128 {v(xr(t,ks),4)}, {v(RB + 2*l0 + b)} offset:{t*16384 + 256*L2}")
            else:
                k(f"ds_read_b128 {v(xr(t,ks),4)}, {v(RB + 4 + (ks & 1))} offset:{t*2048}")
    k("s_waitcnt lgkmcnt(0)\ns_barrier")
    if stamps: k("s_memtime s[82:83]")
    k(f"s_mul_i32 {s(ssrc)}, {s(scs)}, 288\ns_mul_i32 {s(stmp)}, {s(sw)}, {32*3456}\ns_add_u32 {s(ssrc)}, {s(ssrc)}, {s(stmp)}\ns_mul_i32 {s(sh0)}, {s(sw)}, {SLOT}")
    wq = []
    for g in range(4): wq += wdma_ops(g, g*4*SLOT)
    k("v_lshrrev_b32 v13, 4, v0\nv_lshlrev_b32 v13, 3, v13\nv_bfe_u32 v14, v0, 2, 2\nv_add_u32 v13, v13, v14")
    k("v_lshrrev_b32 v14, 1, v13\nv_and_b32 v14, 4, v14\nv_xor_b32 v15, v13, v14")
    k(f"v_mul_u32_u24 v15, 288, v15\nv_and_b32 v14, 3, v0\nv_lshlrev_b32 v14, 3, v14\nv_add_u32 {v(vAb[0])}, v15, v14")
    k("v_add_u32 v13, 4, v13\nv_lshrrev_b32 v15, 1, v13\nv_and_b32 v15, 4, v15\nv_xor_b32 v15, v13, v15")
    k(f"v_mul_u32_u24 v15, 288, v15\nv_add_u32 {v(vA2b[0])}, v15, v14")
    for i in (1, 2): k(f"v_add_u32 {v(vAb[i])}, {7*i*SLOT}, {v(vAb[0])}\nv_add_u32 {v(vA2b[i])}, {7*i*SLOT}, {v(vA2b[0])}")
    k(f"v_lshrrev_b32 v13, 4, v0\nv_lshlrev_b32 v13, 5, v13\nv_add_u32 {v(vM)}, {MODL}, v13")
    M = GS
    for t in range(2): k(f"v_mov_b32 {v(M+2*t)}, 0\nv_mov_b32 {v(M+2*t+1)}, 0")
    k(f"v_mov_b32 {v(M+4)}, 0x3f803f80")
    for ks in range(18):
        for t in range(2):
            for j in range(4):
                r = xr(t,ks)+j
                k(f"v_dot2_f32_bf16 {v(M+2*t)}, {v(r)}, {v(M+4)}, {v(M+2*t)}\nv_dot2_f32_bf16 {v(M+2*t+1)}, {v(r)}, {v(r)}, {v(M+2*t+1)}")
            wpop()
    if stamps: k("s_memtime s[84:85]")
    while wq: wpop()
    for i in range(9): k(f"v_accvgpr_write_b32 {a(72+i)}, {v(PAT+i)}")
    for i in range(4):
        r = v(M+i)
        k(f"v_mov_b32 v13, {r}\nv_permlane32_swap_b32 {r}, v13\nv_add_f32 {r}, {r}, v13\nv_mov_b32 v13, {r}\nv_permlane16_swap_b32 {r}, v13\nv_add_f32 {r}, {r}, v13")
    for t in range(2):
        m, q = M+2*t, M+2*t+1
        k(f"v_mul_f32 {v(m)}, 0x3ae38e39, {v(m)}\nv_mul_f32 {v(q)}, 0x3ae38e39, {v(q)}")
        k(f"v_fma_f32 {v(q)}, -{v(m)}, {v(m)}, {v(q)}\nv_max_f32 {v(q)}, 0, {v(q)}\nv_add_f32 {v(q)}, 0x3727c5ac, {v(q)}\nv_rsq_f32 {v(q)}, {v(q)}")
        k(f"s_nop 0\nv_mul_f32 {v(m)}, {v(m)}, {v(q)}\nv_sub_f32 {v(m)}, 0, {v(m)}")
    PR = M+6
    for t in range(2):
        k(f"v_mov_b32 {v(PR+4*t)}, {v(M+2*t+1)}\nv_mov_b32 {v(PR+4*t+1)}, {v(M+2*t+1)}\nv_mov_b32 {v(PR+4*t+2)}, {v(M+2*t)}\nv_mov_b32 {v(PR+4*t+3)}, {v(M+2*t)}")
    for t in range(2):
        for ks in range(18):
            for j in range(4):
                r = xr(t,ks)+j; tt = T + 2*j
                k(f"v_lshlrev_b32 {v(tt)}, 16, {v(r)}\nv_and_b32 {v(tt+1)}, 0xffff0000, {v(r)}")
            for j in range(4):
                tt = T + 2*j
                k(f"v_pk_fma_f32 {v(tt,2)}, {v(tt,2)}, {v(PR+4*t,2)}, {v(PR+4*t+2,2)}")
            for j in range(4):
                r = xr(t,ks)+j; tt = T + 2*j
                k(f"v_cvt_pk_f16_f32 {v(r)}, {v(tt)}, {v(tt+1)}")
    k(f"v_add_u32 v11, {s(sh0)}, {v(vAb[0])}\nv_add_u32 v12, {s(sh0)}, {v(vA2b[0])}\nv_add_u32 v9, {s(sh0)}, {v(vl16)}")
    for g in (range(4) if repack else ()):
        wait(('w', g))
        o = (g % 2)*4*SLOT
        if g == 2: k(f"v_add_u32 v11, {8*SLOT}, v11\nv_add_u32 v12, {8*SLOT}, v12\nv_add_u32 v9, {8*SLOT}, v9")
        for u in range(9):
            k(f"ds_read_b64_tr_b16 {v(ACC+16+4*u,2)}, v11 offset:{o + u*32}\nds_read_b64_tr_b16 {v(ACC+16+4*u+2,2)}, v12 offset:{o + u*32}")
        k("s_waitcnt lgkmcnt(0)")
        for u in range(9): k(f"ds_write_b128 v9, {v(ACC+16+4*u,4)} offset:{o + u*1024}")
        k("s_waitcnt lgkmcnt(0)")
    if stamps: k("s_memtime s[64:65]")
    k(f"s_cmp_eq_u32 {s(sw)}, 0\ns_cbranch_scc0 L_k01_polled")
    k(f"v_mov_b32 v13, 0\ns_mov_b32 {s(sspin)}, 0")
    k("L_k01_poll:")
    k(f"buffer_load_dword v14, v13, {s(rDBG,4)}, 0 offen sc1")
    k("s_waitcnt vmcnt(0)")
    k(f"v_readfirstlane_b32 {s(stmp)}, v14")
    k(f"s_cmp_ge_u32 {s(stmp)}, {NCRIT}\ns_cbranch_scc1 L_k01_polled")
    k(f"s_add_u32 {s(sspin)}, {s(sspin)}, 1\ns_cmp_lt_u32 {s(sspin)}, 0x100000\ns_cbranch_scc0 L_k01_polled")
    k("s_sleep 1\ns_branch L_k01_poll")
    k("L_k01_polled:")
    k("s_barrier")
    if stamps: k("s_memtime s[66:67]")
    k(f"s_lshl_b32 {s(stmp)}, {s(sw)}, 10\nv_add_u32 v13, {s(stmp)}, {v(vl16)}")
    k(f"buffer_load_dwordx4 {v(GS,4)}, v13, {s(rMOD,4)}, 0 offen sc1")
    k(f"s_mov_b32 {s(stmp)}, 4096\nbuffer_load_dwordx4 {v(GS+4,4)}, {v(vl16)}, {s(rMOD,4)}, {s(stmp)} offen sc1")
    k(f"v_add_u32 v13, {MODL}, v13\nv_add_u32 v14, {MODL+4096}, {v(vl16)}")
    k("s_waitcnt vmcnt(0)")
    k(f"ds_write_b128 v13, {v(GS,4)}\nds_write_b128 v14, {v(GS+4,4)}")
    k("s_waitcnt lgkmcnt(0)\ns_barrier")
    vm.clear()
    k(f"v_add_u32 v9, {7*SLOT}, {v(vl16)}\nv_add_u32 v10, {14*SLOT}, {v(vl16)}")
    def areads(ks, par):
        ops = []
        slot = ks % NSL; bi = slot // 7; o = (slot % 7)*SLOT
        for u in range(9):
            r = par*36 + u*4
            if ks < 16 and repack:
                ops.append(f"ds_read_b128 {a(r,4)}, {v(vPk[bi])} offset:{o + u*1024}")
            else:
                ops.append(f"ds_read_b64_tr_b16 {a(r,2)}, {v(vAb[bi])} offset:{o + u*32}")
                ops.append(f"ds_read_b64_tr_b16 {a(r+2,2)}, {v(vA2b[bi])} offset:{o + u*32}")
        return ops
    def gsreads(ks):
        o = ks*128
        return [f"ds_read_b128 {v(GS,4)}, {v(vM)} offset:{o}", f"ds_read_b128 {v(GS+4,4)}, {v(vM)} offset:{o+16}",
                f"ds_read_b128 {v(GS+8,4)}, {v(vM)} offset:{2304+o}", f"ds_read_b128 {v(GS+12,4)}, {v(vM)} offset:{2304+o+16}"]
    def modulate(ks):
        ops = []
        for t in range(2):
            for j in range(4):
                r = xr(t,ks)+j; tt = T + 2*(j % 4)
                ops.append(f"v_fma_mix_f32 {v(tt)}, {v(r)}, {v(GS+8+2*j)}, {v(GS+2*j)} op_sel_hi:[1,0,0]")
                ops.append(f"v_fma_mix_f32 {v(tt+1)}, {v(r)}, {v(GS+8+2*j+1)}, {v(GS+2*j+1)} op_sel:[1,0,0] op_sel_hi:[1,0,0]")
            for j in range(4):
                r = xr(t,ks)+j; tt = T + 2*(j % 4)
                ops.append(f"v_cvt_pk_bf16_f32 {v(r)}, {v(tt)}, {v(tt+1)}")
        return ops
    def gemm(swapped, tag):
        for o in gsreads(0) + areads(0, 0): k(o)
        k("s_waitcnt lgkmcnt(15)\ns_waitcnt lgkmcnt(14)" if False else "s_waitcnt lgkmcnt(0)")
        for o in modulate(0): k(o)
        for ks in range(18):
            par = ks % 2
            k("s_waitcnt lgkmcnt(0)")
            if ks == 2:
                k("s_barrier")
                k(f"s_cmp_lt_u32 {s(sw)}, 2\ns_cbranch_scc0 L_k01_nodma_{tag}")
                wdma(4, 0, from_acc=True)
                k(f"L_k01_nodma_{tag}:")
            if ks == 14:
                k("s_waitcnt vmcnt(0)\ns_barrier")
            gs = gsreads(ks+1) if ks < 17 else []
            rd = areads(ks+1, 1-par) if ks < 17 else []
            md = modulate(ks+1) if ks < 17 else []
            nrd = len(rd); early = 3 if nrd <= 9 else 6
            per = 1 if nrd <= 9 else 2
            j = 0
            for u in range(9):
                for t in range(2):
                    c = "0" if ks == 0 else v(acc(u,t),4)
                    A_, B_ = a(par*36+u*4,4), v(xr(t,ks),4)
                    if swapped: A_, B_ = B_, A_
                    k(f"v_mfma_f32_16x16x32_bf16 {v(acc(u,t),4)}, {A_}, {B_}, {c}")
                    if j == 0:
                        for o in gs: k(o)
                    elif j <= 3:
                        for _ in range(per):
                            if rd: k(rd.pop(0))
                    elif j == 4 and md:
                        k(f"s_waitcnt lgkmcnt({early})")
                    if j >= 4:
                        if rd and j >= 5: k(rd.pop(0))
                        n = 2 if j < 16 else len(md)
                        for _ in range(n):
                            if md: k(md.pop(0))
                    j += 1
            assert not rd and not md
    k(f"s_cmp_ge_u32 {s(scs)}, 8\ns_cbranch_scc1 L_k01_v")
    gemm(False, "qk")
    if stamps: k("s_memtime s[68:69]")
    RS = 296
    k("s_barrier")
    k(f"s_cmp_lt_u32 {s(scs)}, 4\ns_cselect_b32 {s(skind)}, 0x3eae1a93, 1.0")
    k(f"s_mul_i32 {s(stmp)}, {s(sw)}, {32*RS}")
    k(f"v_and_b32 v13, 15, v0\nv_mul_u32_u24 v13, {RS}, v13\nv_lshrrev_b32 v15, 4, v0\nv_lshlrev_b32 v15, 3, v15\nv_add_u32 v13, v13, v15\nv_add_u32 v13, {s(stmp)}, v13")
    for u in range(9):
        for t in range(2):
            r = acc(u,t)
            for e in range(4): k(f"v_mul_f32 {v(r+e)}, {s(skind)}, {v(r+e)}")
            k(f"v_cvt_pk_bf16_f32 {v(r)}, {v(r)}, {v(r+1)}\nv_cvt_pk_bf16_f32 {v(r+1)}, {v(r+2)}, {v(r+3)}")
            k(f"ds_write_b64 v13, {v(r,2)} offset:{t*16*RS + u*32}")
    k("s_waitcnt lgkmcnt(0)")
    k(f"v_and_b32 v13, 31, v0\nv_mul_u32_u24 v15, {RS}, v13\nv_lshrrev_b32 v14, 5, v0\nv_lshlrev_b32 v14, 4, v14\nv_add_u32 v15, v15, v14\nv_add_u32 v15, {s(stmp)}, v15")
    k(f"v_mul_u32_u24 v14, {RS}, v13\nv_add_u32 v14, {s(stmp)}, v14")
    R = X
    for h in range(8):
        k(f"ds_read2_b32 {v(R+8*h,2)}, v15 offset0:{9*h} offset1:{9*h+1}\nds_read2_b32 {v(R+8*h+2,2)}, v15 offset0:{9*h+2} offset1:{9*h+3}")
        k(f"ds_read_b32 {v(R+8*h+4)}, v14 offset:{36*h+32}")
    k(f"v_mov_b32 v11, 0x7fffffff\nv_cmp_gt_u32 vcc, 32, v0")
    k(f"s_and_b32 {s(sh0)}, {s(scs)}, 3\ns_lshl_b32 {s(sh0)}, {s(sh0)}, 3")
    k(f"s_cmp_lt_u32 {s(scs)}, 4\ns_cbranch_scc0 L_k01_kout")
    k("v_lshlrev_b32 v10, 2, v13\nv_cndmask_b32 v10, v11, v10, vcc")
    k(f"s_lshl_b32 {s(stmp)}, {s(sh0)}, 6\ns_add_u32 {s(stmp)}, {s(stmp)}, {s(sqt)}")
    k("s_waitcnt lgkmcnt(0)")
    for h in range(8):
        k(f"s_add_u32 {s(stmp2)}, {s(stmp)}, {64*h}\ns_lshl_b32 {s(ssrc)}, {s(stmp2)}, 10\nbuffer_store_dwordx4 {v(R+8*h,4)}, {v(vl16)}, {s(rQM,4)}, {s(ssrc)} offen")
        k(f"s_lshl_b32 {s(ssrc)}, {s(stmp2)}, 7\nbuffer_store_dword {v(R+8*h+4)}, v10, {s(rQR,4)}, {s(ssrc)} offen")
    k("s_branch L_k01_fin")
    k("L_k01_kout:")
    k("v_lshlrev_b32 v10, 4, v13\nv_cndmask_b32 v10, v11, v10, vcc")
    k(f"s_mul_i32 {s(stmp)}, {s(sh0)}, {KV_STRIDE}\ns_lshl_b32 {s(stmp2)}, {s(sqt)}, 10\ns_add_u32 {s(stmp2)}, {s(stmp2)}, {s(stmp)}")
    k(f"s_lshl_b32 {s(ssrc)}, {s(srb)}, 9\ns_add_u32 {s(stmp)}, {s(stmp)}, {s(ssrc)}\ns_lshl_b32 {s(ssrc)}, {s(sw)}, 2\ns_add_u32 {s(stmp)}, {s(stmp)}, {s(ssrc)}\ns_add_u32 {s(stmp)}, {s(stmp)}, {KR_OFF}")
    k("s_waitcnt lgkmcnt(0)")
    for h in range(8):
        k(f"buffer_store_dwordx4 {v(R+8*h,4)}, {v(vl16)}, {s(rKV,4)}, {s(stmp2)} offen")
        k(f"buffer_store_dword {v(R+8*h+4)}, v10, {s(rKV,4)}, {s(stmp)} offen")
        if h < 7: k(f"s_add_u32 {s(stmp2)}, {s(stmp2)}, {KV_STRIDE}\ns_add_u32 {s(stmp)}, {s(stmp)}, {KV_STRIDE}")
    k("s_branch L_k01_fin")
    k("L_k01_v:")
    gemm(True, "v")
    if stamps: k("s_memtime s[68:69]")
    k(f"s_sub_u32 {s(sh0)}, {s(scs)}, 8\ns_lshl_b32 {s(sh0)}, {s(sh0)}, 3\ns_mul_i32 {s(stmp)}, {s(sh0)}, {KV_STRIDE}")
    k(f"s_mul_i32 {s(stmp2)}, {s(sqt)}, {2*608}\ns_add_u32 {s(stmp)}, {s(stmp)}, {s(stmp2)}\ns_add_u32 {s(stmp)}, {s(stmp)}, {VT_OFF}")
    k("v_lshrrev_b32 v13, 4, v0\nv_and_b32 v14, 1, v13\nv_mul_u32_u24 v14, 304, v14\nv_lshrrev_b32 v13, 1, v13\nv_lshlrev_b32 v13, 3, v13\nv_add_u32 v14, v14, v13")
    k(f"v_and_b32 v15, 15, v0\ns_mov_b32 {s(stmp2)}, {KV_STRIDE}")
    for u in range(9):
        k(f"v_add_u32 v10, {16*u}, v15\nv_mul_u32_u24 v11, 3641, v10\nv_lshrrev_b32 v11, 16, v11\nv_mul_u32_u24 v13, 18, v11\nv_sub_u32 v10, v10, v13")
        k(f"v_mul_lo_u32 v11, v11, {s(stmp2)}\nv_lshlrev_b32 v10, 4, v10\nv_add_u32 v10, v10, v11\nv_add_u32 v10, v10, v14")
        for t in range(2):
            r = acc(u,t)
            k(f"v_cvt_pk_bf16_f32 {v(r)}, {v(r)}, {v(r+1)}\nv_cvt_pk_bf16_f32 {v(r+1)}, {v(r+2)}, {v(r+3)}")
            k(f"buffer_store_dwordx2 {v(r,2)}, v10, {s(rKV,4)}, {s(stmp)} offen offset:{t*608}")
    k(f"v_lshrrev_b32 v10, 2, v0\nv_mul_lo_u32 v10, v10, {s(stmp2)}\nv_bfe_u32 v11, v0, 1, 1\nv_mul_u32_u24 v11, 608, v11\nv_add_u32 v10, v10, v11")
    k(f"v_and_b32 v11, 1, v0\nv_mul_u32_u24 v11, 304, v11\nv_add_u32 v10, v10, v11\nv_add_u32 v10, {18*16}, v10")
    k("v_mov_b32 v11, 0x7fffffff\nv_cmp_gt_u32 vcc, 32, v0\nv_cndmask_b32 v10, v11, v10, vcc")
    for e in range(4): k(f"v_mov_b32 {v(X+e)}, 0x3f803f80")
    k(f"buffer_store_dwordx4 {v(X,4)}, v10, {s(rKV,4)}, {s(stmp)} offen")
    k("L_k01_fin:")
    if stamps:
        k("s_waitcnt vmcnt(0)\ns_memtime s[70:71]\ns_memrealtime s[72:73]\ns_waitcnt lgkmcnt(0)")
        srd(k, 24, sWS, WS["AUX"], WS["AUX_SZ"])
        k(f"s_lshl_b32 {s(stmp)}, s2, 3\ns_add_u32 {s(stmp)}, {s(stmp)}, {s(sw)}\ns_lshl_b32 {s(stmp)}, {s(stmp)}, 6\nv_mov_b32 v9, {s(stmp)}")
        for i, (x, y) in enumerate(((64,60),(66,60),(68,60),(70,60),(72,62))):
            k(f"s_sub_u32 s74, s{x}, s{y}\nv_mov_b32 v10, s74\nbuffer_store_dword v10, v9, s[24:27], 0 offen offset:{4*i}")
        k(f"v_mov_b32 v10, s62\nbuffer_store_dword v10, v9, s[24:27], 0 offen offset:20")
        for i, x in enumerate((76, 78, 80, 82, 84)):
            k(f"s_sub_u32 s74, s{x}, s60\nv_mov_b32 v10, s74\nbuffer_store_dword v10, v9, s[24:27], 0 offen offset:{24+4*i}")
    k("s_branch L_k01_end")
    mod_role(k, sWS)
    k("L_k01_end:\ns_endpgm")
    return k, (254, 256, MODL + 5120)
```

```python
from asmgen import *
from layout import *
from k_g1 import srd, spread
from k_g2 import w_patterns

def gen_p3(stamps=False, alg=True, pol='', k=None, prog=True):
    fused = k is not None
    if not fused: k = Kern("p3_kernel", vgprs=224)
    if fused: pol = ' sc1'
    sWS, sWO, sX = 4, 6, 8
    rWO, rOM, rOR, rMOD, rX, rX1, rY, rST = 12, 16, 20, 24, 28, 44, 48, 52
    sw, srb, scs, stmp, stmp2, ssrc, slds = range(32, 39)
    vl16, vP, vA0, vA1, vA2, vA3, vR0, vR1, vom, vor, vx = 1, 2, 5, 6, 7, 8, 9, 10, 11, 12, 13
    BF = 16
    ACC = 88
    AF = 112
    if fused:
        k("s_cmp_ge_u32 s2, 192\ns_cbranch_scc1 L_pg_g1")
    if not fused:
        k("s_cmp_ge_u32 s2, 256\ns_cbranch_scc1 L_p3_end")
        k(f"s_load_dwordx2 {s(sWS,2)}, s[0:1], {KA['ws']}")
        if alg:
            k("s_cmp_ge_u32 s2, 192\ns_cbranch_scc0 L_p3_main")
            k(f"v_lshrrev_b32 v14, 6, v0\nv_and_b32 v0, 63, v0\nv_readfirstlane_b32 {s(sw)}, v14\nv_lshlrev_b32 v2, 7, v0")
            k(f"s_sub_u32 {s(stmp)}, s2, 192\ns_lshr_b32 {s(stmp)}, {s(stmp)}, 3\ns_bfe_u32 {s(stmp2)}, s2, 0x20001\ns_lshl_b32 {s(stmp2)}, {s(stmp2)}, 3\ns_add_u32 {s(stmp)}, {s(stmp)}, {s(stmp2)}")
            k(f"s_mul_i32 {s(stmp)}, {s(stmp)}, {8*19*2048}\ns_mul_i32 {s(stmp2)}, {s(sw)}, {5*8192}\ns_add_u32 {s(stmp)}, {s(stmp)}, {s(stmp2)}")
            k("s_waitcnt lgkmcnt(0)")
            srd(k, rWO, sWS, WS["W13F"], WS["W13F_SZ"])
            for i in range(5): k(f"buffer_load_dword v3, v2, {s(rWO,4)}, {s(stmp)} offen\ns_add_u32 {s(stmp)}, {s(stmp)}, 8192")
            k("s_branch L_p3_end")
            k("L_p3_main:")
        else:
            k("s_cmp_ge_u32 s2, 192\ns_cbranch_scc1 L_p3_end")
    k(f"s_load_dwordx2 {s(sWO,2)}, s[0:1], {KA['wo']}")
    k(f"s_load_dwordx2 {s(sX,2)}, s[0:1], {KA['x']}")
    if stamps: k("s_memtime s[60:61]\ns_memrealtime s[62:63]")
    if not fused:
        k("v_lshrrev_b32 v14, 6, v0\nv_and_b32 v0, 63, v0")
        k(f"v_readfirstlane_b32 {s(sw)}, v14")
    k(f"v_lshlrev_b32 {v(vl16)}, 4, v0")
    w_patterns(k, vP, 1152, 112)
    k(f"s_and_b32 {s(stmp)}, s2, 7\ns_lshl_b32 {s(srb)}, {s(stmp)}, 2\ns_lshr_b32 {s(stmp)}, s2, 3\ns_and_b32 {s(stmp2)}, {s(stmp)}, 3\ns_add_u32 {s(srb)}, {s(srb)}, {s(stmp2)}\ns_lshr_b32 {s(scs)}, {s(stmp)}, 2")
    k("v_lshrrev_b32 v112, 4, v0\nv_bfe_u32 v113, v0, 2, 2\nv_and_b32 v114, 3, v0\nv_and_b32 v115, 15, v0")
    k("v_lshrrev_b32 v116, 1, v112\nv_mul_u32_u24 v116, 18, v116\nv_and_b32 v117, 1, v112\nv_lshlrev_b32 v117, 2, v117\nv_add_u32 v116, v116, v117\nv_add_u32 v116, v116, v113")
    def mkaddr(row, d0, d1):
        k(f"v_lshrrev_b32 v117, 2, {v(row)}\nv_and_b32 v117, 1, v117\nv_lshlrev_b32 v117, 5, v117")
        k(f"v_mul_u32_u24 v118, 192, {v(row)}\nv_lshlrev_b32 v119, 3, v114\nv_add_u32 v118, v118, v119")
        k(f"v_add_u32 {v(d0)}, v118, v117\nv_xor_b32 v117, 32, v117\nv_add_u32 {v(d1)}, v118, v117")
    mkaddr(116, vA0, vA1)
    k(f"v_add_u32 {v(vA2)}, {8*6912}, {v(vA0)}\nv_add_u32 {v(vA3)}, {8*6912}, {v(vA1)}")
    k("v_lshlrev_b32 v116, 2, v112\nv_lshrrev_b32 v117, 1, v113\nv_add_u32 v116, v116, v117\nv_mul_u32_u24 v116, 18, v116\nv_and_b32 v117, 1, v113\nv_add_u32 v116, v116, v117\nv_add_u32 v116, 16, v116")
    mkaddr(116, vR0, vR1)
    k(f"s_lshl_b32 {s(stmp)}, {s(srb)}, 2\ns_add_u32 {s(stmp)}, {s(stmp)}, {s(sw)}\ns_lshl_b32 {s(stmp2)}, {s(stmp)}, 4\nv_add_u32 v116, {s(stmp2)}, v115")
    k(f"v_lshlrev_b32 v117, 15, v112\nv_lshlrev_b32 v118, 4, v116\nv_add_u32 {v(vom)}, v117, v118")
    k(f"v_lshlrev_b32 v117, 13, v112\nv_add_u32 v117, v117, v116\nv_lshlrev_b32 {v(vor)}, 2, v117")
    XL = 110592
    for e in range(3):
        k(f"v_add_u32 v117, {64*e}, v0\nv_mul_u32_u24 v118, 21846, v117\nv_lshrrev_b32 v118, 18, v118\nv_mul_u32_u24 v119, 12, v118\nv_sub_u32 v117, v117, v119\nv_lshlrev_b32 v117, 4, v117\nv_mul_u32_u24 v118, 1152, v118\nv_add_u32 {v(164+8+e)}, v117, v118")
    k(f"v_mul_u32_u24 v117, 192, v115\nv_lshlrev_b32 v118, 3, v112\nv_add_u32 v117, v117, v118\ns_mul_i32 {s(stmp2)}, {s(sw)}, 3072\ns_add_u32 {s(stmp2)}, {s(stmp2)}, {XL}\nv_add_u32 {v(vx)}, {s(stmp2)}, v117")
    k("v_lshlrev_b32 v14, 4, v112")
    k("s_waitcnt lgkmcnt(0)")
    srd(k, rWO, sWO, 0, 576*1152); srd(k, rOM, sWS, WS["OM"], WS["OM_SZ"]); srd(k, rOR, sWS, WS["OR"], WS["OR_SZ"])
    srd(k, rMOD, sWS, WS["MOD"], WS["MOD_SZ"]); srd(k, rX, sX, 0, 2048*1152); srd(k, rX1, sWS, WS["X1F"], WS["X1F_SZ"])
    if alg: srd(k, rY, sWS, WS["H2F"], WS["H2F_SZ"]); srd(k, rST, sWS, WS["STAT"], WS["STAT_SZ"])
    k(f"s_lshl_b32 {s(stmp)}, {s(srb)}, 2\ns_add_u32 {s(stmp)}, {s(stmp)}, {s(sw)}\ns_mul_i32 {s(stmp)}, {s(stmp)}, {16*1152}\ns_mul_i32 {s(stmp2)}, {s(scs)}, 192\ns_add_u32 {s(stmp)}, {s(stmp)}, {s(stmp2)}\ns_mul_i32 {s(slds)}, {s(sw)}, 3072")
    for e in range(3):
        k(f"s_add_u32 m0, {s(slds)}, {110592 + e*1024}\ns_nop 0\nbuffer_load_dwordx4 {v(172+e)}, {s(rX,4)}, {s(stmp)} offen lds")
    k(f"s_mul_i32 {s(ssrc)}, {s(sw)}, {16*1152}\ns_mul_i32 {s(stmp2)}, {s(scs)}, 192\ns_add_u32 {s(ssrc)}, {s(ssrc)}, {s(stmp2)}\ns_mul_i32 {s(slds)}, {s(sw)}, 3072")
    vm = [('X',)]*3; q = []
    def emit(op):
        if isinstance(op, tuple): k(op[0]); vm.append(op[1])
        else: k(op)
    def wait(tag, extra=""):
        idx = [i for i, t in enumerate(vm) if t == tag]
        k(f"s_waitcnt vmcnt({min(63, len(vm) - 1 - max(idx))})" + extra)
    def flush(tag):
        while any(isinstance(x, tuple) and x[1] == tag for x in q): emit(q.pop(0))
    def wops(g0, g1, tag):
        return [(f"s_add_u32 m0, {s(slds)}, {g*4*3072 + i*1024}\ns_add_u32 {s(stmp2)}, {s(ssrc)}, {g*4*16*1152}\nbuffer_load_dwordx4 {v(vP+i)}, {s(rWO,4)}, {s(stmp2)} offen lds", tag)
                for g in range(g0, g1) for i in range(3)]
    def omops(s0, s1):
        return [(f"s_mov_b32 {s(stmp2)}, {sx*131072}\nbuffer_load_dwordx4 {v(BF+4*sx,4)}, {v(vom)}, {s(rOM,4)}, {s(stmp2)} offen", ('B', sx)) for sx in range(s0, s1)]
    def orops():
        return [(f"s_mov_b32 {s(stmp2)}, {(16*sp+jj)*8192}\nbuffer_load_dword {v(BF+64+4*sp+jj)}, {v(vor)}, {s(rOR,4)}, {s(stmp2)} offen", ('B', 16+sp)) for sp in range(2) for jj in range(4)]
    XR = 160; GA = 176; G2 = 200
    def gops():
        ops = []
        for base, reg in ((2*576*4, GA),) + (((4*576*4, G2),) if alg else ()):
            for dt in range(6):
                hd = f"s_mul_i32 {s(stmp)}, {s(scs)}, {96*4}\ns_add_u32 {s(stmp)}, {s(stmp)}, {base}\n" if dt == 0 else ""
                ops.append((hd + f"buffer_load_dwordx4 {v(reg+4*dt,4)}, v14, {s(rMOD,4)}, {s(stmp)} offen offset:{dt*64}", ('G',)))
        return ops
    if prog:
        for o in wops(0, 3, ('W', 0)) + omops(0, 5): emit(o)
        q += wops(3, 6, ('W', 1)) + omops(5, 10) + wops(6, 9, ('W', 2)) + omops(10, 16) + orops() + gops()
    else:
        for o in wops(0, 9, ('W', 0)) + omops(0, 16) + orops(): emit(o)
        q += gops()
    if stamps: k("s_memtime s[70:71]")
    wait(('W', 0)); k("s_barrier")
    if stamps: k("s_memtime s[64:65]")
    def areads(sx, par):
        ops = []
        for dt in range(6):
            r = AF + par*24 + dt*4
            if sx < 16:
                regs = (vA0, vA1) if sx < 8 else (vA2, vA3)
                ad = regs[(dt & 1) ^ (sx & 1)]
                o = (sx % 8)*6912 + (dt & ~1)*32
                ops.append(f"ds_read_b64_tr_b16 {v(r,2)}, {v(ad)} offset:{o}")
                ops.append(f"ds_read_b64_tr_b16 {v(r+2,2)}, {v(ad)} offset:{o+1536}")
            else:
                sp = sx - 16
                o = sp*288*192 + (dt & ~1)*32
                ops.append(f"ds_read_b64_tr_b16 {v(r,2)}, {v((vR0, vR1)[dt & 1])} offset:{o}")
                ops.append(f"ds_read_b64_tr_b16 {v(r+2,2)}, {v((vR0, vR1)[(dt & 1) ^ 1])} offset:{o + 36*192}")
        return ops
    for o in areads(0, 0): k(o)
    for sx in range(18):
        par = sx % 2
        flush(('B', sx)); wait(('B', sx), " lgkmcnt(0)")
        if prog and sx == 4: flush(('W', 1)); wait(('W', 1)); k("s_barrier")
        if prog and sx == 9: flush(('W', 2)); wait(('W', 2)); k("s_barrier")
        fill = areads(sx+1, 1-par) if sx < 17 else []
        take = q[:5]; del q[:5]
        fill = take + fill
        slots = spread(fill, 6)
        for dt in range(6):
            c = "0" if sx == 0 else v(ACC+4*dt,4)
            k(f"v_mfma_f32_16x16x32_bf16 {v(ACC+4*dt,4)}, {v(AF+par*24+dt*4,4)}, {v(BF+4*sx,4)}, {c}")
            for o in slots[dt]: emit(o)
    while q: emit(q.pop(0))
    if stamps: k("s_memtime s[66:67]")
    for dt in range(6): k(f"ds_read_b64 {v(XR+2*dt,2)}, {v(vx)} offset:{dt*32}")
    k("s_waitcnt vmcnt(0) lgkmcnt(0)")
    T = AF; OY = BF + 16; O1 = BF
    if alg: k("v_mov_b32 v14, 0\nv_mov_b32 v15, 0")
    for dt in range(6):
        xr = XR + 2*dt; t = T + 4*dt
        k(f"v_lshlrev_b32 {v(t)}, 16, {v(xr)}\nv_and_b32 {v(t+1)}, 0xffff0000, {v(xr)}")
        k(f"v_lshlrev_b32 {v(t+2)}, 16, {v(xr+1)}\nv_and_b32 {v(t+3)}, 0xffff0000, {v(xr+1)}")
        for r in range(4): k(f"v_fma_f32 {v(t+r)}, {v(GA+4*dt+r)}, {v(ACC+4*dt+r)}, {v(t+r)}")
        o = O1 + (dt >> 1)*4 + (dt & 1)*2
        k(f"v_cvt_pk_bf16_f32 {v(o)}, {v(t)}, {v(t+1)}\nv_cvt_pk_bf16_f32 {v(o+1)}, {v(t+2)}, {v(t+3)}")
        if alg:
            for r in range(4): k(f"v_add_f32 v14, v14, {v(t+r)}\nv_fmac_f32 v15, {v(t+r)}, {v(t+r)}")
            for r in range(4): k(f"v_mul_f32 {v(t+r)}, {v(G2+4*dt+r)}, {v(t+r)}")
            o = OY + (dt >> 1)*4 + (dt & 1)*2
            k(f"v_cvt_pk_bf16_f32 {v(o)}, {v(t)}, {v(t+1)}\nv_cvt_pk_bf16_f32 {v(o+1)}, {v(t+2)}, {v(t+3)}")
    k(f"s_lshl_b32 {s(stmp)}, {s(srb)}, 2\ns_add_u32 {s(stmp)}, {s(stmp)}, {s(sw)}\ns_mul_i32 {s(ssrc)}, {s(stmp)}, {18*1024}\ns_mul_i32 {s(stmp2)}, {s(scs)}, 3072\ns_add_u32 {s(ssrc)}, {s(ssrc)}, {s(stmp2)}")
    if alg:
        for j in range(3): k(f"buffer_store_dwordx4 {v(OY+4*j,4)}, {v(vl16)}, {s(rY,4)}, {s(ssrc)} offen offset:{j*1024}" + pol)
    for j in range(3): k(f"buffer_store_dwordx4 {v(O1+4*j,4)}, {v(vl16)}, {s(rX1,4)}, {s(ssrc)} offen offset:{j*1024}" + pol)
    if alg:
        for r in ("v14", "v15"):
            k(f"v_mov_b32 v13, {r}\nv_permlane32_swap_b32 {r}, v13\nv_add_f32 {r}, {r}, v13\nv_mov_b32 v13, {r}\nv_permlane16_swap_b32 {r}, v13\nv_add_f32 {r}, {r}, v13")
        k(f"v_lshlrev_b32 v12, 3, v0")
        k(f"s_lshl_b32 {s(stmp)}, {s(stmp)}, 7\ns_lshl_b32 {s(stmp2)}, {s(scs)}, 14\ns_add_u32 {s(stmp)}, {s(stmp)}, {s(stmp2)}")
        k(f"s_mov_b64 s[56:57], exec\ns_mov_b64 exec, 0xffff\nbuffer_store_dwordx2 v[14:15], v12, {s(rST,4)}, {s(stmp)} offen{pol}\ns_mov_b64 exec, s[56:57]")
    if fused:
        k("s_waitcnt vmcnt(0)\ns_barrier")
        k(f"s_cmp_eq_u32 {s(sw)}, 0\ns_cbranch_scc0 L_pg_g1")
        srd(k, rOM, sWS, WS["CNT"], WS["CNT_SZ"])
        k(f"s_lshr_b32 {s(stmp)}, {s(srb)}, 2\ns_add_u32 {s(stmp)}, {s(stmp)}, 64\ns_lshl_b32 {s(stmp)}, {s(stmp)}, 7\nv_mov_b32 v12, {s(stmp)}\nv_mov_b32 v13, 1")
        k(f"s_mov_b64 s[56:57], exec\ns_mov_b64 exec, 1\nbuffer_atomic_add v13, v12, {s(rOM,4)}, 0 offen sc1\ns_mov_b64 exec, s[56:57]")
        k("L_pg_g1:")
        return
    if stamps:
        k("s_waitcnt vmcnt(0)\ns_memtime s[68:69]\ns_memrealtime s[72:73]\ns_waitcnt lgkmcnt(0)")
        srd(k, 24, sWS, WS["AUX"], WS["AUX_SZ"])
        k(f"s_lshl_b32 {s(stmp)}, s2, 3\ns_add_u32 {s(stmp)}, {s(stmp)}, {s(sw)}\ns_lshl_b32 {s(stmp)}, {s(stmp)}, 6\nv_mov_b32 v9, {s(stmp)}")
        for i, (x, y) in enumerate(((70,60),(64,60),(66,60),(68,60),(72,62))):
            k(f"s_sub_u32 s74, s{x}, s{y}\nv_mov_b32 v10, s74\nbuffer_store_dword v10, v9, s[24:27], 0 offen offset:{4*i}")
    k("L_p3_end:\ns_endpgm")
    return k, (256 if alg else 192, 256, 110592 + 12288)

def gen_ln2():
    k = Kern("ln2_kernel", vgprs=128)
    sWS = 4; rX1, rH2, rMOD = 8, 12, 16
    stile, stmp = 32, 33
    X = 16; G = 88; SB = 96; T = 104
    k("s_cmp_ge_u32 s2, 128\ns_cbranch_scc1 L_ln2_end")
    k(f"s_load_dwordx2 {s(sWS,2)}, s[0:1], {KA['ws']}")
    k("v_lshlrev_b32 v1, 4, v0\nv_lshrrev_b32 v2, 4, v0\nv_lshlrev_b32 v2, 4, v2")
    k(f"s_mul_i32 {s(stile)}, s2, {18*1024}")
    k("s_waitcnt lgkmcnt(0)")
    srd(k, rX1, sWS, WS["X1F"], WS["X1F_SZ"]); srd(k, rH2, sWS, WS["H2F"], WS["H2F_SZ"]); srd(k, rMOD, sWS, WS["MOD"], WS["MOD_SZ"])
    for ks in range(18):
        k(f"s_add_u32 {s(stmp)}, {s(stile)}, {(ks>>2)*4096}\nbuffer_load_dwordx4 {v(X+4*ks,4)}, v1, {s(rX1,4)}, {s(stmp)} offen offset:{(ks&3)*1024}")
    k("v_mov_b32 v3, 0\nv_mov_b32 v4, 0\nv_mov_b32 v5, 0x3f803f80")
    for i in range(72):
        if i % 4 == 0: k(f"s_waitcnt vmcnt({17 - i//4})")
        k(f"v_dot2_f32_bf16 v3, {v(X+i)}, v5, v3\nv_dot2_f32_bf16 v4, {v(X+i)}, {v(X+i)}, v4")
    for r in ("v3", "v4"):
        k(f"v_mov_b32 v6, {r}\nv_permlane32_swap_b32 {r}, v6\nv_add_f32 {r}, {r}, v6\nv_mov_b32 v6, {r}\nv_permlane16_swap_b32 {r}, v6\nv_add_f32 {r}, {r}, v6")
    k("v_mul_f32 v3, 0x3ae38e39, v3\nv_mul_f32 v4, 0x3ae38e39, v4")
    k("v_fma_f32 v4, -v3, v3, v4\nv_max_f32 v4, 0, v4\nv_add_f32 v4, 0x3727c5ac, v4\nv_rsq_f32 v4, v4")
    k("s_nop 0\nv_mul_f32 v3, v3, v4\nv_sub_f32 v3, 0, v3")
    for ks in range(18):
        k(f"s_mov_b32 {s(stmp)}, {(4*576 + 32*ks)*4}")
        k(f"buffer_load_dwordx4 {v(G,4)}, v2, {s(rMOD,4)}, {s(stmp)} offen\nbuffer_load_dwordx4 {v(G+4,4)}, v2, {s(rMOD,4)}, {s(stmp)} offen offset:64")
        k(f"s_mov_b32 {s(stmp)}, {(3*576 + 32*ks)*4}")
        k(f"buffer_load_dwordx4 {v(SB,4)}, v2, {s(rMOD,4)}, {s(stmp)} offen\nbuffer_load_dwordx4 {v(SB+4,4)}, v2, {s(rMOD,4)}, {s(stmp)} offen offset:64")
        for j in range(4):
            x = X + 4*ks + j
            k(f"v_lshlrev_b32 {v(T+2*j)}, 16, {v(x)}\nv_and_b32 {v(T+2*j+1)}, 0xffff0000, {v(x)}")
        for e in range(8): k(f"v_fma_f32 {v(T+e)}, {v(T+e)}, v4, v3")
        k("s_waitcnt vmcnt(0)")
        for e in range(8): k(f"v_fma_f32 {v(T+e)}, {v(T+e)}, {v(G+e)}, {v(SB+e)}")
        for j in range(4): k(f"v_cvt_pk_bf16_f32 {v(X+4*ks+j)}, {v(T+2*j)}, {v(T+2*j+1)}")
        k(f"s_add_u32 {s(stmp)}, {s(stile)}, {ks*1024}\nbuffer_store_dwordx4 {v(X+4*ks,4)}, v1, {s(rH2,4)}, {s(stmp)} offen")
    k("L_ln2_end:\ns_endpgm")
    return k, (128, 64, 0)
```

```python
from asmgen import *
from layout import *
from k_g1 import srd, spread

def gen_att(stamps=False, helper=False, dbg='', order=1, touch_on=False, prefetch=None, alg=True, pol=' sc1', onewait=True, prio=0):
    k = Kern("att_kernel", vgprs=140)
    sWS = 4
    rKV, rQM, rQR, rOM, rOR = 8, 12, 16, 20, 24
    sw, sh, sqt, stmp, stmp2, spass, sloop, snmax, skv = range(32, 41)
    soff = 44
    sstr = 49
    vl16, vK, vKR, vV, vt0, vt1, vom, vor = 1, 2, 3, 4, 5, 6, 7, 8
    QM, NEG, S0, S1, P, O = 12, 20, 36, 52, 68, 76
    KM = [92, 96]; KR = [100, 104]; VF = [108, 116]; QRJ = [124, 128, 132, 136]; QR = 16
    S = [S0, S1]
    k("s_cmp_ge_u32 s2, 256\ns_cbranch_scc1 L_att_end")
    k(f"s_load_dwordx2 {s(sWS,2)}, s[0:1], {KA['ws']}")
    if stamps: k("s_memtime s[60:61]\ns_memrealtime s[62:63]")
    k("v_lshrrev_b32 v9, 6, v0\nv_and_b32 v0, 63, v0")
    k(f"v_readfirstlane_b32 {s(sw)}, v9")
    k(f"v_lshlrev_b32 {v(vl16)}, 4, v0")
    if helper: k(f"s_cmp_eq_u32 {s(sw)}, 8\ns_cbranch_scc1 L_att_helper")
    k(f"s_and_b32 {s(stmp)}, s2, 7\ns_lshl_b32 {s(sh)}, {s(stmp)}, 2\ns_lshr_b32 {s(stmp)}, s2, 3\ns_and_b32 {s(stmp)}, {s(stmp)}, 3\ns_add_u32 {s(sh)}, {s(sh)}, {s(stmp)}")
    k(f"s_lshr_b32 {s(sqt)}, s2, 5\ns_lshl_b32 {s(sqt)}, {s(sqt)}, 3\ns_add_u32 {s(sqt)}, {s(sqt)}, {s(sw)}")
    k(f"s_mul_i32 {s(skv)}, {s(sh)}, {KV_STRIDE}")
    k(f"s_lshl_b32 {s(stmp)}, {s(sw)}, 10")
    k(f"s_mov_b32 {s(soff)}, {s(stmp)}\ns_add_u32 {s(soff+1)}, {s(stmp)}, 8192\ns_add_u32 {s(soff+2)}, {s(stmp)}, 73728\ns_add_u32 {s(soff+3)}, {s(stmp)}, {73728+8192}")
    k(f"s_min_u32 {s(stmp2)}, {s(sw)}, 2\ns_cmp_lt_u32 {s(sw)}, 3\ns_cselect_b32 {s(stmp2)}, {s(stmp2)}, 2\ns_lshl_b32 {s(stmp2)}, {s(stmp2)}, 10\ns_add_u32 {s(soff+4)}, {s(stmp2)}, {73728+16384}\ns_mov_b32 {s(sstr+4)}, 19456")
    k(f"s_sub_u32 {s(stmp2)}, {s(sw)}, 3\ns_lshl_b32 s54, {s(stmp2)}, 10\ns_add_u32 s54, s54, 65536\ns_cmp_lt_u32 {s(stmp2)}, 2\ns_cselect_b32 {s(soff+4)}, s54, {s(soff+4)}\ns_cselect_b32 {s(sstr+4)}, 2048, {s(sstr+4)}")
    strides = [16384, 16384, 19456, 19456, None]
    k("s_waitcnt lgkmcnt(0)")
    srd(k, rKV, sWS, WS["KV"], WS["KV_SZ"])
    def seg_dma(seg):
        for e in range(5):
            k(f"s_mov_b32 m0, {s(soff+e)}\ns_add_u32 {s(stmp2)}, {s(skv)}, {s(soff+e)}")
            k(f"buffer_load_dwordx4 {v(vl16)}, {s(rKV,4)}, {s(stmp2)} offen lds")
            if seg < 3: k(f"s_add_u32 {s(soff+e)}, {s(soff+e)}, " + (str(strides[e]) if strides[e] else s(sstr+4)))
    seg_dma(0)
    srd(k, rQM, sWS, WS["QM"], WS["QM_SZ"]); srd(k, rQR, sWS, WS["QR"], WS["QR_SZ"])
    k(f"v_and_b32 v9, 31, v0\nv_lshlrev_b32 {v(vt0)}, 2, v9\nv_mov_b32 v10, 0x7fffffff\nv_cmp_gt_u32 vcc, 32, v0\nv_cndmask_b32 {v(vt1)}, v10, {v(vt0)}, vcc")
    k(f"s_lshl_b32 {s(stmp)}, {s(sh)}, 6\ns_add_u32 {s(stmp)}, {s(stmp)}, {s(sqt)}")
    k(f"s_lshl_b32 {s(stmp2)}, {s(stmp)}, 10")
    k(f"buffer_load_dwordx4 {v(QM,4)}, {v(vl16)}, {s(rQM,4)}, {s(stmp2)} offen")
    k(f"s_lshl_b32 {s(stmp2)}, {s(stmp)}, 7")
    k(f"buffer_load_dword {v(QR)}, {v(vt1)}, {s(rQR,4)}, {s(stmp2)} offen")
    for seg in range(1, 4): seg_dma(seg)
    k(f"v_mov_b32 {v(vK)}, {v(vl16)}")
    k(f"v_lshlrev_b32 {v(vKR)}, 4, v9\nv_add_u32 {v(vKR)}, 65536, {v(vKR)}")
    k(f"v_lshrrev_b32 v10, 5, v0\nv_mul_u32_u24 v10, 19, v10\nv_add_u32 v11, v9, v10\nv_lshlrev_b32 {v(vV)}, 4, v11\nv_add_u32 {v(vV)}, 73728, {v(vV)}")
    k(f"v_cmp_gt_u32 vcc, 19, v9\nv_mov_b32 v10, 0x30000\nv_cndmask_b32 {v(vV)}, v10, {v(vV)}, vcc")
    k(f"v_mov_b32 {v(vor)}, {v(vt1)}")
    k(f"v_lshlrev_b32 {v(vom)}, 4, v9\nv_lshrrev_b32 v10, 5, v0\nv_lshlrev_b32 v10, 15, v10\nv_add_u32 {v(vom)}, {v(vom)}, v10")
    srd(k, rOM, sWS, WS["OM"], WS["OM_SZ"]); srd(k, rOR, sWS, WS["OR"], WS["OR_SZ"])
    for j in range(4):
        for e in range(4):
            if e != j: k(f"v_mov_b32 {v(QRJ[j]+e)}, 0")
    k(f"s_mov_b32 {s(spass)}, 0\ns_mov_b32 {s(snmax)}, 1")
    k("s_waitcnt vmcnt(15)")
    for j in range(4): k(f"v_mov_b32 {v(QRJ[j]+j)}, {v(QR)}")
    k("s_barrier")
    if stamps: k("s_memtime s[64:65]")
    def mf(d, a_, b_, c_, tag=''):
        if tag and tag in dbg: return
        k(f"v_mfma_f32_32x32x16_bf16 {v(d,16)}, {v(a_,4)}, {v(b_,4)}, {c_}")
    if prio == 1: k(f"s_cmp_ge_u32 {s(sw)}, 4\ns_cbranch_scc0 L_att_noprio\ns_setprio 1\nL_att_noprio:\ns_nop 0")
    if prio == 2: k("s_setprio 1")
    k("L_att_max:")
    k(f"v_mov_b32 {v(vt0)}, 0xff800000\ns_mov_b32 {s(sloop)}, 0")
    k("L_att_maxloop:")
    k(f"ds_read_b128 {v(KR[0],4)}, {v(vKR)}")
    for j in range(4):
        k(f"ds_read_b128 {v(KM[0],4)}, {v(vK)} offset:{j*1024}")
        k("s_waitcnt lgkmcnt(0)")
        mf(S0, KM[0], QM, "0"); mf(S0, KR[0], QRJ[j], v(S0,16))
        for i in range(8): k(f"v_max3_f32 {v(vt0)}, {v(vt0)}, {v(S0+2*i)}, {v(S0+2*i+1)}")
        if j == 0: k(f"s_cmp_eq_u32 {s(spass)}, 0\ns_cbranch_scc1 L_att_maxdone")
    k(f"v_add_u32 {v(vK)}, 4096, {v(vK)}\nv_add_u32 {v(vKR)}, 512, {v(vKR)}")
    k(f"s_add_u32 {s(sloop)}, {s(sloop)}, 1\ns_cmp_lt_u32 {s(sloop)}, {s(snmax)}\ns_cbranch_scc1 L_att_maxloop")
    k("L_att_maxdone:")
    k(f"v_mov_b32 {v(vt1)}, {v(vt0)}")
    k(f"v_permlane32_swap_b32 {v(vt0)}, {v(vt1)}")
    k(f"v_max_f32 {v(vt0)}, {v(vt0)}, {v(vt1)}")
    for i in range(16): k(f"v_sub_f32 {v(NEG+i)}, 0, {v(vt0)}")
    k(f"v_mov_b32 {v(vK)}, {v(vl16)}\nv_and_b32 v9, 31, v0\nv_lshlrev_b32 {v(vKR)}, 4, v9\nv_add_u32 {v(vKR)}, 65536, {v(vKR)}")
    for i in range(16): k(f"v_mov_b32 {v(O+i)}, 0")
    k(f"ds_read_b128 {v(KR[0],4)}, {v(vKR)}\nds_read_b128 {v(KM[0],4)}, {v(vK)}")
    k(f"ds_read_b128 {v(KM[1],4)}, {v(vK)} offset:1024")
    k(f"ds_read_b128 {v(VF[0],4)}, {v(vV)}\nds_read_b128 {v(VF[0]+4,4)}, {v(vV)} offset:608")
    k("s_waitcnt lgkmcnt(3)")
    mf(S0, KM[0], QM, v(NEG,16)); mf(S0, KR[0], QRJ[0], v(S0,16))
    for i in range(8): k(f"v_mov_b32 {v(P+i)}, 0")
    for i in range(8): k(f"v_mov_b32 {v(VF[1]+i)}, 0")
    k(f"s_mov_b32 {s(sloop)}, 0")
    k("L_att_loop:")
    k(f"s_cmp_eq_u32 {s(sloop)}, 1\ns_cbranch_scc0 L_att_nobar")
    k(f"s_cmp_eq_u32 {s(spass)}, 0\ns_cbranch_scc0 L_att_nobar")
    k("s_waitcnt vmcnt(0)\ns_barrier")
    k("L_att_nobar:")
    ex = lambda r: None if 'E' in dbg else k(f"v_exp_f32 {v(r)}, {v(r)}")
    cv = lambda i, sa: k(f"v_cvt_pk_bf16_f32 {v(P+i)}, {v(sa+2*i)}, {v(sa+2*i+1)}")
    for t in range(8):
        sa = S[t % 2]; sb = S[1 - t % 2]; b = t % 2; nb = 1 - b
        g1 = ((t+1) >> 2) & 1; j1 = (t+1) & 3
        rdkr = (t % 4 == 1)
        if onewait:
            k("s_waitcnt lgkmcnt(0)")
            mf(sb, KM[nb], QM, v(NEG,16), 'Q')
            k(f"ds_read_b128 {v(KM[b],4)}, {v(vK)} offset:{(t+2)*1024}")
            ex(sa+0); ex(sa+1)
            k(f"ds_read_b128 {v(VF[nb],4)}, {v(vV)} offset:{(2*t+2)*608}")
            ex(sa+2); ex(sa+3); cv(0, sa); cv(1, sa)
            mf(O, VF[nb]+4, P+4, v(O,16), 'V')
            k(f"ds_read_b128 {v(VF[nb]+4,4)}, {v(vV)} offset:{(2*t+3)*608}")
            ex(sa+4); ex(sa+5)
            if rdkr: k(f"ds_read_b128 {v(KR[((t>>2)+1) & 1],4)}, {v(vKR)} offset:{((t>>2)+1)*512}")
            ex(sa+6); ex(sa+7); cv(2, sa); cv(3, sa)
            mf(sb, KR[g1], QRJ[j1], v(sb,16), 'Q')
            ex(sa+8); ex(sa+9); ex(sa+10); ex(sa+11); cv(4, sa); cv(5, sa)
            mf(O, VF[b], P, v(O,16), 'V')
            ex(sa+12); ex(sa+13); ex(sa+14); ex(sa+15); cv(6, sa); cv(7, sa)
            continue
        k("s_waitcnt lgkmcnt(0)" if 'H' in dbg else "s_waitcnt lgkmcnt(2)")
        mf(sb, KM[nb], QM, v(NEG,16), 'Q')
        if not ('H' in dbg and t % 2): k(f"ds_read_b128 {v(KM[b],4)}, {v(vK)} offset:{(t+2)*1024}")
        ex(sa+0); ex(sa+1); ex(sa+2); ex(sa+3); cv(0, sa); cv(1, sa)
        mf(O, VF[nb]+4, P+4, v(O,16), 'V')
        if rdkr: k(f"ds_read_b128 {v(KR[((t>>2)+1) & 1],4)}, {v(vKR)} offset:{((t>>2)+1)*512}")
        ex(sa+4); ex(sa+5); ex(sa+6); ex(sa+7); cv(2, sa); cv(3, sa)
        mf(sb, KR[g1], QRJ[j1], v(sb,16), 'Q')
        if not ('H' in dbg and t % 2): k(f"ds_read_b128 {v(VF[nb],4)}, {v(vV)} offset:{(2*t+2)*608}")
        ex(sa+8); ex(sa+9); ex(sa+10); ex(sa+11); cv(4, sa); cv(5, sa)
        if 'H' not in dbg: k(f"s_waitcnt lgkmcnt({4 if rdkr else 3})")
        mf(O, VF[b], P, v(O,16), 'V')
        if not ('H' in dbg and t % 2): k(f"ds_read_b128 {v(VF[nb]+4,4)}, {v(vV)} offset:{(2*t+3)*608}")
        ex(sa+12); ex(sa+13); ex(sa+14); ex(sa+15); cv(6, sa); cv(7, sa)
    k(f"v_add_u32 {v(vK)}, 8192, {v(vK)}\nv_add_u32 {v(vKR)}, 1024, {v(vKR)}\nv_add_u32 {v(vV)}, {16*608}, {v(vV)}")
    k(f"s_add_u32 {s(sloop)}, {s(sloop)}, 1\ns_cmp_lt_u32 {s(sloop)}, 8\ns_cbranch_scc1 L_att_loop")
    k("s_waitcnt lgkmcnt(0)")
    mf(O, VF[1]+4, P+4, v(O,16))
    k("s_waitcnt lgkmcnt(0)")
    if stamps: k("s_memtime s[66:67]")
    k(f"v_mov_b32 {v(vt0)}, {v(O+10)}\nv_mov_b32 {v(vt1)}, {v(O+10)}")
    k(f"v_permlane32_swap_b32 {v(vt0)}, {v(vt1)}")
    k(f"s_cmp_eq_u32 {s(spass)}, {1 if dbg else 0}\ns_cbranch_scc0 L_att_fin")
    k(f"v_mov_b32 {v(vt1)}, 0x5f800000")
    k(f"v_cmp_nlt_f32 vcc, {v(vt0)}, {v(vt1)}")
    k("s_nop 1\ns_cmp_eq_u64 vcc, 0\ns_cbranch_scc1 L_att_fin")
    k(f"s_mov_b32 {s(spass)}, 1\ns_mov_b32 {s(snmax)}, 16")
    k(f"v_mov_b32 {v(vK)}, {v(vl16)}\nv_and_b32 v9, 31, v0\nv_lshlrev_b32 {v(vKR)}, 4, v9\nv_add_u32 {v(vKR)}, 65536, {v(vKR)}")
    k(f"v_subrev_u32 {v(vV)}, {8*16*608}, {v(vV)}")
    k("s_branch L_att_max")
    k("L_att_fin:")
    k(f"v_rcp_f32 {v(vt0)}, {v(vt0)}")
    k("s_nop 0")
    for i in range(10): k(f"v_mul_f32 {v(O+i)}, {v(O+i)}, {v(vt0)}")
    for i in range(5): k(f"v_cvt_pk_bf16_f32 {v(P+i)}, {v(O+2*i)}, {v(O+2*i+1)}")
    k(f"s_lshl_b32 {s(stmp)}, {s(sh)}, 6\ns_add_u32 {s(stmp)}, {s(stmp)}, {s(sqt)}")
    k(f"s_lshl_b32 {s(stmp2)}, {s(sh)}, 16\ns_lshl_b32 s54, {s(sqt)}, 9\ns_add_u32 {s(stmp2)}, {s(stmp2)}, s54")
    k(f"buffer_store_dwordx4 {v(P,4)}, {v(vom)}, {s(rOM,4)}, {s(stmp2)} offen")
    k(f"s_lshl_b32 {s(stmp2)}, {s(stmp)}, 7")
    k(f"buffer_store_dword {v(P+4)}, {v(vor)}, {s(rOR,4)}, {s(stmp2)} offen")
    if stamps:
        k("s_waitcnt vmcnt(0)\ns_memtime s[68:69]\ns_memrealtime s[70:71]\ns_waitcnt lgkmcnt(0)")
        srd(k, 24, sWS, WS["AUX"], WS["AUX_SZ"])
        k(f"s_lshl_b32 {s(stmp)}, s2, 3\ns_add_u32 {s(stmp)}, {s(stmp)}, {s(sw)}\ns_lshl_b32 {s(stmp)}, {s(stmp)}, 6\nv_mov_b32 v9, {s(stmp)}")
        for i, (x, y) in enumerate(((64,60),(66,60),(68,60),(70,62))):
            k(f"s_sub_u32 s72, s{x}, s{y}\nv_mov_b32 v10, s72\nbuffer_store_dword v10, v9, s[24:27], 0 offen offset:{4*i}")
        k(f"v_mov_b32 v10, s62\nbuffer_store_dword v10, v9, s[24:27], 0 offen offset:16")
        k(f"v_mov_b32 v10, {s(spass)}\nbuffer_store_dword v10, v9, s[24:27], 0 offen offset:20")
    if helper:
        k("s_branch L_att_end")
        if alg:
            from k_help import gen_helper2
            gen_helper2(k, prefetch, pol)
        else:
            gen_helper(k, touch_on, prefetch)
    k("L_att_end:\ns_endpgm")
    return k, (256, 576 if helper else 512, 163840 if helper else 151552 + 4096)


def gen_helper(k, touch_on=True, prefetch=None):
    HL = 151552
    sWS = 4; sW1, sW3, sW2 = 6, 8, 10
    rW1, rW3, rW2, rD13, rD2, rS = 12, 16, 20, 24, 28, 44
    sb, sm, sr, sks, slg, ssrc, sdst, sstr, stmp, sdstep = range(48, 58)
    rD = 64
    v13, v2s, vsrc, vrd = 2, 3, 4, 5
    R = 12
    k("L_att_helper:")
    k(f"s_load_dwordx2 {s(sW1,2)}, s[0:1], {KA['w1']}\ns_load_dwordx2 {s(sW3,2)}, s[0:1], {KA['w3']}\ns_load_dwordx2 {s(sW2,2)}, s[0:1], {KA['w2']}")
    k("v_lshrrev_b32 v9, 3, v0\nv_and_b32 v10, 7, v0\nv_lshrrev_b32 v11, 1, v10\nv_bfe_u32 v12, v0, 4, 2\nv_xor_b32 v11, v11, v12\nv_lshlrev_b32 v11, 5, v11\nv_and_b32 v10, 1, v10\nv_lshlrev_b32 v10, 4, v10\nv_add_u32 v10, v10, v11")
    k(f"v_mul_u32_u24 {v(v13)}, 9216, v9\nv_add_u32 {v(v13)}, {v(v13)}, v10\nv_mul_u32_u24 {v(v2s)}, 1152, v9\nv_add_u32 {v(v2s)}, {v(v2s)}, v10")
    k("v_lshrrev_b32 v9, 2, v0\nv_lshlrev_b32 v9, 7, v9\nv_and_b32 v10, 3, v0\nv_lshlrev_b32 v10, 3, v10\nv_add_u32 v9, v9, v10\nv_bfe_u32 v10, v0, 3, 2")
    for ct in range(4): k(f"v_xor_b32 v11, {ct}, v10\nv_lshlrev_b32 v11, 5, v11\nv_add_u32 v11, v11, v9\nv_add_u32 {v(vrd+ct)}, {HL}, v11")
    k("s_waitcnt lgkmcnt(0)")
    srd(k, rW1, sW1, 0, 576*9216); srd(k, rW3, sW3, 0, 576*9216); srd(k, rW2, sW2, 0, 4608*1152)
    srd(k, rD13, sWS, WS["W13F"], WS["W13F_SZ"]); srd(k, rD2, sWS, WS["W2F"], WS["W2F_SZ"])
    vm = []
    NBLK = 16
    def decode(n):
        k(f"s_add_u32 {s(sb)}, s2, {256*n}")
        k(f"s_cmp_ge_u32 {s(sb)}, 2592\ns_cbranch_scc1 L_att_h2_{n}")
        k(f"s_cmp_ge_u32 {s(sb)}, 1296\ns_cselect_b32 {s(sm)}, 1, 0\ns_cselect_b32 {s(rS)}, {s(sW3)}, {s(sW1)}\ns_cselect_b32 {s(rS+1)}, {s(sW3+1)}, {s(sW1+1)}")
        k(f"s_mov_b32 {s(rS+2)}, {576*9216}\ns_mov_b32 {s(rS+3)}, 0x20000")
        k(f"s_mul_i32 {s(stmp)}, {s(sm)}, 1296\ns_sub_u32 {s(sr)}, {s(sb)}, {s(stmp)}")
        k(f"s_mul_i32 {s(sks)}, {s(sr)}, 3641\ns_lshr_b32 {s(sks)}, {s(sks)}, 18\ns_mul_i32 {s(stmp)}, {s(sks)}, 72\ns_sub_u32 {s(slg)}, {s(sr)}, {s(stmp)}")
        k(f"s_mul_i32 {s(ssrc)}, {s(sks)}, {32*9216}\ns_lshl_b32 {s(stmp)}, {s(slg)}, 7\ns_add_u32 {s(ssrc)}, {s(ssrc)}, {s(stmp)}\ns_mov_b32 {s(sstr)}, {8*9216}")
        k(f"s_mul_i32 {s(sdst)}, {s(slg)}, {4*36864}\ns_lshl_b32 {s(stmp)}, {s(sks)}, 11\ns_add_u32 {s(sdst)}, {s(sdst)}, {s(stmp)}\ns_lshl_b32 {s(stmp)}, {s(sm)}, 10\ns_add_u32 {s(sdst)}, {s(sdst)}, {s(stmp)}\ns_mov_b32 {s(sdstep)}, 36864")
        k(f"v_mov_b32 {v(vsrc)}, {v(v13)}")
        k(f"s_branch L_att_h3_{n}")
        k(f"L_att_h2_{n}:")
        k(f"s_mov_b32 {s(rS)}, {s(sW2)}\ns_mov_b32 {s(rS+1)}, {s(sW2+1)}\ns_mov_b32 {s(rS+2)}, {4608*1152}\ns_mov_b32 {s(rS+3)}, 0x20000")
        k(f"s_sub_u32 {s(sr)}, {s(sb)}, 2592\ns_mul_i32 {s(sks)}, {s(sr)}, 7282\ns_lshr_b32 {s(sks)}, {s(sks)}, 16\ns_mul_i32 {s(stmp)}, {s(sks)}, 9\ns_sub_u32 {s(slg)}, {s(sr)}, {s(stmp)}")
        k(f"s_mul_i32 {s(ssrc)}, {s(sks)}, {32*1152}\ns_lshl_b32 {s(stmp)}, {s(slg)}, 7\ns_add_u32 {s(ssrc)}, {s(ssrc)}, {s(stmp)}\ns_mov_b32 {s(sstr)}, {8*1152}")
        k(f"s_mul_i32 {s(sdst)}, {s(sks)}, {36*1024}\ns_lshl_b32 {s(stmp)}, {s(slg)}, 12\ns_add_u32 {s(sdst)}, {s(sdst)}, {s(stmp)}\ns_mov_b32 {s(sdstep)}, 1024")
        k(f"s_add_u32 {s(sdst)}, {s(sdst)}, 0x80000000")
        k(f"v_mov_b32 {v(vsrc)}, {v(v2s)}")
        k(f"L_att_h3_{n}:")
        k(f"s_mov_b32 {s(68 + 2*(n % 4))}, {s(sdst)}\ns_mov_b32 {s(69 + 2*(n % 4))}, {s(sdstep)}")
    def dma(n):
        decode(n)
        for i in range(4):
            k(f"s_mov_b32 m0, {HL + (n % 3)*4096 + i*1024}\ns_nop 0\nbuffer_load_dwordx4 {v(vsrc)}, {s(rS,4)}, {s(ssrc)} offen lds")
            vm.append(('D', n))
            if i < 3: k(f"s_add_u32 {s(ssrc)}, {s(ssrc)}, {s(sstr)}")
    def proc(n):
        idx = [i for i, t in enumerate(vm) if t == ('D', n)]
        k(f"s_waitcnt vmcnt({len(vm) - 1 - max(idx)})")
        o = (n % 3)*4096
        for ct in range(4):
            k(f"ds_read_b64_tr_b16 {v(R+4*ct,2)}, {v(vrd+ct)} offset:{o}\nds_read_b64_tr_b16 {v(R+4*ct+2,2)}, {v(vrd+ct)} offset:{o+2048}")
        k("s_waitcnt lgkmcnt(0)")
    def stores(n):
        d, st = 68 + 2*(n % 4), 69 + 2*(n % 4)
        k(f"s_bitcmp1_b32 {s(d)}, 31")
        k(f"s_cselect_b32 {s(rD)}, {s(rD2)}, {s(rD13)}\ns_cselect_b32 {s(rD+1)}, {s(rD2+1)}, {s(rD13+1)}\ns_cselect_b32 {s(rD+2)}, {s(rD2+2)}, {s(rD13+2)}\ns_mov_b32 {s(rD+3)}, 0x20000")
        k(f"s_and_b32 {s(stmp)}, {s(d)}, 0x7fffffff")
        for ct in range(4):
            k(f"buffer_store_dwordx4 {v(R+4*ct,4)}, {v(vl16)}, {s(rD,4)}, {s(stmp)} offen sc1")
            vm.append(('S', n))
            if ct < 3: k(f"s_add_u32 {s(stmp)}, {s(stmp)}, {s(st)}")
    vl16 = 1
    k("s_barrier")
    k("v_and_b32 v9, 31, v0\nv_mul_u32_u24 v10, 9216, v9\nv_mul_u32_u24 v11, 1152, v9")
    def touch(n):
        k(f"s_add_u32 {s(sb)}, s2, {256*n}")
        if n == 15: k(f"s_cmp_lt_u32 s2, 48\ns_cbranch_scc0 L_att_t_done")
        k(f"s_cmp_ge_u32 {s(sb)}, 2592\ns_cbranch_scc1 L_att_t2_{n}")
        k(f"s_cmp_ge_u32 {s(sb)}, 1296\ns_cselect_b32 {s(sm)}, 1, 0\ns_cselect_b32 {s(rS)}, {s(sW3)}, {s(sW1)}\ns_cselect_b32 {s(rS+1)}, {s(sW3+1)}, {s(sW1+1)}")
        k(f"s_mov_b32 {s(rS+2)}, {576*9216}\ns_mov_b32 {s(rS+3)}, 0x20000")
        k(f"s_mul_i32 {s(stmp)}, {s(sm)}, 1296\ns_sub_u32 {s(sr)}, {s(sb)}, {s(stmp)}")
        k(f"s_mul_i32 {s(sks)}, {s(sr)}, 3641\ns_lshr_b32 {s(sks)}, {s(sks)}, 18\ns_mul_i32 {s(stmp)}, {s(sks)}, 72\ns_sub_u32 {s(slg)}, {s(sr)}, {s(stmp)}")
        k(f"s_mul_i32 {s(ssrc)}, {s(sks)}, {32*9216}\ns_lshl_b32 {s(stmp)}, {s(slg)}, 7\ns_add_u32 {s(ssrc)}, {s(ssrc)}, {s(stmp)}")
        k(f"buffer_load_dword v40, v10, {s(rS,4)}, {s(ssrc)} offen")
        k(f"s_branch L_att_t3_{n}")
        k(f"L_att_t2_{n}:")
        k(f"s_sub_u32 {s(sr)}, {s(sb)}, 2592\ns_mul_i32 {s(sks)}, {s(sr)}, 7282\ns_lshr_b32 {s(sks)}, {s(sks)}, 16\ns_mul_i32 {s(stmp)}, {s(sks)}, 9\ns_sub_u32 {s(slg)}, {s(sr)}, {s(stmp)}")
        k(f"s_mul_i32 {s(ssrc)}, {s(sks)}, {32*1152}\ns_lshl_b32 {s(stmp)}, {s(slg)}, 7\ns_add_u32 {s(ssrc)}, {s(ssrc)}, {s(stmp)}")
        k(f"buffer_load_dword v40, v11, {s(rW2,4)}, {s(ssrc)} offen")
        k(f"L_att_t3_{n}:")
    if touch_on:
        for n in range(3, 16): touch(n)
        k("L_att_t_done:")
        k("s_nop 0")
    for n in range(3): dma(n)
    k("s_barrier")
    for n in range(15):
        proc(n)
        if n + 3 < 15: dma(n+3)
        stores(n)
        if n == 2 and prefetch:
            k("s_cmp_lt_u32 s2, 8\ns_cbranch_scc0 L_att_nopf")
            for nm, ns in prefetch: touch_code(k, nm, ns, vt=42)
            k("L_att_nopf:")
            k("s_nop 0")
    k(f"s_cmp_lt_u32 s2, 48\ns_cbranch_scc0 L_att_end")
    k("s_waitcnt vmcnt(0)")
    vm.clear()
    dma(15); proc(15); stores(15)
```

```python
from asmgen import *
from layout import *
from k_g1 import srd, spread

NCRIT = 18

def mod_role(k, sWS):
    sC, sW, sD = 6, 8, 10
    rW, rC, rMOD, rDBG = 12, 16, 20, 24
    stmp, spart, sj = 32, 33, 34
    k("L_k01_mod:")
    k(f"s_sub_u32 {s(sj)}, s2, 192")
    k(f"s_load_dwordx2 {s(sC,2)}, s[0:1], {KA['c']}\ns_load_dwordx2 {s(sW,2)}, s[0:1], {KA['wmod']}\ns_load_dwordx2 {s(sD,2)}, s[0:1], {KA['dbg']}")
    k("v_and_b32 v1, 7, v0\nv_lshrrev_b32 v2, 3, v0")
    k("v_mul_u32_u24 v3, 6912, v2\nv_lshlrev_b32 v4, 4, v1\nv_add_u32 v3, v3, v4")
    k(f"s_lshl_b32 {s(stmp)}, {s(sj)}, 7\nv_add_u32 v3, {s(stmp)}, v3")
    k("v_lshlrev_b32 v4, 1, v2")
    k("s_waitcnt lgkmcnt(0)")
    srd(k, rW, sW, 0, 576*6912); srd(k, rC, sC, 0, 1152); srd(k, rMOD, sWS, WS["MOD"], WS["MOD_SZ"]); srd(k, rDBG, sD, 0, 256)
    C = 8; W = 28
    for i in range(18): k(f"buffer_load_ushort {v(C+i)}, v4, {s(rC,4)}, 0 offen offset:{64*i}")
    for i in range(18): k(f"s_mov_b32 {s(stmp)}, {i*32*6912}\nbuffer_load_dwordx4 {v(W+4*i,4)}, v3, {s(rW,4)}, {s(stmp)} offen")
    k("s_waitcnt vmcnt(18)")
    T = 100
    for i in range(18): k(f"v_lshlrev_b32 {v(C+i)}, 16, {v(C+i)}")
    for b in range(0, 18, 6):
        es = range(b, b+6)
        for i in es: k(f"v_mul_f32 {v(T+i-b)}, 0xbfb8aa3b, {v(C+i)}")
        for i in es: k(f"v_exp_f32 {v(T+i-b)}, {v(T+i-b)}")
        for i in es: k(f"v_add_f32 {v(T+i-b)}, 1.0, {v(T+i-b)}")
        for i in es: k(f"v_rcp_f32 {v(T+i-b)}, {v(T+i-b)}")
        for i in es: k(f"v_mul_f32 {v(C+i)}, {v(C+i)}, {v(T+i-b)}")
        for i in es: k(f"v_cvt_pk_bf16_f32 {v(C+i)}, {v(C+i)}, {v(C+i)}")
        for i in es: k(f"v_lshlrev_b32 {v(C+i)}, 16, {v(C+i)}")
    A = 108
    for e in range(8): k(f"v_mov_b32 {v(A+e)}, 0")
    for i in range(18):
        k(f"s_waitcnt vmcnt({17-i})")
        for j in range(4):
            k(f"v_lshlrev_b32 {v(T+2*(j%2))}, 16, {v(W+4*i+j)}\nv_and_b32 {v(T+2*(j%2)+1)}, 0xffff0000, {v(W+4*i+j)}")
            k(f"v_fmac_f32 {v(A+2*j)}, {v(T+2*(j%2))}, {v(C+i)}\nv_fmac_f32 {v(A+2*j+1)}, {v(T+2*(j%2)+1)}, {v(C+i)}")
    k("v_lshlrev_b32 v5, 8, v2\nv_lshlrev_b32 v6, 5, v1\nv_add_u32 v5, v5, v6")
    k(f"ds_write_b128 v5, {v(A,4)}\nds_write_b128 v5, {v(A+4,4)} offset:16")
    k("s_waitcnt lgkmcnt(0)\ns_barrier")
    k("v_cmp_gt_u32 vcc, 64, v0\ns_and_saveexec_b64 s[40:41], vcc\ns_cbranch_execz L_k01_end")
    k("v_lshlrev_b32 v5, 2, v0")
    for r in range(32): k(f"ds_read_b32 {v(W+r)}, v5 offset:{r*256}")
    k("s_waitcnt lgkmcnt(0)")
    for st in (16, 8, 4, 2, 1):
        for r in range(st): k(f"v_add_f32 {v(W+r)}, {v(W+r)}, {v(W+r+st)}")
    k(f"v_cvt_pk_bf16_f32 {v(W)}, {v(W)}, {v(W)}\nv_lshlrev_b32 {v(W)}, 16, {v(W)}")
    k(f"s_mul_i32 {s(spart)}, {s(sj)}, 7282\ns_lshr_b32 {s(spart)}, {s(spart)}, 16")
    k(f"s_cmp_eq_u32 {s(spart)}, 1\ns_cbranch_scc1 L_k01_madd\ns_cmp_eq_u32 {s(spart)}, 4\ns_cbranch_scc0 L_k01_mst")
    k("L_k01_madd:")
    k(f"v_add_f32 {v(W)}, 1.0, {v(W)}\nv_cvt_pk_bf16_f32 {v(W)}, {v(W)}, {v(W)}\nv_lshlrev_b32 {v(W)}, 16, {v(W)}")
    k("L_k01_mst:")
    k(f"s_lshl_b32 {s(stmp)}, {s(sj)}, 8\nbuffer_store_dword {v(W)}, v5, {s(rMOD,4)}, {s(stmp)} offen sc1")
    k(f"s_cmp_lt_u32 {s(sj)}, {NCRIT}\ns_cbranch_scc0 L_k01_end")
    k("s_waitcnt vmcnt(0)")
    k("v_mov_b32 v6, 0\nv_mov_b32 v7, 1\ns_mov_b64 exec, 1")
    k(f"buffer_atomic_add v7, v6, {s(rDBG,4)}, 0 offen sc1")
    k("s_branch L_k01_end")

def gen_k01(stamps=False, touch=True, prefetch=True, repack=True, vpol='', qpol='', kpol=''):
    k = Kern("k01_kernel", vgprs=256, agprs=84)
    SLOT = 9216; NSL = 16; MODL = NSL*SLOT
    sWS, sX, sW, sD = 4, 6, 8, 10
    rW, rX, rMOD, rQM, rQR, rKV, rDBG = 12, 16, 20, 24, 28, 44, 48
    sw, srb, scs, stmp, stmp2, ssrc, sqt, sh0, skind, sspin = range(32, 42)
    vl16 = 1
    vAb = [2, 3, 4]; vA2b = [5, 6, 7]; vM = 8
    vPk = [1, 9, 10]
    X = 16; ACC = 160; GS = 232; T = 248
    PAT = ACC
    xr = lambda t, ks: X + (t*18+ks)*4
    acc = lambda u, t: ACC + (u*2+t)*4
    k("s_cmp_ge_u32 s2, 254\ns_cbranch_scc1 L_k01_end")
    if prefetch:
        k("s_cmp_ge_u32 s2, 246\ns_cbranch_scc0 L_k01_main")
        k("v_cmp_gt_u32 vcc, 64, v0\ns_and_saveexec_b64 s[40:41], vcc\ns_cbranch_execz L_k01_end")
        touch_code(k, "L_k01_main", 5, end="k01_kernel_codeend")
        touch_code(k, "att_kernel", 3, vt=6)
        k("s_cmp_eq_u32 s2, 246\ns_cbranch_scc0 L_k01_end")
        k(f"s_load_dwordx2 s[4:5], s[0:1], {KA['ws']}\ns_waitcnt lgkmcnt(0)")
        srd(k, 12, 4, WS["CNT"], WS["CNT_SZ"])
        k("v_lshlrev_b32 v20, 7, v0\nv_mov_b32 v21, 0\nbuffer_store_dword v21, v20, s[12:15], 0 offen\ns_mov_b32 s16, 8192\nbuffer_store_dword v21, v20, s[12:15], s16 offen\ns_mov_b32 s16, 16384\nbuffer_store_dword v21, v20, s[12:15], s16 offen")
        k("s_branch L_k01_end")
        k("L_k01_main:")
    else:
        k("s_cmp_ge_u32 s2, 246\ns_cbranch_scc1 L_k01_end")
    k(f"s_load_dwordx2 {s(sWS,2)}, s[0:1], {KA['ws']}")
    k("s_cmp_ge_u32 s2, 192\ns_cbranch_scc1 L_k01_mod")
    k(f"s_load_dwordx2 {s(sX,2)}, s[0:1], {KA['x']}\ns_load_dwordx2 {s(sW,2)}, s[0:1], {KA['wqkv']}\ns_load_dwordx2 {s(sD,2)}, s[0:1], {KA['dbg']}")
    if stamps: k("s_memtime s[60:61]\ns_memrealtime s[62:63]")
    k(f"v_lshrrev_b32 v14, 6, v0\nv_and_b32 v0, 63, v0\nv_readfirstlane_b32 {s(sw)}, v14")
    k(f"v_lshlrev_b32 {v(vl16)}, 4, v0")
    k(f"s_and_b32 {s(stmp)}, s2, 3\ns_lshl_b32 {s(srb)}, {s(stmp)}, 2\ns_lshr_b32 {s(stmp)}, s2, 3\ns_and_b32 {s(stmp2)}, {s(stmp)}, 3\ns_add_u32 {s(srb)}, {s(srb)}, {s(stmp2)}")
    k(f"s_lshr_b32 {s(scs)}, {s(stmp)}, 2\ns_bfe_u32 {s(stmp)}, s2, 0x10002\ns_mul_i32 {s(stmp)}, {s(stmp)}, 6\ns_add_u32 {s(scs)}, {s(scs)}, {s(stmp)}")
    k(f"s_lshl_b32 {s(sqt)}, {s(srb)}, 2\ns_add_u32 {s(sqt)}, {s(sqt)}, {s(sw)}")
    SXW = 36864
    k("s_waitcnt lgkmcnt(0)")
    srd(k, rX, sX, 0, 2048*1152); srd(k, rW, sW, 0, 576*3456)
    if stamps: k("s_memtime s[76:77]")
    vm = []
    def wait(*tags):
        idx = [i for i, t in enumerate(vm) if t in tags]
        k(f"s_waitcnt vmcnt({min(63, len(vm) - 1 - max(idx))})")
    if touch:
        k(f"s_mul_i32 {s(stmp)}, {s(scs)}, 43691\ns_lshr_b32 {s(stmp)}, {s(stmp)}, 18\ns_mul_i32 {s(stmp)}, {s(stmp)}, 6\ns_sub_u32 {s(stmp)}, {s(scs)}, {s(stmp)}")
        k(f"s_lshl_b32 {s(stmp)}, {s(stmp)}, 2\ns_add_u32 {s(stmp)}, {s(stmp)}, {s(sw)}\ns_mul_i32 {s(stmp)}, {s(stmp)}, {48*128}\ns_mul_i32 {s(stmp2)}, {s(srb)}, {128*1152}\ns_add_u32 {s(stmp)}, {s(stmp)}, {s(stmp2)}")
        k(f"v_lshlrev_b32 v12, 7, v0\nbuffer_load_dword a82, v12, {s(rX,4)}, {s(stmp)} offen"); vm.append(('t',))
    if touch: k(f"s_and_b32 {s(stmp)}, {s(srb)}, 3\ns_lshl_b32 {s(stmp)}, {s(stmp)}, 2\ns_add_u32 {s(stmp)}, {s(stmp)}, {s(sw)}\ns_mul_i32 {s(stmp)}, {s(stmp)}, 36")
    if touch: k(f"v_mul_u32_u24 v12, 21846, v0\nv_lshrrev_b32 v12, 16, v12\nv_mul_u32_u24 v13, 3, v12\nv_sub_u32 v13, v0, v13\nv_lshlrev_b32 v13, 7, v13")
    if touch: k(f"v_add_u32 v12, {s(stmp)}, v12\nv_mul_u32_u24 v12, 3456, v12\nv_add_u32 v12, v12, v13\ns_mul_i32 {s(stmp)}, {s(scs)}, 288\ns_and_b32 {s(stmp)}, {s(stmp)}, 0xffffff80")
    if touch: k(f"buffer_load_dword a83, v12, {s(rW,4)}, {s(stmp)} offen"); vm.append(('t',))
    if touch: k(f"v_add_u32 v12, {21*3456}, v12\nbuffer_load_dword a83, v12, {s(rW,4)}, {s(stmp)} offen"); vm.append(('t',))
    k(f"s_mul_i32 {s(sh0)}, {s(sw)}, {SXW}\ns_lshl_b32 {s(ssrc)}, {s(sqt)}, 5\ns_mul_i32 {s(ssrc)}, {s(ssrc)}, 1152")
    for r in range(32):
        i = r & 15; fp = ((i >> 1) & 7) | ((i & 1) << 3)
        k(f"v_xor_b32 {v(10 + (r & 1))}, {fp << 4}, {v(vl16)}\ns_add_u32 m0, {s(sh0)}, {r*1024}\ns_add_u32 {s(stmp)}, {s(ssrc)}, {r*1152}")
        k(f"buffer_load_dwordx4 {v(10 + (r & 1))}, {s(rX,4)}, {s(stmp)} offen lds"); vm.append(('x',))
    k("v_lshrrev_b32 v13, 3, v0\nv_mul_u32_u24 v13, 1152, v13\nv_add_u32 v13, 1024, v13\nv_and_b32 v14, 7, v0\nv_lshrrev_b32 v15, 4, v0")
    for m in range(4):
        k(f"v_add_u32 v11, {4*(m & 1)}, v15\nv_xor_b32 v11, v11, v14\nv_lshlrev_b32 v11, 4, v11\nv_add_u32 v11, v11, v13")
        k(f"s_add_u32 m0, {s(sh0)}, {32768 + m*1024}\ns_add_u32 {s(stmp)}, {s(ssrc)}, {m*8*1152}")
        k(f"buffer_load_dwordx4 v11, {s(rX,4)}, {s(stmp)} offen lds"); vm.append(('x',))
    if stamps: k("s_memtime s[78:79]")
    srd(k, rMOD, sWS, WS["MOD"], WS["MOD_SZ"]); srd(k, rDBG, sD, 0, 256)
    srd(k, rQM, sWS, WS["QM"], WS["QM_SZ"]); srd(k, rQR, sWS, WS["QR"], WS["QR_SZ"]); srd(k, rKV, sWS, WS["KV"], WS["KV_SZ"])
    for i in range(9):
        k(f"v_add_u32 v13, {64*i}, v0\nv_mul_u32_u24 v14, 3641, v13\nv_lshrrev_b32 v14, 16, v14\nv_mul_u32_u24 v15, 18, v14\nv_sub_u32 v13, v13, v15")
        k(f"v_lshrrev_b32 v15, 1, v14\nv_and_b32 v15, 4, v15\nv_xor_b32 v14, v14, v15\nv_mul_u32_u24 v14, 3456, v14\nv_lshlrev_b32 v13, 4, v13\nv_add_u32 {v(PAT+i)}, v13, v14")
    k(f"s_mul_i32 {s(ssrc)}, {s(scs)}, 288\ns_mul_i32 {s(stmp)}, {s(sw)}, {32*3456}\ns_add_u32 {s(ssrc)}, {s(ssrc)}, {s(stmp)}")
    def wdma_ops(g, slotbase, from_acc=False):
        ops = []
        for i in range(9):
            pr = PAT+i; pre = ""
            if from_acc:
                pr = T + (i % 4); pre = f"v_accvgpr_read_b32 {v(pr)}, {a(72+i)}\n"
            ops.append((pre + f"s_add_u32 m0, {s(sh0)}, {slotbase + i*1024}\ns_add_u32 {s(stmp)}, {s(ssrc)}, {g*4*32*3456}\nbuffer_load_dwordx4 {v(pr)}, {s(rW,4)}, {s(stmp)} offen lds", ('w', g)))
        return ops
    def wdma(g, slotbase, from_acc=False):
        for o, tg in wdma_ops(g, slotbase, from_acc): k(o); vm.append(tg)
    def wpop():
        if wq: o, tg = wq.pop(0); k(o); vm.append(tg)
    k("v_and_b32 v13, 15, v0\nv_lshrrev_b32 v14, 1, v13\nv_and_b32 v15, 1, v13\nv_lshlrev_b32 v15, 3, v15\nv_or_b32 v15, v15, v14")
    k(f"v_lshrrev_b32 v12, 4, v0\nv_lshlrev_b32 v11, 10, v13\nv_add_u32 v11, {s(sh0)}, v11")
    RB = GS
    for l0 in range(2):
        for b in range(2):
            k(f"v_add_u32 v9, {8*l0 + 4*b}, v12\nv_xor_b32 v9, v9, v15\nv_lshlrev_b32 v9, 4, v9\nv_add_u32 {v(RB + 2*l0 + b)}, v9, v11")
    k(f"v_lshlrev_b32 v11, 7, v13\nv_add_u32 v11, {s(sh0)}, v11\nv_add_u32 v11, 32768, v11")
    for b in range(2): k(f"v_add_u32 v9, {4*b}, v12\nv_xor_b32 v9, v9, v14\nv_lshlrev_b32 v9, 4, v9\nv_add_u32 {v(RB + 4 + b)}, v9, v11")
    wait(('x',))
    if stamps: k("s_memtime s[80:81]")
    for ks in range(18):
        for t in range(2):
            if ks < 16:
                L2, l0, b = ks >> 2, (ks >> 1) & 1, ks & 1
                k(f"ds_read_b128 {v(xr(t,ks),4)}, {v(RB + 2*l0 + b)} offset:{t*16384 + 256*L2}")
            else:
                k(f"ds_read_b128 {v(xr(t,ks),4)}, {v(RB + 4 + (ks & 1))} offset:{t*2048}")
    k("s_waitcnt lgkmcnt(0)\ns_barrier")
    if stamps: k("s_memtime s[82:83]")
    k(f"s_mul_i32 {s(ssrc)}, {s(scs)}, 288\ns_mul_i32 {s(stmp)}, {s(sw)}, {32*3456}\ns_add_u32 {s(ssrc)}, {s(ssrc)}, {s(stmp)}\ns_mul_i32 {s(sh0)}, {s(sw)}, {SLOT}")
    wq = []
    for g in range(4): wq += wdma_ops(g, g*4*SLOT)
    k("v_lshrrev_b32 v13, 4, v0\nv_lshlrev_b32 v13, 3, v13\nv_bfe_u32 v14, v0, 2, 2\nv_add_u32 v13, v13, v14")
    k("v_lshrrev_b32 v14, 1, v13\nv_and_b32 v14, 4, v14\nv_xor_b32 v15, v13, v14")
    k(f"v_mul_u32_u24 v15, 288, v15\nv_and_b32 v14, 3, v0\nv_lshlrev_b32 v14, 3, v14\nv_add_u32 {v(vAb[0])}, v15, v14")
    k("v_add_u32 v13, 4, v13\nv_lshrrev_b32 v15, 1, v13\nv_and_b32 v15, 4, v15\nv_xor_b32 v15, v13, v15")
    k(f"v_mul_u32_u24 v15, 288, v15\nv_add_u32 {v(vA2b[0])}, v15, v14")
    for i in (1, 2): k(f"v_add_u32 {v(vAb[i])}, {7*i*SLOT}, {v(vAb[0])}\nv_add_u32 {v(vA2b[i])}, {7*i*SLOT}, {v(vA2b[0])}")
    k(f"v_lshrrev_b32 v13, 4, v0\nv_lshlrev_b32 v13, 5, v13\nv_add_u32 {v(vM)}, {MODL}, v13")
    M = GS
    for t in range(2): k(f"v_mov_b32 {v(M+2*t)}, 0\nv_mov_b32 {v(M+2*t+1)}, 0")
    k(f"v_mov_b32 {v(M+4)}, 0x3f803f80")
    for ks in range(18):
        for t in range(2):
            for j in range(4):
                r = xr(t,ks)+j
                k(f"v_dot2_f32_bf16 {v(M+2*t)}, {v(r)}, {v(M+4)}, {v(M+2*t)}\nv_dot2_f32_bf16 {v(M+2*t+1)}, {v(r)}, {v(r)}, {v(M+2*t+1)}")
            wpop()
    if stamps: k("s_memtime s[84:85]")
    while wq: wpop()
    for i in range(9): k(f"v_accvgpr_write_b32 {a(72+i)}, {v(PAT+i)}")
    for i in range(4):
        r = v(M+i)
        k(f"v_mov_b32 v13, {r}\nv_permlane32_swap_b32 {r}, v13\nv_add_f32 {r}, {r}, v13\nv_mov_b32 v13, {r}\nv_permlane16_swap_b32 {r}, v13\nv_add_f32 {r}, {r}, v13")
    for t in range(2):
        m, q = M+2*t, M+2*t+1
        k(f"v_mul_f32 {v(m)}, 0x3ae38e39, {v(m)}\nv_mul_f32 {v(q)}, 0x3ae38e39, {v(q)}")
        k(f"v_fma_f32 {v(q)}, -{v(m)}, {v(m)}, {v(q)}\nv_max_f32 {v(q)}, 0, {v(q)}\nv_add_f32 {v(q)}, 0x3727c5ac, {v(q)}\nv_rsq_f32 {v(q)}, {v(q)}")
        k(f"s_nop 0\nv_mul_f32 {v(m)}, {v(m)}, {v(q)}\nv_sub_f32 {v(m)}, 0, {v(m)}")
    PR = M+6
    for t in range(2):
        k(f"v_mov_b32 {v(PR+4*t)}, {v(M+2*t+1)}\nv_mov_b32 {v(PR+4*t+1)}, {v(M+2*t+1)}\nv_mov_b32 {v(PR+4*t+2)}, {v(M+2*t)}\nv_mov_b32 {v(PR+4*t+3)}, {v(M+2*t)}")
    for t in range(2):
        for ks in range(18):
            for j in range(4):
                r = xr(t,ks)+j; tt = T + 2*j
                k(f"v_lshlrev_b32 {v(tt)}, 16, {v(r)}\nv_and_b32 {v(tt+1)}, 0xffff0000, {v(r)}")
            for j in range(4):
                tt = T + 2*j
                k(f"v_pk_fma_f32 {v(tt,2)}, {v(tt,2)}, {v(PR+4*t,2)}, {v(PR+4*t+2,2)}")
            for j in range(4):
                r = xr(t,ks)+j; tt = T + 2*j
                k(f"v_cvt_pk_f16_f32 {v(r)}, {v(tt)}, {v(tt+1)}")
    k(f"v_add_u32 v11, {s(sh0)}, {v(vAb[0])}\nv_add_u32 v12, {s(sh0)}, {v(vA2b[0])}\nv_add_u32 v9, {s(sh0)}, {v(vl16)}")
    for g in (range(4) if repack else ()):
        wait(('w', g))
        o = (g % 2)*4*SLOT
        if g == 2: k(f"v_add_u32 v11, {8*SLOT}, v11\nv_add_u32 v12, {8*SLOT}, v12\nv_add_u32 v9, {8*SLOT}, v9")
        for u in range(9):
            k(f"ds_read_b64_tr_b16 {v(ACC+16+4*u,2)}, v11 offset:{o + u*32}\nds_read_b64_tr_b16 {v(ACC+16+4*u+2,2)}, v12 offset:{o + u*32}")
        k("s_waitcnt lgkmcnt(0)")
        for u in range(9): k(f"ds_write_b128 v9, {v(ACC+16+4*u,4)} offset:{o + u*1024}")
        k("s_waitcnt lgkmcnt(0)")
    if stamps: k("s_memtime s[64:65]")
    k(f"s_cmp_eq_u32 {s(sw)}, 0\ns_cbranch_scc0 L_k01_polled")
    k(f"v_mov_b32 v13, 0\ns_mov_b32 {s(sspin)}, 0")
    k("L_k01_poll:")
    k(f"buffer_load_dword v14, v13, {s(rDBG,4)}, 0 offen sc1")
    k("s_waitcnt vmcnt(0)")
    k(f"v_readfirstlane_b32 {s(stmp)}, v14")
    k(f"s_cmp_ge_u32 {s(stmp)}, {NCRIT}\ns_cbranch_scc1 L_k01_polled")
    k(f"s_add_u32 {s(sspin)}, {s(sspin)}, 1\ns_cmp_lt_u32 {s(sspin)}, 0x100000\ns_cbranch_scc0 L_k01_polled")
    k("s_sleep 1\ns_branch L_k01_poll")
    k("L_k01_polled:")
    k("s_barrier")
    if stamps: k("s_memtime s[66:67]")
    k(f"s_lshl_b32 {s(stmp)}, {s(sw)}, 10\nv_add_u32 v13, {s(stmp)}, {v(vl16)}")
    k(f"buffer_load_dwordx4 {v(GS,4)}, v13, {s(rMOD,4)}, 0 offen sc1")
    k(f"s_mov_b32 {s(stmp)}, 4096\nbuffer_load_dwordx4 {v(GS+4,4)}, {v(vl16)}, {s(rMOD,4)}, {s(stmp)} offen sc1")
    k(f"v_add_u32 v13, {MODL}, v13\nv_add_u32 v14, {MODL+4096}, {v(vl16)}")
    k("s_waitcnt vmcnt(0)")
    k(f"ds_write_b128 v13, {v(GS,4)}\nds_write_b128 v14, {v(GS+4,4)}")
    k("s_waitcnt lgkmcnt(0)\ns_barrier")
    vm.clear()
    k(f"v_add_u32 v9, {7*SLOT}, {v(vl16)}\nv_add_u32 v10, {14*SLOT}, {v(vl16)}")
    def areads(ks, par):
        ops = []
        slot = ks % NSL; bi = slot // 7; o = (slot % 7)*SLOT
        for u in range(9):
            r = par*36 + u*4
            if ks < 16 and repack:
                ops.append(f"ds_read_b128 {a(r,4)}, {v(vPk[bi])} offset:{o + u*1024}")
            else:
                ops.append(f"ds_read_b64_tr_b16 {a(r,2)}, {v(vAb[bi])} offset:{o + u*32}")
                ops.append(f"ds_read_b64_tr_b16 {a(r+2,2)}, {v(vA2b[bi])} offset:{o + u*32}")
        return ops
    def gsreads(ks):
        o = ks*128
        return [f"ds_read_b128 {v(GS,4)}, {v(vM)} offset:{o}", f"ds_read_b128 {v(GS+4,4)}, {v(vM)} offset:{o+16}",
                f"ds_read_b128 {v(GS+8,4)}, {v(vM)} offset:{2304+o}", f"ds_read_b128 {v(GS+12,4)}, {v(vM)} offset:{2304+o+16}"]
    def modulate(ks):
        ops = []
        for t in range(2):
            for j in range(4):
                r = xr(t,ks)+j; tt = T + 2*(j % 4)
                ops.append(f"v_fma_mix_f32 {v(tt)}, {v(r)}, {v(GS+8+2*j)}, {v(GS+2*j)} op_sel_hi:[1,0,0]")
                ops.append(f"v_fma_mix_f32 {v(tt+1)}, {v(r)}, {v(GS+8+2*j+1)}, {v(GS+2*j+1)} op_sel:[1,0,0] op_sel_hi:[1,0,0]")
            for j in range(4):
                r = xr(t,ks)+j; tt = T + 2*(j % 4)
                ops.append(f"v_cvt_pk_bf16_f32 {v(r)}, {v(tt)}, {v(tt+1)}")
        return ops
    def gemm(swapped, tag):
        for o in gsreads(0) + areads(0, 0): k(o)
        k("s_waitcnt lgkmcnt(15)\ns_waitcnt lgkmcnt(14)" if False else "s_waitcnt lgkmcnt(0)")
        for o in modulate(0): k(o)
        for ks in range(18):
            par = ks % 2
            k("s_waitcnt lgkmcnt(0)")
            if ks == 2:
                k("s_barrier")
                k(f"s_cmp_lt_u32 {s(sw)}, 2\ns_cbranch_scc0 L_k01_nodma_{tag}")
                wdma(4, 0, from_acc=True)
                k(f"L_k01_nodma_{tag}:")
            if ks == 14:
                k("s_waitcnt vmcnt(0)\ns_barrier")
            gs = gsreads(ks+1) if ks < 17 else []
            rd = areads(ks+1, 1-par) if ks < 17 else []
            md = modulate(ks+1) if ks < 17 else []
            nrd = len(rd); early = 3 if nrd <= 9 else 6
            per = 1 if nrd <= 9 else 2
            j = 0
            for u in range(9):
                for t in range(2):
                    c = "0" if ks == 0 else v(acc(u,t),4)
                    A_, B_ = a(par*36+u*4,4), v(xr(t,ks),4)
                    if swapped: A_, B_ = B_, A_
                    k(f"v_mfma_f32_16x16x32_bf16 {v(acc(u,t),4)}, {A_}, {B_}, {c}")
                    if j == 0:
                        for o in gs: k(o)
                    elif j <= 3:
                        for _ in range(per):
                            if rd: k(rd.pop(0))
                    elif j == 4 and md:
                        k(f"s_waitcnt lgkmcnt({early})")
                    if j >= 4:
                        if rd and j >= 5: k(rd.pop(0))
                        n = 2 if j < 16 else len(md)
                        for _ in range(n):
                            if md: k(md.pop(0))
                    j += 1
            assert not rd and not md
    k(f"s_cmp_ge_u32 {s(scs)}, 8\ns_cbranch_scc1 L_k01_v")
    gemm(False, "qk")
    if stamps: k("s_memtime s[68:69]")
    RS = 296
    k("s_barrier")
    k(f"s_cmp_lt_u32 {s(scs)}, 4\ns_cselect_b32 {s(skind)}, 0x3eae1a93, 1.0")
    k(f"s_mul_i32 {s(stmp)}, {s(sw)}, {32*RS}")
    k(f"v_and_b32 v13, 15, v0\nv_mul_u32_u24 v13, {RS}, v13\nv_lshrrev_b32 v15, 4, v0\nv_lshlrev_b32 v15, 3, v15\nv_add_u32 v13, v13, v15\nv_add_u32 v13, {s(stmp)}, v13")
    for u in range(9):
        for t in range(2):
            r = acc(u,t)
            for e in range(4): k(f"v_mul_f32 {v(r+e)}, {s(skind)}, {v(r+e)}")
            k(f"v_cvt_pk_bf16_f32 {v(r)}, {v(r)}, {v(r+1)}\nv_cvt_pk_bf16_f32 {v(r+1)}, {v(r+2)}, {v(r+3)}")
            k(f"ds_write_b64 v13, {v(r,2)} offset:{t*16*RS + u*32}")
    k("s_waitcnt lgkmcnt(0)")
    k(f"v_and_b32 v13, 31, v0\nv_mul_u32_u24 v15, {RS}, v13\nv_lshrrev_b32 v14, 5, v0\nv_lshlrev_b32 v14, 4, v14\nv_add_u32 v15, v15, v14\nv_add_u32 v15, {s(stmp)}, v15")
    k(f"v_mul_u32_u24 v14, {RS}, v13\nv_add_u32 v14, {s(stmp)}, v14")
    R = X
    for h in range(8):
        k(f"ds_read2_b32 {v(R+8*h,2)}, v15 offset0:{9*h} offset1:{9*h+1}\nds_read2_b32 {v(R+8*h+2,2)}, v15 offset0:{9*h+2} offset1:{9*h+3}")
        k(f"ds_read_b32 {v(R+8*h+4)}, v14 offset:{36*h+32}")
    k(f"v_mov_b32 v11, 0x7fffffff\nv_cmp_gt_u32 vcc, 32, v0")
    k(f"s_and_b32 {s(sh0)}, {s(scs)}, 3\ns_lshl_b32 {s(sh0)}, {s(sh0)}, 3")
    k(f"s_cmp_lt_u32 {s(scs)}, 4\ns_cbranch_scc0 L_k01_kout")
    k("v_lshlrev_b32 v10, 2, v13\nv_cndmask_b32 v10, v11, v10, vcc")
    k(f"s_lshl_b32 {s(stmp)}, {s(sh0)}, 6\ns_add_u32 {s(stmp)}, {s(stmp)}, {s(sqt)}")
    k("s_waitcnt lgkmcnt(0)")
    for h in range(8):
        k(f"s_add_u32 {s(stmp2)}, {s(stmp)}, {64*h}\ns_lshl_b32 {s(ssrc)}, {s(stmp2)}, 10\nbuffer_store_dwordx4 {v(R+8*h,4)}, {v(vl16)}, {s(rQM,4)}, {s(ssrc)} offen" + qpol)
        k(f"s_lshl_b32 {s(ssrc)}, {s(stmp2)}, 7\nbuffer_store_dword {v(R+8*h+4)}, v10, {s(rQR,4)}, {s(ssrc)} offen")
    k("s_branch L_k01_fin")
    k("L_k01_kout:")
    k("v_lshlrev_b32 v10, 4, v13\nv_cndmask_b32 v10, v11, v10, vcc")
    k(f"s_mul_i32 {s(stmp)}, {s(sh0)}, {KV_STRIDE}\ns_lshl_b32 {s(stmp2)}, {s(sqt)}, 10\ns_add_u32 {s(stmp2)}, {s(stmp2)}, {s(stmp)}")
    k(f"s_lshl_b32 {s(ssrc)}, {s(srb)}, 9\ns_add_u32 {s(stmp)}, {s(stmp)}, {s(ssrc)}\ns_lshl_b32 {s(ssrc)}, {s(sw)}, 2\ns_add_u32 {s(stmp)}, {s(stmp)}, {s(ssrc)}\ns_add_u32 {s(stmp)}, {s(stmp)}, {KR_OFF}")
    k("s_waitcnt lgkmcnt(0)")
    for h in range(8):
        k(f"buffer_store_dwordx4 {v(R+8*h,4)}, {v(vl16)}, {s(rKV,4)}, {s(stmp2)} offen" + kpol)
        k(f"buffer_store_dword {v(R+8*h+4)}, v10, {s(rKV,4)}, {s(stmp)} offen")
        if h < 7: k(f"s_add_u32 {s(stmp2)}, {s(stmp2)}, {KV_STRIDE}\ns_add_u32 {s(stmp)}, {s(stmp)}, {KV_STRIDE}")
    k("s_branch L_k01_fin")
    k("L_k01_v:")
    gemm(True, "v")
    if stamps: k("s_memtime s[68:69]")
    k(f"s_sub_u32 {s(sh0)}, {s(scs)}, 8\ns_lshl_b32 {s(sh0)}, {s(sh0)}, 3\ns_mul_i32 {s(stmp)}, {s(sh0)}, {KV_STRIDE}")
    k(f"s_mul_i32 {s(stmp2)}, {s(sqt)}, {2*608}\ns_add_u32 {s(stmp)}, {s(stmp)}, {s(stmp2)}\ns_add_u32 {s(stmp)}, {s(stmp)}, {VT_OFF}")
    k("v_lshrrev_b32 v13, 4, v0\nv_and_b32 v14, 1, v13\nv_mul_u32_u24 v14, 304, v14\nv_lshrrev_b32 v13, 1, v13\nv_lshlrev_b32 v13, 3, v13\nv_add_u32 v14, v14, v13")
    k(f"v_and_b32 v15, 15, v0\ns_mov_b32 {s(stmp2)}, {KV_STRIDE}")
    for u in range(9):
        k(f"v_add_u32 v10, {16*u}, v15\nv_mul_u32_u24 v11, 3641, v10\nv_lshrrev_b32 v11, 16, v11\nv_mul_u32_u24 v13, 18, v11\nv_sub_u32 v10, v10, v13")
        k(f"v_mul_lo_u32 v11, v11, {s(stmp2)}\nv_lshlrev_b32 v10, 4, v10\nv_add_u32 v10, v10, v11\nv_add_u32 v10, v10, v14")
        for t in range(2):
            r = acc(u,t)
            k(f"v_cvt_pk_bf16_f32 {v(r)}, {v(r)}, {v(r+1)}\nv_cvt_pk_bf16_f32 {v(r+1)}, {v(r+2)}, {v(r+3)}")
            k(f"buffer_store_dwordx2 {v(r,2)}, v10, {s(rKV,4)}, {s(stmp)} offen offset:{t*608}" + vpol)
    k(f"v_lshrrev_b32 v10, 2, v0\nv_mul_lo_u32 v10, v10, {s(stmp2)}\nv_bfe_u32 v11, v0, 1, 1\nv_mul_u32_u24 v11, 608, v11\nv_add_u32 v10, v10, v11")
    k(f"v_and_b32 v11, 1, v0\nv_mul_u32_u24 v11, 304, v11\nv_add_u32 v10, v10, v11\nv_add_u32 v10, {18*16}, v10")
    k("v_mov_b32 v11, 0x7fffffff\nv_cmp_gt_u32 vcc, 32, v0\nv_cndmask_b32 v10, v11, v10, vcc")
    for e in range(4): k(f"v_mov_b32 {v(X+e)}, 0x3f803f80")
    k(f"buffer_store_dwordx4 {v(X,4)}, v10, {s(rKV,4)}, {s(stmp)} offen")
    k("L_k01_fin:")
    if stamps:
        k("s_waitcnt vmcnt(0)\ns_memtime s[70:71]\ns_memrealtime s[72:73]\ns_waitcnt lgkmcnt(0)")
        srd(k, 24, sWS, WS["AUX"], WS["AUX_SZ"])
        k(f"s_lshl_b32 {s(stmp)}, s2, 3\ns_add_u32 {s(stmp)}, {s(stmp)}, {s(sw)}\ns_lshl_b32 {s(stmp)}, {s(stmp)}, 6\nv_mov_b32 v9, {s(stmp)}")
        for i, (x, y) in enumerate(((64,60),(66,60),(68,60),(70,60),(72,62))):
            k(f"s_sub_u32 s74, s{x}, s{y}\nv_mov_b32 v10, s74\nbuffer_store_dword v10, v9, s[24:27], 0 offen offset:{4*i}")
        k(f"v_mov_b32 v10, s62\nbuffer_store_dword v10, v9, s[24:27], 0 offen offset:20")
        for i, x in enumerate((76, 78, 80, 82, 84)):
            k(f"s_sub_u32 s74, s{x}, s60\nv_mov_b32 v10, s74\nbuffer_store_dword v10, v9, s[24:27], 0 offen offset:{24+4*i}")
    k("s_branch L_k01_end")
    mod_role(k, sWS)
    k("L_k01_end:\ns_endpgm")
    return k, (254, 256, MODL + 5120)
```
